```python
import torch

def _softmax(x, axis=-1):
    return torch.softmax(x, dim=axis)

def _gelu(x):
    return torch.nn.functional.gelu(x, approximate='tanh')

def _silu(x):
    return torch.nn.functional.silu(x)

def _sigmoid(x):
    return torch.sigmoid(x)

def _layernorm(x, axis=-1, eps=1e-05):
    m = x.mean(dim=axis, keepdim=True)
    v = x.var(dim=axis, keepdim=True, unbiased=False)
    return (x - m) / torch.sqrt(v + eps)

def _scatter_add(tgt, idx, src, axis=0):
    return tgt.clone().index_add_(axis, idx, src)

def _segment_sum(src, seg, n):
    out = torch.zeros((n,) + src.shape[1:], dtype=src.dtype)
    return out.index_add_(0, seg, src)

def _pad(x, pw):
    flat = tuple((v for pair in reversed(pw) for v in pair))
    return torch.nn.functional.pad(x, flat)
kernel_name = 'parallel_sum__memory_aug_recurrent_mem_tr__glu_gated_reglu__prompt'

def setup_inputs():

    _w = lambda a: (lambda t: t.to(torch.bfloat16) if t.is_floating_point() else t)(torch.as_tensor(a))

    def _A_setup():
        B, S, Dm = (1, 2048, 512)
        H, Dh = (32, 128)
        M, seg = (8, 32)
        seg = min(seg, S)
        S = S // seg * seg
        return {'x': _w((lambda *s: torch.randn(*s, dtype=torch.bfloat16) * 0.05)(B, S, Dm)), 'mem0': _w((lambda *s: torch.randn(*s, dtype=torch.bfloat16) * 0.2)(B, M, Dm)), 'Wq': _w((lambda *s: torch.randn(*s, dtype=torch.bfloat16) * 1.6)(Dm, H, Dh) * Dm ** (-0.5)), 'Wk': _w((lambda *s: torch.randn(*s, dtype=torch.bfloat16) * 1.6)(Dm, H, Dh) * Dm ** (-0.5)), 'Wv': _w((lambda *s: torch.randn(*s, dtype=torch.bfloat16) * 0.2)(Dm, H, Dh) * Dm ** (-0.5)), 'Wo': _w((lambda *s: torch.randn(*s, dtype=torch.bfloat16) * 0.2)(H, Dh, Dm) * (H * Dh) ** (-0.5)), 'seg_len': seg}
    _A_in = _A_setup()

    def _B_setup():
        B, S, D, F = (1, 2048, 512, 1792)
        return {'x': _w((lambda *s: torch.randn(*s, dtype=torch.bfloat16) * 0.05)(B, S, D)), 'W_gate': _w((lambda *s: torch.randn(*s, dtype=torch.bfloat16) * 0.2)(D, F) * (2.0 / D) ** 0.5), 'W_up': _w((lambda *s: torch.randn(*s, dtype=torch.bfloat16) * 0.2)(D, F) * (2.0 / D) ** 0.5), 'W_down': _w((lambda *s: torch.randn(*s, dtype=torch.bfloat16) * 0.2)(F, D) * (1.0 / F) ** 0.5)}
    _B_in = _B_setup()
    return {'A_x': _A_in['x'], 'A_mem0': _A_in['mem0'], 'A_Wq': _A_in['Wq'], 'A_Wk': _A_in['Wk'], 'A_Wv': _A_in['Wv'], 'A_Wo': _A_in['Wo'], 'A_seg_len': _A_in['seg_len'], 'B_x': _B_in['x'], 'B_W_gate': _B_in['W_gate'], 'B_W_up': _B_in['W_up'], 'B_W_down': _B_in['W_down']}

def reference(A_x, A_mem0, A_Wq, A_Wk, A_Wv, A_Wo, A_seg_len, B_x, B_W_gate, B_W_up, B_W_down):

    def _A_ref(x, mem0, Wq, Wk, Wv, Wo, seg_len):
        B, S, Dm = x.shape
        H, Dh = (Wq.shape[1], Wq.shape[2])
        M = mem0.shape[1]
        scale = Dh ** (-0.5)
        n_seg = S // seg_len
        L = M + seg_len
        idx = torch.arange(L)
        mask = (idx[:, None] < M) | (idx[:, None] >= idx[None, :])
        mem = mem0
        outs = []
        for s in range(n_seg):
            xs = x[:, s * seg_len:(s + 1) * seg_len, :].clone()
            h = torch.concatenate([mem, xs], axis=1)
            q = torch.einsum('btd,dhe->bhte', h, Wq)
            k = torch.einsum('btd,dhe->bhte', h, Wk)
            v = torch.einsum('btd,dhe->bhte', h, Wv)
            scores = torch.einsum('bhqe,bhke->bhqk', q, k) * scale
            scores = torch.where(mask[None, None], scores, -1000000000.0)
            p = _softmax(scores, axis=-1)
            o = torch.einsum('bhqk,bhke->bhqe', p, v)
            o = torch.einsum('bhte,hed->btd', o, Wo)
            mem = o[:, :M, :].clone()
            outs.append(o[:, M:, :])
        return torch.concatenate(outs, axis=1)

    def _B_ref(x, W_gate, W_up, W_down):
        gate = torch.einsum('bsd,df->bsf', x, W_gate)
        up = torch.einsum('bsd,df->bsf', x, W_up)
        gate = gate * (lambda x, dt: x.to(dt))(gate > 0, gate.dtype)
        h = gate * up
        return torch.einsum('bsf,fd->bsd', h, W_down)
    x = A_x
    xn = _layernorm(x, axis=-1)
    return x + _A_ref(xn, A_mem0, A_Wq, A_Wk, A_Wv, A_Wo, A_seg_len) + _B_ref(xn, B_W_gate, B_W_up, B_W_down)
```

```python
import re


def v(i, n=1):
    return "v%d" % i if n == 1 else "v[%d:%d]" % (i, i + n - 1)


def a(i, n=1):
    return "a%d" % i if n == 1 else "a[%d:%d]" % (i, i + n - 1)


def s(i, n=1):
    return "s%d" % i if n == 1 else "s[%d:%d]" % (i, i + n - 1)


def R(i, n=1):
    return v(i, n) if i < 256 else a(i - 256, n)


_REG = re.compile(r"^(-|abs\()?([vas])(?:(\d+)|\[(\d+):(\d+)\])\)?$")


def regs_of(op):
    op = op.strip()
    if op.startswith("|") and op.endswith("|"):
        op = op[1:-1]
    if op.startswith("-|") and op.endswith("|"):
        op = op[2:-1]
    if op in ("vcc", "exec", "m0", "scc"):
        return [op]
    if op in ("vcc_lo", "vcc_hi"):
        return ["vcc"]
    if op in ("exec_lo", "exec_hi"):
        return ["exec"]
    m = _REG.match(op)
    if not m:
        return []
    k = m.group(2)
    if m.group(3) is not None:
        lo = hi = int(m.group(3))
    else:
        lo, hi = int(m.group(4)), int(m.group(5))
    return [(k, i) for i in range(lo, hi + 1)]


TRANS = ("v_exp_f32", "v_log_f32", "v_rcp_f32", "v_rsq_f32", "v_sqrt_f32", "v_sin_f32", "v_cos_f32")


class I:
    __slots__ = ("text", "op", "kind", "rd", "wr", "srcC", "passes", "ab", "wide_store", "dpp", "lds_dma")

    def __init__(self, text):
        self.text = text
        t = text.split(";")[0].strip()
        self.rd, self.wr, self.srcC, self.ab = set(), set(), set(), set()
        self.passes = 0
        self.wide_store = set()
        self.dpp = False
        self.lds_dma = False
        if not t or t.startswith("."):
            self.kind, self.op = "none", ""
            return
        if t.endswith(":"):
            self.kind, self.op = "label", t[:-1]
            return
        parts = t.split(None, 1)
        op = parts[0]
        self.op = op
        rest = parts[1] if len(parts) > 1 else ""
        ops, cur, depth = [], "", 0
        for ch in rest:
            if ch in "[(":
                depth += 1
            if ch in "])":
                depth -= 1
            if ch == "," and depth == 0:
                ops.append(cur.strip())
                cur = ""
            else:
                cur += ch
        if cur.strip():
            ops.append(cur.strip())
        mods = ""
        if ops:
            last = ops[-1].split(None, 1)
            if len(last) > 1:
                ops[-1], mods = last[0], last[1]
        rg = [regs_of(o) for o in ops]
        flat = lambda l: set(x for y in l for x in y)
        if op.startswith("v_mfma") or op.startswith("v_smfmac"):
            self.kind = "mfma"
            self.passes = 8 if "32x32" in op else 4
            self.wr = set(rg[0])
            if op.startswith("v_smfmac"):
                self.srcC = set(rg[0])
                self.ab = flat(rg[1:4])
            else:
                self.srcC = set(rg[3])
                self.ab = flat(rg[1:3])
            self.rd = self.ab | self.srcC
        elif op.startswith("v_"):
            self.kind = "trans" if any(op.startswith(x) for x in TRANS) else "valu"
            self.dpp = "_dpp" in op or "row_" in mods or "quad_perm" in mods
            if op.startswith("v_permlane") and "swap" in op:
                self.wr = flat(rg[0:2])
                self.rd = flat(rg[0:2])
                self.kind = "permlane"
            elif op.startswith("v_cmp"):
                self.wr = set(rg[0])
                self.rd = flat(rg[1:])
                if op.startswith("v_cmpx"):
                    self.wr.add("exec")
            elif op.startswith(("v_add_co", "v_sub_co", "v_addc_co", "v_subb_co")):
                self.wr = flat(rg[0:2])
                self.rd = flat(rg[2:])
            elif op.startswith(("v_readfirstlane", "v_readlane")):
                self.wr = set(rg[0])
                self.rd = flat(rg[1:])
                self.kind = "readlane"
            else:
                self.wr = set(rg[0])
                self.rd = flat(rg[1:])
                if op.startswith(("v_fmac", "v_writelane")) or self.dpp:
                    self.rd |= set(rg[0])
        elif op.startswith("ds_"):
            self.kind = "ds"
            if op.startswith(("ds_read", "ds_bpermute", "ds_permute", "ds_swizzle")):
                self.wr = set(rg[0])
                self.rd = flat(rg[1:])
            else:
                self.rd = flat(rg)
                if "b128" in op or "b96" in op:
                    self.wide_store = flat(rg[1:])
        elif op.startswith(("buffer_", "global_")):
            self.kind = "vmem"
            words = (" " + mods + " ")
            if op in ("buffer_inv", "buffer_wbl2"):
                pass
            elif " lds " in words or "load_lds" in op:
                self.rd = flat(rg) | {"m0"}
                self.lds_dma = True
            elif "load" in op:
                self.wr = set(rg[0])
                self.rd = flat(rg[1:])
            elif "atomic" in op:
                self.rd = flat(rg)
                if " sc0 " in words:
                    self.wr = set(rg[0])
            else:
                self.rd = flat(rg)
                if "x4" in op or "x3" in op:
                    self.wide_store = set(rg[0]) if op.startswith("buffer_") else set(rg[1])
        elif op == "s_nop":
            self.kind = "nop"
            self.passes = int(ops[0], 0)
        elif op.startswith(("s_branch", "s_cbranch", "s_endpgm", "s_setpc")):
            self.kind = "branch"
        elif op.startswith(("s_waitcnt", "s_barrier", "s_sleep", "s_setprio")):
            self.kind = "wait"
        elif op.startswith("s_"):
            self.kind = "salu"
            if op.startswith("s_cmp"):
                self.rd = flat(rg)
                self.wr = {"scc"}
            else:
                self.wr = set(rg[0]) if rg else set()
                self.rd = flat(rg[1:])
        else:
            raise ValueError("unknown instruction: " + text)


VALU_KINDS = ("valu", "trans", "permlane", "readlane")


def need(p, c):
    n = 0
    pv = p.kind in VALU_KINDS
    cv = c.kind in VALU_KINDS
    isv = lambda r: isinstance(r, tuple) and r[0] in "va"
    iss = lambda r: (isinstance(r, tuple) and r[0] == "s") or r == "vcc"
    if pv:
        wv = set(filter(isv, p.wr))
        ws = set(filter(iss, p.wr))
        if c.kind == "mfma" and wv & c.rd:
            n = max(n, 2)
        if c.kind == "permlane" and wv & c.rd:
            n = max(n, 2)
        if c.dpp and wv & c.rd:
            n = max(n, 2)
        if c.kind == "readlane" and wv & c.rd:
            n = max(n, 1)
        if p.kind == "trans" and cv and c.kind != "trans" and wv & c.rd:
            n = max(n, 1)
        if p.kind == "trans" and c.kind in ("ds", "vmem") and wv & c.rd:
            n = max(n, 1)
        if ws and cv and ws & c.rd:
            n = max(n, 4 if c.kind == "readlane" else 2)
        if ws and c.kind == "vmem" and ws & c.rd:
            n = max(n, 5)
        if "exec" in p.wr and (c.kind == "mfma" or c.kind in ("permlane", "readlane") or c.dpp):
            n = max(n, 5)
    if p.kind == "mfma":
        big = {4: 8, 8: 12}[p.passes]
        if c.kind == "mfma":
            if p.wr & c.ab:
                n = max(n, big)
            if p.wr & c.srcC:
                if not (p.wr == c.srcC and p.passes == c.passes):
                    n = max(n, big - 2)
            elif p.wr & c.wr:
                if p.passes != c.passes:
                    n = max(n, big)
        elif cv or c.kind in ("ds", "vmem"):
            if p.wr & (c.rd | c.wr):
                n = max(n, big)
            if cv and p.srcC & c.wr:
                n = max(n, {4: 3, 8: 7}[p.passes])
    if p.wide_store and (p.wide_store & c.wr):
        n = max(n, 2)
    if p.kind == "salu" and "m0" in p.wr and c.lds_dma:
        n = max(n, 1)
    return n


class Asm:
    def __init__(self):
        self.lines = []
        self._uid = 0

    def __call__(self, text):
        for ln in text.split("\n"):
            ln = ln.strip()
            if ln:
                self.lines.append(ln)

    def label(self, name):
        self.lines.append(name + ":")

    def uid(self, p="L"):
        self._uid += 1
        return "%s_%d" % (p, self._uid)

    def extend(self, other):
        self.lines.extend(other.lines if isinstance(other, Asm) else other)


WINDOW = 16


def _dist(seq, c):
    t = 0
    lm_t, lm_p = None, 0
    for k, x in enumerate(seq + [c]):
        if x.kind == "mfma":
            if lm_t is not None:
                t = max(t, lm_t + 4 * lm_p)
            lm_t, lm_p = t, x.passes
        if k == len(seq):
            return t
        t += 4 * (x.passes + 1) if x.kind == "nop" else 4


def fix_hazards(lines, verbose=False):
    out = []
    hist = []
    for ln in lines:
        c = I(ln)
        if c.kind in ("none", "label"):
            out.append(ln)
            continue
        add = 0
        while ";NOHZ" not in ln:
            pad = [I("s_nop %d" % (add - 1))] if add else []
            ok = True
            for k, p in enumerate(hist):
                n = need(p, c)
                if n and _dist(hist[k:] + pad, c) < 4 * (n + 1):
                    ok = False
                    break
            if ok:
                break
            add += 1
        if add:
            out.append("s_nop %d" % (add - 1))
            hist.append(I("s_nop %d" % (add - 1)))
        out.append(ln)
        hist.append(c)
        hist = hist[-14:]
    return out


def estimate(lines, lat_ds_r=64, lat_ds_w=64, lat_vm=250, v2m=14):
    t = 0
    port_free = 0
    pipe_free = 0
    lds_free = 0
    last_valu = -100
    lg = []
    vm = []
    res = []
    for ln in lines:
        c = I(ln)
        if c.kind in ("none", "label"):
            continue
        ti = t
        if c.kind == "mfma":
            ti = max(ti, pipe_free, port_free)
            pipe_free = ti + 4 * c.passes
            blk = 12 if "smfmac" in c.op else (4 if "16x16x16" in c.op else 8)
            port_free = ti + blk
            t = ti + 4
        elif c.kind in VALU_KINDS:
            ti = max(ti, port_free)
            d = 8 if c.kind == "trans" else 4
            port_free = ti + d
            t = ti + d
            last_valu = ti + d - 4
        elif c.kind == "ds":
            ti = max(ti, last_valu + v2m)
            occ = 16 if "b128" in c.op else 8
            if not c.wr:
                ti = max(ti, port_free)
                port_free = ti + (24 if "b128" in c.op else 12)
                occ *= 2
            st = max(ti, lds_free)
            lds_free = st + occ
            lg.append(st + (lat_ds_r if c.wr else (96 if 'b128' in c.op else 72)))
            t = ti + 4
        elif c.kind == "vmem":
            ti = max(ti, last_valu + v2m)
            if "store" in c.op:
                ti = max(ti, port_free)
                port_free = ti + (22 if "x4" in c.op else 11)
            vm.append(ti + lat_vm)
            t = ti + 4
        elif c.kind == "nop":
            t = ti + 4 * (c.passes + 1)
        elif c.op == "s_waitcnt":
            m = re.search(r"lgkmcnt\((\d+)\)", ln)
            if m:
                n = int(m.group(1))
                while len(lg) > n:
                    ti = max(ti, lg.pop(0))
            m = re.search(r"vmcnt\((\d+)\)", ln)
            if m:
                n = int(m.group(1))
                while len(vm) > n:
                    ti = max(ti, vm.pop(0))
            t = ti + 4
        elif c.op == "s_barrier":
            t = ti + 8
        else:
            t = ti + 4
        res.append((ti, ln))
    return res
```

```python
from asmlib import *
from layout import *

WS = "s[4:7]"
SQ, SK, SV, SO, SM0 = 8, 12, 16, 20, 24
sROLE, sWAVE, sXCC, sBUD = 32, 33, 34, 35
sH, sSTEP, sH2L, sH1S0, sH1L, sKX, sVX, sH1S1, sPH = 36, 37, 38, 39, 40, 41, 42, 43, 44
sKM, sVM, sFLAG, _unused, sH2S, sPF, sPROG, sT0, sT1, sBIG = 45, 46, 47, 48, 49, 50, 51, 52, 53, 54
sC1S, sC1L, sH1L2, sNEED = 55, 56, 57, 58
sF1S, sF1L = 48, 59
sCM = 98
sST = 60

MEM = 112
AQ, AK, AV = 144, 152, 160
KXR, VXR = 168, 176
P = [184 + 8 * i for i in range(6)]
T0, T1 = 232, 236
IDX, VH2, SELQ, SELK, HALF, SELR = 240, 241, 242, 244, 246, 248
VL0, VL1, VSX, VH1 = 252, 253, 254, 255
VPFA, VPFD, VPRG = 248, 249, 250

LB = 147456
RA, RB = 0, 8192
WREG = 36864

STREAM_UNITS = [("Q", 0), ("K", 0), ("Q", 1), ("K", 5), ("K", 6), ("K", 7), ("O", 1, 1), ("O", 2, 1), ("O", 3, 1)]
ALL_UNITS = ([("Q", i) for i in range(8)] + [("K", i) for i in range(8)] + [("V", i) for i in range(8)]
             + [("O", u, p) for u in range(4) for p in range(2)])
RES_UNITS = [u for u in ALL_UNITS if u not in STREAM_UNITS]
assert len(RES_UNITS) == 23
RES_REG = {}
for i, u in enumerate(RES_UNITS):
    RES_REG[u] = 256 + 16 * i if i < 16 else 16 * (i - 16)
SLOT_OF = {u: (23 + k) % 9 for k, u in enumerate(STREAM_UNITS)}
STAGE = {
    ("Q", 0, 0): P[0], ("Q", 0, 1): P[1], ("K", 0, 0): P[2], ("K", 0, 1): P[3], ("Q", 1, 0): P[4], ("Q", 1, 1): P[5],
    ("K", 5, 0): P[0], ("K", 6, 0): P[1], ("K", 7, 0): P[2], ("K", 5, 1): P[3], ("K", 6, 1): P[4], ("K", 7, 1): P[5],
    ("O", 1, 1, 0): P[4], ("O", 1, 1, 1): P[5], ("O", 2, 1, 0): MEM, ("O", 2, 1, 1): MEM + 8,
    ("O", 3, 1, 0): MEM + 16, ("O", 3, 1, 1): MEM + 24,
}


def opreg(unit, t):
    if unit in RES_REG:
        return RES_REG[unit] + 8 * t
    return STAGE[unit + (t,)]


def stream_rd(unit, t):
    r = STAGE[unit + (t,)]
    off = SLOT_OF[unit] * 4096 + t * 2048
    return ["ds_read_b128 %s, %s offset:%d" % (v(r, 4), v(VL0), off),
            "ds_read_b128 %s, %s offset:%d" % (v(r + 4, 4), v(VL0), off + 1024)]


def smf(acc, aop, breg):
    return "v_smfmac_f32_16x16x64_bf16 %s, %s, %s, %s" % (v(acc, 4), v(aop, 4), R(breg, 8), v(IDX))


def W(m, t, i):
    acc = {"Q": AQ, "K": AK, "V": AV}[m] + 4 * t
    return smf(acc, MEM + 4 * i, opreg((m, i), t))


ACCO = [AK, AK + 4, P[0] + 4, T1]
OOP = [AV, AV + 4, P[1], P[3] + 4]


def WO(a_, u):
    return smf(ACCO[a_], OOP[u], opreg(("O", u, a_ // 2), a_ % 2))


def mf16(d, a_, b_, c=None):
    return "v_mfma_f32_16x16x16_bf16 %s, %s, %s, %s" % (v(d, 4), v(a_, 2), v(b_, 2), "0" if c is None else v(c, 4))


def mf32(d, a_, b_, c=None):
    return "v_mfma_f32_16x16x32_bf16 %s, %s, %s, %s" % (v(d, 4), v(a_, 4), v(b_, 4), "0" if c is None else v(c, 4))


def cvt(d, x, y):
    return "v_cvt_pk_bf16_f32 %s, %s, %s" % (v(d), v(x), v(y))


def zero(r):
    return "v_mov_b32 %s, 0" % v(r)


class Chain:
    def __init__(self, opts):
        self.o = opts
        self.dbg = opts.get("stamps", False)
        self.tot = self.dbg or opts.get("total", False)

    def prologue(self, A):
        o = self.o
        nt = "nt " if o.get("w_nt", False) else ""
        A("s_mov_b32 %s, %s" % (s(sH), s(sROLE)))
        A("s_load_dwordx4 s[8:11], s[0:1], 8")
        A("s_load_dwordx4 s[12:15], s[0:1], 24")
        A("s_load_dwordx2 s[20:21], s[0:1], 40")
        A("s_waitcnt lgkmcnt(0)")
        A("s_mov_b32 s24, s8\ns_mov_b32 s25, s9\ns_mov_b32 s26, 8192\ns_mov_b32 s27, 0x20000")
        A("s_mov_b32 s8, s10\ns_mov_b32 s9, s11\ns_mov_b32 s10, 0x400000\ns_mov_b32 s11, 0x20000")
        A("s_mov_b32 s16, s14\ns_mov_b32 s17, s15\ns_mov_b32 s18, 0x400000\ns_mov_b32 s19, 0x20000")
        A("s_mov_b32 s14, 0x400000\ns_mov_b32 s15, 0x20000")
        A("s_mov_b32 s22, 0x400000\ns_mov_b32 s23, 0x20000")
        L, N, G = T0, T0 + 1, T0 + 2
        X, Y, Z = T1, T1 + 1, T1 + 2
        DW, DO = AQ, AQ + 1
        TRW0, TRW1, TRO0, TRO1 = AQ + 2, AQ + 3, AQ + 4, AQ + 5
        A("v_and_b32 %s, 63, v0" % v(L))
        A("v_and_b32 %s, 15, %s" % (v(N), v(L)))
        A("v_lshrrev_b32 %s, 4, %s" % (v(G), v(L)))
        A("v_bfe_u32 %s, %s, 2, 1" % (v(X), v(L)))
        A("v_bfe_u32 %s, %s, 3, 1" % (v(Y), v(L)))
        A("v_lshl_add_u32 %s, %s, 5, %s" % (v(X), v(Y), v(X)))
        A("v_lshl_add_u32 %s, %s, 2, %s" % (v(X), v(G), v(X)))
        A("v_lshlrev_b32 %s, 13, %s" % (v(X), v(X)))
        A("v_and_b32 %s, 3, %s" % (v(Y), v(L)))
        A("v_bfe_u32 %s, %s, 4, 1" % (v(Z), v(L)))
        A("v_lshlrev_b32 %s, 1, %s" % (v(Z), v(Z)))
        A("v_xor_b32 %s, %s, %s" % (v(Y), v(Y), v(Z)))
        A("v_lshl_add_u32 %s, %s, 4, %s" % (v(DW), v(Y), v(X)))
        A("v_bfe_u32 %s, %s, 3, 1" % (v(X), v(L)))
        A("v_bfe_u32 %s, %s, 4, 1" % (v(Z), v(L)))
        A("v_lshl_add_u32 %s, %s, 4, %s" % (v(X), v(Z), v(X)))
        A("v_bfe_u32 %s, %s, 5, 1" % (v(Y), v(L)))
        A("v_lshl_add_u32 %s, %s, 2, %s" % (v(X), v(Y), v(X)))
        A("v_lshlrev_b32 %s, 10, %s" % (v(X), v(X)))
        A("v_and_b32 %s, 7, %s" % (v(Y), v(L)))
        A("v_lshlrev_b32 %s, 2, %s" % (v(Z), v(Z)))
        A("v_xor_b32 %s, %s, %s" % (v(Y), v(Y), v(Z)))
        A("v_lshl_add_u32 %s, %s, 4, %s" % (v(DO), v(Y), v(X)))
        A("s_mul_i32 %s, %s, %d" % (s(sT0), s(sWAVE), WREG))
        A("v_lshrrev_b32 %s, 2, %s" % (v(X), v(L)))
        A("v_lshlrev_b32 %s, 6, %s" % (v(X), v(X)))
        A("v_and_b32 %s, 3, %s" % (v(Y), v(L)))
        A("v_lshl_add_u32 %s, %s, 3, %s" % (v(X), v(Y), v(X)))
        A("v_bfe_u32 %s, %s, 4, 1" % (v(Z), v(L)))
        A("v_lshl_add_u32 %s, %s, 5, %s" % (v(X), v(Z), v(X)))
        A("v_add_u32 %s, %s, %s" % (v(TRW0), s(sT0), v(X)))
        A("v_xor_b32 %s, 32, %s" % (v(TRW1), v(TRW0)))
        A("v_bfe_u32 %s, %s, 2, 1" % (v(X), v(L)))
        A("v_lshl_add_u32 %s, %s, 1, %s" % (v(X), v(G), v(X)))
        A("v_lshlrev_b32 %s, 7, %s" % (v(X), v(X)))
        A("v_lshl_add_u32 %s, %s, 6, %s" % (v(X), v(Z), v(X)))
        A("v_lshl_add_u32 %s, %s, 4, %s" % (v(X), v(Y), v(X)))
        A("v_bfe_u32 %s, %s, 3, 1" % (v(Y), v(L)))
        A("v_lshl_add_u32 %s, %s, 3, %s" % (v(X), v(Y), v(X)))
        A("v_add_u32 %s, %s, %s" % (v(TRO0), s(sT0), v(X)))
        A("v_xor_b32 %s, 64, %s" % (v(TRO1), v(TRO0)))
        CB, N4 = T0 + 3, T1 + 3
        A("v_bfe_u32 %s, %s, 1, 1" % (v(CB), v(L)))
        A("v_bfe_u32 %s, %s, 2, 2" % (v(N4), v(L)))
        A("v_lshlrev_b32 %s, 4, %s" % (v(X), v(L)))
        A("v_add_u32 %s, %s, %s" % (v(VL0), s(sT0), v(X)))
        A("v_add_u32 %s, %d, %s" % (v(VL1), LB, v(X)))
        A("v_lshl_add_u32 %s, %s, 10, %s" % (v(VSX), v(CB), v(VL1)))
        A("v_lshlrev_b32 %s, 13, %s" % (v(X), v(N4)))
        A("v_lshl_add_u32 %s, %s, 6, %s" % (v(X), v(G), v(X)))
        A("v_and_b32 %s, 3, %s" % (v(Y), v(L)))
        A("v_lshl_add_u32 %s, %s, 4, %s" % (v(VH1), v(Y), v(X)))
        A("v_mul_u32_u24 %s, 0xAAAA, %s" % (v(IDX), v(CB)))
        A("v_add_u32 %s, 0x4444, %s" % (v(IDX), v(IDX)))
        A("v_mov_b32 %s, 0x3F003F00\nv_mov_b32 %s, 0x3F003F00" % (v(HALF), v(HALF + 1)))
        A("v_and_b32 %s, 1, %s" % (v(X), v(L)))
        A("v_lshlrev_b32 %s, 4, %s" % (v(X), v(X)))
        A("v_cmp_eq_u32 vcc, %s, %s" % (v(G), v(N4)))
        for base, val in ((SELQ, SA_BF), (SELK, SB_BF)):
            A("v_mov_b32 %s, 0x%x" % (v(Y), val))
            A("v_lshlrev_b32 %s, %s, %s" % (v(Y), v(X), v(Y)))
            A("v_cndmask_b32 %s, 0, %s, vcc" % (v(base), v(Y)))
            A("v_mov_b32 %s, %s" % (v(base + 1), v(base)))
        lab = A.uid("c_w0")
        A("v_lshlrev_b32 %s, 7, %s" % (v(VPFA), v(L)))
        A("s_cmp_lg_u32 %s, 0\ns_cbranch_scc1 %s" % (s(sWAVE), lab))
        A("v_mov_b32 %s, 0x3F80" % v(Y))
        A("v_lshlrev_b32 %s, %s, %s" % (v(Y), v(X), v(Y)))
        A("v_bfe_u32 %s, %s, 1, 2" % (v(Z), v(L)))
        for rho in range(4):
            A("v_cmp_eq_u32 vcc, %d, %s" % (rho, v(Z)))
            A("v_cndmask_b32 %s, 0, %s, vcc" % (v(SELR + rho), v(Y)))
        A.label(lab)
        A("v_lshl_add_u32 %s, %s, 6, %s" % (v(X), v(G), v(X)))
        A("v_bfe_u32 %s, %s, 2, 1" % (v(Y), v(L)))
        A("v_lshl_add_u32 %s, %s, 5, %s" % (v(X), v(Y), v(X)))
        A("v_lshl_add_u32 %s, %s, 3, %s" % (v(X), v(CB), v(X)))
        A("v_bfe_u32 %s, %s, 3, 1" % (v(Y), v(L)))
        A("v_lshl_add_u32 %s, %s, 28, %s" % (v(VH2), v(Y), v(X)))
        M0A = AQ + 6
        A("v_and_b32 %s, 1, %s" % (v(X), v(L)))
        A("v_lshl_add_u32 %s, %s, 1, %s" % (v(X), v(N4), v(X)))
        A("v_lshlrev_b32 %s, 10, %s" % (v(X), v(X)))
        A("v_lshl_add_u32 %s, %s, 6, %s" % (v(X), v(CB), v(X)))
        A("v_lshl_add_u32 %s, %s, 4, %s" % (v(M0A), v(G), v(X)))

        sWB, sOB, sLB_ = sKM, sVM, sFLAG
        A("s_lshl_b32 %s, %s, 8" % (s(sWB), s(sH)))
        A("s_lshl_b32 %s, %s, 6" % (s(sT1), s(sWAVE)))
        A("s_add_u32 %s, %s, %s" % (s(sWB), s(sWB), s(sT1)))
        A("s_lshl_b32 %s, %s, 17" % (s(sOB), s(sH)))
        A("s_lshl_b32 %s, %s, 8" % (s(sT1), s(sWAVE)))
        A("s_add_u32 %s, %s, %s" % (s(sOB), s(sOB), s(sT1)))
        A("s_mov_b32 %s, %s" % (s(sLB_), s(sT0)))

        def dma(unit, slot):
            if unit[0] == "O":
                A("s_add_u32 %s, %s, %d\ns_and_b32 %s, %s, 3\ns_lshl_b32 %s, %s, 15" % (
                    s(sT0), s(sWAVE), unit[1], s(sT0), s(sT0), s(sT0), s(sT0)))
                A("s_add_u32 %s, %s, %s" % (s(sT0), s(sT0), s(sOB)))
                srd, vo = s(SO, 4), DO
                offs = [(8 * (r // 2) + 2 * (r % 2)) * 1024 + 128 * unit[2] for r in range(4)]
            else:
                A("s_lshl1_add_u32 %s, %s, %d\ns_and_b32 %s, %s, 7\ns_lshl_b32 %s, %s, 19" % (
                    s(sT0), s(sWAVE), unit[1], s(sT0), s(sT0), s(sT0), s(sT0)))
                A("s_add_u32 %s, %s, %s" % (s(sT0), s(sT0), s(sWB)))
                srd, vo = s({"Q": SQ, "K": SK, "V": SV}[unit[0]], 4), DW
                offs = [(16 * (r // 2) + 2 * (r % 2)) * 8192 for r in range(4)]
            for r in range(4):
                A("s_add_u32 m0, %s, %d" % (s(sLB_), slot * 4096 + r * 1024))
                A("s_add_u32 %s, %s, %d" % (s(sT1), s(sT0), offs[r]))
                A("buffer_load_dwordx4 %s, %s, %s offen %slds" % (v(vo), srd, s(sT1), nt))

        def trread(unit, slot, dst):
            ad = (TRO0, TRO1) if unit[0] == "O" else (TRW0, TRW1)
            for t in range(2):
                for r in range(4):
                    A("ds_read_b64_tr_b16 %s, %s offset:%d" % (R(dst + 8 * t + 2 * r, 2), v(ad[t]), slot * 4096 + r * 1024))

        seq = RES_UNITS + STREAM_UNITS
        self.poison_init(A)
        for i in range(9):
            dma(seq[i], i)
        self.announce(A)
        for i in range(32):
            left = min(8, 31 - i)
            A("s_waitcnt vmcnt(%d)" % (4 * left))
            u = seq[i]
            if i < 23:
                trread(u, i % 9, RES_REG[u])
                A("s_waitcnt lgkmcnt(0)")
                dma(seq[i + 9], i % 9)
            else:
                trread(u, i % 9, P[0])
                A("s_waitcnt lgkmcnt(0)")
                for q in range(4):
                    A("ds_write_b128 %s, %s offset:%d" % (v(VL0), v(P[0] + 4 * q, 4), (i % 9) * 4096 + q * 1024))
                A("s_waitcnt lgkmcnt(0)")
        A("s_mov_b32 %s, 0" % s(sSTEP))
        A("s_lshl_b32 %s, %s, 11" % (s(sT0), s(sWAVE)))
        A("s_add_u32 %s, %s, %d" % (s(sH2L), s(sT0), MEMB - LB))
        A("s_lshl_b32 %s, %s, 8" % (s(sT1), s(sH)))
        A("s_add_u32 %s, %s, %d" % (s(sH2S), s(sT1), MEMB + 8192))
        A("s_lshl_b32 %s, %s, 16" % (s(sC1S), s(sWAVE)))
        A("s_add_u32 %s, %s, %s" % (s(sC1S), s(sC1S), s(sT1)))
        A("s_add_u32 %s, %s, %d" % (s(sC1S), s(sC1S), INB1))
        A("s_lshl_b32 %s, %s, 13" % (s(sT1), s(sH)))
        A("s_add_u32 %s, %s, %d" % (s(sC1L), s(sT1), INB1 - LB))
        A("s_mov_b32 %s, 0" % s(sPH))
        A("s_mov_b32 %s, %s" % (s(sH1L), s(sC1L)))
        A("s_add_u32 %s, %s, 4096" % (s(sH1L2), s(sH1L)))
        A("s_mov_b32 %s, %s" % (s(sH1S0), s(sC1S)))
        A("s_add_u32 %s, %s, 32768" % (s(sH1S1), s(sH1S0)))
        A("s_add_u32 %s, %s, %s" % (s(sKX), s(sT1), s(sT0)))
        A("s_add_u32 %s, %s, %d" % (s(sKX), s(sKX), KX - LB))
        A("s_add_u32 %s, %s, %d" % (s(sVX), s(sKX), VX - KX))
        A("s_cmp_eq_u32 %s, 2" % s(sWAVE))
        A("s_cselect_b32 %s, %d, 0" % (s(sPF), VX - KX))
        A("s_add_u32 %s, %s, %d" % (s(sPF), s(sPF), KX + 262144))
        A("s_add_u32 %s, %s, %s" % (s(sPF), s(sPF), s(sT1)))
        A("s_cmp_eq_u32 %s, 3" % s(sWAVE))
        A("s_cselect_b32 %s, %d, %s" % (s(sPF), MEMB + 2 * 8192 - 262144, s(sPF)))
        A("s_cmp_eq_u32 %s, 2" % s(sWAVE))
        A("s_cselect_b32 %s, %d, 0" % (s(sPROG), 32 * 128))
        A("s_add_u32 %s, %s, %d" % (s(sPROG), s(sPROG), FLAGS + F_P + 32 * 128))
        A("s_lshr_b32 %s, %s, 1\ns_lshl_b32 %s, %s, 8" % (s(sT1), s(sH), s(sT1), s(sT1)))
        A("s_add_u32 %s, %s, %s" % (s(sPROG), s(sPROG), s(sT1)))
        A("s_lshl_b32 %s, %s, 12" % (s(sKM), s(sH)))
        A("s_lshl_b32 %s, %s, 10" % (s(sT1), s(sWAVE)))
        A("s_add_u32 %s, %s, %s" % (s(sKM), s(sKM), s(sT1)))
        A("s_add_u32 %s, %s, %d" % (s(sKM), s(sKM), KM - LB))
        A("s_add_u32 %s, %s, %d" % (s(sVM), s(sKM), VM - KM))
        A("s_lshl_b32 %s, %s, 7" % (s(sFLAG), s(sH)))
        A("s_lshl2_add_u32 %s, %s, %s" % (s(sFLAG), s(sWAVE), s(sFLAG)))
        A("s_add_u32 %s, %s, %d" % (s(sFLAG), s(sFLAG), FLAGS + F_C))
        A("s_mov_b32 %s, 0x5D800000" % s(sBIG))
        A("s_mov_b32 %s, 0xCCCCCCCC\ns_mov_b32 %s, 0xCCCCCCCC" % (s(sCM), s(sCM + 1)))
        A("s_lshl_b32 %s, %s, 8" % (s(sT0), s(sWAVE)))
        A("buffer_load_dwordx4 %s, %s, %s, %s offen" % (v(MEM, 4), v(M0A), s(SM0, 4), s(sT0)))
        A("buffer_load_dwordx4 %s, %s, %s, %s offen offset:128" % (v(MEM + 4, 4), v(M0A), s(SM0, 4), s(sT0)))
        self.wait_dbg(A, DBG_INIT, 1, mask=None)
        self.wait_dbg(A, DBG_CHAIN_READY, 32, mask=0xFFFF)
        A("s_lshr_b32 %s, %s, 16" % (s(sXCC), s(sT1)))
        lab = A.uid("c_m0")
        A("s_cmp_lg_u32 %s, 0\ns_cbranch_scc1 %s" % (s(sH), lab))
        A("s_add_u32 %s, %s, %d" % (s(sT0), s(sH2L), MEMC - MEMB))
        for q in range(2):
            A("buffer_store_dwordx4 %s, %s, %s, %s offen offset:%d sc1" % (v(MEM + 4 * q, 4), v(VL1), WS, s(sT0), 1024 * q))
        A.label(lab)
        lab = A.uid("c_rdy")
        A("s_cmp_eq_u32 %s, 0\ns_cbranch_scc1 %s" % (s(sWAVE), lab))
        lab3 = A.uid("c_rdy3")
        A("s_cmp_lg_u32 %s, 3\ns_cbranch_scc1 %s" % (s(sWAVE), lab3))
        A("s_mov_b32 %s, %d" % (s(sT0), MEMB + 8192))
        A("buffer_load_dword %s, %s, %s, %s offen sc1" % (v(VPFD), v(VPFA), WS, s(sT0)))
        A("s_add_u32 %s, %s, %d" % (s(sT0), s(sC1L), LB))
        A("buffer_load_dword %s, %s, %s, %s offen sc1" % (v(VPFD), v(VPFA), WS, s(sT0)))
        A("s_branch %s" % lab)
        A.label(lab3)
        first = self.o.get("first_need", (3, 2))
        for rep in range(2):
            A("s_add_u32 %s, %s, %d" % (s(sT0), s(sPROG), 128 * rep))
            self.spin_ge(A, sT0, first[rep], VPRG)
        A("buffer_load_dword %s, %s, %s, %s offen sc1" % (v(VPFD), v(VPFA), WS, s(sPF)))
        A.label(lab)
        A("s_add_u32 %s, %s, 262144" % (s(sPF), s(sPF)))
        A("s_barrier")
        for r, sb in ((KXR, sKX), (VXR, sVX)):
            A("buffer_load_dwordx4 %s, %s, %s, %s offen sc1" % (v(r, 4), v(VL1), WS, s(sb)))
            A("buffer_load_dwordx4 %s, %s, %s, %s offen offset:1024 sc1" % (v(r + 4, 4), v(VL1), WS, s(sb)))
        A("s_add_u32 %s, %s, 262144\ns_add_u32 %s, %s, 262144" % (s(sKX), s(sKX), s(sVX), s(sVX)))
        self.window_a(A)
        self.window_b(A)
        A("s_waitcnt vmcnt(0) lgkmcnt(0)")
        if self.dbg:
            self.calib(A, 0)
        if self.tot:
            A("s_memtime s[92:93]\ns_waitcnt lgkmcnt(0)")
        for slow in (0, 1):
            for w in range(4):
                lab = A.uid("c_dsp")
                A("s_cmp_lg_u32 %s, %d\ns_cbranch_scc1 %s" % (s(sWAVE), w, lab))
                if slow == 0:
                    A("s_cmp_lg_u32 %s, 0\ns_cbranch_scc1 %s" % (s(sXCC), lab))
                A("s_branch c_entry_%d_%d" % (slow, w))
                A.label(lab)
        A("s_endpgm")

    def calib(self, A, slot):
        lab = A.uid("c_cal")
        A("s_memrealtime s[60:61]\ns_waitcnt lgkmcnt(0)")
        A.label(lab)
        A("s_memrealtime s[62:63]\ns_memtime s[64:65]\ns_waitcnt lgkmcnt(0)")
        A("s_cmp_eq_u32 s62, s60\ns_cbranch_scc1 %s" % lab)
        A("v_mov_b32 %s, s62\nv_mov_b32 %s, s64" % (v(T0), v(T0 + 1)))
        A("s_lshl_b32 %s, %s, 6\ns_lshl_b32 %s, %s, 4\ns_add_u32 %s, %s, %s\ns_add_u32 %s, %s, %d" % (
            s(sT0), s(sH), s(sT1), s(sWAVE), s(sT0), s(sT0), s(sT1), s(sT0), s(sT0), STAMP + 2048 + 8 * slot))
        A("buffer_store_dwordx2 %s, off, %s, %s" % (v(T0, 2), WS, s(sT0)))
        A("s_waitcnt vmcnt(0)")

    def poison_init(self, A):
        PO = P[5]
        for i in range(4):
            A("v_mov_b32 %s, -1" % v(PO + i))
        A("s_lshl_b32 %s, %s, 13\ns_lshl_b32 %s, %s, 11" % (s(sT0), s(sH), s(sT1), s(sWAVE)))
        A("s_add_u32 %s, %s, %s\ns_add_u32 %s, %s, %d" % (s(sT0), s(sT0), s(sT1), s(sT0), s(sT0), INB1 - LB))
        for q in range(2):
            A("buffer_store_dwordx4 %s, %s, %s, %s offen offset:%d sc1" % (v(PO, 4), v(VL1), WS, s(sT0), 1024 * q))
        X = PO + 4
        A("v_lshlrev_b32 %s, 13, %s" % (v(X), v(T0 + 2)))
        A("v_lshl_add_u32 %s, %s, 4, %s" % (v(X), v(T0 + 1), v(X)))
        A("s_lshl_b32 %s, %s, 8\ns_lshl_b32 %s, %s, 17" % (s(sT0), s(sH), s(sT1), s(sWAVE)))
        A("s_add_u32 %s, %s, %s\ns_add_u32 %s, %s, %d" % (s(sT0), s(sT0), s(sT1), s(sT0), s(sT0), MEMB))
        for q in range(4):
            A("buffer_store_dwordx4 %s, %s, %s, %s offen sc1" % (v(PO, 4), v(X), WS, s(sT0)))
            A("s_add_u32 %s, %s, %d" % (s(sT1), s(sT0), MEMC - MEMB))
            A("buffer_store_dwordx4 %s, %s, %s, %s offen sc1" % (v(PO, 4), v(X), WS, s(sT1)))
            A("s_add_u32 %s, %s, 32768" % (s(sT0), s(sT0)))
        A("s_lshl2_add_u32 %s, %s, %d" % (s(sF1S), s(sH), FL1))
        A("s_and_b32 %s, %s, 7\ns_lshl_b32 %s, %s, 7\ns_add_u32 %s, %s, %d" % (
            s(sF1L), s(sH), s(sF1L), s(sF1L), s(sF1L), s(sF1L), FL1 - LB // 4))
        lab = A.uid("c_f1")
        A("s_cmp_lg_u32 %s, 1\ns_cbranch_scc1 %s" % (s(sWAVE), lab))
        A("v_mov_b32 %s, 0" % v(X + 1))
        A("s_mov_b64 exec, 0xff")
        A("buffer_store_dword %s, %s, %s, %s offen sc1" % (v(X + 1), v(VPFA), WS, s(sF1S)))
        A("s_mov_b64 exec, -1")
        A.label(lab)

    def announce(self, A):
        X = P[5] + 4
        A("s_waitcnt vmcnt(36)")
        A("s_barrier")
        lab = A.uid("c_ann")
        A("s_cmp_lg_u32 %s, 0\ns_cbranch_scc1 %s" % (s(sWAVE), lab))
        A("s_cmp_lg_u32 %s, 0\ns_cselect_b32 %s, 0x10001, 1" % (s(sXCC), s(sT0)))
        A("v_mov_b32 %s, %s" % (v(X), s(sT0)))
        A("s_mov_b64 exec, 1")
        A("buffer_atomic_add %s, off, s[28:31], 0 offset:%d" % (v(X), DBG_CHAIN_READY))
        A("s_mov_b64 exec, -1")
        A.label(lab)

    def budget(self, A, give_up):
        A("s_cmp_eq_u32 %s, 0\ns_cbranch_scc1 %s\ns_sub_u32 %s, %s, 1" % (s(sBUD), give_up, s(sBUD), s(sBUD)))

    def wait_dbg(self, A, off, want, mask):
        top, done = A.uid("c_wd"), A.uid("c_wdd")
        A.label(top)
        A("buffer_load_dword %s, off, s[28:31], 0 offset:%d sc1" % (v(T1), off))
        A("s_waitcnt vmcnt(0)")
        A("v_readfirstlane_b32 %s, %s" % (s(sT1), v(T1)))
        if mask is None:
            A("s_cmp_ge_u32 %s, %d" % (s(sT1), want))
        else:
            A("s_and_b32 %s, %s, 0x%x\ns_cmp_ge_u32 %s, %d" % (s(sT0), s(sT1), mask, s(sT0), want))
        A("s_cbranch_scc1 %s" % done)
        self.budget(A, done)
        A("s_sleep 2\ns_branch %s" % top)
        A.label(done)

    def spin_ge(self, A, soff, want, vreg):
        top, done = A.uid("c_sp"), A.uid("c_spd")
        A.label(top)
        A("buffer_load_dword %s, off, %s, %s sc1" % (v(vreg), WS, s(soff)))
        A("s_waitcnt vmcnt(0)")
        A("v_readfirstlane_b32 %s, %s" % (s(sT1), v(vreg)))
        A("s_cmp_ge_u32 %s, %s" % (s(sT1), want))
        A("s_cbranch_scc1 %s" % done)
        self.budget(A, done)
        A("s_sleep 2\ns_branch %s" % top)
        A.label(done)

    def window_a(self, A):
        for u in STREAM_UNITS[:3]:
            for t in range(2):
                A("\n".join(stream_rd(u, t)))

    def window_b(self, A):
        for k, r in enumerate(range(AQ, AQ + 24, 2)):
            A("v_mov_b64 %s, 0" % v(r, 2))
            if k % 2 == 1:
                A("s_nop 0")

    def stamp(self, A, k):
        pass

    def add_stamps(self, lines):
        import re
        out, k = [], 0
        stride, phase = self.o.get("every", (20, 0))
        at = [re.compile(p) for p in self.o.get("at", [])]
        n = 0
        self.stamp_pos = []
        for l in lines:
            if l == "; DUMP":
                break
            if not at and not l.endswith(":") and not l.startswith(";"):
                if n % stride == phase and k < 15:
                    out.append("s_memtime s[%d:%d]" % (sST + 2 * k, sST + 2 * k + 1))
                    self.stamp_pos.append(n)
                    k += 1
                n += 1
            out.append(l)
            for q, p in enumerate(at):
                if p.search(l):
                    out.append("s_memtime s[%d:%d]" % (sST + 2 * q, sST + 2 * q + 1))
        return out + lines[lines.index("; DUMP") + 1:]

    def loop(self, w, slow):
        A = Asm()
        B = Asm()
        A._uid = B._uid = 1000 * (1 + w + 4 * slow)
        B._uid += 500
        o = self.o
        hs = " sc1" if slow else ""
        ks = lambda i: (2 * w + i) % 8
        tag = "%d_%d" % (slow, w)
        top, entry, fin = "c_top_" + tag, "c_entry_" + tag, "c_fin_" + tag
        E, Lr = MEM, MEM + 4
        CK, FL = T1 + 2, T1 + 3

        ldE = "buffer_load_dwordx4 %s, %s, %s, %s offen sc1" % (v(E, 4), v(VL1), WS, s(sH2L))
        ldL = "buffer_load_dwordx4 %s, %s, %s, %s offen offset:1024 sc1" % (v(Lr, 4), v(VL1), WS, s(sH2L))

        def check(r, bad):
            A("v_max3_u32 %s, %s, %s, %s" % (v(CK), v(r), v(r + 1), v(r + 2)))
            A("v_max_u32 %s, %s, %s" % (v(CK), v(CK), v(r + 3)))
            A("v_cmp_eq_u32 vcc, -1, %s" % v(CK))
            A("s_cbranch_vccnz %s" % bad)

        def nops(n):
            while n > 0:
                A("s_nop %d" % (min(n, 16) - 1))
                n -= 16

        A.label(top)
        A("s_barrier")
        nops(o.get("delay2", 0))
        A(ldE)
        A(ldL)
        A("v_mov_b32 %s, %s" % (v(FL), s(sSTEP)))
        A("s_waitcnt vmcnt(1)")
        A.label("c_chk_" + tag)
        A("v_max3_u32 %s, %s, %s, %s" % (v(CK), v(E), v(E + 1), v(E + 2)))
        A("s_waitcnt vmcnt(0)")
        A("v_max3_u32 %s, %s, %s, %s" % (v(CK), v(CK), v(E + 3), v(Lr)))
        A("v_max3_u32 %s, %s, %s, %s" % (v(CK), v(CK), v(Lr + 1), v(Lr + 2)))
        A("v_max_u32 %s, %s, %s" % (v(CK), v(CK), v(Lr + 3)))
        A("v_cmp_eq_u32 vcc, -1, %s" % v(CK))
        A("s_cbranch_vccnz c_bad_" + tag)
        B.label("c_bad_" + tag)
        B("s_mov_b64 exec, vcc")
        B(ldE)
        B(ldL)
        B("s_mov_b64 exec, -1")
        self.budget(B, "c_okL_" + tag)
        B("s_waitcnt vmcnt(%d)" % o.get("infl2", 6))
        B("v_max3_u32 %s, %s, %s, %s" % (v(CK), v(E), v(E + 1), v(E + 2)))
        B("v_max3_u32 %s, %s, %s, %s" % (v(CK), v(CK), v(E + 3), v(Lr)))
        B("v_max3_u32 %s, %s, %s, %s" % (v(CK), v(CK), v(Lr + 1), v(Lr + 2)))
        B("v_max_u32 %s, %s, %s" % (v(CK), v(CK), v(Lr + 3)))
        B("v_cmp_eq_u32 vcc, -1, %s" % v(CK))
        B("s_cbranch_vccnz c_bad_" + tag)
        B("s_branch c_okL_" + tag)
        B.label(entry)
        B("v_mov_b32 %s, %s" % (v(FL), s(sSTEP)))
        B("s_branch c_okL_" + tag)
        A.label("c_okL_" + tag)
        A("ds_write_b128 %s, %s offset:%d" % (v(VL1), v(E, 4), RA + ks(0) * 1024))
        A("ds_write_b128 %s, %s offset:%d" % (v(VL1), v(Lr, 4), RA + ks(1) * 1024))
        A(W("Q", 0, 0))
        A(W("Q", 1, 0))
        A(W("K", 0, 0))
        A(W("K", 1, 0))
        A(W("Q", 0, 1))
        A(W("Q", 1, 1))
        if not o.get("nokv"):
            A("s_mov_b64 exec, 1")
            A("buffer_store_dword %s, off, %s, %s sc1" % (v(FL), WS, s(sFLAG)))
            A("s_mov_b64 exec, -1")
        A("s_waitcnt lgkmcnt(0)")
        A("s_barrier")
        rd = ["ds_read_b128 %s, %s offset:%d" % (v(MEM + 4 * i, 4), v(VL1), RA + ks(i) * 1024) for i in range(2, 8)]
        A(rd[0])
        A(rd[1])
        A(W("K", 0, 1))
        A(rd[2])
        A(rd[3])
        A(W("K", 1, 1))
        A(rd[4])
        A(rd[5])
        A(W("V", 0, 0))
        A(W("V", 1, 0))
        A(W("V", 0, 1))
        if w in (1, 2):
            A("s_and_b32 %s, %s, 1\ns_xor_b32 %s, %s, 1\ns_lshl_b32 %s, %s, 7" % ((s(sT0), s(sSTEP)) + (s(sT0),) * 4))
        A(W("V", 1, 1))
        gb = []
        for t in range(2):
            for i in (5, 6, 7):
                gb += stream_rd(("K", i), t)
        fill = []
        if w == 3 or (w > 0 and not o.get("nopf")):
            fill += ["buffer_load_dword %s, %s, %s, %s offen sc1" % (v(VPFD), v(VPFA), WS, s(sPF))]
        if w in (1, 2):
            fill += ["s_add_u32 %s, %s, %s" % (s(sT0), s(sT0), s(sPROG)),
                     "buffer_load_dword %s, off, %s, %s sc1" % (v(VPRG), WS, s(sT0))]
        QB, QOP, KOP, VB = T0, T1, P[2], P[2] + 4
        for i in range(2, 8):
            A("s_waitcnt lgkmcnt(5)")
            A(W("Q", 0, i))
            A(gb[i - 2])
            if fill:
                A(fill.pop(0))
        A(W("Q", 1, 2))
        A(gb[6])
        A(W("Q", 1, 3))
        A(gb[7])
        A(cvt(QB, AQ, AQ + 1))
        A(W("Q", 1, 4))
        A(gb[8])
        A(cvt(QB + 1, AQ + 2, AQ + 3))
        A(W("Q", 1, 5))
        A(gb[9])
        A(mf16(AQ, QB, SELQ))
        A(gb[10])
        A(W("Q", 1, 6))
        A(gb[11])
        A(W("Q", 1, 7))
        A(cvt(QOP, AQ, AQ + 1))
        A(W("K", 0, 2))
        A(cvt(QOP + 1, AQ + 2, AQ + 3))
        A(W("K", 0, 3))
        A(cvt(QB + 2, AQ + 4, AQ + 5))
        A(W("K", 0, 4))
        A("s_waitcnt lgkmcnt(0)")
        A(cvt(QB + 3, AQ + 6, AQ + 7))
        A(W("K", 0, 5))
        A(mf16(AQ + 4, QB + 2, SELQ))
        A(W("K", 0, 6))
        A(W("K", 0, 7))
        A(cvt(QOP + 2, AQ + 4, AQ + 5))
        A(W("K", 1, 2))
        A(cvt(QOP + 3, AQ + 6, AQ + 7))
        A(W("K", 1, 3))
        A(cvt(QB, AK, AK + 1))
        A(mf32(AQ, KXR, QOP))
        A(cvt(QB + 1, AK + 2, AK + 3))
        A(mf32(AQ + 4, KXR + 4, QOP))
        A(W("K", 1, 4))
        A("buffer_load_dwordx4 %s, %s, %s, %s offen sc1" % (v(KXR, 4), v(VL1), WS, s(sKX)))
        A("buffer_load_dwordx4 %s, %s, %s, %s offen offset:1024 sc1" % (v(KXR + 4, 4), v(VL1), WS, s(sKX)))
        sel = ["v_cndmask_b32 %s, %s, %s, %s" % (v(AQ + r), v(AQ + r), v(AQ + 4 + r), s(sCM, 2)) for r in range(4)]
        A(mf16(AK, QB, SELK))
        A(sel[0])
        A(sel[1])
        A(sel[2])
        A(W("K", 1, 5))
        A(sel[3])
        A(W("K", 1, 6))
        A("ds_write_b128 %s, %s offset:%d" % (v(VL1), v(AQ, 4), RB + w * 1024))
        A(W("K", 1, 7))
        A(cvt(KOP, AK, AK + 1))
        A(W("V", 0, 2))
        A(cvt(KOP + 1, AK + 2, AK + 3))
        A(cvt(QB + 2, AK + 4, AK + 5))
        A(cvt(QB + 3, AK + 6, AK + 7))
        A(W("V", 1, 2))
        A(mf16(AK + 4, QB + 2, SELK))
        A("s_waitcnt lgkmcnt(0)")
        A("s_barrier")
        X = [P[0], P[0] + 4, P[1], P[1] + 4]
        xr = ["ds_read_b128 %s, %s offset:%d" % (v(X[q], 4), v(VL1), RB + q * 1024) for q in range(4)]
        A(xr[0])
        A(xr[1])
        A(W("V", 0, 3))
        A(xr[2])
        A(xr[3])
        A(cvt(KOP + 2, AK + 4, AK + 5))
        A(cvt(KOP + 3, AK + 6, AK + 7))
        A(W("V", 1, 3))
        A(mf32(AK, KOP, QOP))
        gc1 = stream_rd(("O", 1, 1), 0) + stream_rd(("O", 1, 1), 1)
        A(W("V", 0, 4))
        A(W("V", 1, 4))
        A("ds_write_b64 %s, %s offset:%d" % (v(VL1), v(AK, 2), RA + (w // 2) * 1024 + (w % 2) * 8))
        add = lambda d, x, y: "v_add_f32 %s, %s, %s" % (v(d), v(x), v(y))
        A("s_waitcnt lgkmcnt(1)")
        for r in range(4):
            A(add(X[0] + r, X[0] + r, X[1] + r))
        A(W("V", 0, 5))
        for r in range(4):
            A(add(X[2] + r, X[2] + r, X[3] + r))
        for r in range(4):
            A(add(X[0] + r, X[0] + r, X[2] + r))
        A(W("V", 1, 5))
        A("s_waitcnt lgkmcnt(0)")
        A("s_barrier")
        M = P[3]
        EX, EB, AL, EM = X[1], X[2], X[3], T0
        A("ds_read_b128 %s, %s offset:%d" % (v(M, 4), v(VSX), RA))
        A(gc1[0])
        A(gc1[1])
        A("v_exp_f32 %s, %s" % (v(EX), v(X[0])))
        A("v_exp_f32 %s, %s" % (v(EX + 1), v(X[0] + 1)))
        A(W("V", 0, 6))
        A(gc1[2])
        A(gc1[3])
        A("v_exp_f32 %s, %s" % (v(EX + 2), v(X[0] + 2)))
        A("v_exp_f32 %s, %s" % (v(EX + 3), v(X[0] + 3)))
        A(W("V", 0, 7))
        A(cvt(EX, EX, EX + 1))
        A(cvt(EX + 1, EX + 2, EX + 3))
        A(W("V", 1, 6))
        A("s_waitcnt lgkmcnt(4)")
        A(add(M, M, M + 2))
        A(add(M + 1, M + 1, M + 3))
        A(W("V", 1, 7))
        gc2 = stream_rd(("O", 2, 1), 0) + stream_rd(("O", 2, 1), 1) + stream_rd(("O", 3, 1), 0) + stream_rd(("O", 3, 1), 1)
        A(gc2[0])
        A(gc2[1])
        for r in range(2):
            A("v_add_f32_dpp %s, %s, %s quad_perm:[2,3,0,1] row_mask:0xf bank_mask:0xf" % (v(M + r), v(M + r), v(M + r)))
        self.softmax_tail(A, X, M, gc2[2:], first=True)
        if not o.get("nokv"):
            A("s_cmp_eq_u32 %s, %d\ns_cbranch_scc1 %s" % (s(sSTEP), NSEG - 1, fin))
        RR, TT = T0 + 2, T0 + 3
        self.normalize(A, w, AL)
        A("v_max_f32 %s, %s, %s" % (v(TT), v(AL), v(RR)))
        A("v_cmp_ngt_f32 vcc, %s, %s" % (s(sBIG), v(TT)))
        A("s_cbranch_vccnz c_slow_" + tag)
        A.label("c_back_" + tag)
        self.fallback(B, w, tag, X, M)
        A(WO(0, 0))
        A("buffer_load_dwordx4 %s, %s, %s, %s offen sc1" % (v(VXR, 4), v(VL1), WS, s(sVX)))
        A("buffer_load_dwordx4 %s, %s, %s, %s offen offset:1024 sc1" % (v(VXR + 4, 4), v(VL1), WS, s(sVX)))
        for r in range(4):
            A(zero(ACCO[2] + r))
        A(WO(1, 0))
        for r in range(4):
            A(zero(ACCO[3] + r))
        A(WO(2, 0))
        A("s_waitcnt lgkmcnt(0)")
        A("s_barrier")
        for u in range(1, 4):
            A("ds_read_b128 %s, %s offset:%d" % (v(OOP[u], 4), v(VL1), RB + ((w + u) % 4) * 1024))
        A(WO(3, 0))
        if w == 0:
            A("v_lshlrev_b32 %s, 3, %s" % (v(T0 + 1), v(VL0)))
        kmst = "buffer_store_dwordx4 %s, %s, %s, %s offen sc1" % (v(KOP, 4), v(VL1), WS, s(sKM))
        vmst = "buffer_store_dwordx4 %s, %s, %s, %s offen sc1" % (v(VB, 4), v(VL1), WS, s(sVM))
        if not o.get("nokv"):
            A(kmst)
            A(vmst)
        sal = ["s_add_u32 %s, %s, 1" % (s(sSTEP), s(sSTEP)), "s_add_u32 %s, %s, 8192" % (s(sH2L), s(sH2L))]
        sal += ["s_add_u32 %s, %s, 262144" % (s(r), s(r)) for r in (sKX, sVX)]
        sal += ["s_add_u32 %s, %s, %d" % (s(sPF), s(sPF), 8192 if w == 3 else 262144)]
        sal += ["s_add_u32 %s, %s, 131072" % (s(r), s(r)) for r in (sKM, sVM)]
        for u in range(1, 4):
            A("s_waitcnt lgkmcnt(%d)" % (3 - u))
            A(WO(0, u))
            A(sal.pop(0))
            A(sal.pop(0))
            if u == 1 and w == 0:
                A("v_mov_b32 %s, %s" % (v(T0 + 2), s(sSTEP)))
            A(WO(1, u))
        A(sal.pop(0))
        tagd = lambda r: "v_bfi_b32 %s, 1, %s, %s" % (v(r), s(sPH), v(r))
        A(WO(2, 1))
        A(cvt(AQ, ACCO[0], ACCO[0] + 1))
        A(cvt(AQ + 1, ACCO[0] + 2, ACCO[0] + 3))
        A(WO(3, 1))
        A(cvt(AQ + 2, ACCO[1], ACCO[1] + 1))
        A(cvt(AQ + 3, ACCO[1] + 2, ACCO[1] + 3))
        A(WO(2, 2))
        A(tagd(AQ))
        A(tagd(AQ + 1))
        A(WO(2, 3))
        A(tagd(AQ + 2))
        A(tagd(AQ + 3))
        A(WO(3, 2))
        A(WO(3, 3))
        A("buffer_store_dwordx4 %s, %s, %s, %s offen%s" % (v(AQ, 4), v(VH1), WS, s(sH1S0), hs))
        A(cvt(AQ + 4, ACCO[2], ACCO[2] + 1))
        A(cvt(AQ + 5, ACCO[2] + 2, ACCO[2] + 3))
        A(tagd(AQ + 4))
        A(tagd(AQ + 5))
        A(cvt(AQ + 6, ACCO[3], ACCO[3] + 1))
        A(cvt(AQ + 7, ACCO[3] + 2, ACCO[3] + 3))
        A(tagd(AQ + 6))
        A(tagd(AQ + 7))
        A("buffer_store_dwordx4 %s, %s, %s, %s offen%s" % (v(AQ + 4, 4), v(VH1), WS, s(sH1S1), hs))
        if self.dbg and o.get("lastonly"):
            A("; DUMP0")
            A("; DUMP1")
        elif self.dbg:
            A("; DUMP0")
            A("s_waitcnt lgkmcnt(0)")
            self.dump_stamps(A, w)
            A("; DUMP1")
        if w != 0:
            if o.get("nokv"):
                A("s_cmp_eq_u32 %s, %d\ns_cbranch_scc1 %s" % (s(sSTEP), NSEG - 1, fin))
            self.window_a(A)
            self.window_b(A)
        if w == 0:
            AR = T1
            TG, FA, FD = T0, T0 + 1, T0 + 2
            hl = ["buffer_load_dwordx4 %s, %s, %s, %s offen offset:%d sc1" % (
                v(MEM + 4 * it, 4), v(VL1), WS, s(sH1L if it < 4 else sH1L2), (it % 4) * 1024) for it in range(8)]
            post = ["s_mov_b64 exec, 0xff",
                    "buffer_store_dword %s, %s, %s, %s offen%s" % (v(FD), v(FA), WS, s(sF1S), hs),
                    "s_mov_b64 exec, -1"]
            kpost = o.get("post", 0)
            wa = Asm()
            self.window_a(wa)
            npre = o.get("pre1", 0)
            A("\n".join(wa.lines[:npre]))
            nops(o.get("delay1", 0))
            A.label("c_pfd_" + tag)
            for it in range(8):
                A(hl[it])
            A("\n".join(wa.lines[npre:]))
            self.window_b(A)
            A("s_cmp_lg_u32 %s, 0\ns_cbranch_scc1 c_redl1_%s" % (s(sPH), tag))
            pub = [cvt(AR, AR, AR + 1), cvt(AR + 1, AR + 2, AR + 3),
                   "buffer_store_dwordx2 %s, %s, %s, %s offen%s" % (v(AR, 2), v(VH2), WS, s(sH2S), hs)]
            for ph in (0, 1):
                Z = A if ph == 0 else B
                fn = "0xfe" if ph == 0 else "0x80"
                Z.label("c_redl%d_%s" % (ph, tag))
                for it in range(8):
                    r = MEM + 4 * it
                    Z("s_waitcnt vmcnt(%d)" % (7 - it + (1 if it > kpost else 0)))
                    Z(mf32(AR, r, SELR, None if it == 0 else AR))
                    if it == kpost:
                        Z("\n".join(post))
                    Z("v_bitop3_b32 %s, %s, %s, %s bitop3:%s" % (v(TG), v(r + 2) if it == 0 else v(TG), v(r), v(r + 1), fn))
                    Z("v_bitop3_b32 %s, %s, %s, %s bitop3:%s" % (v(TG), v(TG), v(r + 2), v(r + 3), fn))
                Z("v_and_b32 %s, 1, %s" % (v(TG), v(TG)))
                Z("v_cmp_ne_u32 vcc, %d, %s" % (ph, v(TG)))
                if not o.get("nochk1"):
                    Z("s_cbranch_vccnz c_badR%d_%s" % (ph, tag))
                Z.label("c_okR%d_%s" % (ph, tag))
                Z("\n".join(pub))
                if not o.get("nomemc"):
                    Z("s_add_u32 %s, %s, %d" % (s(sT0), s(sH2S), MEMC - MEMB))
                    Z("buffer_store_dwordx2 %s, %s, %s, %s offen sc1" % (v(AR, 2), v(VH2), WS, s(sT0)))
                Z("s_add_u32 %s, %s, 8192" % (s(sH2S), s(sH2S)))
                if ph == 1:
                    Z("s_branch c_pub_" + tag)
            A.label("c_pub_" + tag)
            if o.get("nokv"):
                A("s_cmp_eq_u32 %s, %d\ns_cbranch_scc1 %s" % (s(sSTEP), NSEG - 1, fin))
            for ph in (0, 1):
                B.label("c_badR%d_%s" % (ph, tag))
                if self.tot:
                    B("s_add_u32 s94, s94, 1")
                B("s_nop 3")
                self.budget(B, "c_okR%d_%s" % (ph, tag))
                B("s_mov_b64 exec, vcc")
                for it in range(8):
                    B(hl[it])
                B("s_mov_b64 exec, -1")
                B("s_branch c_redl%d_%s" % (ph, tag))
        elif w in (1, 2):
            lab = "c_prg_" + tag
            A("s_add_u32 %s, %s, 3" % (s(sNEED), s(sSTEP)))
            A("s_cmp_gt_u32 %s, %d\ns_cbranch_scc1 %s" % (s(sNEED), NSEG, lab))
            A("s_waitcnt vmcnt(%d)" % (6 if o.get("nokv") else 8))
            A("v_readfirstlane_b32 %s, %s" % (s(sT1), v(VPRG)))
            A("s_cmp_ge_u32 %s, %s\ns_cbranch_scc1 %s" % (s(sT1), s(sNEED), lab))
            A("s_and_b32 %s, %s, 1\ns_lshl_b32 %s, %s, 7\ns_add_u32 %s, %s, %s" % (
                s(sT0), s(sSTEP), s(sT0), s(sT0), s(sT0), s(sT0), s(sPROG)))
            self.spin_ge(A, sT0, s(sNEED), VPRG)
            A.label(lab)
        if w == 1:
            FA, FD = T0 + 1, T0 + 2
            fl = "buffer_load_dword %s, %s, %s, %s offen sc1" % (v(FD), v(FA), WS, s(sF1L))
            A("v_lshrrev_b32 %s, 2, %s" % (v(FA), v(VL1)))
            A("v_mov_b32 %s, 0" % v(FD))
            A("s_mov_b32 exec_hi, 0")
            A.label("c_pf_" + tag)
            for q in range(4):
                A(fl)
                for _ in range(o.get("pollchk", 2)):
                    A("v_cmp_gt_u32 vcc, %s, %s" % (s(sSTEP), v(FD)))
                    A("s_cbranch_vccz c_pfx_" + tag)
                    nops(o.get("pollnop", 1))
            A("s_waitcnt vmcnt(40)")
            self.budget(A, "c_pfx_" + tag)
            A("s_branch c_pf_" + tag)
            A.label("c_pfx_" + tag)
            A("s_mov_b64 exec, -1")
        A("; DUMP")
        A("s_xor_b32 %s, %s, 1" % (s(sPH), s(sPH)))
        A("s_waitcnt lgkmcnt(0)")
        A("s_branch " + top)
        A.label(fin)
        A("s_nop 7")
        if not o.get("nokv"):
            A(kmst)
            A(vmst)
            A("s_waitcnt vmcnt(0)")
            A("v_mov_b32 %s, %d" % (v(T1), NSEG))
            A("s_mov_b64 exec, 1")
            A("buffer_store_dword %s, off, %s, %s sc1" % (v(T1), WS, s(sFLAG)))
        A("s_mov_b64 exec, 1")
        if self.tot:
            A("s_memtime s[90:91]\ns_waitcnt lgkmcnt(0)")
            A("s_sub_u32 s90, s90, s92\ns_sub_u32 s92, s92, s96")
            A("v_mov_b32 %s, s90\nv_mov_b32 %s, s94\nv_mov_b32 %s, %s\nv_mov_b32 %s, %s" % (
                v(T0), v(T0 + 1), v(T0 + 2), s(sBUD), v(T0 + 3), "s92"))
            A("s_lshl_b32 %s, %s, 6\ns_add_u32 %s, %s, %d" % (s(sT0), s(sH), s(sT0), s(sT0), STAMP + 16 * w))
            A("buffer_store_dwordx4 %s, off, %s, %s" % (v(T0, 4), WS, s(sT0)))
        A("s_waitcnt vmcnt(0)")
        if self.dbg:
            if o.get("lastonly"):
                A("s_mov_b64 exec, -1")
                self.dump_stamps(A, w)
                A("s_waitcnt vmcnt(0)")
            self.calib(A, 1)
        A("s_endpgm")
        if o.get("drop"):
            import re
            cut = A.lines.index("; DUMP")
            pats = [re.compile(p) for p in o["drop"]]
            keep = range(A.lines.index("; DUMP0"), A.lines.index("; DUMP1")) if self.dbg else range(0)
            A.lines = [l for k, l in enumerate(A.lines[:cut]) if k in keep or not any(p.search(l) for p in pats)] + A.lines[cut:]
        main = fix_hazards(A.lines)
        if self.dbg:
            main = self.add_stamps(main)
        ool = fix_hazards(B.lines)
        if self.dbg and o.get("at"):
            ool = self.add_stamps(ool + ["; DUMP"])
        return main + ["s_nop 7"] + ool

    def dump_stamps(self, A, w):
        A("s_lshl_b32 %s, %s, 5\ns_add_u32 %s, %s, %s\ns_lshl_b32 %s, %s, 8" % (
            s(sT0), s(sSTEP), s(sT0), s(sT0), s(sH), s(sT0), s(sT0)))
        A("s_add_u32 %s, %s, %d" % (s(sT0), s(sT0), STAMP + 4096 + 64 * w))
        R0 = AQ + 8
        for k in range(15):
            A("v_mov_b32 %s, %s" % (v(R0 + k), s(sST + 2 * k)))
        A("v_mov_b32 %s, %s" % (v(R0 + 15), s(sBUD)))
        A("s_mov_b64 exec, 1")
        for q in range(4):
            A("buffer_store_dwordx4 %s, off, %s, %s offset:%d" % (v(R0 + 4 * q, 4), WS, s(sT0), 16 * q))
        A("s_mov_b64 exec, -1")

    def softmax_tail(self, A, X, M, fill, first):
        EX, EB, AL, EM = X[1], X[2], X[3], T0
        VB = P[2] + 4
        fill = list(fill)
        f = lambda: A(fill.pop(0)) if fill else None
        dpp = lambda d, x, q: A("v_mov_b32_dpp %s, %s quad_perm:%s row_mask:0xf bank_mask:0xf" % (v(d), v(x), q))
        src = M if first else M + 2
        A(mf16(AL, HALF, EX))
        dpp(EB, EX, "[0,1,0,1]")
        dpp(EB + 1, EX + 1, "[0,1,0,1]")
        dpp(EB + 2, EX, "[2,3,2,3]")
        dpp(EB + 3, EX + 1, "[2,3,2,3]")
        A("v_exp_f32 %s, %s" % (v(M + 2), v(src)))
        A("v_exp_f32 %s, %s" % (v(M + 3), v(src + 1)))
        A(mf32(AQ, VXR, EB))
        A("v_add_f32_dpp %s, %s, %s quad_perm:[2,3,0,1] row_mask:0xf bank_mask:0xf" % (v(AL), v(AL), v(AL)))
        A(cvt(EM, M + 2, M + 3))
        A(mf32(AQ + 4, VXR + 4, EB))
        A(cvt(EM + 1, M + 2, M + 3))
        A("v_add_f32 %s, %s, %s" % (v(AL), v(AL), v(AL)))
        if first:
            A(cvt(VB, AV, AV + 1))
            A(cvt(VB + 1, AV + 2, AV + 3))
        A(mf16(AL, HALF, EM, AL))
        if first:
            A(cvt(VB + 2, AV + 4, AV + 5))
            A(cvt(VB + 3, AV + 6, AV + 7))
        A(mf16(AQ, VB, EM, AQ))
        f()
        f()
        f()
        A(mf16(AQ + 4, VB + 2, EM, AQ + 4))
        while fill:
            f()

    def normalize(self, A, w, AL):
        RR = T0 + 2
        A("v_rcp_f32 %s, %s" % (v(RR), v(AL)))
        for r in range(2):
            A(zero(ACCO[0] + r))
        for r in range(4):
            A("v_mul_f32 %s, %s, %s" % (v(AQ + r), v(AQ + r), v(RR)))
        for q in range(2):
            A(cvt(OOP[0] + q, AQ + 2 * q, AQ + 2 * q + 1))
        for r in range(4, 8):
            A("v_mul_f32 %s, %s, %s" % (v(AQ + r), v(AQ + r), v(RR)))
        for q in range(2, 4):
            A(cvt(OOP[0] + q, AQ + 2 * q, AQ + 2 * q + 1))
        A("ds_write_b128 %s, %s offset:%d" % (v(VL1), v(OOP[0], 4), RB + w * 1024))
        for r in range(2, 8):
            A(zero(ACCO[0] + r))

    def fallback(self, B, w, tag, X, M):
        EX, AL = X[1], X[3]
        MX, TM = T0 + 2, T0 + 3
        B.label("c_slow_" + tag)
        B("s_nop 7")
        B("v_max3_f32 %s, %s, %s, %s" % (v(MX), v(X[0]), v(X[0] + 1), v(X[0] + 2)))
        B("v_max3_f32 %s, %s, %s, %s" % (v(MX), v(MX), v(X[0] + 3), v(M)))
        B("v_max_f32 %s, %s, %s" % (v(MX), v(MX), v(M + 1)))
        B("v_max_f32_dpp %s, %s, %s quad_perm:[2,3,0,1] row_mask:0xf bank_mask:0xf" % (v(MX), v(MX), v(MX)))
        for sw in ("v_permlane16_swap_b32", "v_permlane32_swap_b32"):
            B("v_mov_b32 %s, %s" % (v(TM), v(MX)))
            B("%s %s, %s" % (sw, v(MX), v(TM)))
            B("s_nop 1")
            B("v_max_f32 %s, %s, %s" % (v(MX), v(MX), v(TM)))
        for r in range(4):
            B("v_sub_f32 %s, %s, %s" % (v(EX + r), v(X[0] + r), v(MX)))
        for r in range(2):
            B("v_sub_f32 %s, %s, %s" % (v(M + 2 + r), v(M + r), v(MX)))
        for r in range(4):
            B("v_exp_f32 %s, %s" % (v(EX + r), v(EX + r)))
        B(cvt(EX, EX, EX + 1))
        B(cvt(EX + 1, EX + 2, EX + 3))
        self.softmax_tail(B, X, M, [], first=False)
        B("s_waitcnt lgkmcnt(0)")
        self.normalize(B, w, AL)
        B("s_nop 7")
        B("s_branch c_back_" + tag)

    def emit(self, A):
        P_ = Asm()
        P_._uid = 100
        self.prologue(P_)
        A.extend(fix_hazards(P_.lines))
        for slow in (0, 1):
            for w in range(4):
                A(".p2align 6")
                A.extend(self.loop(w, slow))
```

```python
NAME = "parallel_sum__memory_aug_recurrent_mem_tr__glu_gated_reglu__prompt"
NSEG = 64
WS_SIZE = 268435456

FLAGS = 0x100000
MEMB = 0x110000
INB1 = 0x200000
FL1 = 0x280000
XN = 0x300000
STAMP = 0x600000
QX = 0x1000000
KX = 0x2000000
VX = 0x4000000
HB = 0x6000000
PART = 0x7000000
MEMC = 0x500000
KM = 0x9000000
VM = 0x9800000

F_LN = 0
F_P = 64 * 128
F_C = 192 * 128
F_Y = 224 * 128
F_D = 272 * 128
FLAG_BYTES = 320 * 128

DBG_TICKET = 0
DBG_CHAIN_READY = 4
DBG_INIT = 36
DBG_LN = 132

SA_BF, SB_BF = 0x3E89, 0x3EF4
SA, SB = 137 / 512.0, 244 / 512.0

LDS_BYTES = 163840
```

```python
from asmlib import *
from layout import *

WS, DBG = "s[4:7]", "s[28:31]"
sROLE, sWAVE, sBUD = 32, 33, 35
sSEG, sEND, sIN, sOUT, sFLG, sSC, sT0, sT1, sT2, sRS, sB0, sB1, sLW = range(36, 49)
sPOLL, sNEED, sX, sSET3, sQ, sKM2 = range(49, 55)
sMASK = 56
W0, W1 = 8, 12
SXI, SOUT = 16, 20
NP, NXY, ND, NZ = 124, 48, 16, 32
SEGB = 262144
PARTB = 12 * 32768
HSEG = 112 * 1024

L, N32, HI, VL16, VST, VT0, VT1, VT2, VT3, VPO = 255, 254, 253, 252, 251, 250, 249, 248, 247, 246
VA = 240


def cvt(d, x, y):
    return "v_cvt_pk_bf16_f32 %s, %s, %s" % (v(d), v(x), v(y))


def budget(A, give_up):
    A("s_cmp_eq_u32 %s, 0\ns_cbranch_scc1 %s\ns_sub_u32 %s, %s, 1" % (s(sBUD), give_up, s(sBUD), s(sBUD)))


def wait_dbg(A, off, want, mask=None, sleep=4):
    top, done = A.uid("w_wd"), A.uid("w_wdd")
    A.label(top)
    A("buffer_load_dword %s, off, %s, 0 offset:%d sc1" % (v(VT0), DBG, off))
    A("s_waitcnt vmcnt(0)")
    A("v_readfirstlane_b32 %s, %s" % (s(sT1), v(VT0)))
    if mask:
        A("s_and_b32 %s, %s, 0x%x" % (s(sT1), s(sT1), mask))
    A("s_cmp_ge_u32 %s, %d\ns_cbranch_scc1 %s" % (s(sT1), want, done))
    budget(A, done)
    A("s_sleep %d\ns_branch %s" % (sleep, top))
    A.label(done)


def poll(A, nl, vaddr, soff, need, sleep=2):
    top, done = A.uid("w_pl"), A.uid("w_pld")
    A("s_mov_b64 exec, 0x%x" % ((1 << nl) - 1))
    A.label(top)
    A("buffer_load_dword %s, %s, %s, %s offen sc1" % (v(VT0), v(vaddr), WS, s(soff)))
    A("s_waitcnt vmcnt(0)")
    A("v_cmp_gt_u32 vcc, %s, %s" % (s(need), v(VT0)))
    A("s_cbranch_vccz %s" % done)
    budget(A, done)
    A("s_sleep %d\ns_branch %s" % (sleep, top))
    A.label(done)
    A("s_mov_b64 exec, -1")


def post_flag(A, val_sgpr_plus1):
    lab = A.uid("w_fl")
    A("s_waitcnt vmcnt(0)\ns_barrier")
    A("s_cmp_lg_u32 %s, 0\ns_cbranch_scc1 %s" % (s(sWAVE), lab))
    A("s_add_u32 %s, %s, 1" % (s(sT0), s(val_sgpr_plus1)))
    A("v_mov_b32 %s, %s" % (v(VT0), s(sT0)))
    A("s_mov_b64 exec, 1")
    A("buffer_store_dword %s, off, %s, %s sc1" % (v(VT0), WS, s(sFLG)))
    A("s_mov_b64 exec, -1")
    A.label(lab)


def srd(A, d, karg, size, sreg=None):
    if sreg is None:
        A("s_load_dwordx2 %s, s[0:1], %d" % (s(d, 2), karg))
    else:
        A("s_load_dwordx2 %s, s[0:1], %s" % (s(d, 2), s(sreg)))
    A("s_mov_b32 %s, 0x%x\ns_mov_b32 %s, 0x20000" % (s(d + 2), size, s(d + 3)))


def common(A):
    A("v_and_b32 %s, 63, v0" % v(L))
    A("v_and_b32 %s, 31, v0" % v(N32))
    A("v_lshrrev_b32 %s, 5, %s" % (v(HI), v(L)))
    A("v_lshlrev_b32 %s, 4, %s" % (v(VL16), v(L)))


def load_weights(A, perm, two_srd, nt=False):
    X, Y, Z, DV = VT0, VT1, VT2, VT3
    A("s_lshl_b32 %s, %s, 15" % (s(sLW), s(sWAVE)))
    A("v_lshrrev_b32 %s, 2, %s" % (v(X), v(L)))
    A("v_mul_lo_u32 %s, %s, %s" % (v(X), v(X), s(sRS)))
    A("v_and_b32 %s, 3, %s" % (v(Y), v(L)))
    A("v_lshl_add_u32 %s, %s, 4, %s" % (v(DV), v(Y), v(X)))
    A("v_bfe_u32 %s, %s, 2, 2" % (v(X), v(L)))
    A("v_lshl_add_u32 %s, %s, %d, %s" % (v(X), v(HI), 2 if perm else 3, v(X)))
    A("v_lshlrev_b32 %s, 6, %s" % (v(X), v(X)))
    A("v_bfe_u32 %s, %s, 4, 1" % (v(Z), v(L)))
    if perm == "col":
        A("v_lshl_add_u32 %s, %s, 4, %s" % (v(X), v(Z), v(X)))
        A("v_and_b32 %s, 1, %s" % (v(Z), v(L)))
        A("v_lshl_add_u32 %s, %s, 5, %s" % (v(X), v(Z), v(X)))
        A("v_bfe_u32 %s, %s, 1, 1" % (v(Z), v(L)))
        A("v_lshl_add_u32 %s, %s, 3, %s" % (v(X), v(Z), v(X)))
    else:
        A("v_lshl_add_u32 %s, %s, 5, %s" % (v(X), v(Z), v(X)))
        A("v_lshl_add_u32 %s, %s, 3, %s" % (v(X), v(Y), v(X)))
    TR = VA
    A("v_add_u32 %s, %s, %s" % (v(TR), s(sLW), v(X)))
    bs, qs = (8, 16) if perm else (16, 4)
    A("s_lshl_b32 %s, %s, 4" % (s(sT2), s(sRS)))

    def dma(u):
        for half in range(2):
            for t in range(2):
                A("s_add_u32 m0, %s, %d" % (s(sLW), (u % 8) * 4096 + t * 2048 + half * 1024))
                A("buffer_load_dwordx4 %s, %s, %s offen %slds" % (
                    v(DV), s(W1 if (t and two_srd) else W0, 4), s(sB1 if t else sB0), "nt " if nt else ""))
            A("s_add_u32 %s, %s, %s\ns_add_u32 %s, %s, %s" % (s(sB0), s(sB0), s(sT2), s(sB1), s(sB1), s(sT2)))

    for u in range(8):
        dma(u)
    for u in range(16):
        A("s_waitcnt vmcnt(%d)" % (4 * min(7, 15 - u)))
        for b in range(2):
            for t in range(2):
                for q in range(2):
                    A("ds_read_b64_tr_b16 %s, %s offset:%d" % (
                        a(((2 * u + b) * 2 + t) * 4 + 2 * q, 2), v(TR), (u % 8) * 4096 + t * 2048 + (bs * b + qs * q) * 64))
        A("s_waitcnt lgkmcnt(0)")
        if u + 8 < 16:
            dma(u + 8)
    A("s_barrier")


def gemm(A, nk, acc, fr, swap, fill=()):
    fill = list(fill)
    rd = lambda k: A("ds_read_b128 %s, %s offset:%d" % (v(fr + 4 * (k % 4), 4), v(VL16), k * 1024))
    for k in range(3):
        rd(k)
    for k in range(nk):
        A("s_waitcnt lgkmcnt(%d)" % min(2, nk - 1 - k))
        for t in range(2):
            w_, x_ = a((2 * k + t) * 4, 4), v(fr + 4 * (k % 4), 4)
            c = "0" if k == 0 else v(acc + 16 * t, 16)
            A("v_mfma_f32_32x32x16_bf16 %s, %s, %s, %s" % (v(acc + 16 * t, 16), x_ if swap else w_, w_ if swap else x_, c))
            if t == 0 and k + 3 < nk:
                rd(k + 3)
            elif fill:
                A(fill.pop(0))
    assert not fill


def layernorm(A):
    XR, F, S0, S1 = 0, 32, 96, 98
    X, Y = VT1, VT2
    srd(A, SXI, 0, 2048 * 1024)
    A("v_lshrrev_b32 %s, 3, %s" % (v(X), v(L)))
    A("v_and_b32 %s, 7, %s" % (v(Y), v(L)))
    A("v_lshlrev_b32 %s, 10, %s" % (v(VT3), v(X)))
    A("v_lshl_add_u32 %s, %s, 4, %s" % (v(VT3), v(Y), v(VT3)))
    A("v_lshlrev_b32 %s, 4, %s" % (v(VST), v(X)))
    A("v_lshl_add_u32 %s, %s, 9, %s" % (v(VST), v(Y), v(VST)))
    A("s_lshl_b32 %s, %s, 15\ns_lshl_b32 %s, %s, 13" % (s(sT0), s(sSEG), s(sT1), s(sWAVE)))
    A("s_add_u32 %s, %s, %s" % (s(sT1), s(sT1), s(sT0)))
    A("s_waitcnt lgkmcnt(0)")
    for i in range(8):
        A("buffer_load_dwordx4 %s, %s, %s, %s offen offset:%d" % (v(XR + 4 * i, 4), v(VT3), s(SXI, 4), s(sT1), 128 * i))
    A("s_lshl_b32 %s, %s, 7\ns_add_u32 %s, %s, %s\ns_add_u32 %s, %s, %d" % (
        s(sT1), s(sWAVE), s(sT0), s(sT0), s(sT1), s(sT0), s(sT0), XN))
    A("s_mov_b32 %s, 0xffff0000" % s(sT2))

    def red8(r):
        for m in ("quad_perm:[1,0,3,2]", "quad_perm:[2,3,0,1]", "row_half_mirror"):
            A("v_add_f32_dpp %s, %s, %s %s row_mask:0xf bank_mask:0xf" % (v(r), v(r), v(r), m))

    def rnd(r):
        A(cvt(r, r, r))
        A("v_lshlrev_b32 %s, 16, %s" % (v(r), v(r)))

    for i in range(8):
        A("s_waitcnt vmcnt(%d)" % (7 - i))
        for j in range(4):
            r = 4 * i + j
            A("v_lshlrev_b32 %s, 16, %s" % (v(F + 2 * r), v(XR + r)))
            A("v_and_b32 %s, %s, %s" % (v(F + 2 * r + 1), s(sT2), v(XR + r)))
            if r == 0:
                A("v_mov_b64 %s, %s" % (v(S0, 2), v(F, 2)))
            else:
                A("v_pk_add_f32 %s, %s, %s" % (v(S0, 2), v(S0, 2), v(F + 2 * r, 2)))
    A("v_add_f32 %s, %s, %s" % (v(S0), v(S0), v(S0 + 1)))
    red8(S0)
    A("v_mul_f32 %s, 0xbb000000, %s" % (v(S0), v(S0)))
    A("v_mov_b32 %s, %s" % (v(S0 + 1), v(S0)))
    A("v_mov_b64 %s, 0" % v(S1, 2))
    for r in range(32):
        t = XR + 2 * (r % 8)
        A("v_pk_add_f32 %s, %s, %s" % (v(t, 2), v(F + 2 * r, 2), v(S0, 2)))
        A("v_pk_fma_f32 %s, %s, %s, %s" % (v(S1, 2), v(t, 2), v(t, 2), v(S1, 2)))
    A("v_add_f32 %s, %s, %s" % (v(S1), v(S1), v(S1 + 1)))
    red8(S1)
    A("v_mul_f32 %s, 0x3b000000, %s" % (v(S1), v(S1)))
    rnd(S1)
    A("v_add_f32 %s, 0x3727c5ac, %s" % (v(S1), v(S1)))
    rnd(S1)
    A("v_sqrt_f32 %s, %s" % (v(S1), v(S1)))
    rnd(S1)
    A("v_rcp_f32 %s, %s" % (v(S1), v(S1)))
    rnd(S0)
    A("v_mov_b32 %s, %s" % (v(S0 + 1), v(S0)))
    A("v_mov_b32 %s, %s" % (v(S1 + 1), v(S1)))
    for i in range(8):
        for j in range(4):
            r = 4 * i + j
            f = F + 2 * r
            A("v_pk_add_f32 %s, %s, %s" % (v(f, 2), v(f, 2), v(S0, 2)))
            A(cvt(f + 1, f, f + 1))
            A("v_lshlrev_b32 %s, 16, %s" % (v(f), v(f + 1)))
            A("v_and_b32 %s, %s, %s" % (v(f + 1), s(sT2), v(f + 1)))
            A("v_pk_mul_f32 %s, %s, %s" % (v(f, 2), v(f, 2), v(S1, 2)))
            A(cvt(XR + r, f, f + 1))
        A("buffer_store_dwordx4 %s, %s, %s, %s offen sc1" % (v(XR + 4 * i, 4), v(VST), WS, s(sT0)))
        A("s_add_u32 %s, %s, 4096" % (s(sT0), s(sT0)))
    lab = A.uid("w_ln")
    A("s_waitcnt vmcnt(0)\ns_barrier")
    A("s_cmp_lg_u32 %s, 0\ns_cbranch_scc1 %s" % (s(sWAVE), lab))
    A("v_mov_b32 %s, 1" % v(VT0))
    A("s_mov_b64 exec, 1")
    A("buffer_atomic_add %s, off, %s, 0 offset:%d" % (v(VT0), DBG, DBG_LN))
    A("s_mov_b64 exec, -1")
    A.label(lab)


XR, FR, ACC, OUT = 0, 32, 48, 80


def pack_store(A, acc, out, offs, order):
    for t in range(2):
        for p in range(2):
            o = out + 8 * t + 4 * p
            for k, q in enumerate(order[p]):
                A(cvt(o + 2 * k, acc + 16 * t + 4 * q, acc + 16 * t + 4 * q + 1))
                A(cvt(o + 2 * k + 1, acc + 16 * t + 4 * q + 2, acc + 16 * t + 4 * q + 3))
            A("buffer_store_dwordx4 %s, %s, %s, %s offen offset:%d sc1" % (v(o, 4), v(VST), WS, s(sOUT), offs[t][p]))


def in_loads(n):
    return ["buffer_load_dwordx4 %s, %s, %s, %s offen offset:%d sc1" % (
        v(XR + 4 * i, 4), v(VA + 1 + i // 4), WS, s(sIN), (i % 4) * 1024) for i in range(n)]


def in_addr(A, n):
    A("s_mul_i32 %s, %s, %d" % (s(sT0), s(sWAVE), n * 1024))
    A("v_add_u32 %s, %s, %s" % (v(VA + 1), s(sT0), v(VL16)))
    A("v_add_u32 %s, 4096, %s" % (v(VA + 2), v(VA + 1)))


def in_writes(A, n):
    for i in range(n):
        A("ds_write_b128 %s, %s offset:%d" % (v(VA + 1), v(XR + 4 * i, 4), i * 1024))
    A("s_waitcnt lgkmcnt(0)\ns_barrier")


def role_p(A, kind, o):
    tg = "p" + kind
    A.label("w_" + tg)
    G = sQ
    A("s_lshl_b32 %s, %s, 8\ns_lshl_b32 %s, %s, 7\ns_add_u32 %s, %s, %s\ns_add_u32 %s, %s, %d" % (
        s(sFLG), s(G), s(sT1), s(sSEG), s(sFLG), s(sFLG), s(sT1), s(sFLG), s(sFLG), FLAGS + F_P))
    if kind == "gu":
        srd(A, W0, 64, 512 * 3584)
        srd(A, W1, 72, 512 * 3584)
        A("s_mov_b32 %s, 3584" % s(sRS))
        A("s_sub_u32 %s, %s, 48" % (s(G), s(G)))
        A("s_lshl2_add_u32 %s, %s, %s" % (s(sT0), s(G), s(sWAVE)))
        A("s_lshl_b32 %s, %s, 6\ns_mov_b32 %s, %s" % (s(sB0), s(sT0), s(sB1), s(sB0)))
        A("s_lshl_b32 %s, %s, 11" % (s(sOUT), s(sT0)))
        A("s_mul_i32 %s, %s, %d" % (s(sT1), s(sSEG), HSEG))
        A("s_add_u32 %s, %s, %s\ns_add_u32 %s, %s, %d" % (s(sOUT), s(sOUT), s(sT1), s(sOUT), s(sOUT), HB))
        A("v_mov_b32 %s, %s" % (v(VST), v(VL16)))
        A("s_mov_b32 %s, 64" % s(sEND))
    else:
        A("s_lshr_b32 %s, %s, 4" % (s(sT0), s(G)))
        A("s_lshl_b32 %s, %s, 3\ns_add_u32 %s, %s, 16" % (s(sT1), s(sT0), s(sT1), s(sT1)))
        srd(A, W0, None, 512 * 8192, sreg=sT1)
        A("s_cmp_eq_u32 %s, 0" % s(sT0))
        A("s_cselect_b32 %s, 0x%x, 0x%x" % (s(sSC), SA_BF << 16, SB_BF << 16)) if False else None
        A("s_mov_b32 %s, 0x%x" % (s(sSC), SB_BF << 16))
        A("s_cselect_b32 %s, 0x%x, %s" % (s(sSC), SA_BF << 16, s(sSC)))
        A("s_mov_b32 %s, 128" % s(sEND))
        A("s_cselect_b32 %s, 64, %s" % (s(sEND), s(sEND)))
        A("s_lshl_b32 %s, 0x%x, %s" % (s(sOUT), QX, s(sT0)))
        A("s_and_b32 %s, %s, 15" % (s(G), s(G)))
        A("s_lshl2_add_u32 %s, %s, %s" % (s(sT0), s(G), s(sWAVE)))
        A("s_lshl_b32 %s, %s, 7\ns_add_u32 %s, %s, 64" % (s(sB0), s(sT0), s(sB1), s(sB0)))
        A("s_lshl_b32 %s, %s, 12\ns_add_u32 %s, %s, %s" % (s(sT0), s(sT0), s(sOUT), s(sOUT), s(sT0)))
        A("s_lshl_b32 %s, %s, 18\ns_add_u32 %s, %s, %s" % (s(sT0), s(sSEG), s(sOUT), s(sOUT), s(sT0)))
        A("s_mov_b32 %s, 8192" % s(sRS))
        A("v_and_b32 %s, 15, %s" % (v(VT0), v(L)))
        A("v_lshlrev_b32 %s, 4, %s" % (v(VST), v(VT0)))
        A("v_lshl_add_u32 %s, %s, 8, %s" % (v(VST), v(HI), v(VST)))
        A("v_bfe_u32 %s, %s, 4, 1" % (v(VT0), v(L)))
        A("v_lshl_add_u32 %s, %s, 10, %s" % (v(VST), v(VT0), v(VST)))
    A("s_waitcnt lgkmcnt(0)")
    load_weights(A, None, kind == "gu", nt=o.get("p_nt"))
    in_addr(A, 8)
    A("s_lshl_b32 %s, %s, 15\ns_add_u32 %s, %s, %d" % (s(sIN), s(sSEG), s(sIN), s(sIN), XN))
    wait_dbg(A, DBG_LN, 64)
    A("\n".join(in_loads(8)))
    wait_dbg(A, DBG_INIT, 1)
    A.label("w_top_" + tg)
    in_writes(A, 8)
    A("s_add_u32 %s, %s, 65536" % (s(sIN), s(sIN)))
    A("\n".join(in_loads(8)))
    A.label("w_gemm_" + tg)
    gemm(A, 32, ACC, FR, kind == "v")
    if kind == "qk":
        A("s_mov_b32 %s, %s" % (s(sSC + 1), s(sSC))) if False else None
        for r in range(32):
            A("v_mul_f32 %s, %s, %s" % (v(ACC + r), s(sSC), v(ACC + r)))
    if kind == "gu":
        A("s_mov_b32 %s, 0xffff0000" % s(sT2))
        for p in range(2):
            for k, q in enumerate(((0, 2), (1, 3))[p]):
                for e in range(2):
                    g, u_ = ACC + 4 * q + 2 * e, ACC + 16 + 4 * q + 2 * e
                    A("v_max_f32 %s, 0, %s" % (v(g), v(g)))
                    A("v_max_f32 %s, 0, %s" % (v(g + 1), v(g + 1)))
                    for r in (g, u_):
                        A(cvt(r + 1, r, r + 1))
                        A("v_lshlrev_b32 %s, 16, %s" % (v(r), v(r + 1)))
                        A("v_and_b32 %s, %s, %s" % (v(r + 1), s(sT2), v(r + 1)))
                    A("v_pk_mul_f32 %s, %s, %s" % (v(g, 2), v(g, 2), v(u_, 2)))
                    A(cvt(OUT + 4 * p + 2 * k + e, g, g + 1))
            A("buffer_store_dwordx4 %s, %s, %s, %s offen offset:%d sc1" % (v(OUT + 4 * p, 4), v(VST), WS, s(sOUT), 1024 * p))
    else:
        pack_store(A, ACC, OUT, ((0, 512), (2048, 2560)), ((0, 2), (1, 3)))
    post_flag(A, sSEG)
    A("s_add_u32 %s, %s, 2" % (s(sSEG), s(sSEG)))
    A("s_add_u32 %s, %s, %d" % (s(sOUT), s(sOUT), 2 * (HSEG if kind == "gu" else SEGB)))
    A("s_cmp_lt_u32 %s, 64\ns_cbranch_scc1 w_top_%s" % (s(sSEG), tg))
    A("s_cmp_ge_u32 %s, %s\ns_cbranch_scc1 w_exit" % (s(sSEG), s(sEND)))
    if kind == "gu":
        return
    A("s_cmp_ge_u32 %s, 66\ns_cbranch_scc1 w_mem_%s" % (s(sSEG), tg))
    for r in range(4):
        A("v_mov_b32 %s, 0" % v(XR + r))
    for i in range(8):
        A("ds_write_b128 %s, %s offset:%d" % (v(VA + 1), v(XR, 4), i * 1024))
    A("v_lshrrev_b32 %s, 4, %s" % (v(VT0), v(L)))
    A("v_lshlrev_b32 %s, 9, %s" % (v(VA + 3), v(VT0)))
    A("v_bfe_u32 %s, %s, 1, 1" % (v(VT0), v(L)))
    A("v_lshl_add_u32 %s, %s, 11, %s" % (v(VA + 3), v(VT0), v(VA + 3)))
    A("v_bfe_u32 %s, %s, 2, 2" % (v(VT0), v(L)))
    A("v_lshl_add_u32 %s, %s, 5, %s" % (v(VA + 3), v(VT0), v(VA + 3)))
    A("v_and_b32 %s, 1, %s" % (v(VT0), v(L)))
    A("v_lshl_add_u32 %s, %s, 4, %s" % (v(VA + 3), v(VT0), v(VA + 3)))
    A("s_lshl_b32 %s, %s, 13" % (s(sT0), s(sWAVE)))
    A("v_add_u32 %s, %s, %s" % (v(VA + 3), s(sT0), v(VA + 3)))
    A("s_lshl_b32 %s, %s, 13\ns_lshl_b32 %s, %s, 11" % (s(sIN), s(sSEG), s(sT0), s(sWAVE)))
    A("s_add_u32 %s, %s, %s\ns_add_u32 %s, %s, %d" % (s(sIN), s(sIN), s(sT0), s(sIN), s(sIN), MEMC - 64 * 8192))
    wait_dbg(A, DBG_CHAIN_READY, 32, mask=0xffff)
    A("s_waitcnt lgkmcnt(0)")
    A.label("w_mem_" + tg)
    for i in range(2):
        A("buffer_load_dwordx4 %s, %s, %s, %s offen offset:%d sc1" % (v(XR + 4 * i, 4), v(VL16), WS, s(sIN), 1024 * i))
    A("s_waitcnt vmcnt(0)")
    A("v_max3_u32 %s, %s, %s, %s" % (v(VT0), v(XR), v(XR + 1), v(XR + 2)))
    A("v_max3_u32 %s, %s, %s, %s" % (v(VT0), v(VT0), v(XR + 3), v(XR + 4)))
    A("v_max3_u32 %s, %s, %s, %s" % (v(VT0), v(VT0), v(XR + 5), v(XR + 6)))
    A("v_max_u32 %s, %s, %s" % (v(VT0), v(VT0), v(XR + 7)))
    A("v_cmp_eq_u32 vcc, -1, %s" % v(VT0))
    A("s_cbranch_vccz w_memok_" + tg)
    budget(A, "w_memok_" + tg)
    A("s_sleep 2\ns_branch w_mem_" + tg)
    A.label("w_memok_" + tg)
    for i in range(2):
        A("ds_write_b128 %s, %s offset:%d" % (v(VA + 3), v(XR + 4 * i, 4), 4096 * i))
    A("s_add_u32 %s, %s, 16384" % (s(sIN), s(sIN)))
    A("s_waitcnt lgkmcnt(0)\ns_barrier")
    A("s_branch w_gemm_" + tg)


def part_setup(A, src_sgpr, ch_sgpr):
    A("s_lshl2_add_u32 %s, %s, %s" % (s(sT0), s(ch_sgpr), s(sWAVE)))
    A("s_lshl_b32 %s, %s, 7\ns_add_u32 %s, %s, %s\ns_add_u32 %s, %s, 64" % (
        s(sT1), s(sT0), s(sB0), s(sB0), s(sT1), s(sB1), s(sB0)))
    A("s_lshl_b32 %s, %s, 12\ns_lshl_b32 %s, %s, 15\ns_add_u32 %s, %s, %s" % (
        s(sOUT), s(sT0), s(sT1), s(src_sgpr), s(sOUT), s(sOUT), s(sT1)))
    A("s_mul_i32 %s, %s, %d\ns_add_u32 %s, %s, %s\ns_add_u32 %s, %s, %d" % (
        s(sT1), s(sSEG), PARTB, s(sOUT), s(sOUT), s(sT1), s(sOUT), s(sOUT), PART))
    A("s_mov_b32 %s, 1024" % s(sRS))
    A("v_mov_b32 %s, %s" % (v(VST), v(VL16)))


PART_OFFS, PART_ORD = ((0, 1024), (2048, 3072)), ((0, 1), (2, 3))


def role_d(A, o):
    A.label("w_d")
    J = sQ
    srd(A, W0, 80, 1792 * 1024)
    A("s_and_b32 %s, %s, 1" % (s(sSEG), s(J)))
    A("s_lshr_b32 %s, %s, 1" % (s(sT0), s(J)))
    A("s_lshl_b32 %s, %s, 3\ns_add_u32 %s, %s, %s" % (s(sFLG), s(sSEG), s(sFLG), s(sFLG), s(sT0)))
    A("s_lshl_b32 %s, %s, 7\ns_add_u32 %s, %s, %d" % (s(sFLG), s(sFLG), s(sFLG), s(sFLG), FLAGS + F_D))
    A("s_and_b32 %s, %s, 3\ns_lshr_b32 %s, %s, 3" % (s(sX), s(sT0), s(sSET3), s(J)))
    A("s_mul_i32 %s, %s, %d" % (s(sB0), s(sX), 448 * 1024))
    A("s_mul_i32 %s, %s, %d\ns_mul_i32 %s, %s, %d" % (s(sIN), s(sX), 28 * 1024, s(sT1), s(sSEG), HSEG))
    A("s_add_u32 %s, %s, %s\ns_add_u32 %s, %s, %d" % (s(sIN), s(sIN), s(sT1), s(sIN), s(sIN), HB))
    A("s_add_u32 %s, %s, 8" % (s(sX), s(sX)))
    part_setup(A, sX, sSET3)
    A("s_lshl_b32 %s, %s, 7\ns_add_u32 %s, %s, %d" % (s(sPOLL), s(sSEG), s(sPOLL), s(sPOLL), FLAGS + F_P + 96 * 128))
    A("v_lshlrev_b32 %s, 8, %s" % (v(VPO), v(L)))
    A("s_waitcnt lgkmcnt(0)")
    load_weights(A, "col", False)
    in_addr(A, 7)
    wait_dbg(A, DBG_INIT, 1)
    A("s_add_u32 %s, %s, 1" % (s(sNEED), s(sSEG)))
    poll(A, 14, VPO, sPOLL, sNEED, sleep=8)
    A("\n".join(in_loads(7)))
    A("s_waitcnt vmcnt(0)")
    A.label("w_top_d")
    in_writes(A, 7)
    A("s_add_u32 %s, %s, %d" % (s(sIN), s(sIN), 2 * HSEG))
    A("s_add_u32 %s, %s, 3" % (s(sNEED), s(sSEG)))
    A("s_cmp_gt_u32 %s, 64\ns_cbranch_scc1 w_gemm_d" % s(sNEED))
    poll(A, 14, VPO, sPOLL, sNEED, sleep=8)
    A("\n".join(in_loads(7)))
    A.label("w_gemm_d")
    gemm(A, 28, ACC, FR, False)
    pack_store(A, ACC, OUT, PART_OFFS, PART_ORD)
    post_flag(A, sSEG)
    A("s_add_u32 %s, %s, 2" % (s(sSEG), s(sSEG)))
    A("s_add_u32 %s, %s, %d" % (s(sOUT), s(sOUT), 2 * PARTB))
    A("s_cmp_lt_u32 %s, 64\ns_cbranch_scc1 w_top_d" % s(sSEG))
    A("s_branch w_exit")


def mf16(d, a_, b_, c=None):
    return "v_mfma_f32_16x16x16_bf16 %s, %s, %s, %s" % (v(d, 4), v(a_, 2), v(b_, 2), "0" if c is None else v(c, 4))


def mf32(d, a_, b_, c=None):
    return "v_mfma_f32_16x16x32_bf16 %s, %s, %s, %s" % (v(d, 4), v(a_, 4), v(b_, 4), "0" if c is None else v(c, 4))


def role_xy(A, o):
    A.label("w_xy")
    J = sQ
    Q, K, V_, KM_, VM_ = 0, 32, 64, 96, 112
    S00, S01, S11, SM0, SM1 = 128, 132, 136, 140, 144
    O = 148
    acc, fr, out = 148, 180, 196
    M0, M1, L0, L1, TA, NEG, OW = 212, 213, 214, 215, 216, 218, 219
    P0, P1, PM0, PM1 = 220, 224, 222, 228
    srd(A, W0, 40, 4096 * 1024)
    A("s_mul_i32 %s, %s, 43\ns_lshr_b32 %s, %s, 7" % (s(sT0), s(J), s(sT0), s(sT0)))
    A("s_mul_i32 %s, %s, 3\ns_sub_u32 %s, %s, %s" % (s(sT1), s(sT0), s(sSEG), s(J), s(sT1)))
    A("s_and_b32 %s, %s, 1\ns_lshr_b32 %s, %s, 1" % (s(sSET3), s(sT0), s(sX), s(sT0)))
    A("s_lshl1_add_u32 %s, %s, %s\ns_lshl3_add_u32 %s, %s, %s" % (s(sFLG), s(sSEG), s(sSET3), s(sFLG), s(sFLG), s(sX)))
    A("s_lshl_b32 %s, %s, 7\ns_add_u32 %s, %s, %d" % (s(sFLG), s(sFLG), s(sFLG), s(sFLG), FLAGS + F_Y))
    A("s_lshl_b32 %s, %s, 19" % (s(sB0), s(sX)))
    part_setup(A, sX, sSET3)
    A("s_lshl2_add_u32 %s, %s, %s" % (s(sT0), s(sX), s(sWAVE)))
    A("s_lshl_b32 %s, %s, 13\ns_lshl_b32 %s, %s, 18\ns_add_u32 %s, %s, %s" % (
        s(sIN), s(sT0), s(sT1), s(sSEG), s(sIN), s(sIN), s(sT1)))
    A("s_add_u32 %s, %s, %d" % (s(sIN), s(sIN), QX))
    A("s_lshr_b32 %s, %s, 1\ns_lshl_b32 %s, %s, 8\ns_add_u32 %s, %s, %d" % (
        s(sT0), s(sT0), s(sT0), s(sT0), s(sPOLL), s(sT0), FLAGS + F_P))
    A("s_waitcnt lgkmcnt(0)")
    load_weights(A, "col", False)
    A("v_lshrrev_b32 %s, 4, %s" % (v(VT1), v(L)))
    A("v_and_b32 %s, 15, %s" % (v(VT2), v(L)))
    A("v_lshlrev_b32 %s, 2, %s" % (v(VT3), v(VT1)))
    for r in range(4):
        A("v_cmp_le_u32 %s, %s, %s" % (s(sMASK + 2 * r, 2), v(VT3), v(VT2)))
        A("v_add_u32 %s, 1, %s" % (v(VT3), v(VT3)))
    A("s_mov_b32 %s, -1\ns_mov_b32 %s, 0" % (s(sMASK + 8), s(sMASK + 9)))
    A("v_mov_b32 %s, 0xff800000" % v(NEG))
    A("v_lshlrev_b32 %s, 9, %s" % (v(OW), v(VT1)))
    A("v_lshl_add_u32 %s, %s, 4, %s" % (v(OW), v(VT2), v(OW)))
    A("s_lshl_b32 %s, %s, 13" % (s(sT0), s(sWAVE)))
    A("v_add_u32 %s, %s, %s" % (v(OW), s(sT0), v(OW)))
    A("v_add_u32 %s, 4096, %s" % (v(VA + 1), v(VL16)))
    wait_dbg(A, DBG_INIT, 1, sleep=16)
    A("v_lshrrev_b32 %s, 1, %s" % (v(VT1), v(L)))
    A("v_lshlrev_b32 %s, 12, %s" % (v(VPO), v(VT1)))
    A("v_and_b32 %s, 1, %s" % (v(VT1), v(L)))
    A("v_lshl_add_u32 %s, %s, 7, %s" % (v(VPO), v(VT1), v(VPO)))
    A("s_mov_b32 %s, 63" % s(sNEED))
    poll(A, 6, VPO, sPOLL, sNEED, sleep=16)
    A("v_lshlrev_b32 %s, 12, %s" % (v(VPO), v(L)))
    A("s_add_u32 %s, %s, 4096" % (s(sPOLL), s(sPOLL)))

    def qkv_loads():
        res = []
        for base, off in ((Q, 0), (K, KX - QX), (V_, VX - QX)):
            res.append("s_add_u32 %s, %s, %d" % (s(sT2), s(sIN), off))
            for i in range(8):
                res.append("buffer_load_dwordx4 %s, %s, %s, %s offen offset:%d sc1" % (
                    v(base + 4 * i, 4), v(VL16 if i < 4 else VA + 1), WS, s(sT2), (i % 4) * 1024))
        return res

    A("\n".join(qkv_loads()))
    A("s_waitcnt vmcnt(0)")
    A.label("w_top_xy")
    for w in range(4):
        A(mf32(S00, K + 8 * w, Q + 8 * w, S00 if w else None))
        A(mf32(S01, K + 8 * w, Q + 8 * w + 4, S01 if w else None))
        A(mf32(S11, K + 8 * w + 4, Q + 8 * w + 4, S11 if w else None))
    A("s_add_u32 %s, %s, 65" % (s(sNEED), s(sSEG)))
    A("s_and_b32 %s, %s, 1\ns_lshl_b32 %s, %s, 7\ns_add_u32 %s, %s, %s" % (
        s(sT2), s(sSEG), s(sT2), s(sT2), s(sT2), s(sT2), s(sPOLL)))
    for r in range(4):
        for S in (S00, S11):
            A("v_cndmask_b32 %s, %s, %s, %s" % (v(S + r), v(NEG), v(S + r), s(sMASK + 2 * r, 2)))
    A("v_max3_f32 %s, %s, %s, %s" % (v(M0), v(S00), v(S00 + 1), v(S00 + 2)))
    A("v_max_f32 %s, %s, %s" % (v(M0), v(M0), v(S00 + 3)))
    A("v_max3_f32 %s, %s, %s, %s" % (v(M1), v(S01), v(S01 + 1), v(S01 + 2)))
    A("v_max3_f32 %s, %s, %s, %s" % (v(M1), v(M1), v(S01 + 3), v(S11)))
    A("v_max3_f32 %s, %s, %s, %s" % (v(M1), v(M1), v(S11 + 1), v(S11 + 2)))
    A("v_max_f32 %s, %s, %s" % (v(M1), v(M1), v(S11 + 3)))
    poll(A, 2, VPO, sT2, sNEED)
    A("s_add_u32 %s, %s, %d" % (s(sT2), s(sIN), KX - QX + 64 * SEGB))
    for w in range(4):
        A("buffer_load_dwordx4 %s, %s, %s, %s offen offset:%d sc1" % (
            v(KM_ + 4 * w, 4), v(VL16 if w < 2 else VA + 1), WS, s(sT2), (w % 2) * 2048))
    A("s_add_u32 %s, %s, %d" % (s(sT2), s(sIN), VX - QX + 64 * SEGB))
    for f in range(8):
        A("buffer_load_dwordx2 %s, %s, %s, %s offen offset:%d sc1" % (
            v(VM_ + 2 * f, 2), v(VL16 if f < 4 else VA + 1), WS, s(sT2), (f % 4) * 1024))
    A("s_add_u32 %s, %s, %d" % (s(sIN), s(sIN), 3 * SEGB))
    for w in range(4):
        A("s_waitcnt vmcnt(%d)" % (11 - w))
        A(mf32(SM0, KM_ + 4 * w, Q + 8 * w, SM0 if w else None))
        A(mf32(SM1, KM_ + 4 * w, Q + 8 * w + 4, SM1 if w else None))
    for S, M in ((SM0, M0), (SM1, M1)):
        for r in range(4):
            A("v_cndmask_b32 %s, %s, %s, %s" % (v(S + r), v(NEG), v(S + r), s(sMASK + 8, 2)))
        A("v_max3_f32 %s, %s, %s, %s" % (v(M), v(M), v(S), v(S + 1)))
        A("v_max3_f32 %s, %s, %s, %s" % (v(M), v(M), v(S + 2), v(S + 3)))

    def xred(op, r0, r1):
        for sw in ("v_permlane16_swap_b32", "v_permlane32_swap_b32"):
            A("v_mov_b32 %s, %s\nv_mov_b32 %s, %s" % (v(TA), v(r0), v(TA + 1), v(r1)))
            A("%s %s, %s\n%s %s, %s" % (sw, v(r0), v(TA), sw, v(r1), v(TA + 1)))
            A("s_nop 0")
            A("%s %s, %s, %s\n%s %s, %s, %s" % (op, v(r0), v(r0), v(TA), op, v(r1), v(r1), v(TA + 1)))

    xred("v_max_f32", M0, M1)
    grp = ((M0, L0, (S00, SM0)), (M1, L1, (S01, S11, SM1)))
    for M, Lr, SS in grp:
        for S in SS:
            for r in range(4):
                A("v_sub_f32 %s, %s, %s" % (v(S + r), v(S + r), v(M)))
            for r in range(4):
                A("v_exp_f32 %s, %s" % (v(S + r), v(S + r)))
    for M, Lr, SS in grp:
        regs = [S + r for S in SS for r in range(4)]
        A("v_add_f32 %s, %s, %s" % (v(Lr), v(regs[0]), v(regs[1])))
        for r in regs[2:]:
            A("v_add_f32 %s, %s, %s" % (v(Lr), v(Lr), v(r)))
    xred("v_add_f32", L0, L1)
    A("v_rcp_f32 %s, %s\nv_rcp_f32 %s, %s" % (v(L0), v(L0), v(L1), v(L1)))
    for Lr, S, P in ((L0, S00, P0), (L1, S01, P1), (L1, S11, P1 + 2), (L0, SM0, PM0), (L1, SM1, PM1)):
        for r in range(4):
            A("v_mul_f32 %s, %s, %s" % (v(S + r), v(S + r), v(Lr)))
        A(cvt(P, S, S + 1))
        A(cvt(P + 1, S + 2, S + 3))
    Or = lambda f, kt: O + 8 * f + 4 * kt
    for f in range(8):
        A(mf16(Or(f, 0), V_ + 4 * f, P0))
        A(mf32(Or(f, 1), V_ + 4 * f, P1))
    A("s_waitcnt vmcnt(0)")
    for f in range(8):
        A(mf16(Or(f, 0), VM_ + 2 * f, PM0, Or(f, 0)))
        A(mf16(Or(f, 1), VM_ + 2 * f, PM1, Or(f, 1)))
    for a_ in range(4):
        for kt in range(2):
            d = KM_ + 4 * ((2 * a_ + kt) % 4)
            for e in range(2):
                A(cvt(d + 2 * e, Or(2 * a_ + e, kt), Or(2 * a_ + e, kt) + 1))
                A(cvt(d + 2 * e + 1, Or(2 * a_ + e, kt) + 2, Or(2 * a_ + e, kt) + 3))
            if 2 * a_ + kt == 4:
                pass
            A("ds_write_b128 %s, %s offset:%d" % (v(OW), v(d, 4), a_ * 2048 + kt * 256))
            if (2 * a_ + kt) % 4 == 3:
                A("s_waitcnt lgkmcnt(0)")
    A("s_barrier")
    gemm(A, 32, acc, fr, False, fill=qkv_loads())
    pack_store(A, acc, out, PART_OFFS, PART_ORD)
    post_flag(A, sSEG)
    A("s_add_u32 %s, %s, 3" % (s(sSEG), s(sSEG)))
    A("s_add_u32 %s, %s, %d" % (s(sOUT), s(sOUT), 3 * PARTB))
    A("s_cmp_lt_u32 %s, 64\ns_cbranch_scc1 w_top_xy" % s(sSEG))
    A("s_branch w_exit")


def role_z(A, o):
    A.label("w_z")
    J = sQ
    PR, XV, FA, FB, T = 0, 48, 52, 60, 68
    srd(A, SXI, 0, 2048 * 1024)
    srd(A, SOUT, 88, 2048 * 1024)
    A("s_lshr_b32 %s, %s, 3\ns_and_b32 %s, %s, 7" % (s(sSEG), s(J), s(J), s(J)))
    A("s_lshl2_add_u32 %s, %s, %s" % (s(sT0), s(J), s(sWAVE)))
    A("s_lshl_b32 %s, %s, 10\ns_mul_i32 %s, %s, %d" % (s(sIN), s(sT0), s(sT1), s(sSEG), PARTB))
    A("s_add_u32 %s, %s, %s\ns_add_u32 %s, %s, %d" % (s(sIN), s(sIN), s(sT1), s(sIN), s(sIN), PART))
    A("s_lshr_b32 %s, %s, 1\ns_lshl_b32 %s, %s, 6" % (s(sT1), s(sT0), s(sT1), s(sT1)))
    A("s_and_b32 %s, %s, 1\ns_lshl4_add_u32 %s, %s, %s" % (s(sT0), s(sT0), s(sX), s(sT0), s(sT1)))
    A("s_lshl_b32 %s, %s, 15\ns_add_u32 %s, %s, %s" % (s(sT1), s(sSEG), s(sX), s(sX), s(sT1)))
    A("s_lshr_b32 %s, %s, 2" % (s(J), s(J)))
    A("s_and_b32 %s, %s, 1\ns_lshl1_add_u32 %s, %s, %s\ns_lshl_b32 %s, %s, 9" % (
        s(sT0), s(sSEG), s(sT0), s(sT0), s(J), s(sT0), s(sT0)))
    A("s_add_u32 %s, %s, %d" % (s(sPOLL), s(sT0), FLAGS + F_D))
    A("s_lshl_b32 %s, %s, 10\ns_add_u32 %s, %s, %d" % (s(sFLG), s(J), s(sFLG), s(sFLG), FLAGS + F_Y))
    A("s_cmp_eq_u32 %s, 3\ns_cselect_b32 %s, 0, %s" % (s(sSEG), s(sSET3), s(sSEG)))
    A("v_lshlrev_b32 %s, 7, %s" % (v(VPO), v(L)))
    A("v_lshlrev_b32 %s, 10, %s" % (v(VST), v(N32)))
    A("v_lshl_add_u32 %s, %s, 5, %s" % (v(VST), v(HI), v(VST)))
    A("s_mov_b32 %s, 0xffff0000" % s(sSC))
    A("s_waitcnt lgkmcnt(0)")
    wait_dbg(A, DBG_INIT, 1, sleep=16)
    A.label("w_top_z")
    A("s_add_u32 %s, %s, 1" % (s(sNEED), s(sSEG)))
    A("buffer_load_dwordx4 %s, %s, %s, %s offen" % (v(XV, 4), v(VST), s(SXI, 4), s(sX)))
    poll(A, 4, VPO, sPOLL, sNEED, sleep=16)

    def loads(lo, hi):
        for i in range(lo, hi):
            A("s_add_u32 %s, %s, %d" % (s(sT0), s(sIN), 32768 * i))
            A("buffer_load_dwordx4 %s, %s, %s, %s offen sc1" % (v(PR + 4 * i, 4), v(VL16), WS, s(sT0)))

    def unpack(dst, src):
        A("v_lshlrev_b32 %s, 16, %s" % (v(dst), v(src)))
        A("v_and_b32 %s, %s, %s" % (v(dst + 1), s(sSC), v(src)))

    def summ(F, lo, hi):
        for i in range(lo, hi):
            A("s_waitcnt vmcnt(%d)" % (hi - 1 - i))
            for j in range(4):
                unpack(F + 2 * j if i == lo else T + 2 * j, PR + 4 * i + j)
            if i > lo:
                for j in range(4):
                    A("v_pk_add_f32 %s, %s, %s" % (v(F + 2 * j, 2), v(F + 2 * j, 2), v(T + 2 * j, 2)))

    def rnd(F):
        for j in range(4):
            A(cvt(F + 2 * j + 1, F + 2 * j, F + 2 * j + 1))
        for j in range(4):
            A("v_lshlrev_b32 %s, 16, %s" % (v(F + 2 * j), v(F + 2 * j + 1)))
            A("v_and_b32 %s, %s, %s" % (v(F + 2 * j + 1), s(sSC), v(F + 2 * j + 1)))

    loads(8, 12)
    summ(FB, 8, 12)
    rnd(FB)
    XF = PR + 32
    for j in range(4):
        unpack(XF + 2 * j, XV + j)
    A("s_lshl_b32 %s, %s, 11\ns_add_u32 %s, %s, %s" % (s(sT2), s(sSET3), s(sT2), s(sT2), s(sFLG)))
    poll(A, 8, VPO, sT2, sNEED, sleep=o.get("zsleep", 2))
    loads(0, 8)
    summ(FA, 0, 8)
    rnd(FA)
    for j in range(4):
        A("v_pk_add_f32 %s, %s, %s" % (v(FA + 2 * j, 2), v(FA + 2 * j, 2), v(XF + 2 * j, 2)))
    rnd(FA)
    for j in range(4):
        A("v_pk_add_f32 %s, %s, %s" % (v(FA + 2 * j, 2), v(FA + 2 * j, 2), v(FB + 2 * j, 2)))
    for j in range(4):
        A(cvt(T + j, FA + 2 * j, FA + 2 * j + 1))
    A("buffer_store_dwordx4 %s, %s, %s, %s offen" % (v(T, 4), v(VST), s(SOUT, 4), s(sX)))
    A("s_add_u32 %s, %s, 4" % (s(sSEG), s(sSEG)))
    A("s_add_u32 %s, %s, %d\ns_add_u32 %s, %s, %d" % (s(sIN), s(sIN), 4 * PARTB, s(sX), s(sX), 4 * 32768))
    A("s_add_u32 %s, %s, 1\ns_cmp_eq_u32 %s, 3\ns_cselect_b32 %s, 0, %s" % (s(sSET3), s(sSET3), s(sSET3), s(sSET3), s(sSET3)))
    A("s_cmp_lt_u32 %s, 64\ns_cbranch_scc1 w_top_z" % s(sSEG))
    A("s_branch w_exit")


def role_init(A):
    A.label("w_init")
    A("v_lshlrev_b32 %s, 7, v0" % v(VT1))
    for r in range(4):
        A("v_mov_b32 %s, 0" % v(r + 4))
    for k in range(2):
        A("s_mov_b32 %s, %d" % (s(sT0), FLAGS + 32768 * k))
        A("buffer_store_dwordx4 %s, %s, %s, %s offen sc1" % (v(4, 4), v(VT1), WS, s(sT0)))
    A("s_waitcnt vmcnt(0)\ns_barrier")
    A("s_cmp_lg_u32 %s, 0\ns_cbranch_scc1 w_exit" % s(sWAVE))
    A("v_mov_b32 %s, 1\ns_mov_b64 exec, 1" % v(VT0))
    A("buffer_store_dword %s, off, %s, 0 offset:%d sc1" % (v(VT0), DBG, DBG_INIT))
    A("s_branch w_exit")


def dispatch(E, opts):
    E("s_branch w_start")


def emit(A0, opts):
    A = Asm()
    A._uid = 50000
    A.label("w_start")
    common(A)
    A("s_cmp_eq_u32 %s, 255\ns_cbranch_scc1 w_init" % s(sROLE))
    A("s_sub_u32 %s, %s, %d" % (s(sQ), s(sROLE), 32 + NP + NXY + ND))
    A("s_cbranch_scc1 w_notz")
    A("s_cmp_lt_u32 %s, %d\ns_cbranch_scc1 w_z" % (s(sQ), NZ))
    A.label("w_exit")
    A("s_waitcnt vmcnt(0)\ns_endpgm")
    A.label("w_notz")
    A("s_sub_u32 %s, %s, %d" % (s(sSEG), s(sROLE), 32 + NP))
    A("s_cbranch_scc1 w_isp")
    layernorm(A)
    A("s_mov_b32 %s, %s" % (s(sQ), s(sSEG)))
    A("s_cmp_lt_u32 %s, %d\ns_cbranch_scc1 w_xy" % (s(sQ), NXY))
    A("s_sub_u32 %s, %s, %d\ns_branch w_d" % (s(sQ), s(sQ), NXY))
    A.label("w_isp")
    A("s_sub_u32 %s, %s, 32" % (s(sQ), s(sROLE)))
    A("s_and_b32 %s, %s, 1\ns_lshr_b32 %s, %s, 1" % (s(sSEG), s(sQ), s(sQ), s(sQ)))
    A("s_cmp_lt_u32 %s, 32\ns_cbranch_scc1 w_pqk" % s(sQ))
    A("s_cmp_lt_u32 %s, 48\ns_cbranch_scc1 w_pv" % s(sQ))
    A("s_branch w_pgu")
    role_init(A)
    role_z(A, opts)
    for kind in ("gu", "qk", "v"):
        role_p(A, kind, opts)
    role_d(A, opts)
    role_xy(A, opts)
    A0.extend(fix_hazards(A.lines))
```

```python
import sys
from asmlib import *
from layout import *
import chain as C

HEADER_COMMENT = open('cdna_kernels/%s.s.ref' % NAME).read().split('; Override launch')[0]


def build(opts):
    K = NAME + "_kernel"
    A = Asm()
    E = Asm()
    E("s_cmp_ge_u32 s2, 256\ns_cbranch_scc1 k_exit")
    if opts.get("total") or opts.get("stamps"):
        E("s_memtime s[96:97]")
    E("s_load_dwordx4 s[28:31], s[0:1], 96")
    E("s_getreg_b32 s34, hwreg(HW_REG_XCC_ID, 0, 4)")
    E("v_lshrrev_b32 v1, 6, v0")
    E("s_mov_b32 s35, 0x%x" % opts.get("budget", 0x10000))
    E("s_mov_b32 s94, 0")
    E("v_readfirstlane_b32 s33, v1")
    E("s_and_b32 s34, s34, 7")
    E("s_waitcnt lgkmcnt(0)")
    E("s_mov_b32 s4, s30\ns_mov_b32 s5, s31\ns_mov_b32 s6, 0x%x\ns_mov_b32 s7, 0x20000" % WS_SIZE)
    E("s_mov_b32 s30, 256\ns_mov_b32 s31, 0x20000")
    E("s_cmp_lg_u32 s33, 0\ns_cbranch_scc1 k_noticket")
    E("s_mov_b32 s36, s34\ns_mov_b32 s37, 0")
    E("s_mov_b64 exec, 1")
    E.label("k_ticket")
    E("v_mov_b32 v2, 1")
    E("s_lshl_b32 s38, s36, 5")
    E("buffer_atomic_add v2, off, s[28:31], s38 sc0")
    E("s_waitcnt vmcnt(0)")
    E("v_readfirstlane_b32 s39, v2")
    E("s_cmp_lt_u32 s39, 32\ns_cbranch_scc1 k_gotticket")
    E("s_add_u32 s36, s36, 1\ns_and_b32 s36, s36, 7\ns_add_u32 s37, s37, 1")
    E("s_cmp_lt_u32 s37, 8\ns_cbranch_scc1 k_ticket")
    E("s_mov_b32 s38, 256\ns_mov_b32 s39, 0")
    E.label("k_gotticket")
    E("s_add_u32 s39, s39, s38")
    E("v_mov_b32 v2, s39\nv_mov_b32 v3, 0")
    E("ds_write_b32 v3, v2")
    E("s_waitcnt lgkmcnt(0)")
    E("s_mov_b64 exec, -1")
    E.label("k_noticket")
    E("s_barrier")
    E("v_mov_b32 v3, 0")
    E("ds_read_b32 v2, v3")
    E("s_waitcnt lgkmcnt(0)")
    E("v_readfirstlane_b32 s32, v2")
    E("s_barrier")
    E("s_cmp_lt_u32 s32, 32\ns_cbranch_scc1 k_chain")
    if opts.get("standalone_chain"):
        E("s_cmp_lg_u32 s32, 255\ns_cbranch_scc1 k_exit")
        E("v_mov_b32 v2, 1\ns_mov_b64 exec, 1")
        E("buffer_store_dword v2, off, s[28:31], 0 offset:%d sc1" % DBG_INIT)
        E("s_waitcnt vmcnt(0)")
    else:
        import workers
        workers.dispatch(E, opts)
    E.label("k_exit")
    E("s_endpgm")
    A.extend(fix_hazards(E.lines))
    A.label("k_chain")
    C.Chain(opts).emit(A)
    if not opts.get("standalone_chain"):
        import workers
        workers.emit(A, opts)
    A("s_endpgm")
    out = HEADER_COMMENT
    out += "; @launch grid=(256,1,1) block=(256,1,1) lds=%d\n" % LDS_BYTES
    out += '.amdgcn_target "amdgcn-amd-amdhsa--gfx950"\n.text\n.globl %s\n.p2align 8\n.type %s,@function\n%s:\n' % (K, K, K)
    out += "\n".join(("" if l.endswith(":") or l.startswith(".") else "  ") + l for l in A.lines) + "\n"
    out += """.section .rodata,"a"
.p2align 6
.amdhsa_kernel %s
  .amdhsa_next_free_vgpr 512
  .amdhsa_next_free_sgpr 102
  .amdhsa_accum_offset 256
  .amdhsa_group_segment_fixed_size 0
  .amdhsa_kernarg_size 112
  .amdhsa_user_sgpr_count 2
  .amdhsa_user_sgpr_kernarg_segment_ptr 1
  .amdhsa_system_sgpr_workgroup_id_x 1
.end_amdhsa_kernel
""" % K
    return out


if __name__ == "__main__":
    import json
    opts = json.loads(sys.argv[2]) if len(sys.argv) > 2 else {}
    open(sys.argv[1], "w").write(build(opts))
```

```python
from asmlib import *
from layout import *

WS = "s[4:7]"
SQ, SK, SV, SO, SM0 = 8, 12, 16, 20, 24
sROLE, sWAVE, sXCC, sBUD = 32, 33, 34, 35
sH, sSTEP, sH2L, sH1S0, sH1L, sKX, sVX, sH1S1, sPH = 36, 37, 38, 39, 40, 41, 42, 43, 44
sKM, sVM, sFLAG, _unused, sH2S, sPF, sPROG, sT0, sT1, sBIG = 45, 46, 47, 48, 49, 50, 51, 52, 53, 54
sC1S, sC1L, sH1L2, sNEED = 55, 56, 57, 58
sH2C, sSEEN, sFS = 48, 59, 55
sFL = 8
sCM = 98
sST = 60

MEM = 112
AQ, AK, AV = 144, 152, 160
KXR, VXR = 168, 176
P = [184 + 8 * i for i in range(6)]
T0, T1 = 232, 236
IDX, VH2, SELQ, SELK, HALF, SELR = 240, 241, 242, 244, 246, 248
VL0, VL1, VSX, VH1 = 252, 253, 254, 255
VPFA, VPFD, VPRG = 248, 249, 250

LB = 147456
RA, RB = 0, 8192
WREG = 36864

STREAM_UNITS = [("Q", 0), ("K", 0), ("Q", 1), ("K", 5), ("K", 6), ("K", 7), ("O", 1, 1), ("O", 2, 1), ("O", 3, 1)]
ALL_UNITS = ([("Q", i) for i in range(8)] + [("K", i) for i in range(8)] + [("V", i) for i in range(8)]
             + [("O", u, p) for u in range(4) for p in range(2)])
RES_UNITS = [u for u in ALL_UNITS if u not in STREAM_UNITS]
assert len(RES_UNITS) == 23
RES_REG = {}
for i, u in enumerate(RES_UNITS):
    RES_REG[u] = 256 + 16 * i if i < 16 else 16 * (i - 16)
SLOT_OF = {u: (23 + k) % 9 for k, u in enumerate(STREAM_UNITS)}
STAGE = {
    ("Q", 0, 0): P[0], ("Q", 0, 1): P[1], ("K", 0, 0): P[2], ("K", 0, 1): P[3], ("Q", 1, 0): P[4], ("Q", 1, 1): P[5],
    ("K", 5, 0): P[0], ("K", 6, 0): P[1], ("K", 7, 0): P[2], ("K", 5, 1): P[3], ("K", 6, 1): P[4], ("K", 7, 1): P[5],
    ("O", 1, 1, 0): P[4], ("O", 1, 1, 1): P[5], ("O", 2, 1, 0): MEM, ("O", 2, 1, 1): MEM + 8,
    ("O", 3, 1, 0): MEM + 16, ("O", 3, 1, 1): MEM + 24,
}


def opreg(unit, t):
    if unit in RES_REG:
        return RES_REG[unit] + 8 * t
    return STAGE[unit + (t,)]


def stream_rd(unit, t):
    r = STAGE[unit + (t,)]
    off = SLOT_OF[unit] * 4096 + t * 2048
    return ["ds_read_b128 %s, %s offset:%d" % (v(r, 4), v(VL0), off),
            "ds_read_b128 %s, %s offset:%d" % (v(r + 4, 4), v(VL0), off + 1024)]


def smf(acc, aop, breg):
    return "v_smfmac_f32_16x16x64_bf16 %s, %s, %s, %s" % (v(acc, 4), v(aop, 4), R(breg, 8), v(IDX))


def W(m, t, i):
    acc = {"Q": AQ, "K": AK, "V": AV}[m] + 4 * t
    return smf(acc, MEM + 4 * i, opreg((m, i), t))


ACCO = [AK, AK + 4, P[0] + 4, T1]
OOP = [AV, AV + 4, P[1], P[3] + 4]


def WO(a_, u):
    return smf(ACCO[a_], OOP[u], opreg(("O", u, a_ // 2), a_ % 2))


def mf16(d, a_, b_, c=None):
    return "v_mfma_f32_16x16x16_bf16 %s, %s, %s, %s" % (v(d, 4), v(a_, 2), v(b_, 2), "0" if c is None else v(c, 4))


def mf32(d, a_, b_, c=None):
    return "v_mfma_f32_16x16x32_bf16 %s, %s, %s, %s" % (v(d, 4), v(a_, 4), v(b_, 4), "0" if c is None else v(c, 4))


def cvt(d, x, y):
    return "v_cvt_pk_bf16_f32 %s, %s, %s" % (v(d), v(x), v(y))


def zero(r):
    return "v_mov_b32 %s, 0" % v(r)


class Chain:
    def __init__(self, opts):
        self.o = opts
        self.dbg = opts.get("stamps", False)
        self.tot = self.dbg or opts.get("total", False)

    def prologue(self, A):
        o = self.o
        nt = "nt " if o.get("w_nt", False) else ""
        A("s_mov_b32 %s, %s" % (s(sH), s(sROLE)))
        A("s_load_dwordx4 s[8:11], s[0:1], 8")
        A("s_load_dwordx4 s[12:15], s[0:1], 24")
        A("s_load_dwordx2 s[20:21], s[0:1], 40")
        A("s_waitcnt lgkmcnt(0)")
        A("s_mov_b32 s24, s8\ns_mov_b32 s25, s9\ns_mov_b32 s26, 8192\ns_mov_b32 s27, 0x20000")
        A("s_mov_b32 s8, s10\ns_mov_b32 s9, s11\ns_mov_b32 s10, 0x400000\ns_mov_b32 s11, 0x20000")
        A("s_mov_b32 s16, s14\ns_mov_b32 s17, s15\ns_mov_b32 s18, 0x400000\ns_mov_b32 s19, 0x20000")
        A("s_mov_b32 s14, 0x400000\ns_mov_b32 s15, 0x20000")
        A("s_mov_b32 s22, 0x400000\ns_mov_b32 s23, 0x20000")
        L, N, G = T0, T0 + 1, T0 + 2
        X, Y, Z = T1, T1 + 1, T1 + 2
        DW, DO = AQ, AQ + 1
        TRW0, TRW1, TRO0, TRO1 = AQ + 2, AQ + 3, AQ + 4, AQ + 5
        A("v_and_b32 %s, 63, v0" % v(L))
        A("v_and_b32 %s, 15, %s" % (v(N), v(L)))
        A("v_lshrrev_b32 %s, 4, %s" % (v(G), v(L)))
        A("v_bfe_u32 %s, %s, 2, 1" % (v(X), v(L)))
        A("v_bfe_u32 %s, %s, 3, 1" % (v(Y), v(L)))
        A("v_lshl_add_u32 %s, %s, 5, %s" % (v(X), v(Y), v(X)))
        A("v_lshl_add_u32 %s, %s, 2, %s" % (v(X), v(G), v(X)))
        A("v_lshlrev_b32 %s, 13, %s" % (v(X), v(X)))
        A("v_and_b32 %s, 3, %s" % (v(Y), v(L)))
        A("v_bfe_u32 %s, %s, 4, 1" % (v(Z), v(L)))
        A("v_lshlrev_b32 %s, 1, %s" % (v(Z), v(Z)))
        A("v_xor_b32 %s, %s, %s" % (v(Y), v(Y), v(Z)))
        A("v_lshl_add_u32 %s, %s, 4, %s" % (v(DW), v(Y), v(X)))
        A("v_bfe_u32 %s, %s, 3, 1" % (v(X), v(L)))
        A("v_bfe_u32 %s, %s, 4, 1" % (v(Z), v(L)))
        A("v_lshl_add_u32 %s, %s, 4, %s" % (v(X), v(Z), v(X)))
        A("v_bfe_u32 %s, %s, 5, 1" % (v(Y), v(L)))
        A("v_lshl_add_u32 %s, %s, 2, %s" % (v(X), v(Y), v(X)))
        A("v_lshlrev_b32 %s, 10, %s" % (v(X), v(X)))
        A("v_and_b32 %s, 7, %s" % (v(Y), v(L)))
        A("v_lshlrev_b32 %s, 2, %s" % (v(Z), v(Z)))
        A("v_xor_b32 %s, %s, %s" % (v(Y), v(Y), v(Z)))
        A("v_lshrrev_b32 %s, 2, %s" % (v(Z), v(Y)))
        A("v_lshl_add_u32 %s, %s, 8, %s" % (v(X), v(Z), v(X)))
        A("v_and_b32 %s, 3, %s" % (v(Y), v(Y)))
        A("v_lshl_add_u32 %s, %s, 4, %s" % (v(DO), v(Y), v(X)))
        A("s_mul_i32 %s, %s, %d" % (s(sT0), s(sWAVE), WREG))
        A("v_lshrrev_b32 %s, 2, %s" % (v(X), v(L)))
        A("v_lshlrev_b32 %s, 6, %s" % (v(X), v(X)))
        A("v_and_b32 %s, 3, %s" % (v(Y), v(L)))
        A("v_lshl_add_u32 %s, %s, 3, %s" % (v(X), v(Y), v(X)))
        A("v_bfe_u32 %s, %s, 4, 1" % (v(Z), v(L)))
        A("v_lshl_add_u32 %s, %s, 5, %s" % (v(X), v(Z), v(X)))
        A("v_add_u32 %s, %s, %s" % (v(TRW0), s(sT0), v(X)))
        A("v_xor_b32 %s, 32, %s" % (v(TRW1), v(TRW0)))
        A("v_bfe_u32 %s, %s, 2, 1" % (v(X), v(L)))
        A("v_lshl_add_u32 %s, %s, 1, %s" % (v(X), v(G), v(X)))
        A("v_lshlrev_b32 %s, 7, %s" % (v(X), v(X)))
        A("v_lshl_add_u32 %s, %s, 6, %s" % (v(X), v(Z), v(X)))
        A("v_lshl_add_u32 %s, %s, 4, %s" % (v(X), v(Y), v(X)))
        A("v_bfe_u32 %s, %s, 3, 1" % (v(Y), v(L)))
        A("v_lshl_add_u32 %s, %s, 3, %s" % (v(X), v(Y), v(X)))
        A("v_add_u32 %s, %s, %s" % (v(TRO0), s(sT0), v(X)))
        A("v_xor_b32 %s, 64, %s" % (v(TRO1), v(TRO0)))
        CB, N4 = T0 + 3, T1 + 3
        A("v_bfe_u32 %s, %s, 1, 1" % (v(CB), v(L)))
        A("v_bfe_u32 %s, %s, 2, 2" % (v(N4), v(L)))
        A("v_lshlrev_b32 %s, 4, %s" % (v(X), v(L)))
        A("v_add_u32 %s, %s, %s" % (v(VL0), s(sT0), v(X)))
        A("v_add_u32 %s, %d, %s" % (v(VL1), LB, v(X)))
        A("v_lshl_add_u32 %s, %s, 10, %s" % (v(VSX), v(CB), v(VL1)))
        A("v_lshrrev_b32 %s, 3, %s" % (v(X), v(L)))
        A("s_lshl1_add_u32 %s, %s, %s" % (s(sT1), s(sWAVE), s(sH)))
        A("v_lshl_add_u32 %s, %s, 2, %s" % (v(Y), v(X), s(sT1)))
        A("v_and_b32 %s, 31, %s" % (v(Y), v(Y)))
        A("v_lshlrev_b32 %s, 13, %s" % (v(X), v(X)))
        A("v_lshl_add_u32 %s, %s, 6, %s" % (v(X), v(Y), v(X)))
        A("v_and_b32 %s, 7, %s" % (v(Y), v(L)))
        A("v_lshl_add_u32 %s, %s, 3, %s" % (v(VH1), v(Y), v(X)))
        A("v_mul_u32_u24 %s, 0xAAAA, %s" % (v(IDX), v(CB)))
        A("v_add_u32 %s, 0x4444, %s" % (v(IDX), v(IDX)))
        A("v_mov_b32 %s, 0x3F003F00\nv_mov_b32 %s, 0x3F003F00" % (v(HALF), v(HALF + 1)))
        A("v_and_b32 %s, 1, %s" % (v(X), v(L)))
        A("v_lshlrev_b32 %s, 4, %s" % (v(X), v(X)))
        A("v_cmp_eq_u32 vcc, %s, %s" % (v(G), v(N4)))
        for base, val in ((SELQ, SA_BF), (SELK, SB_BF)):
            A("v_mov_b32 %s, 0x%x" % (v(Y), val))
            A("v_lshlrev_b32 %s, %s, %s" % (v(Y), v(X), v(Y)))
            A("v_cndmask_b32 %s, 0, %s, vcc" % (v(base), v(Y)))
            A("v_mov_b32 %s, %s" % (v(base + 1), v(base)))
        A("v_bfe_u32 %s, %s, 2, 1" % (v(X), v(L)))
        A("v_lshlrev_b32 %s, 4, %s" % (v(X), v(X)))
        A("v_mov_b32 %s, 0x3F80" % v(Y))
        A("v_lshlrev_b32 %s, %s, %s" % (v(Y), v(X), v(Y)))
        A("v_bfe_u32 %s, %s, 3, 1" % (v(Z), v(L)))
        A("v_and_b32 %s, 1, %s" % (v(X), v(L)))
        A("v_lshl_add_u32 %s, %s, 1, %s" % (v(Z), v(X), v(Z)))
        for rho in range(4):
            A("v_cmp_eq_u32 vcc, %d, %s" % (rho, v(Z)))
            A("v_cndmask_b32 %s, 0, %s, vcc" % (v(SELR + rho), v(Y)))
        A("v_lshlrev_b32 %s, 2, %s" % (v(X), v(X)))
        A("v_lshl_add_u32 %s, %s, 28, %s" % (v(X), v(N4), v(X)))
        A("v_lshl_add_u32 %s, %s, 8, %s" % (v(X), v(CB), v(X)))
        A("v_and_b32 %s, 16, %s" % (v(Y), v(L)))
        A("v_add_u32 %s, %s, %s" % (v(X), v(Y), v(X)))
        A("v_bfe_u32 %s, %s, 5, 1" % (v(Y), v(L)))
        A("v_lshl_add_u32 %s, %s, 3, %s" % (v(VH2), v(Y), v(X)))
        M0A = AQ + 6
        A("v_and_b32 %s, 1, %s" % (v(X), v(L)))
        A("v_lshl_add_u32 %s, %s, 1, %s" % (v(X), v(N4), v(X)))
        A("v_lshlrev_b32 %s, 10, %s" % (v(X), v(X)))
        A("v_lshl_add_u32 %s, %s, 6, %s" % (v(X), v(CB), v(X)))
        A("v_lshl_add_u32 %s, %s, 4, %s" % (v(M0A), v(G), v(X)))

        sWB, sOB, sLB_ = sKM, sVM, sFLAG
        A("s_lshl_b32 %s, %s, 8" % (s(sWB), s(sH)))
        A("s_lshl_b32 %s, %s, 6" % (s(sT1), s(sWAVE)))
        A("s_add_u32 %s, %s, %s" % (s(sWB), s(sWB), s(sT1)))
        A("s_lshl_b32 %s, %s, 17" % (s(sOB), s(sH)))
        A("s_add_u32 %s, %s, %s" % (s(sOB), s(sOB), s(sT1)))
        A("s_mov_b32 %s, %s" % (s(sLB_), s(sT0)))

        def dma(unit, slot):
            if unit[0] == "O":
                A("s_add_u32 %s, %s, %d\ns_and_b32 %s, %s, 3\ns_lshl_b32 %s, %s, 15" % (
                    s(sT0), s(sWAVE), unit[1], s(sT0), s(sT0), s(sT0), s(sT0)))
                A("s_add_u32 %s, %s, %s" % (s(sT0), s(sT0), s(sOB)))
                srd, vo = s(SO, 4), DO
                offs = [(8 * (r // 2) + 2 * (r % 2)) * 1024 + 512 * unit[2] for r in range(4)]
            else:
                A("s_lshl1_add_u32 %s, %s, %d\ns_and_b32 %s, %s, 7\ns_lshl_b32 %s, %s, 19" % (
                    s(sT0), s(sWAVE), unit[1], s(sT0), s(sT0), s(sT0), s(sT0)))
                A("s_add_u32 %s, %s, %s" % (s(sT0), s(sT0), s(sWB)))
                srd, vo = s({"Q": SQ, "K": SK, "V": SV}[unit[0]], 4), DW
                offs = [(16 * (r // 2) + 2 * (r % 2)) * 8192 for r in range(4)]
            for r in range(4):
                A("s_add_u32 m0, %s, %d" % (s(sLB_), slot * 4096 + r * 1024))
                A("s_add_u32 %s, %s, %d" % (s(sT1), s(sT0), offs[r]))
                A("buffer_load_dwordx4 %s, %s, %s offen %slds" % (v(vo), srd, s(sT1), nt))

        def trread(unit, slot, dst):
            ad = (TRO0, TRO1) if unit[0] == "O" else (TRW0, TRW1)
            for t in range(2):
                for r in range(4):
                    A("ds_read_b64_tr_b16 %s, %s offset:%d" % (R(dst + 8 * t + 2 * r, 2), v(ad[t]), slot * 4096 + r * 1024))

        seq = RES_UNITS + STREAM_UNITS
        self.poison_init(A)
        self.flag_init(A)
        for i in range(9):
            dma(seq[i], i)
        self.announce(A)
        for i in range(32):
            left = min(8, 31 - i)
            A("s_waitcnt vmcnt(%d)" % (4 * left))
            u = seq[i]
            if i < 23:
                trread(u, i % 9, RES_REG[u])
                A("s_waitcnt lgkmcnt(0)")
                dma(seq[i + 9], i % 9)
            else:
                trread(u, i % 9, P[0])
                A("s_waitcnt lgkmcnt(0)")
                for q in range(4):
                    A("ds_write_b128 %s, %s offset:%d" % (v(VL0), v(P[0] + 4 * q, 4), (i % 9) * 4096 + q * 1024))
                A("s_waitcnt lgkmcnt(0)")
        for q in range(8):
            A("s_mov_b32 %s, 0" % s(sFL + q))
        A("s_mov_b32 %s, 0" % s(sSTEP))
        A("s_lshl_b32 %s, %s, 11" % (s(sT0), s(sWAVE)))
        A("s_add_u32 %s, %s, %d" % (s(sH2L), s(sT0), MEMB - LB))
        A("s_lshr_b32 %s, %s, 4\ns_lshl_b32 %s, %s, 10\ns_add_u32 %s, %s, %s" % (s(sT1), s(sH), s(sT1), s(sT1), s(sT1), s(sT1), s(sT0)))
        A("s_and_b32 %s, %s, 6\ns_lshl_b32 %s, %s, 5\ns_add_u32 %s, %s, %s" % (s(sPH), s(sH), s(sPH), s(sPH), s(sT1), s(sT1), s(sPH)))
        A("s_and_b32 %s, %s, 8\ns_lshl2_add_u32 %s, %s, %s" % (s(sPH), s(sH), s(sT1), s(sPH), s(sT1)))
        A("s_and_b32 %s, %s, 1\ns_lshl_b32 %s, %s, 9\ns_add_u32 %s, %s, %s" % (s(sPH), s(sH), s(sPH), s(sPH), s(sT1), s(sT1), s(sPH)))
        A("s_add_u32 %s, %s, %d" % (s(sH2S), s(sT1), MEMB + 8192))
        A("s_add_u32 %s, %s, %d" % (s(sH2C), s(sT1), MEMC))
        A("s_lshl_b32 %s, %s, 16" % (s(sH1S0), s(sWAVE)))
        A("s_add_u32 %s, %s, %d" % (s(sH1S0), s(sH1S0), INB1))
        A("s_add_u32 %s, %s, 4096" % (s(sH1S1), s(sH1S0)))
        A("s_lshl_b32 %s, %s, 13" % (s(sT1), s(sH)))
        A("s_add_u32 %s, %s, %s" % (s(sKX), s(sT1), s(sT0)))
        A("s_add_u32 %s, %s, %d" % (s(sH1L), s(sKX), INB1 - LB))
        A("s_mov_b32 %s, 0" % s(sPH))
        A("s_add_u32 %s, %s, %d" % (s(sKX), s(sKX), KX - LB))
        A("s_add_u32 %s, %s, %d" % (s(sVX), s(sKX), VX - KX))
        A("s_cmp_eq_u32 %s, 2" % s(sWAVE))
        A("s_cselect_b32 %s, %d, 0" % (s(sPF), VX - KX))
        A("s_add_u32 %s, %s, %d" % (s(sPF), s(sPF), KX + 262144 - 8 * LB))
        A("s_add_u32 %s, %s, %s" % (s(sPF), s(sPF), s(sT1)))
        A("s_cmp_eq_u32 %s, 3" % s(sWAVE))
        A("s_cselect_b32 %s, %d, %s" % (s(sPF), MEMB + 8192 - 8 * LB, s(sPF)))
        A("s_cmp_eq_u32 %s, 2" % s(sWAVE))
        A("s_cselect_b32 %s, %d, 0" % (s(sPROG), 16 * 128))
        A("s_add_u32 %s, %s, %d" % (s(sPROG), s(sPROG), FLAGS + F_P + 16 * 128))
        A("s_lshr_b32 %s, %s, 1\ns_lshl_b32 %s, %s, 7" % (s(sT1), s(sH), s(sT1), s(sT1)))
        A("s_add_u32 %s, %s, %s" % (s(sPROG), s(sPROG), s(sT1)))
        A("s_mov_b32 m0, %d" % (LB + RB + 4096))
        A("s_mov_b32 %s, 0x5D800000" % s(sBIG))
        A("s_mov_b32 %s, 0xCCCCCCCC\ns_mov_b32 %s, 0xCCCCCCCC" % (s(sCM), s(sCM + 1)))
        A("s_lshl_b32 %s, %s, 8" % (s(sT0), s(sWAVE)))
        A("buffer_load_dwordx4 %s, %s, %s, %s offen" % (v(MEM, 4), v(M0A), s(SM0, 4), s(sT0)))
        A("buffer_load_dwordx4 %s, %s, %s, %s offen offset:128" % (v(MEM + 4, 4), v(M0A), s(SM0, 4), s(sT0)))
        self.wait_dbg(A, DBG_INIT, 1, mask=None)
        self.wait_dbg(A, DBG_CHAIN_READY, 32, mask=0xFFFF)
        A("s_lshr_b32 %s, %s, 16" % (s(sXCC), s(sT1)))
        A("v_and_b32 %s, 12, %s" % (v(T0 + 1), v(VH2)))
        A("v_bfe_u32 %s, %s, 4, 1" % (v(T0 + 2), v(VH2)))
        A("v_lshl_add_u32 %s, %s, 10, %s" % (v(T0 + 1), v(T0 + 2), v(T0 + 1)))
        A("v_bfe_u32 %s, %s, 8, 1" % (v(T0 + 2), v(VH2)))
        A("v_lshl_add_u32 %s, %s, 4, %s" % (v(T0 + 1), v(T0 + 2), v(T0 + 1)))
        A("s_and_b32 %s, %s, 6\ns_lshl_b32 %s, %s, 10\ns_and_b32 %s, %s, 24\ns_lshl3_add_u32 %s, %s, %s" % (
            s(sT0), s(sH), s(sT0), s(sT0), s(sT1), s(sH), s(sT0), s(sT1), s(sT0)))
        A("s_and_b32 %s, %s, 1\ns_lshl3_add_u32 %s, %s, %s\ns_lshl_b32 %s, %s, 5\ns_add_u32 %s, %s, %s" % (
            s(sT1), s(sH), s(sT1), s(sWAVE), s(sT1), s(sT1), s(sT1), s(sT0), s(sT0), s(sT1)))
        A("buffer_load_dword %s, %s, %s, %s offen" % (v(T0 + 1), v(T0 + 1), s(SM0, 4), s(sT0)))
        lab = A.uid("c_rdy")
        A("v_lshlrev_b32 %s, 3, %s" % (v(T0), v(VL1)))
        A("s_and_b32 %s, %s, 1\ns_lshr_b32 %s, %s, 1\ns_cmp_eq_u32 %s, %s\ns_cbranch_scc1 %s" % (
            s(sT0), s(sWAVE), s(sT1), s(sWAVE), s(sT0), s(sT1), lab))
        A("s_mov_b32 %s, 3" % s(sNEED))
        self.progress(A)
        A.label(lab)
        A("s_lshl_b32 %s, %s, 13\ns_add_u32 %s, %s, %d" % (s(sT0), s(sH), s(sT0), s(sT0), INB1 - 8 * LB))
        A("s_cmp_eq_u32 %s, 0\ns_cselect_b32 %s, %s, %s" % (s(sWAVE), s(sT0), s(sT0), s(sPF)))
        A("buffer_load_dword %s, %s, %s offen lds" % (v(T0), WS, s(sT0)))
        A("s_cmp_eq_u32 %s, 3\ns_cselect_b32 %s, 8192, 262144" % (s(sWAVE), s(sT0))) if False else None
        A("s_mov_b32 %s, 262144\ns_cmp_eq_u32 %s, 3\ns_cselect_b32 %s, 8192, %s" % (s(sT0), s(sWAVE), s(sT0), s(sT0)))
        A("s_add_u32 %s, %s, %s" % (s(sPF), s(sPF), s(sT0)))
        A("s_barrier")
        for r, sb in ((KXR, sKX), (VXR, sVX)):
            A("buffer_load_dwordx4 %s, %s, %s, %s offen sc1" % (v(r, 4), v(VL1), WS, s(sb)))
            A("buffer_load_dwordx4 %s, %s, %s, %s offen offset:1024 sc1" % (v(r + 4, 4), v(VL1), WS, s(sb)))
        A("s_add_u32 %s, %s, 262144\ns_add_u32 %s, %s, 262144" % (s(sKX), s(sKX), s(sVX), s(sVX)))
        self.window_a(A)
        self.window_b(A)
        A("s_waitcnt vmcnt(0) lgkmcnt(0)")
        if self.dbg:
            self.calib(A, 0)
        if self.tot:
            A("s_memtime s[92:93]\ns_memrealtime s[88:89]\ns_waitcnt lgkmcnt(0)")
        for slow in (0, 1):
            for w in range(4):
                lab = A.uid("c_dsp")
                A("s_cmp_lg_u32 %s, %d\ns_cbranch_scc1 %s" % (s(sWAVE), w, lab))
                if slow == 0:
                    A("s_cmp_lg_u32 %s, 0\ns_cbranch_scc1 %s" % (s(sXCC), lab))
                A("s_branch c_entry_%d_%d" % (slow, w))
                A.label(lab)
        A("s_endpgm")

    def calib(self, A, slot):
        lab = A.uid("c_cal")
        A("s_memrealtime s[60:61]\ns_waitcnt lgkmcnt(0)")
        A.label(lab)
        A("s_memrealtime s[62:63]\ns_memtime s[64:65]\ns_waitcnt lgkmcnt(0)")
        A("s_cmp_eq_u32 s62, s60\ns_cbranch_scc1 %s" % lab)
        A("v_mov_b32 %s, s62\nv_mov_b32 %s, s64" % (v(T0), v(T0 + 1)))
        A("s_lshl_b32 %s, %s, 6\ns_lshl_b32 %s, %s, 4\ns_add_u32 %s, %s, %s\ns_add_u32 %s, %s, %d" % (
            s(sT0), s(sH), s(sT1), s(sWAVE), s(sT0), s(sT0), s(sT1), s(sT0), s(sT0), STAMP + 2048 + 8 * slot))
        A("buffer_store_dwordx2 %s, off, %s, %s" % (v(T0, 2), WS, s(sT0)))
        A("s_waitcnt vmcnt(0)")

    def poison_init(self, A):
        PO = P[5]
        for i in range(4):
            A("v_mov_b32 %s, -1" % v(PO + i))
        A("s_lshl_b32 %s, %s, 13\ns_lshl_b32 %s, %s, 11" % (s(sT0), s(sH), s(sT1), s(sWAVE)))
        A("s_add_u32 %s, %s, %s\ns_add_u32 %s, %s, %d" % (s(sT0), s(sT0), s(sT1), s(sT0), s(sT0), INB1 - LB))
        for q in range(2):
            A("buffer_store_dwordx4 %s, %s, %s, %s offen offset:%d sc1" % (v(PO, 4), v(VL1), WS, s(sT0), 1024 * q))
        X = PO + 4
        A("v_lshlrev_b32 %s, 13, %s" % (v(X), v(T0 + 2)))
        A("v_lshl_add_u32 %s, %s, 4, %s" % (v(X), v(T0 + 1), v(X)))
        A("s_lshl_b32 %s, %s, 8\ns_lshl_b32 %s, %s, 17" % (s(sT0), s(sH), s(sT1), s(sWAVE)))
        A("s_add_u32 %s, %s, %s\ns_add_u32 %s, %s, %d" % (s(sT0), s(sT0), s(sT1), s(sT0), s(sT0), MEMB))
        for q in range(4):
            A("buffer_store_dwordx4 %s, %s, %s, %s offen sc1" % (v(PO, 4), v(X), WS, s(sT0)))
            A("s_add_u32 %s, %s, %d" % (s(sT1), s(sT0), MEMC - MEMB))
            A("buffer_store_dwordx4 %s, %s, %s, %s offen sc1" % (v(PO, 4), v(X), WS, s(sT1)))
            A("s_add_u32 %s, %s, 32768" % (s(sT0), s(sT0)))

    def flag_init(self, A):
        X = P[5] + 5
        A("s_cmp_eq_u32 %s, 0\ns_cselect_b32 %s, %s, 0\ns_add_u32 %s, %s, %d" % (s(sWAVE), s(sFS), s(sH), s(sFS), s(sFS), FL1))
        lab = A.uid("c_f1")
        A("s_cmp_lg_u32 %s, 0\ns_cbranch_scc1 %s" % (s(sWAVE), lab))
        A("v_mov_b32 %s, 0" % v(X))
        A("s_mov_b64 exec, 1")
        A("buffer_store_byte %s, off, %s, %s" % (v(X), WS, s(sFS)))
        A("s_mov_b64 exec, -1")
        A.label(lab)

    def announce(self, A):
        X = P[5] + 4
        A("s_waitcnt vmcnt(36)")
        A("s_barrier")
        lab = A.uid("c_ann")
        A("s_cmp_lg_u32 %s, 0\ns_cbranch_scc1 %s" % (s(sWAVE), lab))
        A("s_cmp_lg_u32 %s, 0\ns_cselect_b32 %s, 0x10001, 1" % (s(sXCC), s(sT0)))
        A("v_mov_b32 %s, %s" % (v(X), s(sT0)))
        A("s_mov_b64 exec, 1")
        A("buffer_atomic_add %s, off, s[28:31], 0 offset:%d" % (v(X), DBG_CHAIN_READY))
        A("s_mov_b64 exec, -1")
        A.label(lab)

    def budget(self, A, give_up):
        A("s_cmp_eq_u32 %s, 0\ns_cbranch_scc1 %s\ns_sub_u32 %s, %s, 1" % (s(sBUD), give_up, s(sBUD), s(sBUD)))

    def wait_dbg(self, A, off, want, mask):
        top, done = A.uid("c_wd"), A.uid("c_wdd")
        A.label(top)
        A("buffer_load_dword %s, off, s[28:31], 0 offset:%d sc1" % (v(T1), off))
        A("s_waitcnt vmcnt(0)")
        A("v_readfirstlane_b32 %s, %s" % (s(sT1), v(T1)))
        if mask is None:
            A("s_cmp_ge_u32 %s, %d" % (s(sT1), want))
        else:
            A("s_and_b32 %s, %s, 0x%x\ns_cmp_ge_u32 %s, %d" % (s(sT0), s(sT1), mask, s(sT0), want))
        A("s_cbranch_scc1 %s" % done)
        self.budget(A, done)
        A("s_sleep 2\ns_branch %s" % top)
        A.label(done)

    def spin_ge(self, A, soff, want, vreg):
        top, done = A.uid("c_sp"), A.uid("c_spd")
        A.label(top)
        A("buffer_load_dword %s, off, %s, %s sc1" % (v(vreg), WS, s(soff)))
        A("s_waitcnt vmcnt(0)")
        A("v_readfirstlane_b32 %s, %s" % (s(sT1), v(vreg)))
        A("s_cmp_ge_u32 %s, %s" % (s(sT1), want))
        A("s_cbranch_scc1 %s" % done)
        self.budget(A, done)
        A("s_sleep 2\ns_branch %s" % top)
        A.label(done)

    def progress(self, A):
        top, done = A.uid("c_sp"), A.uid("c_spd")
        A.label(top)
        A("buffer_load_dword %s, off, %s, %s sc1" % (v(T1), WS, s(sPROG)))
        A("s_waitcnt vmcnt(0)")
        A("v_readfirstlane_b32 %s, %s" % (s(sSEEN), v(T1)))
        A("s_cmp_ge_u32 %s, %s" % (s(sSEEN), s(sNEED)))
        A("s_cbranch_scc1 %s" % done)
        self.budget(A, done)
        A("s_sleep 2\ns_branch %s" % top)
        A.label(done)

    def window_a(self, A):
        for u in STREAM_UNITS[:3]:
            for t in range(2):
                A("\n".join(stream_rd(u, t)))

    def window_b(self, A):
        for k, r in enumerate(range(AQ, AQ + 24, 2)):
            A("v_mov_b64 %s, 0" % v(r, 2))
            if k % 2 == 1:
                A("s_nop 0")

    def stamp(self, A, k):
        pass

    def add_stamps(self, lines, main=True):
        import re
        out, k = [], 0
        stride, phase = self.o.get("every", (20, 0))
        at = [re.compile(p) for p in self.o.get("at", [])]
        n = 0
        self.stamp_pos = []
        for l in lines:
            if l == "; DUMP":
                break
            if not at and not l.endswith(":") and not l.startswith(";"):
                if n % stride == phase and k < 15:
                    out.append("s_memtime s[%d:%d]" % (sST + 2 * k, sST + 2 * k + 1))
                    self.stamp_pos.append(n)
                    k += 1
                n += 1
            if not l.endswith(":") and not l.startswith(";"):
                if at and main and n == self.o.get("nth", -1):
                    out.append("s_memtime s[%d:%d]" % (sST + 28, sST + 29))
                n += 1 if at else 0
            out.append(l)
            for q, p in enumerate(at):
                if p.search(l):
                    out.append("s_memtime s[%d:%d]" % (sST + 2 * q, sST + 2 * q + 1))
        return out + lines[lines.index("; DUMP") + 1:]

    def loop(self, w, slow):
        A = Asm()
        B = Asm()
        A._uid = B._uid = 1000 * (1 + w + 4 * slow)
        B._uid += 500
        o = {k: (x[w] if isinstance(x, list) and k not in ("at", "more", "drop", "every") else x) for k, x in self.o.items()}
        hs = " sc1" if slow else ""
        ks = lambda i: (2 * w + i) % 8
        tag = "%d_%d" % (slow, w)
        top, entry, fin = "c_top_" + tag, "c_entry_" + tag, "c_fin_" + tag
        E, Lr = MEM, MEM + 4
        CK, FL = T1 + 2, T1 + 3

        ldE = "buffer_load_dwordx4 %s, %s, %s, %s offen sc1" % (v(E, 4), v(VL1), WS, s(sH2L))
        ldL = "buffer_load_dwordx4 %s, %s, %s, %s offen offset:1024 sc1" % (v(Lr, 4), v(VL1), WS, s(sH2L))

        def check(r, bad):
            A("v_max3_u32 %s, %s, %s, %s" % (v(CK), v(r), v(r + 1), v(r + 2)))
            A("v_max_u32 %s, %s, %s" % (v(CK), v(CK), v(r + 3)))
            A("v_cmp_eq_u32 vcc, -1, %s" % v(CK))
            A("s_cbranch_vccnz %s" % bad)

        def nops(n):
            while n > 0:
                A("s_nop %d" % (min(n, 16) - 1))
                n -= 16

        A.label(entry)
        A.label("c_okL_" + tag)
        if o.get("lateexit"):
            A("s_cmp_eq_u32 %s, %d\ns_cbranch_scc1 %s" % (s(sSTEP), NSEG - 1, fin))
        A("ds_write_b128 %s, %s offset:%d" % (v(VL1), v(E, 4), RA + ks(0) * 1024))
        A("ds_write_b128 %s, %s offset:%d" % (v(VL1), v(Lr, 4), RA + ks(1) * 1024))
        A(W("Q", 0, 0))
        A(W("Q", 1, 0))
        A(W("K", 0, 0))
        A(W("K", 1, 0))
        A(W("Q", 0, 1))
        A(W("Q", 1, 1))
        A("s_waitcnt lgkmcnt(0)")
        A("s_barrier ; B1")
        rd = ["ds_read_b128 %s, %s offset:%d" % (v(MEM + 4 * i, 4), v(VL1), RA + ks(i) * 1024) for i in range(2, 8)]
        A(rd[0])
        A(rd[1])
        A(W("K", 0, 1))
        A(rd[2])
        A(rd[3])
        A(W("K", 1, 1))
        A(rd[4])
        A(rd[5])
        A(W("V", 0, 0))
        A(W("V", 1, 0))
        A(W("V", 0, 1))
        if w > 0:
            A("v_lshlrev_b32 %s, 3, %s" % (v(T0 + 2), v(VL1)))
        A(W("V", 1, 1))
        gb = []
        for t in range(2):
            for i in (5, 6, 7):
                gb += stream_rd(("K", i), t)
        fill = []
        memc = "buffer_store_dword %s, %s, %s, %s offen sc1" % (v(T0 + 1), v(VH2), WS, s(sH2C))
        pf = "buffer_load_dword %s, %s, %s offen lds" % (v(T0 + 2), WS, s(sPF))
        npend = 2 if w else 1
        QB, QOP, KOP, VB = T0, T1, P[2], P[2] + 4
        for i in range(2, 8):
            A("s_waitcnt lgkmcnt(5)")
            A(W("Q", 0, i))
            A(gb[i - 2])
            if fill:
                A(fill.pop(0))
        A(W("Q", 1, 2))
        A(gb[6])
        A(W("Q", 1, 3))
        A(gb[7])
        A(cvt(QB, AQ, AQ + 1))
        A(W("Q", 1, 4))
        A(gb[8])
        A(cvt(QB + 1, AQ + 2, AQ + 3))
        A(W("Q", 1, 5))
        A(gb[9])
        A(mf16(AQ, QB, SELQ))
        A(gb[10])
        A(W("Q", 1, 6))
        A(gb[11])
        A(W("Q", 1, 7))
        z64 = lambda r: "v_mov_b64 %s, 0" % v(r, 2)
        add = lambda d, x, y: "v_add_f32 %s, %s, %s" % (v(d), v(x), v(y))
        dpp = lambda d, x, q: "v_mov_b32_dpp %s, %s quad_perm:%s row_mask:0xf bank_mask:0xf" % (v(d), v(x), q)
        addx = lambda r: "v_add_f32_dpp %s, %s, %s quad_perm:[2,3,0,1] row_mask:0xf bank_mask:0xf" % (v(r), v(r), v(r))
        ex = lambda d, x: "v_exp_f32 %s, %s" % (v(d), v(x))
        X = [P[0], P[0] + 4, P[1], P[1] + 4]
        M = P[3]
        EX, EB, AL, EM = X[1], X[2], X[3], T0
        RR, TT = T0 + 2, T0 + 3
        sel = ["v_cndmask_b32 %s, %s, %s, %s" % (v(AQ + r), v(AQ + r), v(AQ + 4 + r), s(sCM, 2)) for r in range(4)]
        xr = ["ds_read_b128 %s, %s offset:%d" % (v(X[q], 4), v(VL1), RB + q * 1024) for q in range(4)]
        gc1 = stream_rd(("O", 1, 1), 0) + stream_rd(("O", 1, 1), 1)
        gc2 = stream_rd(("O", 2, 1), 0) + stream_rd(("O", 3, 1), 0) + stream_rd(("O", 2, 1), 1) + stream_rd(("O", 3, 1), 1)
        kvl = ["buffer_load_dwordx4 %s, %s, %s, %s offen offset:%d sc1" % (v(r + 4 * q, 4), v(VL1), WS, s(sb), 1024 * q)
               for r, sb in ((KXR, sKX), (VXR, sVX)) for q in range(2)]
        seq = [
            cvt(QOP, AQ, AQ + 1), W("K", 0, 2), cvt(QOP + 1, AQ + 2, AQ + 3), W("K", 0, 3),
            cvt(QB + 2, AQ + 4, AQ + 5), cvt(QB + 3, AQ + 6, AQ + 7), W("K", 0, 4), mf16(AQ + 4, QB + 2, SELQ),
            "s_waitcnt lgkmcnt(0)", W("K", 0, 5), W("K", 0, 6),
            cvt(QOP + 2, AQ + 4, AQ + 5), cvt(QOP + 3, AQ + 6, AQ + 7), W("K", 0, 7),
            "s_waitcnt vmcnt(%d)" % npend, mf32(AQ, KXR, QOP), mf32(AQ + 4, KXR + 4, QOP),
            cvt(QB, AK, AK + 1), cvt(QB + 1, AK + 2, AK + 3), W("K", 1, 2), mf16(AK, QB, SELK),
            sel[0], sel[1], sel[2], sel[3], W("K", 1, 3),
            "ds_write_b128 %s, %s offset:%d" % (v(VL1), v(AQ, 4), RB + w * 1024),
            W("K", 1, 4), cvt(KOP, AK, AK + 1), W("K", 1, 5), cvt(KOP + 1, AK + 2, AK + 3), W("K", 1, 6), W("K", 1, 7),
            W("V", 0, 2), W("V", 1, 2), cvt(QB + 2, AK + 4, AK + 5), cvt(QB + 3, AK + 6, AK + 7),
            "s_waitcnt lgkmcnt(0)", "s_barrier ; B2", mf16(AK + 4, QB + 2, SELK), xr[0], xr[1],
            W("V", 0, 3), xr[2], xr[3], W("V", 1, 3),
            cvt(KOP + 2, AK + 4, AK + 5), cvt(KOP + 3, AK + 6, AK + 7), W("V", 0, 4), mf32(AK, KOP, QOP),
            "s_waitcnt lgkmcnt(2)"] + [add(X[0] + r, X[0] + r, X[1] + r) for r in range(4)] + [
            W("V", 1, 4),
            "ds_write_b64 %s, %s offset:%d" % (v(VL1), v(AK, 2), RA + (w // 2) * 1024 + (w % 2) * 8),
            "s_waitcnt lgkmcnt(1)"] + [add(X[2] + r, X[2] + r, X[3] + r) for r in range(4)] + [
            W("V", 0, 5)] + [add(X[0] + r, X[0] + r, X[2] + r) for r in range(4)] + [
            ex(EX, X[0]), ex(EX + 1, X[0] + 1), W("V", 1, 5),
            "s_waitcnt lgkmcnt(0)", "s_barrier ; B3",
            "ds_read_b128 %s, %s offset:%d" % (v(M, 4), v(VSX), RA), W("V", 0, 6), gc1[0], gc1[1],
            ex(EX + 2, X[0] + 2), ex(EX + 3, X[0] + 3), cvt(EX, EX, EX + 1), cvt(EX + 1, EX + 2, EX + 3),
            W("V", 0, 7), gc1[2], gc1[3], dpp(EB, EX, "[0,1,0,1]"), mf16(AL, HALF, EX),
            dpp(EB + 1, EX + 1, "[0,1,0,1]"), dpp(EB + 2, EX, "[2,3,2,3]"), dpp(EB + 3, EX + 1, "[2,3,2,3]"),
            W("V", 1, 6), "s_waitcnt lgkmcnt(4)", add(M, M, M + 2), W("V", 1, 7), gc2[0], gc2[1], add(M + 1, M + 1, M + 3),
            mf32(AQ, VXR, EB), gc2[2], addx(M), addx(M + 1),
            mf32(AQ + 4, VXR + 4, EB), gc2[3], ex(M + 2, M), ex(M + 3, M + 1), addx(AL),
            cvt(EM, M + 2, M + 3), cvt(EM + 1, M + 2, M + 3), add(AL, AL, AL),
            cvt(VB, AV, AV + 1), cvt(VB + 1, AV + 2, AV + 3),
            mf16(AL, HALF, EM, AL), cvt(VB + 2, AV + 4, AV + 5), cvt(VB + 3, AV + 6, AV + 7), z64(ACCO[0]),
            mf16(AQ, VB, EM, AQ), z64(ACCO[0] + 2), z64(ACCO[1]), z64(ACCO[1] + 2),
            mf16(AQ + 4, VB + 2, EM, AQ + 4)]
        A("\n".join(seq))
        self.normalize(A, w, AL, [z64(ACCO[2]), z64(ACCO[2] + 2), "v_max_f32 %s, %s, %s" % (v(TT), v(AL), v(RR))], [])
        A(WO(0, 0))
        A("v_cmp_ngt_f32 vcc, %s, %s" % (s(sBIG), v(TT)))
        A(WO(1, 0))
        A(z64(ACCO[3]))
        A(z64(ACCO[3] + 2))
        A("s_cbranch_vccnz c_slow_" + tag)
        A.label("c_back_" + tag)
        self.fallback(B, w, tag, X, M)
        A("s_waitcnt lgkmcnt(0)")
        A("s_barrier ; B4")
        for u in range(1, 4):
            A("ds_read_b128 %s, %s offset:%d" % (v(OOP[u], 4), v(VL1), RB + ((w + u) % 4) * 1024))
        A(WO(2, 0))
        A(gc2[4])
        A(WO(3, 0))
        sal = ["s_add_u32 %s, %s, 1" % (s(sSTEP), s(sSTEP)), "s_add_u32 %s, %s, 8192" % (s(sH2L), s(sH2L))]
        sal += ["s_add_u32 %s, %s, 262144" % (s(r), s(r)) for r in (sKX, sVX)]
        sal += ["s_add_u32 %s, %s, %d" % (s(sPF), s(sPF), 8192 if w == 3 else 262144)]
        sal += ["s_add_u32 %s, %s, 3" % (s(sNEED), s(sSTEP)), "s_min_u32 %s, %s, %d" % (s(sNEED), s(sNEED), NSEG - 1)]
        tagd = lambda r: "v_bfi_b32 %s, 1, %s, %s" % (v(r), s(sPH), v(r))
        st1 = lambda a_: "buffer_store_dwordx2 %s, %s, %s, %s offen offset:%d%s ; S%d" % (
            v(AQ + 2 * a_, 2), v(VH1), WS, s(sH1S1 if a_ > 1 else sH1S0), 2048 * (a_ % 2), hs, a_)
        c0 = lambda a_: cvt(AQ + 2 * a_, ACCO[a_], ACCO[a_] + 1)
        c1 = lambda a_: cvt(AQ + 2 * a_ + 1, ACCO[a_] + 2, ACCO[a_] + 3)
        t0 = lambda a_: tagd(AQ + 2 * a_)
        t1 = lambda a_: tagd(AQ + 2 * a_ + 1)
        seq = ["s_waitcnt lgkmcnt(3)", WO(0, 1), gc2[5], sal[0], "s_waitcnt lgkmcnt(3)", WO(0, 2), gc2[6], sal[1],
               "s_waitcnt lgkmcnt(3)", WO(0, 3), gc2[7], sal[2], WO(1, 1), sal[3], sal[4], WO(1, 2), c0(0), c1(0),
               WO(1, 3), t0(0), t1(0), WO(2, 1), st1(0), WO(2, 2), c0(1), c1(1), WO(2, 3), t0(1), t1(1),
               WO(3, 1), st1(1), "s_waitcnt lgkmcnt(0)", WO(3, 2), c0(2), c1(2), WO(3, 3), t0(2), t1(2), sal[5], sal[6], st1(2),
               c0(3), c1(3), t0(3), t1(3), st1(3)]
        A("\n".join(seq))
        ins = {}
        ins.setdefault(o.get("mc0", 7) + o.get("mcs", 1) * w, []).extend([memc, "s_add_u32 %s, %s, 8192" % (s(sH2C), s(sH2C))])
        if w:
            ins.setdefault(o.get("pf0", 12) + o.get("pfs", 4) * (w - 1), []).append(pf)
        for q in range(2):
            ins.setdefault(o.get("kx0", 36) + o.get("kxs", 1) * w + o.get("kxq", 16) * q, []).append(kvl[q])
        for q in range(2):
            ins.setdefault(o.get("vx", [[58, 61], [59, 62], [60, 63], [61, 64]][w])[q], []).append(kvl[2 + q])
        hint = o.get("hint", 0) and not slow
        if hint and w == 0:
            fp = o.get("fp", 66)
            ins.setdefault(fp - 1, []).extend(["s_sub_u32 %s, %s, 1" % (s(sT0), s(sPH)), "v_mov_b32 %s, %s" % (v(T0), s(sT0))])
            ins.setdefault(fp, []).extend(["s_mov_b64 exec, 1", "buffer_store_byte %s, off, %s, %s" % (v(T0), WS, s(sFS)), "s_mov_b64 exec, -1"])
        res, k = [], 0
        for l in A.lines:
            res.append(l)
            if "mfma" in l:
                res += ins.pop(k, [])
                k += 1
        assert not ins
        A.lines = res
        if self.dbg and o.get("lastonly"):
            A("; DUMP0")
            A("; DUMP1")
        elif self.dbg:
            A("; DUMP0")
            A("s_waitcnt lgkmcnt(0)")
            self.dump_stamps(A, w)
            A("; DUMP1")
        H, AR, TG, XS = MEM + 8, T1, T0, T0 + 1
        if w in (1, 2):
            A("s_cmp_lt_u32 %s, %s\ns_cbranch_scc1 c_prg_%s" % (s(sSEEN), s(sNEED), tag))
            A.label("c_prgok_" + tag)
            B.label("c_prg_" + tag)
            B("s_nop 7")
            self.progress(B)
            B("s_branch c_prgok_" + tag)
        wa = Asm()
        self.window_a(wa)
        wa = wa.lines
        zr = ["v_mov_b64 %s, 0" % v(r, 2) for r in range(AQ, AQ + 24, 2)]
        zr = zr[4:] + zr[:4]
        n1, n2, n3, z1, z2 = o.get("n1", 6), o.get("n2", 6), o.get("n3", 12), o.get("z1", 0), o.get("z2", 12)
        two1, two2 = o.get("two1", 1), o.get("two2", 1)
        A("\n".join(zr[:z1] + wa[:n1]))
        if o.get("ack1") is not None:
            A("s_waitcnt vmcnt(%d)" % o["ack1"])
        nops(o.get("delay1", 0))
        hl = lambda r: "\n".join("buffer_load_dwordx4 %s, %s, %s, %s offen offset:%d sc1" % (
            v(r + 4 * it, 4), v(VL1), WS, s(sH1L), it * 1024) for it in range(2))
        A.label("c_pfd_" + tag)
        A(hl(H))
        A("\n".join(wa[n1:n2] + zr[z1:z2]))
        if o.get("fine2"):
            for q in range(4):
                A("v_mov_b64 %s, -1" % v(E + 2 * q, 2))
            two2 = 0
        nops(o.get("gap1", 0))
        if two1:
            A(hl(H + 8))
        A("s_cmp_lg_u32 %s, 0\ns_cbranch_scc1 c_h1c1_%s" % (s(sPH), tag))
        for ph in (0, 1):
            Z = A if ph == 0 else B
            fn, fl_ = ("0xfe", "0xa8") if ph == 0 else ("0x80", "0x80")
            Z.label("c_h1c%d_%s" % (ph, tag))
            for r in ((H, H + 8) if two1 else (H,)):
                Z("s_waitcnt vmcnt(%d)" % (1 + 2 * two1))
                Z(mf32(AR, SELR, r))
                Z("s_waitcnt vmcnt(%d)" % (2 * two1))
                Z(mf32(AR, SELR, r + 4, AR))
                Z("v_bitop3_b32 %s, %s, %s, %s bitop3:%s" % (v(TG), v(r), v(r + 1), v(r + 2), fn))
                Z("v_bitop3_b32 %s, %s, %s, %s bitop3:%s" % (v(TG), v(TG), v(r + 3), v(r + 4), fn))
                Z("v_bitop3_b32 %s, %s, %s, %s bitop3:%s" % (v(TG), v(TG), v(r + 5), v(r + 6), fn))
                Z("v_bitop3_b32 %s, %s, %s, 1 bitop3:%s" % (v(TG), v(TG), v(r + 7), fl_))
                Z("v_cmp_ne_u32 vcc, %d, %s" % (ph, v(TG)))
                Z("s_cbranch_vccz c_h1ok_" + tag)
                Z("s_mov_b64 exec, vcc")
                Z(hl(r))
                Z("s_mov_b64 exec, -1")
                if self.tot:
                    Z("s_add_u32 s94, s94, 1")
            self.budget(Z, "c_h1ok_" + tag)
            Z("s_branch c_h1c%d_%s" % (ph, tag))
        A.label("c_h1ok_" + tag)
        A("s_xor_b32 %s, %s, 1" % (s(sPH), s(sPH)))
        A("s_nop 0")
        for ro in (4, 8):
            for r in range(2):
                A("v_add_f32_dpp %s, %s, %s row_ror:%d row_mask:0xf bank_mask:0xf" % (v(AR + r), v(AR + r), v(AR + r), ro))
        A(cvt(XS, AR, AR + 1))
        A("buffer_store_dword %s, %s, %s, %s offen%s" % (v(XS), v(VH2), WS, s(sH2S), hs))
        A("s_add_u32 %s, %s, 8192" % (s(sH2S), s(sH2S)))
        if not o.get("lateexit"):
            A("s_cmp_eq_u32 %s, %d\ns_cbranch_scc1 %s" % (s(sSTEP), NSEG - 1, fin))
        A("\n".join(wa[n2:n3] + zr[z2:]))
        if o.get("lg2", 1):
            A("s_waitcnt lgkmcnt(0)")
        if o.get("ack2"):
            A("s_waitcnt vmcnt(0)")
        nops(o.get("delay2", 0))
        A(ldE)
        A(ldL + " ; first")
        A("\n".join(wa[n3:]))
        A("s_waitcnt lgkmcnt(0)")
        nops(o.get("gap2", 0))
        if two2:
            A(ldE)
            A(ldL)
        A.label(top)
        A("s_waitcnt vmcnt(%d)" % (40 if o.get("fine2") else 2 * two2))
        nops(o.get("fnop", 0))
        for q in range(1):
            A("v_max3_u32 %s, %s, %s, %s" % (v(CK), v(E), v(E + 1), v(E + 2)))
            A("v_max3_u32 %s, %s, %s, %s" % (v(CK), v(CK), v(E + 3), v(Lr)))
            A("v_max3_u32 %s, %s, %s, %s" % (v(CK), v(CK), v(Lr + 1), v(Lr + 2)))
            A("v_max_u32 %s, %s, %s" % (v(CK), v(CK), v(Lr + 3)))
            A("v_cmp_eq_u32 vcc, -1, %s" % v(CK))
            A("s_cbranch_vccz c_okL_" + tag)
        A("; DUMP")
        if self.tot:
            A("s_add_u32 s95, s95, 1")
        A("s_mov_b64 exec, vcc")
        A(ldE)
        A(ldL)
        A("s_mov_b64 exec, -1")
        self.budget(A, "c_okL_" + tag)
        A("s_branch " + top)
        A.label(fin)
        A(memc)
        A("s_nop 7")
        A("s_mov_b64 exec, 1")
        if self.tot:
            A("s_memtime s[90:91]\ns_waitcnt lgkmcnt(0)")
            A("s_sub_u32 s90, s90, s92\ns_sub_u32 s92, s92, s96")
            A("v_mov_b32 %s, s90\nv_mov_b32 %s, s94\nv_mov_b32 %s, %s\nv_mov_b32 %s, %s" % (
                v(T0), v(T0 + 1), v(T0 + 2), "s95", v(T0 + 3), "s92"))
            A("s_lshl_b32 %s, %s, 6\ns_add_u32 %s, %s, %d" % (s(sT0), s(sH), s(sT0), s(sT0), STAMP + 16 * w))
            A("buffer_store_dwordx4 %s, off, %s, %s" % (v(T0, 4), WS, s(sT0)))
            if o.get("wst"):
                A("s_memrealtime s[90:91]\ns_waitcnt lgkmcnt(0)")
                A("v_mov_b32 %s, s88\nv_mov_b32 %s, s90" % (v(T1), v(T1 + 1)))
                A("s_lshl_b32 %s, %s, 5\ns_add_u32 %s, %s, %d" % (s(sT0), s(sH), s(sT0), s(sT0), STAMP + 0x80000 + 24))
                A("buffer_store_dwordx2 %s, off, %s, %s" % (v(T1, 2), WS, s(sT0)))
        A("s_waitcnt vmcnt(0)")
        if self.dbg:
            if o.get("lastonly"):
                A("s_mov_b64 exec, -1")
                self.dump_stamps(A, w)
                A("s_waitcnt vmcnt(0)")
            self.calib(A, 1)
        A("s_endpgm")
        if o.get("drop"):
            import re
            cut = A.lines.index("; DUMP")
            pats = [re.compile(p) for p in o["drop"]]
            keep = range(A.lines.index("; DUMP0"), A.lines.index("; DUMP1")) if self.dbg else range(0)
            A.lines = [l for k, l in enumerate(A.lines[:cut]) if k in keep or not any(p.search(l) for p in pats)] + A.lines[cut:]
        main = fix_hazards(A.lines)
        if self.dbg:
            main = self.add_stamps(main)
        ool = fix_hazards(B.lines)
        if self.dbg and o.get("at"):
            ool = self.add_stamps(ool + ["; DUMP"], False)
        return main + ["s_nop 7"] + ool

    def dump_stamps(self, A, w):
        A("s_lshl_b32 %s, %s, 5\ns_add_u32 %s, %s, %s\ns_lshl_b32 %s, %s, 8" % (
            s(sT0), s(sSTEP), s(sT0), s(sT0), s(sH), s(sT0), s(sT0)))
        A("s_add_u32 %s, %s, %d" % (s(sT0), s(sT0), STAMP + 4096 + 64 * w))
        R0 = AQ + 8
        for k in range(15):
            A("v_mov_b32 %s, %s" % (v(R0 + k), s(sST + 2 * k)))
        A("v_mov_b32 %s, %s" % (v(R0 + 15), s(sBUD)))
        A("s_mov_b64 exec, 1")
        for q in range(4):
            A("buffer_store_dwordx4 %s, off, %s, %s offset:%d" % (v(R0 + 4 * q, 4), WS, s(sT0), 16 * q))
        A("s_mov_b64 exec, -1")

    def softmax_tail(self, A, X, M, fill, first):
        EX, EB, AL, EM = X[1], X[2], X[3], T0
        VB = P[2] + 4
        fill = list(fill)
        f = lambda: A(fill.pop(0)) if fill else None
        dpp = lambda d, x, q: A("v_mov_b32_dpp %s, %s quad_perm:%s row_mask:0xf bank_mask:0xf" % (v(d), v(x), q))
        src = M if first else M + 2
        A(mf16(AL, HALF, EX))
        dpp(EB, EX, "[0,1,0,1]")
        dpp(EB + 1, EX + 1, "[0,1,0,1]")
        dpp(EB + 2, EX, "[2,3,2,3]")
        dpp(EB + 3, EX + 1, "[2,3,2,3]")
        A("v_exp_f32 %s, %s" % (v(M + 2), v(src)))
        A("v_exp_f32 %s, %s" % (v(M + 3), v(src + 1)))
        A(mf32(AQ, VXR, EB))
        A("v_add_f32_dpp %s, %s, %s quad_perm:[2,3,0,1] row_mask:0xf bank_mask:0xf" % (v(AL), v(AL), v(AL)))
        A(cvt(EM, M + 2, M + 3))
        A(mf32(AQ + 4, VXR + 4, EB))
        A(cvt(EM + 1, M + 2, M + 3))
        A("v_add_f32 %s, %s, %s" % (v(AL), v(AL), v(AL)))
        if first:
            A(cvt(VB, AV, AV + 1))
            A(cvt(VB + 1, AV + 2, AV + 3))
        A(mf16(AL, HALF, EM, AL))
        if first:
            A(cvt(VB + 2, AV + 4, AV + 5))
            A(cvt(VB + 3, AV + 6, AV + 7))
        A(mf16(AQ, VB, EM, AQ))
        f()
        f()
        f()
        A(mf16(AQ + 4, VB + 2, EM, AQ + 4))
        while fill:
            f()

    def normalize(self, A, w, AL, f0=(), f1=()):
        RR = T0 + 2
        pk = lambda r: A("v_pk_mul_f32 %s, %s, %s op_sel_hi:[1,0]" % (v(r, 2), v(r, 2), v(RR, 2)))
        A("v_rcp_f32 %s, %s" % (v(RR), v(AL)))
        A("\n".join(f0))
        pk(AQ)
        pk(AQ + 2)
        for q in range(2):
            A(cvt(OOP[0] + q, AQ + 2 * q, AQ + 2 * q + 1))
        pk(AQ + 4)
        pk(AQ + 6)
        for q in range(2, 4):
            A(cvt(OOP[0] + q, AQ + 2 * q, AQ + 2 * q + 1))
        A("ds_write_b128 %s, %s offset:%d" % (v(VL1), v(OOP[0], 4), RB + w * 1024))
        A("\n".join(f1))

    def fallback(self, B, w, tag, X, M):
        EX, AL = X[1], X[3]
        MX, TM = T0 + 2, T0 + 3
        B.label("c_slow_" + tag)
        vl = lambda so: "\n".join("buffer_load_dwordx4 %s, %s, %s, %s offen offset:%d sc1" % (
            v(VXR + 4 * q, 4), v(VL1), WS, s(so), 1024 * q) for q in range(2))
        B("s_waitcnt vmcnt(0)")
        B("s_sub_u32 %s, %s, 262144" % (s(sT0), s(sVX)))
        B(vl(sT0))
        B("s_waitcnt vmcnt(0)")
        B("s_nop 15")
        B("v_max3_f32 %s, %s, %s, %s" % (v(MX), v(X[0]), v(X[0] + 1), v(X[0] + 2)))
        B("v_max3_f32 %s, %s, %s, %s" % (v(MX), v(MX), v(X[0] + 3), v(M)))
        B("v_max_f32 %s, %s, %s" % (v(MX), v(MX), v(M + 1)))
        B("v_max_f32_dpp %s, %s, %s quad_perm:[2,3,0,1] row_mask:0xf bank_mask:0xf" % (v(MX), v(MX), v(MX)))
        for sw in ("v_permlane16_swap_b32", "v_permlane32_swap_b32"):
            B("v_mov_b32 %s, %s" % (v(TM), v(MX)))
            B("%s %s, %s" % (sw, v(MX), v(TM)))
            B("s_nop 1")
            B("v_max_f32 %s, %s, %s" % (v(MX), v(MX), v(TM)))
        for r in range(4):
            B("v_sub_f32 %s, %s, %s" % (v(EX + r), v(X[0] + r), v(MX)))
        for r in range(2):
            B("v_sub_f32 %s, %s, %s" % (v(M + 2 + r), v(M + r), v(MX)))
        for r in range(4):
            B("v_exp_f32 %s, %s" % (v(EX + r), v(EX + r)))
        B(cvt(EX, EX, EX + 1))
        B(cvt(EX + 1, EX + 2, EX + 3))
        self.softmax_tail(B, X, M, [], first=False)
        B("s_waitcnt lgkmcnt(0)")
        self.normalize(B, w, AL)
        for a_ in range(4):
            B("v_mov_b64 %s, 0\nv_mov_b64 %s, 0" % (v(ACCO[a_], 2), v(ACCO[a_] + 2, 2)))
        for a_ in range(2):
            B(WO(a_, 0))
        B(vl(sVX))
        B("s_nop 7")
        B("s_branch c_back_" + tag)

    def emit(self, A):
        P_ = Asm()
        P_._uid = 100
        self.prologue(P_)
        A.extend(fix_hazards(P_.lines))
        for slow in (0, 1):
            for w in range(4):
                A(".p2align 6")
                A.extend(self.loop(w, slow))
```

```python
NAME = "parallel_sum__memory_aug_recurrent_mem_tr__glu_gated_reglu__prompt"
NSEG = 64
WS_SIZE = 268435456

FLAGS = 0x140000
MEMB = 0xA000000
INB1 = 0x200000
FL1 = 0x280000
XN = 0x300000
STAMP = 0x600000
QX = 0x1000000
KX = 0x2000000
VX = 0x4000000
HB = 0x6000000
PART = 0x7000000
MEMC = 0xA800000
KM = 0x9000000
VM = 0x9800000

F_P = 0
F_M = 64 * 128
F_Y = 128 * 128
F_D = 192 * 128
FLAG_BYTES = 256 * 128
DUMMY = 0x700000

DBG_TICKET = 0
DBG_CHAIN_READY = 4
DBG_INIT = 36
DBG_LN = 132
DBG_GATE = 228
DBG_POISON = 164

SA_BF, SB_BF = 0x3E89, 0x3EF4
SA, SB = 137 / 512.0, 244 / 512.0

LDS_BYTES = 163840
REPB = 0x100000 + 2048
```

```python
from asmlib import *
from layout import *

WS, DBG = "s[4:7]", "s[28:31]"
sROLE, sWAVE, sBUD = 32, 33, 35
sSEG, sEND, sIN, sOUT, sFLG, sSC, sT0, sT1, sT2, sRS, sB0, sB1, sLW = range(36, 49)
sPOLL, sNEED, sX, sSET3, sQ, sKM2 = range(49, 55)
sMASK = 56
W0, W1 = 8, 12
SXI, SOUT = 16, 20
NP, NM, NXY, ND, NZ = 62, 64, 48, 16, 32
SEGB = 262144
PARTB = 12 * 32768
HSEG = 112 * 1024

L, N32, HI, VL16, VST, VT0, VT1, VT2, VT3, VPO = 255, 254, 253, 252, 251, 250, 249, 248, 247, 246
VA = 240


def cvt(d, x, y):
    return "v_cvt_pk_bf16_f32 %s, %s, %s" % (v(d), v(x), v(y))


WST = [False]


def rt(A, k):
    if WST[0]:
        A("s_memrealtime %s\ns_waitcnt lgkmcnt(0)" % s(70 + 2 * k, 2))


def budget(A, give_up):
    A("s_cmp_eq_u32 %s, 0\ns_cbranch_scc1 %s\ns_sub_u32 %s, %s, 1" % (s(sBUD), give_up, s(sBUD), s(sBUD)))


def wait_dbg(A, off, want, mask=None, sleep=4):
    top, done = A.uid("w_wd"), A.uid("w_wdd")
    A.label(top)
    A("buffer_load_dword %s, off, %s, 0 offset:%d sc1" % (v(VT0), DBG, off))
    A("s_waitcnt vmcnt(0)")
    A("v_readfirstlane_b32 %s, %s" % (s(sT1), v(VT0)))
    if mask:
        A("s_and_b32 %s, %s, 0x%x" % (s(sT1), s(sT1), mask))
    A("s_cmp_ge_u32 %s, %d\ns_cbranch_scc1 %s" % (s(sT1), want, done))
    budget(A, done)
    A("s_sleep %d\ns_branch %s" % (sleep, top))
    A.label(done)


def poll(A, nl, vaddr, soff, need, sleep=2, vneed=False):
    top, done = A.uid("w_pl"), A.uid("w_pld")
    A("s_mov_b64 exec, 0x%x" % ((1 << nl) - 1))
    A.label(top)
    A("buffer_load_dword %s, %s, %s, %s offen sc1" % (v(VT0), v(vaddr), WS, s(soff)))
    A("s_waitcnt vmcnt(0)")
    A("v_cmp_gt_u32 vcc, %s, %s" % (v(need) if vneed else s(need), v(VT0)))
    A("s_cbranch_vccz %s" % done)
    budget(A, done)
    A("s_sleep %d\ns_branch %s" % (sleep, top))
    A.label(done)
    A("s_mov_b64 exec, -1")


def post_flag(A, val_sgpr_plus1):
    lab = A.uid("w_fl")
    A("s_waitcnt vmcnt(0)\ns_barrier")
    A("s_cmp_lg_u32 %s, 0\ns_cbranch_scc1 %s" % (s(sWAVE), lab))
    A("s_add_u32 %s, %s, 1" % (s(sT0), s(val_sgpr_plus1)))
    A("v_mov_b32 %s, %s" % (v(VT0), s(sT0)))
    A("s_mov_b64 exec, 1")
    A("buffer_store_dword %s, off, %s, %s sc1" % (v(VT0), WS, s(sFLG)))
    A("s_mov_b64 exec, -1")
    A.label(lab)


def srd(A, d, karg, size, sreg=None):
    if sreg is None:
        A("s_load_dwordx2 %s, s[0:1], %d" % (s(d, 2), karg))
    else:
        A("s_load_dwordx2 %s, s[0:1], %s" % (s(d, 2), s(sreg)))
    A("s_mov_b32 %s, 0x%x\ns_mov_b32 %s, 0x20000" % (s(d + 2), size, s(d + 3)))


def common(A):
    A("v_and_b32 %s, 63, v0" % v(L))
    A("v_and_b32 %s, 31, v0" % v(N32))
    A("v_lshrrev_b32 %s, 5, %s" % (v(HI), v(L)))
    A("v_lshlrev_b32 %s, 4, %s" % (v(VL16), v(L)))


def load_weights(A, perm, two_srd, nt=False):
    X, Y, Z, DV = VT0, VT1, VT2, VT3
    A("s_lshl_b32 %s, %s, 15" % (s(sLW), s(sWAVE)))
    A("v_lshrrev_b32 %s, 2, %s" % (v(X), v(L)))
    A("v_mul_lo_u32 %s, %s, %s" % (v(X), v(X), s(sRS)))
    A("v_and_b32 %s, 3, %s" % (v(Y), v(L)))
    A("v_lshl_add_u32 %s, %s, 4, %s" % (v(DV), v(Y), v(X)))
    A("v_bfe_u32 %s, %s, 2, 2" % (v(X), v(L)))
    A("v_lshl_add_u32 %s, %s, %d, %s" % (v(X), v(HI), 2 if perm else 3, v(X)))
    A("v_lshlrev_b32 %s, 6, %s" % (v(X), v(X)))
    A("v_bfe_u32 %s, %s, 4, 1" % (v(Z), v(L)))
    if perm == "col":
        A("v_lshl_add_u32 %s, %s, 4, %s" % (v(X), v(Z), v(X)))
        A("v_and_b32 %s, 1, %s" % (v(Z), v(L)))
        A("v_lshl_add_u32 %s, %s, 5, %s" % (v(X), v(Z), v(X)))
        A("v_bfe_u32 %s, %s, 1, 1" % (v(Z), v(L)))
        A("v_lshl_add_u32 %s, %s, 3, %s" % (v(X), v(Z), v(X)))
    else:
        A("v_lshl_add_u32 %s, %s, 5, %s" % (v(X), v(Z), v(X)))
        A("v_lshl_add_u32 %s, %s, 3, %s" % (v(X), v(Y), v(X)))
    TR = VA
    A("v_add_u32 %s, %s, %s" % (v(TR), s(sLW), v(X)))
    bs, qs = (8, 16) if perm else (16, 4)
    A("s_lshl_b32 %s, %s, 4" % (s(sT2), s(sRS)))

    def dma(u):
        for half in range(2):
            for t in range(2):
                A("s_add_u32 m0, %s, %d" % (s(sLW), (u % 8) * 4096 + t * 2048 + half * 1024))
                A("buffer_load_dwordx4 %s, %s, %s offen %slds" % (
                    v(DV), s(W1 if (t and two_srd) else W0, 4), s(sB1 if t else sB0), "nt " if nt else ""))
            A("s_add_u32 %s, %s, %s\ns_add_u32 %s, %s, %s" % (s(sB0), s(sB0), s(sT2), s(sB1), s(sB1), s(sT2)))

    for u in range(8):
        dma(u)
    for u in range(16):
        A("s_waitcnt vmcnt(%d)" % (4 * min(7, 15 - u)))
        for b in range(2):
            for t in range(2):
                for q in range(2):
                    A("ds_read_b64_tr_b16 %s, %s offset:%d" % (
                        a(((2 * u + b) * 2 + t) * 4 + 2 * q, 2), v(TR), (u % 8) * 4096 + t * 2048 + (bs * b + qs * q) * 64))
        A("s_waitcnt lgkmcnt(0)")
        if u + 8 < 16:
            dma(u + 8)
    A("s_barrier")
    rt(A, 1)


def gemm(A, nk, acc, fr, swap, fill=(), base=0, sched=None):
    fill = list(fill)
    sched = dict(sched or {})
    q = []

    def emit(l):
        A(l)
        if l.startswith("ds_"):
            q.append(None)

    def rd(k):
        A("ds_read_b128 %s, %s offset:%d" % (v(fr + 4 * (k % 4), 4), v(VL16), base + k * 1024))
        q.append(k)

    for k in range(3):
        rd(k)
    for k in range(nk):
        n = len(q) - 1 - q.index(k)
        A("s_waitcnt lgkmcnt(%d)" % n)
        del q[:len(q) - n]
        for t in range(2):
            w_, x_ = a((2 * k + t) * 4, 4), v(fr + 4 * (k % 4), 4)
            c = "0" if k == 0 else v(acc + 16 * t, 16)
            A("v_mfma_f32_32x32x16_bf16 %s, %s, %s, %s" % (v(acc + 16 * t, 16), x_ if swap else w_, w_ if swap else x_, c))
            if t == 0 and k + 3 < nk:
                rd(k + 3)
            elif fill:
                emit(fill.pop(0))
            for l in sched.pop(2 * k + t, []):
                emit(l)
    assert not fill and not sched


def layernorm(A):
    XR, F, S0, S1 = 0, 32, 96, 98
    X, Y = VT1, VT2
    srd(A, SXI, 0, 2048 * 1024)
    A("v_lshrrev_b32 %s, 3, %s" % (v(X), v(L)))
    A("v_and_b32 %s, 7, %s" % (v(Y), v(L)))
    A("v_lshlrev_b32 %s, 10, %s" % (v(VT3), v(X)))
    A("v_lshl_add_u32 %s, %s, 4, %s" % (v(VT3), v(Y), v(VT3)))
    A("v_lshlrev_b32 %s, 4, %s" % (v(VST), v(X)))
    A("v_lshl_add_u32 %s, %s, 9, %s" % (v(VST), v(Y), v(VST)))
    A("s_lshl_b32 %s, %s, 15\ns_lshl_b32 %s, %s, 13" % (s(sT0), s(sSEG), s(sT1), s(sWAVE)))
    A("s_add_u32 %s, %s, %s" % (s(sT1), s(sT1), s(sT0)))
    A("s_waitcnt lgkmcnt(0)")
    for i in range(8):
        A("buffer_load_dwordx4 %s, %s, %s, %s offen offset:%d" % (v(XR + 4 * i, 4), v(VT3), s(SXI, 4), s(sT1), 128 * i))
    A("s_lshl_b32 %s, %s, 7\ns_add_u32 %s, %s, %s\ns_add_u32 %s, %s, %d" % (
        s(sT1), s(sWAVE), s(sT0), s(sT0), s(sT1), s(sT0), s(sT0), XN))
    A("s_mov_b32 %s, 0xffff0000" % s(sT2))

    def red8(r):
        for m in ("quad_perm:[1,0,3,2]", "quad_perm:[2,3,0,1]", "row_half_mirror"):
            A("v_add_f32_dpp %s, %s, %s %s row_mask:0xf bank_mask:0xf" % (v(r), v(r), v(r), m))

    def rnd(r):
        A(cvt(r, r, r))
        A("v_lshlrev_b32 %s, 16, %s" % (v(r), v(r)))

    for i in range(8):
        A("s_waitcnt vmcnt(%d)" % (7 - i))
        for j in range(4):
            r = 4 * i + j
            A("v_lshlrev_b32 %s, 16, %s" % (v(F + 2 * r), v(XR + r)))
            A("v_and_b32 %s, %s, %s" % (v(F + 2 * r + 1), s(sT2), v(XR + r)))
            if r == 0:
                A("v_mov_b64 %s, %s" % (v(S0, 2), v(F, 2)))
            else:
                A("v_pk_add_f32 %s, %s, %s" % (v(S0, 2), v(S0, 2), v(F + 2 * r, 2)))
    A("v_add_f32 %s, %s, %s" % (v(S0), v(S0), v(S0 + 1)))
    red8(S0)
    A("v_mul_f32 %s, 0xbb000000, %s" % (v(S0), v(S0)))
    A("v_mov_b32 %s, %s" % (v(S0 + 1), v(S0)))
    A("v_mov_b64 %s, 0" % v(S1, 2))
    for r in range(32):
        t = XR + 2 * (r % 8)
        A("v_pk_add_f32 %s, %s, %s" % (v(t, 2), v(F + 2 * r, 2), v(S0, 2)))
        A("v_pk_fma_f32 %s, %s, %s, %s" % (v(S1, 2), v(t, 2), v(t, 2), v(S1, 2)))
    A("v_add_f32 %s, %s, %s" % (v(S1), v(S1), v(S1 + 1)))
    red8(S1)
    A("v_mul_f32 %s, 0x3b000000, %s" % (v(S1), v(S1)))
    rnd(S1)
    A("v_add_f32 %s, 0x3727c5ac, %s" % (v(S1), v(S1)))
    rnd(S1)
    A("v_sqrt_f32 %s, %s" % (v(S1), v(S1)))
    rnd(S1)
    A("v_rcp_f32 %s, %s" % (v(S1), v(S1)))
    rnd(S0)
    A("v_mov_b32 %s, %s" % (v(S0 + 1), v(S0)))
    A("v_mov_b32 %s, %s" % (v(S1 + 1), v(S1)))
    for i in range(8):
        for j in range(4):
            r = 4 * i + j
            f = F + 2 * r
            A("v_pk_add_f32 %s, %s, %s" % (v(f, 2), v(f, 2), v(S0, 2)))
            A(cvt(f + 1, f, f + 1))
            A("v_lshlrev_b32 %s, 16, %s" % (v(f), v(f + 1)))
            A("v_and_b32 %s, %s, %s" % (v(f + 1), s(sT2), v(f + 1)))
            A("v_pk_mul_f32 %s, %s, %s" % (v(f, 2), v(f, 2), v(S1, 2)))
            A(cvt(XR + r, f, f + 1))
        A("buffer_store_dwordx4 %s, %s, %s, %s offen sc1" % (v(XR + 4 * i, 4), v(VST), WS, s(sT0)))
        A("s_add_u32 %s, %s, 4096" % (s(sT0), s(sT0)))
    lab = A.uid("w_ln")
    A("s_waitcnt vmcnt(0)\ns_barrier")
    A("s_cmp_lg_u32 %s, 0\ns_cbranch_scc1 %s" % (s(sWAVE), lab))
    A("v_mov_b32 %s, 1" % v(VT0))
    A("s_mov_b64 exec, 1")
    A("buffer_atomic_add %s, off, %s, 0 offset:%d" % (v(VT0), DBG, DBG_LN))
    A("s_mov_b64 exec, -1")
    A.label(lab)


XR, FR, ACC, OUT = 0, 32, 48, 80


def pack_store(A, acc, out, offs, order):
    for t in range(2):
        for p in range(2):
            o = out + 8 * t + 4 * p
            for k, q in enumerate(order[p]):
                A(cvt(o + 2 * k, acc + 16 * t + 4 * q, acc + 16 * t + 4 * q + 1))
                A(cvt(o + 2 * k + 1, acc + 16 * t + 4 * q + 2, acc + 16 * t + 4 * q + 3))
            A("buffer_store_dwordx4 %s, %s, %s, %s offen offset:%d sc1" % (v(o, 4), v(VST), WS, s(sOUT), offs[t][p]))


def in_loads(n):
    return ["buffer_load_dwordx4 %s, %s, %s, %s offen offset:%d sc1" % (
        v(XR + 4 * i, 4), v(VA + 1 + i // 4), WS, s(sIN), (i % 4) * 1024) for i in range(n)]


def in_addr(A, n):
    A("s_mul_i32 %s, %s, %d" % (s(sT0), s(sWAVE), n * 1024))
    A("v_add_u32 %s, %s, %s" % (v(VA + 1), s(sT0), v(VL16)))
    A("v_add_u32 %s, 4096, %s" % (v(VA + 2), v(VA + 1)))


def in_writes(A, n):
    for i in range(n):
        A("ds_write_b128 %s, %s offset:%d" % (v(VA + 1), v(XR + 4 * i, 4), i * 1024))
    A("s_waitcnt lgkmcnt(0)\ns_barrier")


def p_setup(A, kind, mem):
    G = sQ
    if kind == "gu":
        srd(A, W0, 64, 512 * 3584)
        srd(A, W1, 72, 512 * 3584)
        A("s_mov_b32 %s, 3584" % s(sRS))
        A("s_sub_u32 %s, %s, 48" % (s(G), s(G)))
        A("s_lshl2_add_u32 %s, %s, %s" % (s(sT0), s(G), s(sWAVE)))
        A("s_lshl_b32 %s, %s, 6\ns_mov_b32 %s, %s" % (s(sB0), s(sT0), s(sB1), s(sB0)))
        A("s_lshl_b32 %s, %s, 11\ns_add_u32 %s, %s, %d" % (s(sOUT), s(sT0), s(sOUT), s(sOUT), HB))
        A("v_mov_b32 %s, %s" % (v(VST), v(VL16)))
    else:
        A("s_lshr_b32 %s, %s, 4" % (s(sT0), s(G)))
        A("s_lshl_b32 %s, %s, 3\ns_add_u32 %s, %s, 16" % (s(sT1), s(sT0), s(sT1), s(sT1)))
        srd(A, W0, None, 512 * 8192, sreg=sT1)
        A("s_cmp_eq_u32 %s, 0" % s(sT0))
        A("s_mov_b32 %s, 0x%x" % (s(sSC), SB_BF << 16))
        A("s_cselect_b32 %s, 0x%x, %s" % (s(sSC), SA_BF << 16, s(sSC)))
        A("s_lshl_b32 %s, 0x%x, %s" % (s(sOUT), QX, s(sT0)))
        A("s_and_b32 %s, %s, 15" % (s(G), s(G)))
        A("s_lshl2_add_u32 %s, %s, %s" % (s(sT0), s(G), s(sWAVE)))
        A("s_lshl_b32 %s, %s, 7\ns_add_u32 %s, %s, 64" % (s(sB0), s(sT0), s(sB1), s(sB0)))
        A("s_lshl_b32 %s, %s, 12\ns_add_u32 %s, %s, %s" % (s(sT0), s(sT0), s(sOUT), s(sOUT), s(sT0)))
        if mem:
            A("s_add_u32 %s, %s, 64\ns_lshl_b32 %s, %s, 18\ns_add_u32 %s, %s, %s" % (
                s(sT0), s(sSEG), s(sT0), s(sT0), s(sOUT), s(sOUT), s(sT0)))
        A("s_mov_b32 %s, 8192" % s(sRS))
        A("v_and_b32 %s, 15, %s" % (v(VT0), v(L)))
        A("v_lshlrev_b32 %s, 4, %s" % (v(VST), v(VT0)))
        A("v_lshl_add_u32 %s, %s, 8, %s" % (v(VST), v(HI), v(VST)))
        A("v_bfe_u32 %s, %s, 4, 1" % (v(VT0), v(L)))
        A("v_lshl_add_u32 %s, %s, 10, %s" % (v(VST), v(VT0), v(VST)))
    A("s_waitcnt lgkmcnt(0)")


def p_epilogue(kind, acc, out):
    E = Asm()
    if kind == "gu":
        for p in range(2):
            for k, q in enumerate(((0, 2), (1, 3))[p]):
                for e in range(2):
                    g, u_ = acc + 4 * q + 2 * e, acc + 16 + 4 * q + 2 * e
                    E("v_max_f32 %s, 0, %s" % (v(g), v(g)))
                    E("v_max_f32 %s, 0, %s" % (v(g + 1), v(g + 1)))
                    for r in (g, u_):
                        E(cvt(r + 1, r, r + 1))
                        E("v_lshlrev_b32 %s, 16, %s" % (v(r), v(r + 1)))
                        E("v_and_b32 %s, 0xffff0000, %s" % (v(r + 1), v(r + 1)))
                    E("v_mul_f32 %s, %s, %s" % (v(g), v(g), v(u_)))
                    E("v_mul_f32 %s, %s, %s" % (v(g + 1), v(g + 1), v(u_ + 1)))
                    E(cvt(out + 4 * p + 2 * k + e, g, g + 1))
            E("buffer_store_dwordx4 %s, %s, %s, %s offen offset:%d sc1" % (v(out + 4 * p, 4), v(VST), WS, s(sOUT), 1024 * p))
    else:
        offs, order = ((0, 512), (2048, 2560)), ((0, 2), (1, 3))
        for t in range(2):
            for p in range(2):
                o_ = out + 8 * t + 4 * p
                for k, q in enumerate(order[p]):
                    r0 = acc + 16 * t + 4 * q
                    if kind == "qk":
                        for r in range(4):
                            E("v_mul_f32 %s, %s, %s" % (v(r0 + r), s(sSC), v(r0 + r)))
                    E(cvt(o_ + 2 * k, r0, r0 + 1))
                    E(cvt(o_ + 2 * k + 1, r0 + 2, r0 + 3))
                E("buffer_store_dwordx4 %s, %s, %s, %s offen offset:%d sc1" % (v(o_, 4), v(VST), WS, s(sOUT), offs[t][p]))
    return E.lines


def role_p(A, kind, o):
    tg = "p" + kind
    ACC2 = (48, 96)
    step = HSEG if kind == "gu" else SEGB
    nst = 2 if kind == "gu" else 4
    A.label("w_" + tg)
    A("s_lshl_b32 %s, %s, 7\ns_add_u32 %s, %s, %d" % (s(sFLG), s(sQ), s(sFLG), s(sFLG), FLAGS + F_P))
    A("s_mov_b32 %s, 0" % s(sSEG))
    p_setup(A, kind, False)
    load_weights(A, None, kind == "gu", nt=o.get("p_nt"))
    in_addr(A, 8)
    A("s_mov_b32 %s, %d" % (s(sIN), XN))
    A("s_mov_b32 %s, %s\ns_mov_b32 %s, %d" % (s(sX), s(sOUT), s(sOUT), DUMMY))
    wait_dbg(A, DBG_LN, 64)
    A("\n".join(in_loads(8)))
    wait_dbg(A, DBG_INIT, 1)
    in_writes(A, 8)
    A("s_add_u32 %s, %s, 32768" % (s(sIN), s(sIN)))
    A("\n".join(in_loads(8)))
    rt(A, 2)
    A.label("w_top_" + tg)
    for p in range(2):
        ep = p_epilogue(kind, ACC2[1 - p], OUT)
        sched = {}
        g = 2
        while ep:
            n = 3 if g % 2 == 0 else 4
            sched[g], ep = ep[:n], ep[n:]
            g += 1
        g = max(g, 30)
        sched[g] = ["s_waitcnt vmcnt(%d)" % nst, "s_mov_b32 %s, %s" % (s(sOUT), s(sX)),
                    "s_add_u32 %s, %s, %d" % (s(sX), s(sX), step), "s_add_u32 %s, %s, 32768" % (s(sIN), s(sIN))]
        for i in range(8):
            sched[g + 1 + i] = ["ds_write_b128 %s, %s offset:%d" % (v(VA + 1), v(XR + 4 * i, 4), (1 - p) * 32768 + i * 1024)]
        for i, l in enumerate(in_loads(8)):
            sched[g + 16 + i] = [l]
        gemm(A, 32, ACC2[p], FR, kind == "v", base=p * 32768, sched=sched)
        lab = A.uid("w_fl")
        A("s_waitcnt vmcnt(8) lgkmcnt(0)\ns_barrier")
        A("s_cmp_lg_u32 %s, 0\ns_cbranch_scc1 %s" % (s(sWAVE), lab))
        A("v_mov_b32 %s, %s" % (v(VT0), s(sSEG)))
        A("s_mov_b64 exec, 1")
        A("buffer_store_dword %s, off, %s, %s sc1" % (v(VT0), WS, s(sFLG)))
        A("s_mov_b64 exec, -1")
        A.label(lab)
        A("s_add_u32 %s, %s, 1" % (s(sSEG), s(sSEG)))
    A("s_cmp_lt_u32 %s, 64\ns_cbranch_scc1 w_top_%s" % (s(sSEG), tg))
    A("s_nop 7")
    A("\n".join(p_epilogue(kind, ACC2[1], OUT)))
    A("s_mov_b32 %s, 63" % s(sSEG))
    post_flag(A, sSEG)
    A("s_branch w_exit")


def role_m(A, kind, o):
    tg = "m" + kind
    A.label("w_" + tg)
    A("s_lshl1_add_u32 %s, %s, %s\ns_lshl_b32 %s, %s, 7\ns_add_u32 %s, %s, %d" % (
        s(sFLG), s(sQ), s(sSEG), s(sFLG), s(sFLG), s(sFLG), s(sFLG), FLAGS + F_M - 32 * 128))
    p_setup(A, kind, True)
    load_weights(A, None, False)
    in_addr(A, 8)
    for r in range(4):
        A("v_mov_b32 %s, 0" % v(XR + r))
    for i in range(8):
        A("ds_write_b128 %s, %s offset:%d" % (v(VA + 1), v(XR, 4), i * 1024))
    A("v_lshrrev_b32 %s, 4, %s" % (v(VT0), v(L)))
    A("v_lshlrev_b32 %s, 9, %s" % (v(VA + 3), v(VT0)))
    A("v_bfe_u32 %s, %s, 1, 1" % (v(VT0), v(L)))
    A("v_lshl_add_u32 %s, %s, 11, %s" % (v(VA + 3), v(VT0), v(VA + 3)))
    A("v_bfe_u32 %s, %s, 2, 2" % (v(VT0), v(L)))
    A("v_lshl_add_u32 %s, %s, 5, %s" % (v(VA + 3), v(VT0), v(VA + 3)))
    A("v_and_b32 %s, 1, %s" % (v(VT0), v(L)))
    A("v_lshl_add_u32 %s, %s, 4, %s" % (v(VA + 3), v(VT0), v(VA + 3)))
    A("s_lshl_b32 %s, %s, 13" % (s(sT0), s(sWAVE)))
    A("v_add_u32 %s, %s, %s" % (v(VA + 3), s(sT0), v(VA + 3)))
    A("s_lshl_b32 %s, %s, 13\ns_lshl_b32 %s, %s, 11" % (s(sIN), s(sSEG), s(sT0), s(sWAVE)))
    A("s_add_u32 %s, %s, %s\ns_add_u32 %s, %s, %d" % (s(sIN), s(sIN), s(sT0), s(sIN), s(sIN), MEMC))
    wait_dbg(A, DBG_INIT, 1)
    wait_dbg(A, DBG_CHAIN_READY, 32, mask=0xffff)
    A("s_waitcnt lgkmcnt(0)")
    A.label("w_mem_" + tg)
    for i in range(2):
        A("buffer_load_dwordx4 %s, %s, %s, %s offen offset:%d sc1" % (v(XR + 4 * i, 4), v(VL16), WS, s(sIN), 1024 * i))
    A("s_waitcnt vmcnt(0)")
    A("v_max3_u32 %s, %s, %s, %s" % (v(VT0), v(XR), v(XR + 1), v(XR + 2)))
    A("v_max3_u32 %s, %s, %s, %s" % (v(VT0), v(VT0), v(XR + 3), v(XR + 4)))
    A("v_max3_u32 %s, %s, %s, %s" % (v(VT0), v(VT0), v(XR + 5), v(XR + 6)))
    A("v_max_u32 %s, %s, %s" % (v(VT0), v(VT0), v(XR + 7)))
    A("v_cmp_eq_u32 vcc, -1, %s" % v(VT0))
    A("s_cbranch_vccz w_memok_" + tg)
    budget(A, "w_memok_" + tg)
    A("s_sleep %d\ns_branch w_mem_%s" % (o.get("msleep", 2), tg))
    A.label("w_memok_" + tg)
    rt(A, 4)
    for i in range(2):
        A("ds_write_b128 %s, %s offset:%d" % (v(VA + 3), v(XR + 4 * i, 4), 4096 * i))
    A("s_add_u32 %s, %s, 16384" % (s(sIN), s(sIN)))
    A("s_waitcnt lgkmcnt(0)\ns_barrier")
    gemm(A, 32, ACC, FR, kind == "v")
    A("\n".join(p_epilogue(kind, ACC, OUT)))
    post_flag(A, sSEG)
    A("s_add_u32 %s, %s, 2" % (s(sSEG), s(sSEG)))
    A("s_add_u32 %s, %s, %d" % (s(sOUT), s(sOUT), 2 * SEGB))
    A("s_cmp_lt_u32 %s, 64\ns_cbranch_scc1 w_mem_%s" % (s(sSEG), tg))
    A("s_branch w_exit")


def part_setup(A, src_sgpr, ch_sgpr):
    A("s_lshl2_add_u32 %s, %s, %s" % (s(sT0), s(ch_sgpr), s(sWAVE)))
    A("s_lshl_b32 %s, %s, 7\ns_add_u32 %s, %s, %s\ns_add_u32 %s, %s, 64" % (
        s(sT1), s(sT0), s(sB0), s(sB0), s(sT1), s(sB1), s(sB0)))
    A("s_lshl_b32 %s, %s, 12\ns_lshl_b32 %s, %s, 15\ns_add_u32 %s, %s, %s" % (
        s(sOUT), s(sT0), s(sT1), s(src_sgpr), s(sOUT), s(sOUT), s(sT1)))
    A("s_mul_i32 %s, %s, %d\ns_add_u32 %s, %s, %s\ns_add_u32 %s, %s, %d" % (
        s(sT1), s(sSEG), PARTB, s(sOUT), s(sOUT), s(sT1), s(sOUT), s(sOUT), PART))
    A("s_mov_b32 %s, 1024" % s(sRS))
    A("v_mov_b32 %s, %s" % (v(VST), v(VL16)))


PART_OFFS, PART_ORD = ((0, 1024), (2048, 3072)), ((0, 1), (2, 3))


def role_d(A, o):
    A.label("w_d")
    J = sQ
    srd(A, W0, 80, 1792 * 1024)
    A("s_and_b32 %s, %s, 1" % (s(sSEG), s(J)))
    A("s_lshr_b32 %s, %s, 1" % (s(sT0), s(J)))
    A("s_lshl_b32 %s, %s, 3\ns_add_u32 %s, %s, %s" % (s(sFLG), s(sSEG), s(sFLG), s(sFLG), s(sT0)))
    A("s_lshl_b32 %s, %s, 7\ns_add_u32 %s, %s, %d" % (s(sFLG), s(sFLG), s(sFLG), s(sFLG), FLAGS + F_D))
    A("s_and_b32 %s, %s, 3\ns_lshr_b32 %s, %s, 3" % (s(sX), s(sT0), s(sSET3), s(J)))
    A("s_mul_i32 %s, %s, %d" % (s(sB0), s(sX), 448 * 1024))
    A("s_mul_i32 %s, %s, %d\ns_mul_i32 %s, %s, %d" % (s(sIN), s(sX), 28 * 1024, s(sT1), s(sSEG), HSEG))
    A("s_add_u32 %s, %s, %s\ns_add_u32 %s, %s, %d" % (s(sIN), s(sIN), s(sT1), s(sIN), s(sIN), HB))
    A("s_add_u32 %s, %s, 8" % (s(sX), s(sX)))
    part_setup(A, sX, sSET3)
    A("s_mov_b32 %s, %d" % (s(sPOLL), FLAGS + F_P + 48 * 128))
    A("v_lshlrev_b32 %s, 7, %s" % (v(VPO), v(L)))
    A("s_waitcnt lgkmcnt(0)")
    load_weights(A, "col", False)
    in_addr(A, 7)
    wait_dbg(A, DBG_INIT, 1)
    A("s_add_u32 %s, %s, 1" % (s(sNEED), s(sSEG)))
    poll(A, 14, VPO, sPOLL, sNEED, sleep=8)
    A("\n".join(in_loads(7)))
    A("s_waitcnt vmcnt(0)")
    rt(A, 2)
    A.label("w_top_d")
    in_writes(A, 7)
    A("s_add_u32 %s, %s, %d" % (s(sIN), s(sIN), 2 * HSEG))
    A("s_add_u32 %s, %s, 3" % (s(sNEED), s(sSEG)))
    A("s_cmp_gt_u32 %s, 64\ns_cbranch_scc1 w_gemm_d" % s(sNEED))
    poll(A, 14, VPO, sPOLL, sNEED, sleep=8)
    A("\n".join(in_loads(7)))
    A.label("w_gemm_d")
    gemm(A, 28, ACC, FR, False)
    pack_store(A, ACC, OUT, PART_OFFS, PART_ORD)
    post_flag(A, sSEG)
    A("s_add_u32 %s, %s, 2" % (s(sSEG), s(sSEG)))
    A("s_add_u32 %s, %s, %d" % (s(sOUT), s(sOUT), 2 * PARTB))
    A("s_cmp_lt_u32 %s, 64\ns_cbranch_scc1 w_top_d" % s(sSEG))
    A("s_branch w_exit")


def mf16(d, a_, b_, c=None):
    return "v_mfma_f32_16x16x16_bf16 %s, %s, %s, %s" % (v(d, 4), v(a_, 2), v(b_, 2), "0" if c is None else v(c, 4))


def mf32(d, a_, b_, c=None):
    return "v_mfma_f32_16x16x32_bf16 %s, %s, %s, %s" % (v(d, 4), v(a_, 4), v(b_, 4), "0" if c is None else v(c, 4))


def role_xy(A, o):
    A.label("w_xy")
    J = sQ
    Q, K, V_, KM_, VM_ = 0, 32, 64, 96, 112
    S00, S01, S11, SM0, SM1 = 128, 132, 136, 140, 144
    O = 148
    acc, fr, out = 148, 180, 196
    M0, M1, L0, L1, TA, NEG, OW = 212, 213, 214, 215, 216, 218, 219
    P0, P1, PM0, PM1 = 220, 224, 222, 228
    srd(A, W0, 40, 4096 * 1024)
    A("s_mul_i32 %s, %s, 43\ns_lshr_b32 %s, %s, 7" % (s(sT0), s(J), s(sT0), s(sT0)))
    A("s_mul_i32 %s, %s, 3\ns_sub_u32 %s, %s, %s" % (s(sT1), s(sT0), s(sSEG), s(J), s(sT1)))
    A("s_and_b32 %s, %s, 1\ns_lshr_b32 %s, %s, 1" % (s(sSET3), s(sT0), s(sX), s(sT0)))
    A("s_lshl1_add_u32 %s, %s, %s\ns_lshl3_add_u32 %s, %s, %s" % (s(sFLG), s(sSEG), s(sSET3), s(sFLG), s(sFLG), s(sX)))
    A("s_lshl_b32 %s, %s, 7\ns_add_u32 %s, %s, %d" % (s(sFLG), s(sFLG), s(sFLG), s(sFLG), FLAGS + F_Y))
    A("s_lshl_b32 %s, %s, 19" % (s(sB0), s(sX)))
    part_setup(A, sX, sSET3)
    A("s_lshl2_add_u32 %s, %s, %s" % (s(sT0), s(sX), s(sWAVE)))
    A("s_lshl_b32 %s, %s, 13\ns_lshl_b32 %s, %s, 18\ns_add_u32 %s, %s, %s" % (
        s(sIN), s(sT0), s(sT1), s(sSEG), s(sIN), s(sIN), s(sT1)))
    A("s_add_u32 %s, %s, %d" % (s(sIN), s(sIN), QX))
    A("s_lshr_b32 %s, %s, 1\ns_lshl_b32 %s, %s, 7" % (s(sKM2), s(sT0), s(sKM2), s(sKM2)))
    A("s_mov_b32 %s, %d" % (s(sPOLL), FLAGS))
    A("s_waitcnt lgkmcnt(0)")
    load_weights(A, "col", False)
    A("v_lshrrev_b32 %s, 4, %s" % (v(VT1), v(L)))
    A("v_and_b32 %s, 15, %s" % (v(VT2), v(L)))
    A("v_lshlrev_b32 %s, 2, %s" % (v(VT3), v(VT1)))
    for r in range(4):
        A("v_cmp_le_u32 %s, %s, %s" % (s(sMASK + 2 * r, 2), v(VT3), v(VT2)))
        A("v_add_u32 %s, 1, %s" % (v(VT3), v(VT3)))
    A("s_mov_b32 %s, -1\ns_mov_b32 %s, 0" % (s(sMASK + 8), s(sMASK + 9)))
    A("v_mov_b32 %s, 0xff800000" % v(NEG))
    A("v_lshlrev_b32 %s, 9, %s" % (v(OW), v(VT1)))
    A("v_lshl_add_u32 %s, %s, 4, %s" % (v(OW), v(VT2), v(OW)))
    A("s_lshl_b32 %s, %s, 13" % (s(sT0), s(sWAVE)))
    A("v_add_u32 %s, %s, %s" % (v(OW), s(sT0), v(OW)))
    A("v_add_u32 %s, 4096, %s" % (v(VA + 1), v(VL16)))
    wait_dbg(A, DBG_INIT, 1, sleep=16)
    PX, NB, NV = 232, 233, 234
    A("v_lshlrev_b32 %s, 11, %s" % (v(VT1), v(L)))
    A("v_add_u32 %s, %s, %s" % (v(VT1), s(sKM2), v(VT1)))
    A("s_lshl_b32 %s, %s, 7\ns_and_b32 %s, %s, 128\ns_add_u32 %s, %s, %d" % (s(sT0), s(sSEG), s(sT0), s(sT0), s(sT0), s(sT0), F_M))
    A("v_lshl_add_u32 %s, %s, 1, %s" % (v(VT2), v(VT1), s(sT0)))
    A("v_add_u32 %s, %d, %s" % (v(VT3), (F_P - 4096) & 0xffffffff, v(VT1)))
    A("v_cmp_gt_u32 vcc, 2, %s" % v(L))
    A("v_cndmask_b32 %s, %s, %s, vcc" % (v(VPO), v(VT3), v(VT2)))
    A("v_mov_b32 %s, 128" % v(VT2))
    A("v_cndmask_b32 %s, 0, %s, vcc" % (v(PX), v(VT2)))
    A("v_cndmask_b32 %s, 4, 1, vcc" % v(NB))
    A("s_add_u32 %s, %s, 1" % (s(sNEED), s(sSEG)))
    A("v_mov_b32 %s, %s" % (v(NV), s(sNEED)))
    A("v_cndmask_b32 %s, %s, 0, vcc" % (v(NV), v(NV)))
    poll(A, 5, VPO, sPOLL, NV, sleep=16, vneed=True)

    def qkv_loads():
        res = []
        for base, off in ((Q, 0), (K, KX - QX), (V_, VX - QX)):
            res.append("s_add_u32 %s, %s, %d" % (s(sT2), s(sIN), off))
            for i in range(8):
                res.append("buffer_load_dwordx4 %s, %s, %s, %s offen offset:%d sc1" % (
                    v(base + 4 * i, 4), v(VL16 if i < 4 else VA + 1), WS, s(sT2), (i % 4) * 1024))
        return res

    A("\n".join(qkv_loads()))
    A("s_waitcnt vmcnt(0)")
    rt(A, 2)
    A.label("w_top_xy")
    for w in range(4):
        A(mf32(S00, K + 8 * w, Q + 8 * w, S00 if w else None))
        A(mf32(S01, K + 8 * w, Q + 8 * w + 4, S01 if w else None))
        A(mf32(S11, K + 8 * w + 4, Q + 8 * w + 4, S11 if w else None))
    A("v_add_u32 %s, %s, %s" % (v(NV), s(sSEG), v(NB)))
    A("v_min_u32 %s, 64, %s" % (v(NV), v(NV)))
    for r in range(4):
        for S in (S00, S11):
            A("v_cndmask_b32 %s, %s, %s, %s" % (v(S + r), v(NEG), v(S + r), s(sMASK + 2 * r, 2)))
    A("v_max3_f32 %s, %s, %s, %s" % (v(M0), v(S00), v(S00 + 1), v(S00 + 2)))
    A("v_max_f32 %s, %s, %s" % (v(M0), v(M0), v(S00 + 3)))
    A("v_max3_f32 %s, %s, %s, %s" % (v(M1), v(S01), v(S01 + 1), v(S01 + 2)))
    A("v_max3_f32 %s, %s, %s, %s" % (v(M1), v(M1), v(S01 + 3), v(S11)))
    A("v_max3_f32 %s, %s, %s, %s" % (v(M1), v(M1), v(S11 + 1), v(S11 + 2)))
    A("v_max_f32 %s, %s, %s" % (v(M1), v(M1), v(S11 + 3)))
    rt(A, 3)
    poll(A, 5, VPO, sPOLL, NV, vneed=True)
    A("v_xor_b32 %s, %s, %s" % (v(VPO), v(VPO), v(PX)))
    rt(A, 4)
    A("s_add_u32 %s, %s, %d" % (s(sT2), s(sIN), KX - QX + 64 * SEGB))
    for w in range(4):
        A("buffer_load_dwordx4 %s, %s, %s, %s offen offset:%d sc1" % (
            v(KM_ + 4 * w, 4), v(VL16 if w < 2 else VA + 1), WS, s(sT2), (w % 2) * 2048))
    A("s_add_u32 %s, %s, %d" % (s(sT2), s(sIN), VX - QX + 64 * SEGB))
    for f in range(8):
        A("buffer_load_dwordx2 %s, %s, %s, %s offen offset:%d sc1" % (
            v(VM_ + 2 * f, 2), v(VL16 if f < 4 else VA + 1), WS, s(sT2), (f % 4) * 1024))
    A("s_add_u32 %s, %s, %d" % (s(sIN), s(sIN), 3 * SEGB))
    for w in range(4):
        A("s_waitcnt vmcnt(%d)" % (11 - w))
        A(mf32(SM0, KM_ + 4 * w, Q + 8 * w, SM0 if w else None))
        A(mf32(SM1, KM_ + 4 * w, Q + 8 * w + 4, SM1 if w else None))
    for S, M in ((SM0, M0), (SM1, M1)):
        for r in range(4):
            A("v_cndmask_b32 %s, %s, %s, %s" % (v(S + r), v(NEG), v(S + r), s(sMASK + 8, 2)))
        A("v_max3_f32 %s, %s, %s, %s" % (v(M), v(M), v(S), v(S + 1)))
        A("v_max3_f32 %s, %s, %s, %s" % (v(M), v(M), v(S + 2), v(S + 3)))

    def xred(op, r0, r1):
        for sw in ("v_permlane16_swap_b32", "v_permlane32_swap_b32"):
            A("v_mov_b32 %s, %s\nv_mov_b32 %s, %s" % (v(TA), v(r0), v(TA + 1), v(r1)))
            A("%s %s, %s\n%s %s, %s" % (sw, v(r0), v(TA), sw, v(r1), v(TA + 1)))
            A("s_nop 0")
            A("%s %s, %s, %s\n%s %s, %s, %s" % (op, v(r0), v(r0), v(TA), op, v(r1), v(r1), v(TA + 1)))

    xred("v_max_f32", M0, M1)
    grp = ((M0, L0, (S00, SM0)), (M1, L1, (S01, S11, SM1)))
    for M, Lr, SS in grp:
        for S in SS:
            for r in range(4):
                A("v_sub_f32 %s, %s, %s" % (v(S + r), v(S + r), v(M)))
            for r in range(4):
                A("v_exp_f32 %s, %s" % (v(S + r), v(S + r)))
    for M, Lr, SS in grp:
        regs = [S + r for S in SS for r in range(4)]
        A("v_add_f32 %s, %s, %s" % (v(Lr), v(regs[0]), v(regs[1])))
        for r in regs[2:]:
            A("v_add_f32 %s, %s, %s" % (v(Lr), v(Lr), v(r)))
    xred("v_add_f32", L0, L1)
    A("v_rcp_f32 %s, %s\nv_rcp_f32 %s, %s" % (v(L0), v(L0), v(L1), v(L1)))
    for Lr, S, P in ((L0, S00, P0), (L1, S01, P1), (L1, S11, P1 + 2), (L0, SM0, PM0), (L1, SM1, PM1)):
        for r in range(4):
            A("v_mul_f32 %s, %s, %s" % (v(S + r), v(S + r), v(Lr)))
        A(cvt(P, S, S + 1))
        A(cvt(P + 1, S + 2, S + 3))
    Or = lambda f, kt: O + 8 * f + 4 * kt
    for f in range(8):
        A(mf16(Or(f, 0), V_ + 4 * f, P0))
        A(mf32(Or(f, 1), V_ + 4 * f, P1))
    A("s_waitcnt vmcnt(0)")
    for f in range(8):
        A(mf16(Or(f, 0), VM_ + 2 * f, PM0, Or(f, 0)))
        A(mf16(Or(f, 1), VM_ + 2 * f, PM1, Or(f, 1)))
    for a_ in range(4):
        for kt in range(2):
            d = KM_ + 4 * ((2 * a_ + kt) % 4)
            for e in range(2):
                A(cvt(d + 2 * e, Or(2 * a_ + e, kt), Or(2 * a_ + e, kt) + 1))
                A(cvt(d + 2 * e + 1, Or(2 * a_ + e, kt) + 2, Or(2 * a_ + e, kt) + 3))
            if 2 * a_ + kt == 4:
                pass
            A("ds_write_b128 %s, %s offset:%d" % (v(OW), v(d, 4), a_ * 2048 + kt * 256))
            if (2 * a_ + kt) % 4 == 3:
                A("s_waitcnt lgkmcnt(0)")
    A("s_barrier")
    rt(A, 5)
    gemm(A, 32, acc, fr, False, fill=qkv_loads())
    rt(A, 6)
    pack_store(A, acc, out, PART_OFFS, PART_ORD)
    post_flag(A, sSEG)
    A("s_add_u32 %s, %s, 3" % (s(sSEG), s(sSEG)))
    A("s_add_u32 %s, %s, %d" % (s(sOUT), s(sOUT), 3 * PARTB))
    A("s_cmp_lt_u32 %s, 64\ns_cbranch_scc1 w_top_xy" % s(sSEG))
    A("s_branch w_exit")


def role_z(A, o):
    A.label("w_z")
    J = sQ
    PR, XV, FA, FB, T = 0, 48, 52, 60, 68
    srd(A, SXI, 0, 2048 * 1024)
    srd(A, SOUT, 88, 2048 * 1024)
    A("s_lshr_b32 %s, %s, 3\ns_and_b32 %s, %s, 7" % (s(sSEG), s(J), s(J), s(J)))
    A("s_lshl2_add_u32 %s, %s, %s" % (s(sT0), s(J), s(sWAVE)))
    A("s_lshl_b32 %s, %s, 10\ns_mul_i32 %s, %s, %d" % (s(sIN), s(sT0), s(sT1), s(sSEG), PARTB))
    A("s_add_u32 %s, %s, %s\ns_add_u32 %s, %s, %d" % (s(sIN), s(sIN), s(sT1), s(sIN), s(sIN), PART))
    A("s_lshr_b32 %s, %s, 1\ns_lshl_b32 %s, %s, 6" % (s(sT1), s(sT0), s(sT1), s(sT1)))
    A("s_and_b32 %s, %s, 1\ns_lshl4_add_u32 %s, %s, %s" % (s(sT0), s(sT0), s(sX), s(sT0), s(sT1)))
    A("s_lshl_b32 %s, %s, 15\ns_add_u32 %s, %s, %s" % (s(sT1), s(sSEG), s(sX), s(sX), s(sT1)))
    A("s_lshr_b32 %s, %s, 2" % (s(J), s(J)))
    A("s_and_b32 %s, %s, 1\ns_lshl1_add_u32 %s, %s, %s\ns_lshl_b32 %s, %s, 9" % (
        s(sT0), s(sSEG), s(sT0), s(sT0), s(J), s(sT0), s(sT0)))
    A("s_add_u32 %s, %s, %d" % (s(sPOLL), s(sT0), FLAGS + F_D))
    A("s_lshl_b32 %s, %s, 10\ns_add_u32 %s, %s, %d" % (s(sFLG), s(J), s(sFLG), s(sFLG), FLAGS + F_Y))
    A("s_cmp_eq_u32 %s, 3\ns_cselect_b32 %s, 0, %s" % (s(sSEG), s(sSET3), s(sSEG)))
    A("v_lshlrev_b32 %s, 7, %s" % (v(VPO), v(L)))
    A("v_lshlrev_b32 %s, 10, %s" % (v(VST), v(N32)))
    A("v_lshl_add_u32 %s, %s, 5, %s" % (v(VST), v(HI), v(VST)))
    A("s_mov_b32 %s, 0xffff0000" % s(sSC))
    A("s_waitcnt lgkmcnt(0)")
    wait_dbg(A, DBG_INIT, 1, sleep=16)
    A.label("w_top_z")
    A("s_add_u32 %s, %s, 1" % (s(sNEED), s(sSEG)))
    A("buffer_load_dwordx4 %s, %s, %s, %s offen" % (v(XV, 4), v(VST), s(SXI, 4), s(sX)))
    poll(A, 4, VPO, sPOLL, sNEED, sleep=16)

    def loads(lo, hi):
        for i in range(lo, hi):
            A("s_add_u32 %s, %s, %d" % (s(sT0), s(sIN), 32768 * i))
            A("buffer_load_dwordx4 %s, %s, %s, %s offen sc1" % (v(PR + 4 * i, 4), v(VL16), WS, s(sT0)))

    def unpack(dst, src):
        A("v_lshlrev_b32 %s, 16, %s" % (v(dst), v(src)))
        A("v_and_b32 %s, %s, %s" % (v(dst + 1), s(sSC), v(src)))

    def summ(F, lo, hi):
        for i in range(lo, hi):
            A("s_waitcnt vmcnt(%d)" % (hi - 1 - i))
            for j in range(4):
                unpack(F + 2 * j if i == lo else T + 2 * j, PR + 4 * i + j)
            if i > lo:
                for j in range(4):
                    A("v_pk_add_f32 %s, %s, %s" % (v(F + 2 * j, 2), v(F + 2 * j, 2), v(T + 2 * j, 2)))

    def rnd(F):
        for j in range(4):
            A(cvt(F + 2 * j + 1, F + 2 * j, F + 2 * j + 1))
        for j in range(4):
            A("v_lshlrev_b32 %s, 16, %s" % (v(F + 2 * j), v(F + 2 * j + 1)))
            A("v_and_b32 %s, %s, %s" % (v(F + 2 * j + 1), s(sSC), v(F + 2 * j + 1)))

    loads(8, 12)
    summ(FB, 8, 12)
    rnd(FB)
    XF = PR + 32
    for j in range(4):
        unpack(XF + 2 * j, XV + j)
    A("s_lshl_b32 %s, %s, 11\ns_add_u32 %s, %s, %s" % (s(sT2), s(sSET3), s(sT2), s(sT2), s(sFLG)))
    poll(A, 8, VPO, sT2, sNEED, sleep=o.get("zsleep", 2))
    rt(A, 4)
    loads(0, 8)
    summ(FA, 0, 8)
    rnd(FA)
    for j in range(4):
        A("v_pk_add_f32 %s, %s, %s" % (v(FA + 2 * j, 2), v(FA + 2 * j, 2), v(XF + 2 * j, 2)))
    rnd(FA)
    for j in range(4):
        A("v_pk_add_f32 %s, %s, %s" % (v(FA + 2 * j, 2), v(FA + 2 * j, 2), v(FB + 2 * j, 2)))
    for j in range(4):
        A(cvt(T + j, FA + 2 * j, FA + 2 * j + 1))
    A("buffer_store_dwordx4 %s, %s, %s, %s offen" % (v(T, 4), v(VST), s(SOUT, 4), s(sX)))
    A("s_add_u32 %s, %s, 4" % (s(sSEG), s(sSEG)))
    A("s_add_u32 %s, %s, %d\ns_add_u32 %s, %s, %d" % (s(sIN), s(sIN), 4 * PARTB, s(sX), s(sX), 4 * 32768))
    A("s_add_u32 %s, %s, 1\ns_cmp_eq_u32 %s, 3\ns_cselect_b32 %s, 0, %s" % (s(sSET3), s(sSET3), s(sSET3), s(sSET3), s(sSET3)))
    A("s_cmp_lt_u32 %s, 64\ns_cbranch_scc1 w_top_z" % s(sSEG))
    A("s_branch w_exit")


def role_init(A):
    A.label("w_init")
    A("v_lshlrev_b32 %s, 7, v0" % v(VT1))
    for r in range(4):
        A("v_mov_b32 %s, 0" % v(r + 4))
    for k in range(2):
        A("s_mov_b32 %s, %d" % (s(sT0), FLAGS + 32768 * k))
        A("buffer_store_dwordx4 %s, %s, %s, %s offen sc1" % (v(4, 4), v(VT1), WS, s(sT0)))
    A("s_waitcnt vmcnt(0)\ns_barrier")
    A("s_cmp_lg_u32 %s, 0\ns_cbranch_scc1 w_exit" % s(sWAVE))
    A("v_mov_b32 %s, 1\ns_mov_b64 exec, 1" % v(VT0))
    A("buffer_store_dword %s, off, %s, 0 offset:%d sc1" % (v(VT0), DBG, DBG_INIT))
    A("s_branch w_exit")


def dispatch(E, opts):
    E("s_branch w_start")


def emit(A0, opts):
    A = Asm()
    A._uid = 50000
    WST[0] = opts.get("wst", False)
    A.label("w_start")
    if WST[0]:
        for k in range(16):
            A("s_mov_b32 %s, 0" % s(70 + k))
    rt(A, 0)
    common(A)
    A("s_cmp_eq_u32 %s, 255\ns_cbranch_scc1 w_init" % s(sROLE))
    A("s_sub_u32 %s, %s, %d" % (s(sQ), s(sROLE), 32 + NP + NM + NXY + ND))
    A("s_cbranch_scc1 w_notz")
    A("s_cmp_lt_u32 %s, %d\ns_cbranch_scc1 w_z" % (s(sQ), NZ))
    A.label("w_exit")
    A("s_waitcnt vmcnt(0)")
    if WST[0]:
        rt(A, 7)
        A("s_cmp_lg_u32 %s, 0\ns_cbranch_scc1 w_exit2" % s(sWAVE))
        for k in range(8):
            A("v_mov_b32 %s, %s" % (v(k), s(70 + 2 * k)))
        A("s_lshl_b32 %s, %s, 5\ns_add_u32 %s, %s, %d" % (s(sT0), s(sROLE), s(sT0), s(sT0), STAMP + 0x80000))
        A("s_mov_b64 exec, 1")
        A("buffer_store_dwordx4 v[0:3], off, %s, %s\nbuffer_store_dwordx4 v[4:7], off, %s, %s offset:16" % (WS, s(sT0), WS, s(sT0)))
        A("s_waitcnt vmcnt(0)")
        A.label("w_exit2")
    A("s_endpgm")
    A.label("w_notz")
    A("s_sub_u32 %s, %s, %d" % (s(sSEG), s(sROLE), 32 + NP + NM))
    A("s_cbranch_scc1 w_isp")
    layernorm(A)
    rt(A, 3)
    A("s_mov_b32 %s, %s" % (s(sQ), s(sSEG)))
    A("s_cmp_lt_u32 %s, %d\ns_cbranch_scc1 w_xy" % (s(sQ), NXY))
    A("s_sub_u32 %s, %s, %d\ns_branch w_d" % (s(sQ), s(sQ), NXY))
    A.label("w_isp")
    A("s_sub_u32 %s, %s, 128\ns_cbranch_scc1 w_kv" % (s(sQ), s(sROLE)))
    A("s_cmp_lt_u32 %s, 16\ns_cbranch_scc1 w_pqk" % s(sQ))
    A("s_add_u32 %s, %s, 32\ns_branch w_pgu" % (s(sQ), s(sQ)))
    A.label("w_kv")
    A("s_sub_u32 %s, %s, 32" % (s(sT0), s(sROLE)))
    A("s_mul_i32 %s, %s, 171\ns_lshr_b32 %s, %s, 9" % (s(sQ), s(sT0), s(sQ), s(sQ)))
    A("s_mul_i32 %s, %s, 3\ns_sub_u32 %s, %s, %s" % (s(sT1), s(sQ), s(sSEG), s(sT0), s(sT1)))
    A("s_add_u32 %s, %s, 16" % (s(sQ), s(sQ)))
    A("s_sub_u32 %s, %s, 1\ns_cbranch_scc0 w_ism" % (s(sSEG), s(sSEG)))
    A("s_cmp_lt_u32 %s, 32\ns_cbranch_scc1 w_pqk\ns_branch w_pv" % s(sQ))
    A.label("w_ism")
    A("s_cmp_lt_u32 %s, 32\ns_cbranch_scc1 w_mqk\ns_branch w_mv" % s(sQ))
    role_init(A)
    role_z(A, opts)
    for kind in ("gu", "qk", "v"):
        role_p(A, kind, opts)
    for kind in ("qk", "v"):
        role_m(A, kind, opts)
    role_d(A, opts)
    role_xy(A, opts)
    A0.extend(fix_hazards(A.lines))


def role_ranges():
    return [("chain", slice(0, 32)), ("KV", slice(32, 128, 3)), ("M0", slice(33, 128, 3)), ("M1", slice(34, 128, 3)), ("Q", slice(128, 144)),
            ("GU", slice(144, 158)), ("XY", slice(158, 206)), ("D", slice(206, 222)), ("Z", slice(222, 254))]
```

```python
import sys
from asmlib import *
from layout import *
import chain as C

HEADER_COMMENT = open('cdna_kernels/%s.s.ref' % NAME).read().split('; Override launch')[0]


DEFAULT = dict(z1=12, ack1=[2, 1, 0, 0], ack2=1, two1=[0, 0, 0, 1], two2=1, n1=0, n2=6, n3=6)


def build(opts):
    K = NAME + "_kernel"
    A = Asm()
    E = Asm()
    E("s_cmp_ge_u32 s2, 256\ns_cbranch_scc1 k_exit")
    if opts.get("total") or opts.get("stamps"):
        E("s_memtime s[96:97]")
    if opts.get("hst"):
        E("s_memrealtime s[100:101]")
    E("s_load_dwordx4 s[28:31], s[0:1], 96")
    E("s_getreg_b32 s34, hwreg(HW_REG_XCC_ID, 0, 4)")
    E("v_lshrrev_b32 v1, 6, v0")
    E("s_mov_b32 s35, 0x%x" % opts.get("budget", 0x10000))
    E("s_mov_b32 s94, 0\ns_mov_b32 s95, 0")
    E("v_readfirstlane_b32 s33, v1")
    E("s_and_b32 s34, s34, 7")
    E("s_waitcnt lgkmcnt(0)")
    E("s_mov_b32 s4, s30\ns_mov_b32 s5, s31\ns_mov_b32 s6, 0x%x\ns_mov_b32 s7, 0x20000" % WS_SIZE)
    E("s_mov_b32 s30, 256\ns_mov_b32 s31, 0x20000")
    E("s_cmp_lg_u32 s33, 0\ns_cbranch_scc1 k_noticket")
    E("s_mov_b32 s36, s34\ns_mov_b32 s37, 0")
    E("s_mov_b64 exec, 1")
    E.label("k_ticket")
    E("v_mov_b32 v2, 1")
    E("s_lshl_b32 s38, s36, 5")
    E("buffer_atomic_add v2, off, s[28:31], s38 sc0")
    E("s_waitcnt vmcnt(0)")
    E("v_readfirstlane_b32 s39, v2")
    E("s_cmp_lt_u32 s39, 32\ns_cbranch_scc1 k_gotticket")
    E("s_add_u32 s36, s36, 1\ns_and_b32 s36, s36, 7\ns_add_u32 s37, s37, 1")
    E("s_cmp_lt_u32 s37, 8\ns_cbranch_scc1 k_ticket")
    E("s_mov_b32 s38, 256\ns_mov_b32 s39, 0")
    E.label("k_gotticket")
    E("s_add_u32 s39, s39, s38")
    E("v_mov_b32 v2, s39\nv_mov_b32 v3, 0")
    E("ds_write_b32 v3, v2")
    E("s_waitcnt lgkmcnt(0)")
    E("s_mov_b64 exec, -1")
    E.label("k_noticket")
    E("s_barrier")
    E("v_mov_b32 v3, 0")
    E("ds_read_b32 v2, v3")
    E("s_waitcnt lgkmcnt(0)")
    E("v_readfirstlane_b32 s32, v2")
    E("s_barrier")
    E("s_cmp_lt_u32 s32, 32\ns_cbranch_scc1 k_chain")
    if opts.get("standalone_chain"):
        E("s_cmp_lg_u32 s32, 255\ns_cbranch_scc1 k_exit")
        E("v_mov_b32 v2, 1\ns_mov_b64 exec, 1")
        E("buffer_store_dword v2, off, s[28:31], 0 offset:%d sc1" % DBG_INIT)
        E("s_waitcnt vmcnt(0)")
    else:
        import workers
        workers.dispatch(E, opts)
    E.label("k_exit")
    E("s_endpgm")
    A.extend(fix_hazards(E.lines))
    A.label("k_chain")
    C.Chain(opts).emit(A)
    if not opts.get("standalone_chain"):
        import workers
        workers.emit(A, opts)
    A("s_endpgm")
    out = HEADER_COMMENT
    out += "; @launch grid=(256,1,1) block=(256,1,1) lds=%d\n" % LDS_BYTES
    out += '.amdgcn_target "amdgcn-amd-amdhsa--gfx950"\n.text\n.globl %s\n.p2align 8\n.type %s,@function\n%s:\n' % (K, K, K)
    out += "\n".join(("" if l.endswith(":") or l.startswith(".") else "  ") + l for l in A.lines) + "\n"
    out += """.section .rodata,"a"
.p2align 6
.amdhsa_kernel %s
  .amdhsa_next_free_vgpr 512
  .amdhsa_next_free_sgpr 102
  .amdhsa_accum_offset 256
  .amdhsa_group_segment_fixed_size 0
  .amdhsa_kernarg_size 112
  .amdhsa_user_sgpr_count 2
  .amdhsa_user_sgpr_kernarg_segment_ptr 1
  .amdhsa_system_sgpr_workgroup_id_x 1
.end_amdhsa_kernel
""" % K
    return out


if __name__ == "__main__":
    import json
    opts = dict(DEFAULT)
    opts.update(json.loads(sys.argv[2]) if len(sys.argv) > 2 else {})
    open(sys.argv[1], "w").write(build(opts))
```

```python
from asmlib import *
from layout import *

WS = "s[4:7]"
SQ, SK, SV, SO, SM0 = 8, 12, 16, 20, 24
sROLE, sWAVE, sXCC, sBUD = 32, 33, 34, 35
sH, sSTEP, sH2L, sH1S0, sH1L, sKX, sVX, sH1S1, sPH = 36, 37, 38, 39, 40, 41, 42, 43, 44
sKM, sVM, sFLAG, _unused, sH2S, sPF, sPROG, sT0, sT1, sBIG = 45, 46, 47, 48, 49, 50, 51, 52, 53, 54
sC1S, sC1L, sH1L2, sNEED = 55, 56, 57, 58
sH2C, sSEEN, sFS = 48, 59, 55
sFL = 8
sCM = 98
sST = 60

MEM = 112
AQ, AK, AV = 144, 152, 160
KXR, VXR = 168, 176
P = [184 + 8 * i for i in range(6)]
T0, T1 = 232, 236
IDX, VH2, SELQ, SELK, HALF, SELR = 240, 241, 242, 244, 246, 248
VL0, VL1, VSX, VH1 = 252, 253, 254, 255
VPFA, VPFD, VPRG = 248, 249, 250

LB = 147456
RA, RB = 0, 8192
WREG = 36864

STREAM_UNITS = [("Q", 0), ("K", 0), ("Q", 1), ("K", 5), ("K", 6), ("K", 7), ("O", 1, 1), ("O", 2, 1), ("O", 3, 1)]
ALL_UNITS = ([("Q", i) for i in range(8)] + [("K", i) for i in range(8)] + [("V", i) for i in range(8)]
             + [("O", u, p) for u in range(4) for p in range(2)])
RES_UNITS = [u for u in ALL_UNITS if u not in STREAM_UNITS]
assert len(RES_UNITS) == 23
RES_REG = {}
for i, u in enumerate(RES_UNITS):
    RES_REG[u] = 256 + 16 * i if i < 16 else 16 * (i - 16)
CUR = [0]


def slot_of(unit):
    if unit[0] == "K":
        return {0: 5, 5: 6, 6: 7, 7: 8}[unit[1]]
    if unit[0] == "Q":
        return 2 + unit[1]
    order = [u for u in ((gu - CUR[0]) % 4 for gu in range(4)) if u]
    return (4, 0, 1)[order.index(unit[1])]


STAGE = {
    ("Q", 0, 0): P[0], ("Q", 0, 1): P[1], ("K", 0, 0): P[2], ("K", 0, 1): P[3], ("Q", 1, 0): P[4], ("Q", 1, 1): P[5],
    ("K", 5, 0): P[0], ("K", 6, 0): P[1], ("K", 7, 0): P[2], ("K", 5, 1): P[3], ("K", 6, 1): P[4], ("K", 7, 1): P[5],
    ("O", 1, 1, 0): P[4], ("O", 1, 1, 1): P[5], ("O", 2, 1, 0): MEM, ("O", 2, 1, 1): MEM + 8,
    ("O", 3, 1, 0): MEM + 16, ("O", 3, 1, 1): MEM + 24,
}


def opreg(unit, t):
    if unit in RES_REG:
        return RES_REG[unit] + 8 * t
    return STAGE[unit + (t,)]


def stream_rd(unit, t):
    r = STAGE[unit + (t,)]
    off = slot_of(unit) * 4096 + t * 2048
    return ["ds_read_b128 %s, %s offset:%d" % (v(r, 4), v(VL0), off),
            "ds_read_b128 %s, %s offset:%d" % (v(r + 4, 4), v(VL0), off + 1024)]


def smf(acc, aop, breg):
    return "v_smfmac_f32_16x16x64_bf16 %s, %s, %s, %s" % (v(acc, 4), v(aop, 4), R(breg, 8), v(IDX))


def W(m, t, i):
    acc = {"Q": AQ, "K": AK, "V": AV}[m] + 4 * t
    return smf(acc, MEM + 4 * i, opreg((m, i), t))


ACCO = [AK, AK + 4, P[0] + 4, T1]
OOP = [AV, AV + 4, P[1], P[3] + 4]


def WO(a_, u):
    return smf(ACCO[a_], OOP[u], opreg(("O", u, a_ // 2), a_ % 2))


def mf16(d, a_, b_, c=None):
    return "v_mfma_f32_16x16x16_bf16 %s, %s, %s, %s" % (v(d, 4), v(a_, 2), v(b_, 2), "0" if c is None else v(c, 4))


def mf32(d, a_, b_, c=None):
    return "v_mfma_f32_16x16x32_bf16 %s, %s, %s, %s" % (v(d, 4), v(a_, 4), v(b_, 4), "0" if c is None else v(c, 4))


def cvt(d, x, y):
    return "v_cvt_pk_bf16_f32 %s, %s, %s" % (v(d), v(x), v(y))


def zero(r):
    return "v_mov_b32 %s, 0" % v(r)


class Chain:
    def __init__(self, opts):
        self.o = opts
        self.dbg = opts.get("stamps", False)
        self.tot = self.dbg or opts.get("total", False)

    def prologue(self, A, w):
        o = self.o
        nt = "nt " if o.get("w_nt", False) else ""
        A("s_mov_b32 %s, %s" % (s(sH), s(sROLE)))
        A("s_load_dwordx4 s[8:11], s[0:1], 8")
        A("s_load_dwordx4 s[12:15], s[0:1], 24")
        A("s_load_dwordx2 s[20:21], s[0:1], 40")
        A("s_waitcnt lgkmcnt(0)")
        A("s_mov_b32 s24, s8\ns_mov_b32 s25, s9\ns_mov_b32 s26, 8192\ns_mov_b32 s27, 0x20000")
        A("s_mov_b32 s8, s10\ns_mov_b32 s9, s11\ns_mov_b32 s10, 0x400000\ns_mov_b32 s11, 0x20000")
        A("s_mov_b32 s16, s14\ns_mov_b32 s17, s15\ns_mov_b32 s18, 0x400000\ns_mov_b32 s19, 0x20000")
        A("s_mov_b32 s14, 0x400000\ns_mov_b32 s15, 0x20000")
        A("s_mov_b32 s22, 0x400000\ns_mov_b32 s23, 0x20000")
        L, N, G = T0, T0 + 1, T0 + 2
        X, Y, Z = T1, T1 + 1, T1 + 2
        DW, DO, TRW, TRO, M0A, INI, RDY, PRK, PRV, MCD = AK, AK + 2, AK + 4, AK + 8, AK + 10, AK + 11, AK + 12, AK + 13, AK + 14, AK + 15
        sWB, sOB = sKM, sVM
        vq = []

        def vm(line, tag=None):
            A(line)
            vq.append(tag)

        def vwait(tag):
            last = max(i for i, x in enumerate(vq) if x == tag)
            A("s_waitcnt vmcnt(%d)" % (len(vq) - 1 - last))
            del vq[:last + 1]

        self.vm = vm
        stages = ([("K", i) for i in range(8)] + [("V", i) for i in range(8)] + [("O", i, 0) for i in range(4)]
                  + [("Q", i) for i in range(8)] + [("O", i, 1) for i in range(4)])
        RING = 5

        def dma(n):
            st = stages[n]
            for q in range(4):
                A("s_mov_b32 m0, %d" % (w * WREG + (n % RING) * 4096 + q * 1024))
                if st[0] == "O":
                    off = st[1] * 32768 + 512 * st[2] + (8 * (w // 2) + 2 * (w % 2) + 16 * (q % 2) + 4 * (q // 2)) * 1024
                    srd, vo, sb = SO, DO, sOB
                else:
                    off = (64 * st[1] + 16 * (w // 2) + 2 * (w % 2) + 4 * q) * 8192
                    srd, vo, sb = {"Q": SQ, "K": SK, "V": SV}[st[0]], DW, sWB
                A("s_add_u32 %s, %s, %d" % (s(sT1), s(sb), off))
                vm("buffer_load_dwordx4 %s, %s, %s offen %slds" % (v(vo + q % 2), s(srd, 4), s(sT1), nt), n)

        A("v_and_b32 %s, 63, v0" % v(L))
        A("v_and_b32 %s, 15, %s" % (v(N), v(L)))
        A("v_lshrrev_b32 %s, 4, %s" % (v(G), v(L)))
        A("v_and_b32 %s, 1, %s" % (v(X), v(G)))
        A("v_lshrrev_b32 %s, 1, %s" % (v(Y), v(G)))
        A("v_lshl_add_u32 %s, %s, 5, %s" % (v(X), v(Y), v(X)))
        A("v_lshlrev_b32 %s, 13, %s" % (v(X), v(X)))
        A("v_lshlrev_b32 %s, 1, %s" % (v(Z), v(G)))
        A("v_xor_b32 %s, %s, %s" % (v(Z), v(Z), v(N)))
        A("v_lshl_add_u32 %s, %s, 4, %s" % (v(DW), v(Z), v(X)))
        A("v_xor_b32 %s, 128, %s" % (v(DW + 1), v(DW)))
        A("s_lshl_b32 %s, %s, 8\ns_lshl_b32 %s, %s, 17" % (s(sWB), s(sH), s(sOB), s(sH)))
        for n in range(RING - 1):
            dma(n)
        A("v_and_b32 %s, 31, %s" % (v(X), v(L)))
        A("v_lshlrev_b32 %s, 2, %s" % (v(Z), v(Y)))
        A("v_xor_b32 %s, %s, %s" % (v(X), v(X), v(Z)))
        A("v_lshlrev_b32 %s, 4, %s" % (v(X), v(X)))
        A("v_lshl_add_u32 %s, %s, 10, %s" % (v(DO), v(Y), v(X)))
        A("v_xor_b32 %s, 128, %s" % (v(DO + 1), v(DO)))
        A("s_mov_b32 %s, %d" % (s(sT0), w * WREG))
        A("v_lshrrev_b32 %s, 2, %s" % (v(X), v(L)))
        A("v_and_b32 %s, 7, %s" % (v(Z), v(X)))
        A("v_xor_b32 %s, %d, %s" % (v(Z), 2 * w, v(Z)))
        A("v_lshlrev_b32 %s, 8, %s" % (v(X), v(X)))
        A("v_lshl_add_u32 %s, %s, 5, %s" % (v(X), v(Z), v(X)))
        A("v_and_b32 %s, 3, %s" % (v(Y), v(L)))
        A("v_lshl_add_u32 %s, %s, 3, %s" % (v(TRW), v(Y), v(X)))
        A("v_xor_b32 %s, 32, %s" % (v(TRW + 1), v(TRW)))
        A("v_add_u32 %s, %d, %s" % (v(TRW + 2), 2 * WREG, v(TRW)))
        A("v_add_u32 %s, %d, %s" % (v(TRW + 3), 2 * WREG, v(TRW + 1)))
        A("v_bfe_u32 %s, %s, 2, 1" % (v(X), v(L)))
        A("v_lshl_add_u32 %s, %s, 1, %s" % (v(X), v(G), v(X)))
        A("v_and_b32 %s, 3, %s" % (v(Z), v(X)))
        A("v_xor_b32 %s, %d, %s" % (v(Z), w, v(Z)))
        A("v_lshlrev_b32 %s, 9, %s" % (v(X), v(X)))
        A("v_lshl_add_u32 %s, %s, 6, %s" % (v(X), v(Z), v(X)))
        A("v_lshl_add_u32 %s, %s, 4, %s" % (v(X), v(Y), v(X)))
        A("v_bfe_u32 %s, %s, 3, 1" % (v(Y), v(L)))
        A("v_lshl_add_u32 %s, %s, 3, %s" % (v(TRO), v(Y), v(X)))
        A("v_add_u32 %s, %d, %s" % (v(TRO + 1), 2 * WREG, v(TRO)))
        CB, N4 = T0 + 3, T1 + 3
        A("v_bfe_u32 %s, %s, 1, 1" % (v(CB), v(L)))
        A("v_bfe_u32 %s, %s, 2, 2" % (v(N4), v(L)))
        A("v_lshlrev_b32 %s, 4, %s" % (v(X), v(L)))
        A("v_add_u32 %s, %s, %s" % (v(VL0), s(sT0), v(X)))
        A("v_add_u32 %s, %d, %s" % (v(VL1), LB, v(X)))
        A("v_lshl_add_u32 %s, %s, 10, %s" % (v(VSX), v(CB), v(VL1)))
        A("v_lshrrev_b32 %s, 3, %s" % (v(X), v(L)))
        A("s_lshl1_add_u32 %s, %s, %s" % (s(sT1), s(sWAVE), s(sH)))
        A("v_lshl_add_u32 %s, %s, 2, %s" % (v(Y), v(X), s(sT1)))
        A("v_and_b32 %s, 31, %s" % (v(Y), v(Y)))
        A("v_lshlrev_b32 %s, 13, %s" % (v(X), v(X)))
        A("v_lshl_add_u32 %s, %s, 6, %s" % (v(X), v(Y), v(X)))
        A("v_and_b32 %s, 7, %s" % (v(Y), v(L)))
        A("v_lshl_add_u32 %s, %s, 3, %s" % (v(VH1), v(Y), v(X)))
        A("v_mul_u32_u24 %s, 0xAAAA, %s" % (v(IDX), v(CB)))
        A("v_add_u32 %s, 0x4444, %s" % (v(IDX), v(IDX)))
        A("v_mov_b32 %s, 0x3F003F00\nv_mov_b32 %s, 0x3F003F00" % (v(HALF), v(HALF + 1)))
        A("v_and_b32 %s, 1, %s" % (v(X), v(L)))
        A("v_lshlrev_b32 %s, 4, %s" % (v(X), v(X)))
        A("v_cmp_eq_u32 vcc, %s, %s" % (v(G), v(N4)))
        for base, val in ((SELQ, SA_BF), (SELK, SB_BF)):
            A("v_mov_b32 %s, 0x%x" % (v(Y), val))
            A("v_lshlrev_b32 %s, %s, %s" % (v(Y), v(X), v(Y)))
            A("v_cndmask_b32 %s, 0, %s, vcc" % (v(base), v(Y)))
            A("v_mov_b32 %s, %s" % (v(base + 1), v(base)))
        A("v_bfe_u32 %s, %s, 2, 1" % (v(X), v(L)))
        A("v_lshlrev_b32 %s, 4, %s" % (v(X), v(X)))
        A("v_mov_b32 %s, 0x3F80" % v(Y))
        A("v_lshlrev_b32 %s, %s, %s" % (v(Y), v(X), v(Y)))
        A("v_bfe_u32 %s, %s, 3, 1" % (v(Z), v(L)))
        A("v_and_b32 %s, 1, %s" % (v(X), v(L)))
        A("v_lshl_add_u32 %s, %s, 1, %s" % (v(Z), v(X), v(Z)))
        for rho in range(4):
            A("v_cmp_eq_u32 vcc, %d, %s" % (rho, v(Z)))
            A("v_cndmask_b32 %s, 0, %s, vcc" % (v(SELR + rho), v(Y)))
        A("v_lshlrev_b32 %s, 2, %s" % (v(X), v(X)))
        A("v_lshl_add_u32 %s, %s, 28, %s" % (v(X), v(N4), v(X)))
        A("v_lshl_add_u32 %s, %s, 8, %s" % (v(X), v(CB), v(X)))
        A("v_and_b32 %s, 16, %s" % (v(Y), v(L)))
        A("v_add_u32 %s, %s, %s" % (v(X), v(Y), v(X)))
        A("v_bfe_u32 %s, %s, 5, 1" % (v(Y), v(L)))
        A("v_lshl_add_u32 %s, %s, 3, %s" % (v(VH2), v(Y), v(X)))
        A("v_and_b32 %s, 1, %s" % (v(X), v(L)))
        A("v_lshl_add_u32 %s, %s, 1, %s" % (v(X), v(N4), v(X)))
        A("v_lshlrev_b32 %s, 10, %s" % (v(X), v(X)))
        A("v_lshl_add_u32 %s, %s, 6, %s" % (v(X), v(CB), v(X)))
        A("v_lshl_add_u32 %s, %s, 4, %s" % (v(M0A), v(G), v(X)))

        self.poison_init(A)
        A("s_mov_b32 %s, 0" % s(sSTEP))
        A("s_lshl_b32 %s, %s, 11" % (s(sT0), s(sWAVE)))
        A("s_add_u32 %s, %s, %d" % (s(sH2L), s(sT0), MEMB - LB))
        A("s_lshr_b32 %s, %s, 4\ns_lshl_b32 %s, %s, 10\ns_add_u32 %s, %s, %s" % (s(sT1), s(sH), s(sT1), s(sT1), s(sT1), s(sT1), s(sT0)))
        A("s_and_b32 %s, %s, 6\ns_lshl_b32 %s, %s, 5\ns_add_u32 %s, %s, %s" % (s(sPH), s(sH), s(sPH), s(sPH), s(sT1), s(sT1), s(sPH)))
        A("s_and_b32 %s, %s, 8\ns_lshl2_add_u32 %s, %s, %s" % (s(sPH), s(sH), s(sT1), s(sPH), s(sT1)))
        A("s_and_b32 %s, %s, 1\ns_lshl_b32 %s, %s, 9\ns_add_u32 %s, %s, %s" % (s(sPH), s(sH), s(sPH), s(sPH), s(sT1), s(sT1), s(sPH)))
        A("s_add_u32 %s, %s, %d" % (s(sH2S), s(sT1), MEMB + 8192))
        A("s_add_u32 %s, %s, %d" % (s(sH2C), s(sT1), MEMC))
        A("s_lshl_b32 %s, %s, 16" % (s(sH1S0), s(sWAVE)))
        A("s_add_u32 %s, %s, %d" % (s(sH1S0), s(sH1S0), INB1))
        A("s_add_u32 %s, %s, 4096" % (s(sH1S1), s(sH1S0)))
        A("s_lshl_b32 %s, %s, 13" % (s(sT1), s(sH)))
        A("s_add_u32 %s, %s, %s" % (s(sKX), s(sT1), s(sT0)))
        A("s_add_u32 %s, %s, %d" % (s(sH1L), s(sKX), INB1 - LB))
        A("s_mov_b32 %s, 0" % s(sPH))
        A("s_add_u32 %s, %s, %d" % (s(sKX), s(sKX), KX - LB))
        A("s_add_u32 %s, %s, %d" % (s(sVX), s(sKX), VX - KX))
        A("s_cmp_eq_u32 %s, 2" % s(sWAVE))
        A("s_cselect_b32 %s, %d, 0" % (s(sPF), VX - KX))
        A("s_add_u32 %s, %s, %d" % (s(sPF), s(sPF), KX + 262144 - 8 * LB))
        A("s_add_u32 %s, %s, %s" % (s(sPF), s(sPF), s(sT1)))
        A("s_cmp_eq_u32 %s, 3" % s(sWAVE))
        A("s_cselect_b32 %s, %d, %s" % (s(sPF), MEMB + 8192 - 8 * LB, s(sPF)))
        A("s_cmp_eq_u32 %s, 2" % s(sWAVE))
        A("s_cselect_b32 %s, %d, 0" % (s(sPROG), 16 * 128))
        A("s_add_u32 %s, %s, %d" % (s(sPROG), s(sPROG), FLAGS + F_P + 16 * 128))
        A("s_lshr_b32 %s, %s, 1\ns_lshl_b32 %s, %s, 7" % (s(sT1), s(sH), s(sT1), s(sT1)))
        A("s_add_u32 %s, %s, %s" % (s(sPROG), s(sPROG), s(sT1)))
        A("s_mov_b32 %s, 0x5D800000" % s(sBIG))
        A("s_mov_b32 %s, 0xCCCCCCCC\ns_mov_b32 %s, 0xCCCCCCCC" % (s(sCM), s(sCM + 1)))
        for q in range(2):
            vm("buffer_load_dwordx4 %s, %s, %s, 0 offen offset:%d" % (v(MEM + 4 * q, 4), v(M0A), s(SM0, 4), 256 * w + 128 * q))
        A("v_and_b32 %s, 12, %s" % (v(X), v(VH2)))
        A("v_bfe_u32 %s, %s, 4, 1" % (v(Y), v(VH2)))
        A("v_lshl_add_u32 %s, %s, 10, %s" % (v(X), v(Y), v(X)))
        A("v_bfe_u32 %s, %s, 8, 1" % (v(Y), v(VH2)))
        A("v_lshl_add_u32 %s, %s, 4, %s" % (v(X), v(Y), v(X)))
        A("s_and_b32 %s, %s, 6\ns_lshl_b32 %s, %s, 10\ns_and_b32 %s, %s, 24\ns_lshl3_add_u32 %s, %s, %s" % (
            s(sT0), s(sH), s(sT0), s(sT0), s(sT1), s(sH), s(sT0), s(sT1), s(sT0)))
        A("s_and_b32 %s, %s, 1\ns_lshl_b32 %s, %s, 5\ns_add_u32 %s, %s, %s" % (
            s(sT1), s(sH), s(sT1), s(sT1), s(sT0), s(sT0), s(sT1)))
        vm("buffer_load_dword %s, %s, %s, %s offen offset:%d" % (v(MCD), v(X), s(SM0, 4), s(sT0), 256 * w))
        A("v_lshlrev_b32 %s, 3, %s" % (v(T0), v(VL1)))
        HOLD = {("Q", 0): P[0], ("Q", 1): P[4], ("O", 1, 1): P[2], ("O", 2, 1): MEM + 8, ("O", 3, 1): MEM + 24}
        held = []

        def put(u, src):
            for q in range(4):
                A("ds_write_b128 %s, %s offset:%d" % (v(VL0), v(src + 4 * q, 4), slot_of(u) * 4096 + q * 1024))

        pft = "buffer_load_dword %s, %s, %%s offen lds" % (v(T0), WS)
        for n, st in enumerate(stages):
            vwait(n)
            A("s_waitcnt lgkmcnt(0)\ns_barrier")
            if n + RING - 1 < 32:
                dma(n + RING - 1)
            u = ("O", (st[1] - w) % 4, st[2]) if st[0] == "O" else (st[0], (st[1] - 2 * w) % 8)
            dst = RES_REG[u] if u in RES_REG else HOLD.get(u, P[0])
            for t_ in range(2):
                for r in range(4):
                    off = (r % 2) * WREG + (n % RING) * 4096
                    ad = (TRO + r // 2, off + 256 * t_) if st[0] == "O" else (TRW + t_ + 2 * (r // 2), off)
                    A("ds_read_b64_tr_b16 %s, %s offset:%d" % (R(dst + 8 * t_ + 2 * r, 2), v(ad[0]), ad[1]))
            if n >= 28:
                c = [x for x in held if slot_of(x) == (n - 1) % RING]
                put(c[0], HOLD[c[0]])
                held.remove(c[0])
            if u in HOLD:
                held.append(u)
            elif u not in RES_REG:
                A("s_waitcnt lgkmcnt(0)")
                put(u, dst)
            if n == 5 and w == 0:
                A("s_cmp_lg_u32 %s, 0\ns_cselect_b32 %s, 0x10001, 1" % (s(sXCC), s(sT0)))
                A("v_mov_b32 %s, %s" % (v(X), s(sT0)))
                A("s_mov_b64 exec, 1")
                vm("buffer_atomic_add %s, off, s[28:31], 0 offset:%d" % (v(X), DBG_CHAIN_READY))
                A("s_mov_b64 exec, -1")
            if n == 14:
                vm("buffer_load_dword %s, off, s[28:31], 0 offset:%d sc1" % (v(INI), DBG_INIT))
                vm("buffer_load_dword %s, off, s[28:31], 0 offset:%d sc1" % (v(RDY), DBG_CHAIN_READY))
            if n == 20:
                lab = A.uid("c_fl")
                A("v_readfirstlane_b32 %s, %s\nv_readfirstlane_b32 %s, %s" % (s(sT0), v(INI), s(sT1), v(RDY)))
                A("s_lshl_b32 %s, %s, 5\ns_and_b32 %s, %s, %s\ns_cbranch_scc1 %s" % (s(sT0), s(sT0), s(sT0), s(sT0), s(sT1), lab))
                self.wait_dbg(A, DBG_INIT, 1, mask=None)
                self.wait_dbg(A, DBG_CHAIN_READY, 32, mask=0xFFFF)
                A.label(lab)
                A("s_lshr_b32 %s, %s, 16" % (s(sXCC), s(sT1)))
            if n == 27:
                A("s_add_u32 %s, %s, %d" % (s(sT0), s(sPROG), -2048 if w == 2 else 2048))
                vm("buffer_load_dword %s, off, %s, %s sc1" % (v(PRK), WS, s(sPROG)), "prg")
                vm("buffer_load_dword %s, off, %s, %s sc1" % (v(PRV), WS, s(sT0)), "prg")
                if w in (0, 3):
                    A("s_mov_b32 m0, %d" % (LB + RB + 4096))
                    A("s_lshl_b32 %s, %s, 13\ns_add_u32 %s, %s, %d" % (s(sT0), s(sH), s(sT0), s(sT0), INB1 - 8 * LB))
                    vm(pft % s(sT0 if w == 0 else sPF))
        A("s_mov_b32 m0, %d" % (LB + RB + 4096 + (0 if w else 1024)))
        vwait("prg")
        A("v_min_u32 %s, %s, %s" % (v(PRK), v(PRK), v(PRV)))
        A("s_mov_b32 %s, %d" % (s(sNEED), o.get("need0", 3)))
        A("v_readfirstlane_b32 %s, %s" % (s(sSEEN), v(PRK)))
        lab = A.uid("c_rdy")
        A("s_cmp_ge_u32 %s, %s\ns_cbranch_scc1 %s" % (s(sSEEN), s(sNEED), lab))
        A("s_xor_b32 %s, %s, %d" % (s(sPROG), s(sPROG), 0x1800))
        self.progress(A)
        A("s_xor_b32 %s, %s, %d" % (s(sPROG), s(sPROG), 0x1800))
        self.progress(A)
        A.label(lab)
        for r, sb in ((KXR, sKX), (VXR, sVX)):
            A("buffer_load_dwordx4 %s, %s, %s, %s offen sc1" % (v(r, 4), v(VL1), WS, s(sb)))
            A("buffer_load_dwordx4 %s, %s, %s, %s offen offset:1024 sc1" % (v(r + 4, 4), v(VL1), WS, s(sb)))
        if w in (1, 2):
            A(pft % s(sPF))
        A("s_add_u32 %s, %s, %d" % (s(sPF), s(sPF), 8192 if w == 3 else 262144))
        A("s_add_u32 %s, %s, 262144\ns_add_u32 %s, %s, 262144" % (s(sKX), s(sKX), s(sVX), s(sVX)))
        A("v_mov_b32 %s, %s" % (v(T0 + 1), v(MCD)))
        A("s_waitcnt lgkmcnt(0)\ns_barrier")
        put(held[0], HOLD[held[0]])
        A("s_waitcnt lgkmcnt(0)")
        A("\n".join(stream_rd(("K", 0), 0) + stream_rd(("K", 0), 1)))
        self.window_b(A)
        A("s_waitcnt lgkmcnt(0)")
        if self.dbg:
            self.calib(A, 0)
        if self.tot:
            A("s_memtime s[92:93]\ns_memrealtime s[88:89]\ns_waitcnt lgkmcnt(0)")
        A("s_cmp_lg_u32 %s, 0\ns_cbranch_scc1 c_entry_1_%d\ns_branch c_entry_0_%d" % (s(sXCC), w, w))

    def calib(self, A, slot):
        lab = A.uid("c_cal")
        A("s_memrealtime s[60:61]\ns_waitcnt lgkmcnt(0)")
        A.label(lab)
        A("s_memrealtime s[62:63]\ns_memtime s[64:65]\ns_waitcnt lgkmcnt(0)")
        A("s_cmp_eq_u32 s62, s60\ns_cbranch_scc1 %s" % lab)
        A("v_mov_b32 %s, s62\nv_mov_b32 %s, s64" % (v(T0), v(T0 + 1)))
        A("s_lshl_b32 %s, %s, 6\ns_lshl_b32 %s, %s, 4\ns_add_u32 %s, %s, %s\ns_add_u32 %s, %s, %d" % (
            s(sT0), s(sH), s(sT1), s(sWAVE), s(sT0), s(sT0), s(sT1), s(sT0), s(sT0), STAMP + 2048 + 8 * slot))
        A("buffer_store_dwordx2 %s, off, %s, %s" % (v(T0, 2), WS, s(sT0)))
        A("s_waitcnt vmcnt(0)")

    def poison_init(self, A):
        PO = KXR
        for i in range(4):
            A("v_mov_b32 %s, -1" % v(PO + i))
        A("s_lshl_b32 %s, %s, 13\ns_lshl_b32 %s, %s, 11" % (s(sT0), s(sH), s(sT1), s(sWAVE)))
        A("s_add_u32 %s, %s, %s\ns_add_u32 %s, %s, %d" % (s(sT0), s(sT0), s(sT1), s(sT0), s(sT0), INB1 - LB))
        for q in range(2):
            self.vm("buffer_store_dwordx4 %s, %s, %s, %s offen offset:%d sc1" % (v(PO, 4), v(VL1), WS, s(sT0), 1024 * q))
        X = PO + 4
        A("v_lshlrev_b32 %s, 13, %s" % (v(X), v(T0 + 2)))
        A("v_lshl_add_u32 %s, %s, 4, %s" % (v(X), v(T0 + 1), v(X)))
        A("s_lshl_b32 %s, %s, 8\ns_lshl_b32 %s, %s, 17" % (s(sT0), s(sH), s(sT1), s(sWAVE)))
        A("s_add_u32 %s, %s, %s\ns_add_u32 %s, %s, %d" % (s(sT0), s(sT0), s(sT1), s(sT0), s(sT0), MEMB))
        for q in range(4):
            self.vm("buffer_store_dwordx4 %s, %s, %s, %s offen sc1" % (v(PO, 4), v(X), WS, s(sT0)))
            A("s_add_u32 %s, %s, %d" % (s(sT1), s(sT0), MEMC - MEMB))
            self.vm("buffer_store_dwordx4 %s, %s, %s, %s offen sc1" % (v(PO, 4), v(X), WS, s(sT1)))
            A("s_add_u32 %s, %s, 32768" % (s(sT0), s(sT0)))

    def budget(self, A, give_up):
        A("s_cmp_eq_u32 %s, 0\ns_cbranch_scc1 %s\ns_sub_u32 %s, %s, 1" % (s(sBUD), give_up, s(sBUD), s(sBUD)))

    def wait_dbg(self, A, off, want, mask):
        top, done = A.uid("c_wd"), A.uid("c_wdd")
        A.label(top)
        A("buffer_load_dword %s, off, s[28:31], 0 offset:%d sc1" % (v(T1), off))
        A("s_waitcnt vmcnt(0)")
        A("v_readfirstlane_b32 %s, %s" % (s(sT1), v(T1)))
        if mask is None:
            A("s_cmp_ge_u32 %s, %d" % (s(sT1), want))
        else:
            A("s_and_b32 %s, %s, 0x%x\ns_cmp_ge_u32 %s, %d" % (s(sT0), s(sT1), mask, s(sT0), want))
        A("s_cbranch_scc1 %s" % done)
        self.budget(A, done)
        A("s_sleep 2\ns_branch %s" % top)
        A.label(done)

    def spin_ge(self, A, soff, want, vreg):
        top, done = A.uid("c_sp"), A.uid("c_spd")
        A.label(top)
        A("buffer_load_dword %s, off, %s, %s sc1" % (v(vreg), WS, s(soff)))
        A("s_waitcnt vmcnt(0)")
        A("v_readfirstlane_b32 %s, %s" % (s(sT1), v(vreg)))
        A("s_cmp_ge_u32 %s, %s" % (s(sT1), want))
        A("s_cbranch_scc1 %s" % done)
        self.budget(A, done)
        A("s_sleep 2\ns_branch %s" % top)
        A.label(done)

    def progress(self, A):
        top, done = A.uid("c_sp"), A.uid("c_spd")
        A.label(top)
        A("buffer_load_dword %s, off, %s, %s sc1" % (v(T1), WS, s(sPROG)))
        A("s_waitcnt vmcnt(0)")
        A("v_readfirstlane_b32 %s, %s" % (s(sSEEN), v(T1)))
        A("s_cmp_ge_u32 %s, %s" % (s(sSEEN), s(sNEED)))
        A("s_cbranch_scc1 %s" % done)
        self.budget(A, done)
        A("s_sleep 2\ns_branch %s" % top)
        A.label(done)

    def window_a(self, A):
        for u in STREAM_UNITS[:3]:
            for t in range(2):
                A("\n".join(stream_rd(u, t)))

    def window_b(self, A):
        for k, r in enumerate(range(AQ, AQ + 24, 2)):
            A("v_mov_b64 %s, 0" % v(r, 2))
            if k % 2 == 1:
                A("s_nop 0")

    def stamp(self, A, k):
        pass

    def add_stamps(self, lines, main=True):
        import re
        out, k = [], 0
        stride, phase = self.o.get("every", (20, 0))
        at = [re.compile(p) for p in self.o.get("at", [])]
        n = 0
        self.stamp_pos = []
        for l in lines:
            if l == "; DUMP":
                break
            if not at and not l.endswith(":") and not l.startswith(";"):
                if n % stride == phase and k < 15:
                    out.append("s_memtime s[%d:%d]" % (sST + 2 * k, sST + 2 * k + 1))
                    self.stamp_pos.append(n)
                    k += 1
                n += 1
            if not l.endswith(":") and not l.startswith(";"):
                if at and main and n == self.o.get("nth", -1):
                    out.append("s_memtime s[%d:%d]" % (sST + 28, sST + 29))
                n += 1 if at else 0
            out.append(l)
            for q, p in enumerate(at):
                if p.search(l):
                    out.append("s_memtime s[%d:%d]" % (sST + 2 * q, sST + 2 * q + 1))
        return out + lines[lines.index("; DUMP") + 1:]

    def loop(self, w, slow):
        CUR[0] = w
        A = Asm()
        B = Asm()
        A._uid = B._uid = 1000 * (1 + w + 4 * slow)
        B._uid += 500
        o = {k: (x[w] if isinstance(x, list) and k not in ("at", "more", "drop", "every") else x) for k, x in self.o.items()}
        hs = " sc1" if slow else ""
        ks = lambda i: (2 * w + i) % 8
        tag = "%d_%d" % (slow, w)
        top, entry, fin = "c_top_" + tag, "c_entry_" + tag, "c_fin_" + tag
        E, Lr = MEM, MEM + 4
        CK, FL = T1 + 2, T1 + 3

        ldE = "buffer_load_dwordx4 %s, %s, %s, %s offen sc1" % (v(E, 4), v(VL1), WS, s(sH2L))
        ldL = "buffer_load_dwordx4 %s, %s, %s, %s offen offset:1024 sc1" % (v(Lr, 4), v(VL1), WS, s(sH2L))

        def check(r, bad):
            A("v_max3_u32 %s, %s, %s, %s" % (v(CK), v(r), v(r + 1), v(r + 2)))
            A("v_max_u32 %s, %s, %s" % (v(CK), v(CK), v(r + 3)))
            A("v_cmp_eq_u32 vcc, -1, %s" % v(CK))
            A("s_cbranch_vccnz %s" % bad)

        def nops(n):
            while n > 0:
                A("s_nop %d" % (min(n, 16) - 1))
                n -= 16

        A.label(entry)
        A.label("c_okL_" + tag)
        if o.get("lateexit"):
            A("s_cmp_eq_u32 %s, %d\ns_cbranch_scc1 %s" % (s(sSTEP), NSEG - 1, fin))
        A("ds_write_b128 %s, %s offset:%d" % (v(VL1), v(E, 4), RA + ks(0) * 1024))
        A("ds_write_b128 %s, %s offset:%d" % (v(VL1), v(Lr, 4), RA + ks(1) * 1024))
        A(W("Q", 0, 0))
        A(W("Q", 1, 0))
        A(W("K", 0, 0))
        A(W("K", 1, 0))
        A(W("Q", 0, 1))
        A(W("Q", 1, 1))
        A("s_waitcnt lgkmcnt(0)")
        A("s_barrier ; B1")
        rd = ["ds_read_b128 %s, %s offset:%d" % (v(MEM + 4 * i, 4), v(VL1), RA + ks(i) * 1024) for i in range(2, 8)]
        A(rd[0])
        A(rd[1])
        A(W("K", 0, 1))
        A(rd[2])
        A(rd[3])
        A(W("K", 1, 1))
        A(rd[4])
        A(rd[5])
        A(W("V", 0, 0))
        A(W("V", 1, 0))
        A(W("V", 0, 1))
        if w > 0:
            A("v_lshlrev_b32 %s, 3, %s" % (v(T0 + 2), v(VL1)))
        else:
            A("v_lshlrev_b32 %s, 7, %s" % (v(T0 + 2), v(VL0)))
        A(W("V", 1, 1))
        gb = []
        for t in range(2):
            for i in (5, 6, 7):
                gb += stream_rd(("K", i), t)
        fill = []
        memc = "buffer_store_dword %s, %s, %s, %s offen sc1" % (v(T0 + 1), v(VH2), WS, s(sH2C))
        pf = "buffer_load_dword %s, %s, %s offen lds" % (v(T0 + 2), WS, s(sPF))
        npend = 2
        QB, QOP, KOP, VB = T0, T1, P[2], P[2] + 4
        for i in range(2, 8):
            A("s_waitcnt lgkmcnt(5)")
            A(W("Q", 0, i))
            A(gb[i - 2])
            if fill:
                A(fill.pop(0))
        A(W("Q", 1, 2))
        A(gb[6])
        A(W("Q", 1, 3))
        A(gb[7])
        A(cvt(QB, AQ, AQ + 1))
        A(W("Q", 1, 4))
        A(gb[8])
        A(cvt(QB + 1, AQ + 2, AQ + 3))
        A(W("Q", 1, 5))
        A(gb[9])
        A(mf16(AQ, QB, SELQ))
        A(gb[10])
        A(W("Q", 1, 6))
        A(gb[11])
        A(W("Q", 1, 7))
        z64 = lambda r: "v_mov_b64 %s, 0" % v(r, 2)
        add = lambda d, x, y: "v_add_f32 %s, %s, %s" % (v(d), v(x), v(y))
        dpp = lambda d, x, q: "v_mov_b32_dpp %s, %s quad_perm:%s row_mask:0xf bank_mask:0xf" % (v(d), v(x), q)
        addx = lambda r: "v_add_f32_dpp %s, %s, %s quad_perm:[2,3,0,1] row_mask:0xf bank_mask:0xf" % (v(r), v(r), v(r))
        ex = lambda d, x: "v_exp_f32 %s, %s" % (v(d), v(x))
        X = [P[0], P[0] + 4, P[1], P[1] + 4]
        M = P[3]
        EX, EB, AL, EM = X[1], X[2], X[3], T0
        RR, TT = T0 + 2, T0 + 3
        sel = ["v_cndmask_b32 %s, %s, %s, %s" % (v(AQ + r), v(AQ + r), v(AQ + 4 + r), s(sCM, 2)) for r in range(4)]
        xr = ["ds_read_b128 %s, %s offset:%d" % (v(X[q], 4), v(VL1), RB + q * 1024) for q in range(4)]
        gc1 = stream_rd(("O", 1, 1), 0) + stream_rd(("O", 1, 1), 1)
        gc2 = stream_rd(("O", 2, 1), 0) + stream_rd(("O", 3, 1), 0) + stream_rd(("O", 2, 1), 1) + stream_rd(("O", 3, 1), 1)
        kvl = ["buffer_load_dwordx4 %s, %s, %s, %s offen offset:%d sc1" % (v(r + 4 * q, 4), v(VL1), WS, s(sb), 1024 * q)
               for r, sb in ((KXR, sKX), (VXR, sVX)) for q in range(2)]
        seq = [
            cvt(QOP, AQ, AQ + 1), W("K", 0, 2), cvt(QOP + 1, AQ + 2, AQ + 3), W("K", 0, 3),
            cvt(QB + 2, AQ + 4, AQ + 5), cvt(QB + 3, AQ + 6, AQ + 7), W("K", 0, 4), mf16(AQ + 4, QB + 2, SELQ),
            "s_waitcnt lgkmcnt(0)", W("K", 0, 5), W("K", 0, 6),
            cvt(QOP + 2, AQ + 4, AQ + 5), cvt(QOP + 3, AQ + 6, AQ + 7), W("K", 0, 7),
            "s_waitcnt vmcnt(%d)" % npend, mf32(AQ, KXR, QOP), mf32(AQ + 4, KXR + 4, QOP),
            cvt(QB, AK, AK + 1), cvt(QB + 1, AK + 2, AK + 3), W("K", 1, 2), mf16(AK, QB, SELK),
            sel[0], sel[1], sel[2], sel[3], W("K", 1, 3),
            "ds_write_b128 %s, %s offset:%d" % (v(VL1), v(AQ, 4), RB + w * 1024),
            W("K", 1, 4), cvt(KOP, AK, AK + 1), W("K", 1, 5), cvt(KOP + 1, AK + 2, AK + 3), W("K", 1, 6), W("K", 1, 7),
            W("V", 0, 2), W("V", 1, 2), cvt(QB + 2, AK + 4, AK + 5), cvt(QB + 3, AK + 6, AK + 7),
            "s_waitcnt lgkmcnt(0)", "s_barrier ; B2", mf16(AK + 4, QB + 2, SELK), xr[0], xr[1],
            W("V", 0, 3), xr[2], xr[3], W("V", 1, 3),
            cvt(KOP + 2, AK + 4, AK + 5), cvt(KOP + 3, AK + 6, AK + 7), W("V", 0, 4), mf32(AK, KOP, QOP),
            "s_waitcnt lgkmcnt(2)"] + [add(X[0] + r, X[0] + r, X[1] + r) for r in range(4)] + [
            W("V", 1, 4),
            "ds_write_b64 %s, %s offset:%d" % (v(VL1), v(AK, 2), RA + (w // 2) * 1024 + (w % 2) * 8),
            "s_waitcnt lgkmcnt(1)"] + [add(X[2] + r, X[2] + r, X[3] + r) for r in range(4)] + [
            W("V", 0, 5)] + [add(X[0] + r, X[0] + r, X[2] + r) for r in range(4)] + [
            ex(EX, X[0]), ex(EX + 1, X[0] + 1), W("V", 1, 5),
            "s_waitcnt lgkmcnt(0)", "s_barrier ; B3",
            "ds_read_b128 %s, %s offset:%d" % (v(M, 4), v(VSX), RA), W("V", 0, 6), gc1[0], gc1[1],
            ex(EX + 2, X[0] + 2), ex(EX + 3, X[0] + 3), cvt(EX, EX, EX + 1), cvt(EX + 1, EX + 2, EX + 3),
            W("V", 0, 7), gc1[2], gc1[3], dpp(EB, EX, "[0,1,0,1]"), mf16(AL, HALF, EX),
            dpp(EB + 1, EX + 1, "[0,1,0,1]"), dpp(EB + 2, EX, "[2,3,2,3]"), dpp(EB + 3, EX + 1, "[2,3,2,3]"),
            W("V", 1, 6), "s_waitcnt lgkmcnt(4)", add(M, M, M + 2), W("V", 1, 7), gc2[0], gc2[1], add(M + 1, M + 1, M + 3),
            mf32(AQ, VXR, EB), gc2[2], addx(M), addx(M + 1),
            mf32(AQ + 4, VXR + 4, EB), gc2[3], ex(M + 2, M), ex(M + 3, M + 1), addx(AL),
            cvt(EM, M + 2, M + 3), cvt(EM + 1, M + 2, M + 3), add(AL, AL, AL),
            cvt(VB, AV, AV + 1), cvt(VB + 1, AV + 2, AV + 3),
            mf16(AL, HALF, EM, AL), cvt(VB + 2, AV + 4, AV + 5), cvt(VB + 3, AV + 6, AV + 7), z64(ACCO[0]),
            mf16(AQ, VB, EM, AQ), z64(ACCO[0] + 2), z64(ACCO[1]), z64(ACCO[1] + 2),
            mf16(AQ + 4, VB + 2, EM, AQ + 4)]
        A("\n".join(seq))
        self.normalize(A, w, AL, [z64(ACCO[2]), z64(ACCO[2] + 2), "v_max_f32 %s, %s, %s" % (v(TT), v(AL), v(RR))], [])
        A(WO(0, 0))
        A("v_cmp_ngt_f32 vcc, %s, %s" % (s(sBIG), v(TT)))
        A(WO(1, 0))
        A(z64(ACCO[3]))
        A(z64(ACCO[3] + 2))
        A("s_cbranch_vccnz c_slow_" + tag)
        A.label("c_back_" + tag)
        self.fallback(B, w, tag, X, M)
        A("s_waitcnt lgkmcnt(0)")
        A("s_barrier ; B4")
        for u in range(1, 4):
            A("ds_read_b128 %s, %s offset:%d" % (v(OOP[u], 4), v(VL1), RB + ((w + u) % 4) * 1024))
        A(WO(2, 0))
        A(gc2[4])
        A(WO(3, 0))
        sal = ["s_add_u32 %s, %s, 1" % (s(sSTEP), s(sSTEP)), "s_add_u32 %s, %s, 8192" % (s(sH2L), s(sH2L))]
        sal += ["s_add_u32 %s, %s, 262144" % (s(r), s(r)) for r in (sKX, sVX)]
        sal += ["s_add_u32 %s, %s, %d" % (s(sPF), s(sPF), 8192 if w == 3 else 262144)]
        sal += ["s_add_u32 %s, %s, 3" % (s(sNEED), s(sSTEP)), "s_min_u32 %s, %s, %d" % (s(sNEED), s(sNEED), NSEG - 1)]
        tagd = lambda r: "v_bfi_b32 %s, 1, %s, %s" % (v(r), s(sPH), v(r))
        st1 = lambda a_: "buffer_store_dwordx2 %s, %s, %s, %s offen offset:%d%s ; S%d" % (
            v(AQ + 2 * a_, 2), v(VH1), WS, s(sH1S1 if a_ > 1 else sH1S0), 2048 * (a_ % 2), hs, a_)
        c0 = lambda a_: cvt(AQ + 2 * a_, ACCO[a_], ACCO[a_] + 1)
        c1 = lambda a_: cvt(AQ + 2 * a_ + 1, ACCO[a_] + 2, ACCO[a_] + 3)
        t0 = lambda a_: tagd(AQ + 2 * a_)
        t1 = lambda a_: tagd(AQ + 2 * a_ + 1)
        seq = ["s_waitcnt lgkmcnt(3)", WO(0, 1), gc2[5], sal[0], "s_waitcnt lgkmcnt(3)", WO(0, 2), gc2[6], sal[1],
               "s_waitcnt lgkmcnt(3)", WO(0, 3), gc2[7], sal[2], WO(1, 1), sal[3], sal[4], WO(1, 2), c0(0), c1(0),
               WO(1, 3), t0(0), t1(0), WO(2, 1), st1(0), WO(2, 2), c0(1), c1(1), WO(2, 3), t0(1), t1(1),
               WO(3, 1), st1(1), "s_waitcnt lgkmcnt(0)", WO(3, 2), c0(2), c1(2), WO(3, 3), t0(2), t1(2), sal[5], sal[6], st1(2),
               c0(3), c1(3), t0(3), t1(3), st1(3)]
        A("\n".join(seq))
        ins = {}
        ins.setdefault(o.get("mc0", 7) + o.get("mcs", 1) * w, []).extend([memc, "s_add_u32 %s, %s, 8192" % (s(sH2C), s(sH2C))])
        if w == 0:
            ins.setdefault(o.get("pg0", 22), []).extend([
                "s_mov_b64 exec, 3", "buffer_load_dword %s, %s, %s offen sc1 lds" % (v(T0 + 2), WS, s(sPROG)), "s_mov_b64 exec, -1"])
        if w:
            ins.setdefault(o.get("pf0", 12) + o.get("pfs", 4) * (w - 1), []).append(pf)
        for q in range(2):
            ins.setdefault(o.get("kx0", 36) + o.get("kxs", 1) * w + o.get("kxq", 16) * q, []).append(kvl[q])
        for q in range(2):
            ins.setdefault(o.get("vx", [[58, 61], [59, 62], [60, 63], [61, 64]][w])[q], []).append(kvl[2 + q])
        hint = o.get("hint", 0) and not slow
        if hint and w == 0:
            fp = o.get("fp", 66)
            ins.setdefault(fp - 1, []).extend(["s_sub_u32 %s, %s, 1" % (s(sT0), s(sPH)), "v_mov_b32 %s, %s" % (v(T0), s(sT0))])
            ins.setdefault(fp, []).extend(["s_mov_b64 exec, 1", "buffer_store_byte %s, off, %s, %s" % (v(T0), WS, s(sFS)), "s_mov_b64 exec, -1"])
        res, k = [], 0
        for l in A.lines:
            res.append(l)
            if "mfma" in l:
                res += ins.pop(k, [])
                k += 1
        assert not ins
        A.lines = res
        if self.dbg and o.get("lastonly"):
            A("; DUMP0")
            A("; DUMP1")
        elif self.dbg:
            A("; DUMP0")
            A("s_waitcnt lgkmcnt(0)")
            self.dump_stamps(A, w)
            A("; DUMP1")
        H, AR, TG, XS = MEM + 8, T1, T0, T0 + 1
        wa = Asm()
        self.window_a(wa)
        wa = wa.lines
        zr = ["v_mov_b64 %s, 0" % v(r, 2) for r in range(AQ, AQ + 24, 2)]
        zr = zr[4:] + zr[:4]
        n1, n2, n3, z1, z2 = o.get("n1", 6), o.get("n2", 6), o.get("n3", 12), o.get("z1", 0), o.get("z2", 12)
        two1, two2 = o.get("two1", 1), o.get("two2", 1)
        A("\n".join(zr[:z1] + wa[:n1]))
        if o.get("ack1") is not None:
            A("s_waitcnt vmcnt(%d)" % o["ack1"])
        nops(o.get("delay1", 0))
        hl = lambda r: "\n".join("buffer_load_dwordx4 %s, %s, %s, %s offen offset:%d sc1" % (
            v(r + 4 * it, 4), v(VL1), WS, s(sH1L), it * 1024) for it in range(2))
        A.label("c_pfd_" + tag)
        A(hl(H))
        A("\n".join(wa[n1:n2] + zr[z1:z2]))
        if o.get("fine2"):
            for q in range(4):
                A("v_mov_b64 %s, -1" % v(E + 2 * q, 2))
            two2 = 0
        nops(o.get("gap1", 0))
        if two1:
            A(hl(H + 8))
        A("s_cmp_lg_u32 %s, 0\ns_cbranch_scc1 c_h1c1_%s" % (s(sPH), tag))
        for ph in (0, 1):
            Z = A if ph == 0 else B
            fn, fl_ = ("0xfe", "0xa8") if ph == 0 else ("0x80", "0x80")
            Z.label("c_h1c%d_%s" % (ph, tag))
            for r in ((H, H + 8) if two1 else (H,)):
                Z("s_waitcnt vmcnt(%d)" % (1 + 2 * two1))
                Z(mf32(AR, SELR, r))
                Z("s_waitcnt vmcnt(%d)" % (2 * two1))
                Z(mf32(AR, SELR, r + 4, AR))
                Z("v_bitop3_b32 %s, %s, %s, %s bitop3:%s" % (v(TG), v(r), v(r + 1), v(r + 2), fn))
                Z("v_bitop3_b32 %s, %s, %s, %s bitop3:%s" % (v(TG), v(TG), v(r + 3), v(r + 4), fn))
                Z("v_bitop3_b32 %s, %s, %s, %s bitop3:%s" % (v(TG), v(TG), v(r + 5), v(r + 6), fn))
                Z("v_bitop3_b32 %s, %s, %s, 1 bitop3:%s" % (v(TG), v(TG), v(r + 7), fl_))
                Z("v_cmp_ne_u32 vcc, %d, %s" % (ph, v(TG)))
                Z("s_cbranch_vccz c_h1ok_" + tag)
                Z("s_mov_b64 exec, vcc")
                Z(hl(r))
                Z("s_mov_b64 exec, -1")
                if self.tot:
                    Z("s_add_u32 s94, s94, 1")
            self.budget(Z, "c_h1ok_" + tag)
            Z("s_branch c_h1c%d_%s" % (ph, tag))
        A.label("c_h1ok_" + tag)
        A("s_xor_b32 %s, %s, 1" % (s(sPH), s(sPH)))
        A("s_nop 0")
        for ro in (4, 8):
            for r in range(2):
                A("v_add_f32_dpp %s, %s, %s row_ror:%d row_mask:0xf bank_mask:0xf" % (v(AR + r), v(AR + r), v(AR + r), ro))
        A(cvt(XS, AR, AR + 1))
        A("buffer_store_dword %s, %s, %s, %s offen%s" % (v(XS), v(VH2), WS, s(sH2S), hs))
        A("s_add_u32 %s, %s, 8192" % (s(sH2S), s(sH2S)))
        if not o.get("lateexit"):
            A("s_cmp_eq_u32 %s, %d\ns_cbranch_scc1 %s" % (s(sSTEP), NSEG - 1, fin))
        if w == 0:
            A("ds_read_b64 %s, %s offset:%d" % (v(T1, 2), v(VL1), RB + 4096 + 1024))
            A("s_waitcnt lgkmcnt(0)")
            A("v_min_u32 %s, %s, %s" % (v(T1), v(T1), v(T1 + 1)))
            A("v_readfirstlane_b32 %s, %s" % (s(sSEEN), v(T1)))
            A("s_cmp_lt_u32 %s, %s\ns_cbranch_scc1 c_prg_%s" % (s(sSEEN), s(sNEED), tag))
            A.label("c_prgok_" + tag)
            B.label("c_prg_" + tag)
            for _ in range(2):
                B("s_xor_b32 %s, %s, %d" % (s(sPROG), s(sPROG), 0x1800))
                self.progress(B)
            B("s_branch c_prgok_" + tag)
        A("\n".join(wa[n2:n3] + zr[z2:]))
        if o.get("lg2", 1):
            A("s_waitcnt lgkmcnt(0)")
        if o.get("ack2"):
            A("s_waitcnt vmcnt(0)")
        nops(o.get("delay2", 0))
        A(ldE)
        A(ldL + " ; first")
        A("\n".join(wa[n3:]))
        A("s_waitcnt lgkmcnt(0)")
        nops(o.get("gap2", 0))
        if two2:
            A(ldE)
            A(ldL)
        A.label(top)
        A("s_waitcnt vmcnt(%d)" % (40 if o.get("fine2") else 2 * two2))
        nops(o.get("fnop", 0))
        for q in range(1):
            A("v_max3_u32 %s, %s, %s, %s" % (v(CK), v(E), v(E + 1), v(E + 2)))
            A("v_max3_u32 %s, %s, %s, %s" % (v(CK), v(CK), v(E + 3), v(Lr)))
            A("v_max3_u32 %s, %s, %s, %s" % (v(CK), v(CK), v(Lr + 1), v(Lr + 2)))
            A("v_max_u32 %s, %s, %s" % (v(CK), v(CK), v(Lr + 3)))
            A("v_cmp_eq_u32 vcc, -1, %s" % v(CK))
            A("s_cbranch_vccz c_okL_" + tag)
        A("; DUMP")
        if self.tot:
            A("s_add_u32 s95, s95, 1")
        A("s_mov_b64 exec, vcc")
        A(ldE)
        A(ldL)
        A("s_mov_b64 exec, -1")
        self.budget(A, "c_okL_" + tag)
        A("s_branch " + top)
        A.label(fin)
        A(memc)
        A("s_nop 7")
        A("s_mov_b64 exec, 1")
        if self.tot:
            A("s_memtime s[90:91]\ns_waitcnt lgkmcnt(0)")
            A("s_sub_u32 s90, s90, s92\ns_sub_u32 s92, s92, s96")
            A("v_mov_b32 %s, s90\nv_mov_b32 %s, s94\nv_mov_b32 %s, %s\nv_mov_b32 %s, %s" % (
                v(T0), v(T0 + 1), v(T0 + 2), "s95", v(T0 + 3), "s92"))
            A("s_lshl_b32 %s, %s, 6\ns_add_u32 %s, %s, %d" % (s(sT0), s(sH), s(sT0), s(sT0), STAMP + 16 * w))
            A("buffer_store_dwordx4 %s, off, %s, %s" % (v(T0, 4), WS, s(sT0)))
            if o.get("wst"):
                A("s_memrealtime s[90:91]\ns_waitcnt lgkmcnt(0)")
                A("v_mov_b32 %s, s88\nv_mov_b32 %s, s90" % (v(T1), v(T1 + 1)))
                A("s_lshl_b32 %s, %s, 5\ns_add_u32 %s, %s, %d" % (s(sT0), s(sH), s(sT0), s(sT0), STAMP + 0x80000 + 24))
                A("buffer_store_dwordx2 %s, off, %s, %s" % (v(T1, 2), WS, s(sT0)))
        A("s_waitcnt vmcnt(0)")
        if self.dbg:
            if o.get("lastonly"):
                A("s_mov_b64 exec, -1")
                self.dump_stamps(A, w)
                A("s_waitcnt vmcnt(0)")
            self.calib(A, 1)
        A("s_endpgm")
        if o.get("drop"):
            import re
            cut = A.lines.index("; DUMP")
            pats = [re.compile(p) for p in o["drop"]]
            keep = range(A.lines.index("; DUMP0"), A.lines.index("; DUMP1")) if self.dbg else range(0)
            A.lines = [l for k, l in enumerate(A.lines[:cut]) if k in keep or not any(p.search(l) for p in pats)] + A.lines[cut:]
        main = fix_hazards(A.lines)
        if self.dbg:
            main = self.add_stamps(main)
        ool = fix_hazards(B.lines)
        if self.dbg and o.get("at"):
            ool = self.add_stamps(ool + ["; DUMP"], False)
        return main + ["s_nop 7"] + ool

    def dump_stamps(self, A, w):
        A("s_lshl_b32 %s, %s, 5\ns_add_u32 %s, %s, %s\ns_lshl_b32 %s, %s, 8" % (
            s(sT0), s(sSTEP), s(sT0), s(sT0), s(sH), s(sT0), s(sT0)))
        A("s_add_u32 %s, %s, %d" % (s(sT0), s(sT0), STAMP + 4096 + 64 * w))
        R0 = AQ + 8
        for k in range(15):
            A("v_mov_b32 %s, %s" % (v(R0 + k), s(sST + 2 * k)))
        A("v_mov_b32 %s, %s" % (v(R0 + 15), s(sBUD)))
        A("s_mov_b64 exec, 1")
        for q in range(4):
            A("buffer_store_dwordx4 %s, off, %s, %s offset:%d" % (v(R0 + 4 * q, 4), WS, s(sT0), 16 * q))
        A("s_mov_b64 exec, -1")

    def softmax_tail(self, A, X, M, fill, first):
        EX, EB, AL, EM = X[1], X[2], X[3], T0
        VB = P[2] + 4
        fill = list(fill)
        f = lambda: A(fill.pop(0)) if fill else None
        dpp = lambda d, x, q: A("v_mov_b32_dpp %s, %s quad_perm:%s row_mask:0xf bank_mask:0xf" % (v(d), v(x), q))
        src = M if first else M + 2
        A(mf16(AL, HALF, EX))
        dpp(EB, EX, "[0,1,0,1]")
        dpp(EB + 1, EX + 1, "[0,1,0,1]")
        dpp(EB + 2, EX, "[2,3,2,3]")
        dpp(EB + 3, EX + 1, "[2,3,2,3]")
        A("v_exp_f32 %s, %s" % (v(M + 2), v(src)))
        A("v_exp_f32 %s, %s" % (v(M + 3), v(src + 1)))
        A(mf32(AQ, VXR, EB))
        A("v_add_f32_dpp %s, %s, %s quad_perm:[2,3,0,1] row_mask:0xf bank_mask:0xf" % (v(AL), v(AL), v(AL)))
        A(cvt(EM, M + 2, M + 3))
        A(mf32(AQ + 4, VXR + 4, EB))
        A(cvt(EM + 1, M + 2, M + 3))
        A("v_add_f32 %s, %s, %s" % (v(AL), v(AL), v(AL)))
        if first:
            A(cvt(VB, AV, AV + 1))
            A(cvt(VB + 1, AV + 2, AV + 3))
        A(mf16(AL, HALF, EM, AL))
        if first:
            A(cvt(VB + 2, AV + 4, AV + 5))
            A(cvt(VB + 3, AV + 6, AV + 7))
        A(mf16(AQ, VB, EM, AQ))
        f()
        f()
        f()
        A(mf16(AQ + 4, VB + 2, EM, AQ + 4))
        while fill:
            f()

    def normalize(self, A, w, AL, f0=(), f1=()):
        RR = T0 + 2
        pk = lambda r: A("v_pk_mul_f32 %s, %s, %s op_sel_hi:[1,0]" % (v(r, 2), v(r, 2), v(RR, 2)))
        A("v_rcp_f32 %s, %s" % (v(RR), v(AL)))
        A("\n".join(f0))
        pk(AQ)
        pk(AQ + 2)
        for q in range(2):
            A(cvt(OOP[0] + q, AQ + 2 * q, AQ + 2 * q + 1))
        pk(AQ + 4)
        pk(AQ + 6)
        for q in range(2, 4):
            A(cvt(OOP[0] + q, AQ + 2 * q, AQ + 2 * q + 1))
        A("ds_write_b128 %s, %s offset:%d" % (v(VL1), v(OOP[0], 4), RB + w * 1024))
        A("\n".join(f1))

    def fallback(self, B, w, tag, X, M):
        EX, AL = X[1], X[3]
        MX, TM = T0 + 2, T0 + 3
        B.label("c_slow_" + tag)
        vl = lambda so: "\n".join("buffer_load_dwordx4 %s, %s, %s, %s offen offset:%d sc1" % (
            v(VXR + 4 * q, 4), v(VL1), WS, s(so), 1024 * q) for q in range(2))
        B("s_waitcnt vmcnt(0)")
        B("s_sub_u32 %s, %s, 262144" % (s(sT0), s(sVX)))
        B(vl(sT0))
        B("s_waitcnt vmcnt(0)")
        B("s_nop 15")
        B("v_max3_f32 %s, %s, %s, %s" % (v(MX), v(X[0]), v(X[0] + 1), v(X[0] + 2)))
        B("v_max3_f32 %s, %s, %s, %s" % (v(MX), v(MX), v(X[0] + 3), v(M)))
        B("v_max_f32 %s, %s, %s" % (v(MX), v(MX), v(M + 1)))
        B("v_max_f32_dpp %s, %s, %s quad_perm:[2,3,0,1] row_mask:0xf bank_mask:0xf" % (v(MX), v(MX), v(MX)))
        for sw in ("v_permlane16_swap_b32", "v_permlane32_swap_b32"):
            B("v_mov_b32 %s, %s" % (v(TM), v(MX)))
            B("%s %s, %s" % (sw, v(MX), v(TM)))
            B("s_nop 1")
            B("v_max_f32 %s, %s, %s" % (v(MX), v(MX), v(TM)))
        for r in range(4):
            B("v_sub_f32 %s, %s, %s" % (v(EX + r), v(X[0] + r), v(MX)))
        for r in range(2):
            B("v_sub_f32 %s, %s, %s" % (v(M + 2 + r), v(M + r), v(MX)))
        for r in range(4):
            B("v_exp_f32 %s, %s" % (v(EX + r), v(EX + r)))
        B(cvt(EX, EX, EX + 1))
        B(cvt(EX + 1, EX + 2, EX + 3))
        self.softmax_tail(B, X, M, [], first=False)
        B("s_waitcnt lgkmcnt(0)")
        self.normalize(B, w, AL)
        for a_ in range(4):
            B("v_mov_b64 %s, 0\nv_mov_b64 %s, 0" % (v(ACCO[a_], 2), v(ACCO[a_] + 2, 2)))
        for a_ in range(2):
            B(WO(a_, 0))
        B(vl(sVX))
        B("s_nop 7")
        B("s_branch c_back_" + tag)

    def emit(self, A):
        for w in range(1, 4):
            A("s_cmp_eq_u32 %s, %d\ns_cbranch_scc1 c_pro_%d" % (s(sWAVE), w, w))
        for w in range(4):
            CUR[0] = w
            P_ = Asm()
            P_._uid = 100 + 200 * w
            P_.label("c_pro_%d" % w)
            self.prologue(P_, w)
            A.extend(fix_hazards(P_.lines))
        for slow in (0, 1):
            for w in range(4):
                A(".p2align 6")
                A.extend(self.loop(w, slow))
```

```python
from asmlib import *
from layout import *

WS, DBG = "s[4:7]", "s[28:31]"
sROLE, sWAVE, sBUD = 32, 33, 35
sSEG, sEND, sIN, sOUT, sFLG, sSC, sT0, sT1, sT2, sRS, sB0, sB1, sLW = range(36, 49)
sPOLL, sNEED, sX, sSET3, sQ, sKM2 = range(49, 55)
sMASK = 56
W0, W1 = 8, 12
SXI, SOUT = 16, 20
NP, NM, NXY, ND, NZ = 62, 64, 48, 16, 32
SEGB = 262144
PARTB = 12 * 32768
HSEG = 112 * 1024

L, N32, HI, VL16, VST, VT0, VT1, VT2, VT3, VPO = 255, 254, 253, 252, 251, 250, 249, 248, 247, 246
VA = 240


def cvt(d, x, y):
    return "v_cvt_pk_bf16_f32 %s, %s, %s" % (v(d), v(x), v(y))


WST = [False]


def rt(A, k):
    if WST[0]:
        A("s_memrealtime %s\ns_waitcnt lgkmcnt(0)" % s(70 + 2 * k, 2))


def budget(A, give_up):
    A("s_cmp_eq_u32 %s, 0\ns_cbranch_scc1 %s\ns_sub_u32 %s, %s, 1" % (s(sBUD), give_up, s(sBUD), s(sBUD)))


def wait_dbg(A, off, want, mask=None, sleep=4):
    top, done = A.uid("w_wd"), A.uid("w_wdd")
    A.label(top)
    A("buffer_load_dword %s, off, %s, 0 offset:%d sc1" % (v(VT0), DBG, off))
    A("s_waitcnt vmcnt(0)")
    A("v_readfirstlane_b32 %s, %s" % (s(sT1), v(VT0)))
    if mask:
        A("s_and_b32 %s, %s, 0x%x" % (s(sT1), s(sT1), mask))
    A("s_cmp_ge_u32 %s, %d\ns_cbranch_scc1 %s" % (s(sT1), want, done))
    budget(A, done)
    A("s_sleep %d\ns_branch %s" % (sleep, top))
    A.label(done)


def poll(A, nl, vaddr, soff, need, sleep=2, vneed=False):
    top, done = A.uid("w_pl"), A.uid("w_pld")
    A("s_mov_b64 exec, 0x%x" % ((1 << nl) - 1))
    A.label(top)
    A("buffer_load_dword %s, %s, %s, %s offen sc1" % (v(VT0), v(vaddr), WS, s(soff)))
    A("s_waitcnt vmcnt(0)")
    A("v_cmp_gt_u32 vcc, %s, %s" % (v(need) if vneed else s(need), v(VT0)))
    A("s_cbranch_vccz %s" % done)
    budget(A, done)
    A("s_sleep %d\ns_branch %s" % (sleep, top))
    A.label(done)
    A("s_mov_b64 exec, -1")


def post_flag(A, val_sgpr_plus1):
    lab = A.uid("w_fl")
    A("s_waitcnt vmcnt(0)\ns_barrier")
    A("s_cmp_lg_u32 %s, 0\ns_cbranch_scc1 %s" % (s(sWAVE), lab))
    A("s_add_u32 %s, %s, 1" % (s(sT0), s(val_sgpr_plus1)))
    A("v_mov_b32 %s, %s" % (v(VT0), s(sT0)))
    A("s_mov_b64 exec, 1")
    A("buffer_store_dword %s, off, %s, %s sc1" % (v(VT0), WS, s(sFLG)))
    A("s_mov_b64 exec, -1")
    A.label(lab)


def srd(A, d, karg, size, sreg=None):
    if sreg is None:
        A("s_load_dwordx2 %s, s[0:1], %d" % (s(d, 2), karg))
    else:
        A("s_load_dwordx2 %s, s[0:1], %s" % (s(d, 2), s(sreg)))
    A("s_mov_b32 %s, 0x%x\ns_mov_b32 %s, 0x20000" % (s(d + 2), size, s(d + 3)))


def common(A):
    A("v_and_b32 %s, 63, v0" % v(L))
    A("v_and_b32 %s, 31, v0" % v(N32))
    A("v_lshrrev_b32 %s, 5, %s" % (v(HI), v(L)))
    A("v_lshlrev_b32 %s, 4, %s" % (v(VL16), v(L)))


def load_weights(A, perm, two_srd, nt=False):
    X, Y, Z, DV = VT0, VT1, VT2, VT3
    full = not two_srd
    rowb = 128 if full else 64
    A("s_lshl_b32 %s, %s, 15" % (s(sLW), s(sWAVE)))
    A("v_lshrrev_b32 %s, %d, %s" % (v(X), 3 if full else 2, v(L)))
    A("v_mul_lo_u32 %s, %s, %s" % (v(X), v(X), s(sRS)))
    if full:
        A("v_bfe_u32 %s, %s, 4, 1" % (v(Z), v(L)))
        A("v_lshlrev_b32 %s, 2, %s" % (v(Z), v(Z)))
        A("v_xor_b32 %s, %s, %s" % (v(Y), v(Z), v(L)))
        A("v_and_b32 %s, 7, %s" % (v(Y), v(Y)))
    else:
        A("v_and_b32 %s, 3, %s" % (v(Y), v(L)))
    A("v_lshl_add_u32 %s, %s, 4, %s" % (v(DV), v(Y), v(X)))
    A("s_lshl_b32 %s, %s, %d" % (s(sT2), s(sRS), 3 if full else 4))

    def dma(u):
        for half in range(2):
            for t in range(2):
                A("s_add_u32 m0, %s, %d" % (s(sLW), (u % 8) * 4096 + ((2 * half + t) * 1024 if full else t * 2048 + half * 1024)))
                A("buffer_load_dwordx4 %s, %s, %s offen %slds" % (
                    v(DV), s(W1 if (t and two_srd) else W0, 4), s(sB0), "nt " if nt else ""))
                if full or t:
                    A("s_add_u32 %s, %s, %s" % (s(sB0), s(sB0), s(sT2)))

    for u in range(8):
        dma(u)
    A("v_and_b32 %s, 3, %s" % (v(Y), v(L)))
    A("v_bfe_u32 %s, %s, 2, 2" % (v(X), v(L)))
    A("v_lshl_add_u32 %s, %s, %d, %s" % (v(X), v(HI), 2 if perm else 3, v(X)))
    A("v_lshlrev_b32 %s, %d, %s" % (v(X), 7 if full else 6, v(X)))
    A("v_bfe_u32 %s, %s, 4, 1" % (v(Z), v(L)))
    if perm == "col":
        A("v_lshl_add_u32 %s, %s, 4, %s" % (v(X), v(Z), v(X)))
        A("v_and_b32 %s, 1, %s" % (v(Z), v(L)))
        A("v_lshl_add_u32 %s, %s, 5, %s" % (v(X), v(Z), v(X)))
        A("v_bfe_u32 %s, %s, 1, 1" % (v(Z), v(L)))
        A("v_lshl_add_u32 %s, %s, 3, %s" % (v(X), v(Z), v(X)))
    else:
        A("v_lshl_add_u32 %s, %s, 5, %s" % (v(X), v(Z), v(X)))
        A("v_lshl_add_u32 %s, %s, 3, %s" % (v(X), v(Y), v(X)))
    TR = VA
    if full:
        A("v_bfe_u32 %s, %s, 3, 1" % (v(Z), v(L)))
        A("v_lshl_add_u32 %s, %s, 6, %s" % (v(X), v(Z), v(X)))
    A("v_add_u32 %s, %s, %s" % (v(TR), s(sLW), v(X)))
    A("v_xor_b32 %s, %d, %s" % (v(TR + 1), 64 if full else 2048, v(TR)))
    bs, qs = (8, 16) if perm else (16, 4)
    for u in range(16):
        A("s_waitcnt vmcnt(%d)" % (4 * min(7, 15 - u)))
        for b in range(2):
            for t in range(2):
                for q in range(2):
                    A("ds_read_b64_tr_b16 %s, %s offset:%d" % (
                        a(((2 * u + b) * 2 + t) * 4 + 2 * q, 2), v(TR + t), (u % 8) * 4096 + (bs * b + qs * q) * rowb))
        A("s_waitcnt lgkmcnt(0)")
        if u + 8 < 16:
            dma(u + 8)
    A("s_barrier")
    rt(A, 1)


def gemm(A, nk, acc, fr, swap, fill=(), base=0, sched=None):
    fill = list(fill)
    sched = dict(sched or {})
    q = []

    def emit(l):
        A(l)
        if l.startswith("ds_"):
            q.append(None)

    def rd(k):
        A("ds_read_b128 %s, %s offset:%d" % (v(fr + 4 * (k % 4), 4), v(VL16), base + k * 1024))
        q.append(k)

    for k in range(3):
        rd(k)
    for k in range(nk):
        n = len(q) - 1 - q.index(k)
        A("s_waitcnt lgkmcnt(%d)" % n)
        del q[:len(q) - n]
        for t in range(2):
            w_, x_ = a((2 * k + t) * 4, 4), v(fr + 4 * (k % 4), 4)
            c = "0" if k == 0 else v(acc + 16 * t, 16)
            A("v_mfma_f32_32x32x16_bf16 %s, %s, %s, %s" % (v(acc + 16 * t, 16), x_ if swap else w_, w_ if swap else x_, c))
            if t == 0 and k + 3 < nk:
                rd(k + 3)
            elif fill:
                emit(fill.pop(0))
            for l in sched.pop(2 * k + t, []):
                emit(l)
    assert not fill and not sched


def layernorm(A):
    XR, F, S0, S1 = 0, 32, 96, 98
    X, Y = VT1, VT2
    srd(A, SXI, 0, 2048 * 1024)
    A("v_lshrrev_b32 %s, 3, %s" % (v(X), v(L)))
    A("v_and_b32 %s, 7, %s" % (v(Y), v(L)))
    A("v_lshlrev_b32 %s, 10, %s" % (v(VT3), v(X)))
    A("v_lshl_add_u32 %s, %s, 4, %s" % (v(VT3), v(Y), v(VT3)))
    A("v_lshlrev_b32 %s, 4, %s" % (v(VST), v(X)))
    A("v_lshl_add_u32 %s, %s, 9, %s" % (v(VST), v(Y), v(VST)))
    A("s_lshl_b32 %s, %s, 15\ns_lshl_b32 %s, %s, 13" % (s(sT0), s(sSEG), s(sT1), s(sWAVE)))
    A("s_add_u32 %s, %s, %s" % (s(sT1), s(sT1), s(sT0)))
    A("s_waitcnt lgkmcnt(0)")
    for i in range(8):
        A("buffer_load_dwordx4 %s, %s, %s, %s offen offset:%d" % (v(XR + 4 * i, 4), v(VT3), s(SXI, 4), s(sT1), 128 * i))
    A("s_lshl_b32 %s, %s, 7\ns_add_u32 %s, %s, %s\ns_add_u32 %s, %s, %d" % (
        s(sT1), s(sWAVE), s(sT0), s(sT0), s(sT1), s(sT0), s(sT0), XN))
    A("s_mov_b32 %s, 0xffff0000" % s(sT2))

    def red8(r):
        for m in ("quad_perm:[1,0,3,2]", "quad_perm:[2,3,0,1]", "row_half_mirror"):
            A("v_add_f32_dpp %s, %s, %s %s row_mask:0xf bank_mask:0xf" % (v(r), v(r), v(r), m))

    def rnd(r):
        A(cvt(r, r, r))
        A("v_lshlrev_b32 %s, 16, %s" % (v(r), v(r)))

    for i in range(8):
        A("s_waitcnt vmcnt(%d)" % (7 - i))
        for j in range(4):
            r = 4 * i + j
            A("v_lshlrev_b32 %s, 16, %s" % (v(F + 2 * r), v(XR + r)))
            A("v_and_b32 %s, %s, %s" % (v(F + 2 * r + 1), s(sT2), v(XR + r)))
            if r == 0:
                A("v_mov_b64 %s, %s" % (v(S0, 2), v(F, 2)))
            else:
                A("v_pk_add_f32 %s, %s, %s" % (v(S0, 2), v(S0, 2), v(F + 2 * r, 2)))
    A("v_add_f32 %s, %s, %s" % (v(S0), v(S0), v(S0 + 1)))
    red8(S0)
    A("v_mul_f32 %s, 0xbb000000, %s" % (v(S0), v(S0)))
    A("v_mov_b32 %s, %s" % (v(S0 + 1), v(S0)))
    A("v_mov_b64 %s, 0" % v(S1, 2))
    for r in range(32):
        t = XR + 2 * (r % 8)
        A("v_pk_add_f32 %s, %s, %s" % (v(t, 2), v(F + 2 * r, 2), v(S0, 2)))
        A("v_pk_fma_f32 %s, %s, %s, %s" % (v(S1, 2), v(t, 2), v(t, 2), v(S1, 2)))
    A("v_add_f32 %s, %s, %s" % (v(S1), v(S1), v(S1 + 1)))
    red8(S1)
    A("v_mul_f32 %s, 0x3b000000, %s" % (v(S1), v(S1)))
    rnd(S1)
    A("v_add_f32 %s, 0x3727c5ac, %s" % (v(S1), v(S1)))
    rnd(S1)
    A("v_sqrt_f32 %s, %s" % (v(S1), v(S1)))
    rnd(S1)
    A("v_rcp_f32 %s, %s" % (v(S1), v(S1)))
    rnd(S0)
    A("v_mov_b32 %s, %s" % (v(S0 + 1), v(S0)))
    A("v_mov_b32 %s, %s" % (v(S1 + 1), v(S1)))
    for i in range(8):
        for j in range(4):
            r = 4 * i + j
            f = F + 2 * r
            A("v_pk_add_f32 %s, %s, %s" % (v(f, 2), v(f, 2), v(S0, 2)))
            A(cvt(f + 1, f, f + 1))
            A("v_lshlrev_b32 %s, 16, %s" % (v(f), v(f + 1)))
            A("v_and_b32 %s, %s, %s" % (v(f + 1), s(sT2), v(f + 1)))
            A("v_pk_mul_f32 %s, %s, %s" % (v(f, 2), v(f, 2), v(S1, 2)))
            A(cvt(XR + r, f, f + 1))
        A("buffer_store_dwordx4 %s, %s, %s, %s offen sc1" % (v(XR + 4 * i, 4), v(VST), WS, s(sT0)))
        A("s_add_u32 %s, %s, 4096" % (s(sT0), s(sT0)))
    lab = A.uid("w_ln")
    A("s_waitcnt vmcnt(0)\ns_barrier")
    A("s_cmp_lg_u32 %s, 0\ns_cbranch_scc1 %s" % (s(sWAVE), lab))
    A("v_mov_b32 %s, 1" % v(VT0))
    A("s_mov_b64 exec, 1")
    A("buffer_atomic_add %s, off, %s, 0 offset:%d" % (v(VT0), DBG, DBG_LN))
    A("s_mov_b64 exec, -1")
    A.label(lab)


XR, FR, ACC, OUT = 0, 32, 48, 80


def pack_store(A, acc, out, offs, order):
    for t in range(2):
        for p in range(2):
            o = out + 8 * t + 4 * p
            for k, q in enumerate(order[p]):
                A(cvt(o + 2 * k, acc + 16 * t + 4 * q, acc + 16 * t + 4 * q + 1))
                A(cvt(o + 2 * k + 1, acc + 16 * t + 4 * q + 2, acc + 16 * t + 4 * q + 3))
            A("buffer_store_dwordx4 %s, %s, %s, %s offen offset:%d sc1" % (v(o, 4), v(VST), WS, s(sOUT), offs[t][p]))


def in_loads(n):
    return ["buffer_load_dwordx4 %s, %s, %s, %s offen offset:%d sc1" % (
        v(XR + 4 * i, 4), v(VA + 1 + i // 4), WS, s(sIN), (i % 4) * 1024) for i in range(n)]


def in_addr(A, n):
    A("s_mul_i32 %s, %s, %d" % (s(sT0), s(sWAVE), n * 1024))
    A("v_add_u32 %s, %s, %s" % (v(VA + 1), s(sT0), v(VL16)))
    A("v_add_u32 %s, 4096, %s" % (v(VA + 2), v(VA + 1)))


def in_writes(A, n):
    for i in range(n):
        A("ds_write_b128 %s, %s offset:%d" % (v(VA + 1), v(XR + 4 * i, 4), i * 1024))
    A("s_waitcnt lgkmcnt(0)\ns_barrier")


def p_setup(A, kind, mem):
    G = sQ
    if kind == "gu":
        srd(A, W0, 64, 512 * 3584)
        srd(A, W1, 72, 512 * 3584)
        A("s_mov_b32 %s, 3584" % s(sRS))
        A("s_sub_u32 %s, %s, 48" % (s(G), s(G)))
        A("s_lshl2_add_u32 %s, %s, %s" % (s(sT0), s(G), s(sWAVE)))
        A("s_lshl_b32 %s, %s, 6\ns_mov_b32 %s, %s" % (s(sB0), s(sT0), s(sB1), s(sB0)))
        A("s_lshl_b32 %s, %s, 11\ns_add_u32 %s, %s, %d" % (s(sOUT), s(sT0), s(sOUT), s(sOUT), HB))
        A("v_mov_b32 %s, %s" % (v(VST), v(VL16)))
    else:
        A("s_lshr_b32 %s, %s, 4" % (s(sT0), s(G)))
        A("s_lshl_b32 %s, %s, 3\ns_add_u32 %s, %s, 16" % (s(sT1), s(sT0), s(sT1), s(sT1)))
        srd(A, W0, None, 512 * 8192, sreg=sT1)
        A("s_cmp_eq_u32 %s, 0" % s(sT0))
        A("s_mov_b32 %s, 0x%x" % (s(sSC), SB_BF << 16))
        A("s_cselect_b32 %s, 0x%x, %s" % (s(sSC), SA_BF << 16, s(sSC)))
        A("s_lshl_b32 %s, 0x%x, %s" % (s(sOUT), QX, s(sT0)))
        A("s_and_b32 %s, %s, 15" % (s(G), s(G)))
        A("s_lshl2_add_u32 %s, %s, %s" % (s(sT0), s(G), s(sWAVE)))
        A("s_lshl_b32 %s, %s, 7\ns_add_u32 %s, %s, 64" % (s(sB0), s(sT0), s(sB1), s(sB0)))
        A("s_lshl_b32 %s, %s, 12\ns_add_u32 %s, %s, %s" % (s(sT0), s(sT0), s(sOUT), s(sOUT), s(sT0)))
        if mem:
            A("s_add_u32 %s, %s, 64\ns_lshl_b32 %s, %s, 18\ns_add_u32 %s, %s, %s" % (
                s(sT0), s(sSEG), s(sT0), s(sT0), s(sOUT), s(sOUT), s(sT0)))
        A("s_mov_b32 %s, 8192" % s(sRS))
        A("v_and_b32 %s, 15, %s" % (v(VT0), v(L)))
        A("v_lshlrev_b32 %s, 4, %s" % (v(VST), v(VT0)))
        A("v_lshl_add_u32 %s, %s, 8, %s" % (v(VST), v(HI), v(VST)))
        A("v_bfe_u32 %s, %s, 4, 1" % (v(VT0), v(L)))
        A("v_lshl_add_u32 %s, %s, 10, %s" % (v(VST), v(VT0), v(VST)))
    A("s_waitcnt lgkmcnt(0)")


def p_epilogue(kind, acc, out):
    E = Asm()
    if kind == "gu":
        for p in range(2):
            for k, q in enumerate(((0, 2), (1, 3))[p]):
                for e in range(2):
                    g, u_ = acc + 4 * q + 2 * e, acc + 16 + 4 * q + 2 * e
                    E("v_max_f32 %s, 0, %s" % (v(g), v(g)))
                    E("v_max_f32 %s, 0, %s" % (v(g + 1), v(g + 1)))
                    for r in (g, u_):
                        E(cvt(r + 1, r, r + 1))
                        E("v_lshlrev_b32 %s, 16, %s" % (v(r), v(r + 1)))
                        E("v_and_b32 %s, 0xffff0000, %s" % (v(r + 1), v(r + 1)))
                    E("v_mul_f32 %s, %s, %s" % (v(g), v(g), v(u_)))
                    E("v_mul_f32 %s, %s, %s" % (v(g + 1), v(g + 1), v(u_ + 1)))
                    E(cvt(out + 4 * p + 2 * k + e, g, g + 1))
            E("buffer_store_dwordx4 %s, %s, %s, %s offen offset:%d sc1" % (v(out + 4 * p, 4), v(VST), WS, s(sOUT), 1024 * p))
    else:
        offs, order = ((0, 512), (2048, 2560)), ((0, 2), (1, 3))
        for t in range(2):
            for p in range(2):
                o_ = out + 8 * t + 4 * p
                for k, q in enumerate(order[p]):
                    r0 = acc + 16 * t + 4 * q
                    if kind == "qk":
                        for r in range(4):
                            E("v_mul_f32 %s, %s, %s" % (v(r0 + r), s(sSC), v(r0 + r)))
                    E(cvt(o_ + 2 * k, r0, r0 + 1))
                    E(cvt(o_ + 2 * k + 1, r0 + 2, r0 + 3))
                E("buffer_store_dwordx4 %s, %s, %s, %s offen offset:%d sc1" % (v(o_, 4), v(VST), WS, s(sOUT), offs[t][p]))
    return E.lines


def role_p(A, kind, o):
    tg = "p" + kind
    ACC2 = (48, 96)
    step = HSEG if kind == "gu" else SEGB
    nst = 2 if kind == "gu" else 4
    A.label("w_" + tg)
    A("s_lshl_b32 %s, %s, 7\ns_add_u32 %s, %s, %d" % (s(sFLG), s(sQ), s(sFLG), s(sFLG), FLAGS + F_P))
    A("s_mov_b32 %s, 0" % s(sSEG))
    p_setup(A, kind, False)
    load_weights(A, None, kind == "gu", nt=o.get("p_nt"))
    in_addr(A, 8)
    A("s_mov_b32 %s, %d" % (s(sIN), XN))
    A("s_mov_b32 %s, %s\ns_mov_b32 %s, %d" % (s(sX), s(sOUT), s(sOUT), DUMMY))
    wait_dbg(A, DBG_LN, 64)
    A("\n".join(in_loads(8)))
    wait_dbg(A, DBG_INIT, 1)
    in_writes(A, 8)
    A("s_add_u32 %s, %s, 32768" % (s(sIN), s(sIN)))
    A("\n".join(in_loads(8)))
    rt(A, 2)
    A.label("w_top_" + tg)
    for p in range(2):
        ep = p_epilogue(kind, ACC2[1 - p], OUT)
        sched = {}
        g = 2
        while ep:
            n = 3 if g % 2 == 0 else 4
            sched[g], ep = ep[:n], ep[n:]
            g += 1
        g = max(g, 30)
        sched[g] = ["s_waitcnt vmcnt(%d)" % nst, "s_mov_b32 %s, %s" % (s(sOUT), s(sX)),
                    "s_add_u32 %s, %s, %d" % (s(sX), s(sX), step), "s_add_u32 %s, %s, 32768" % (s(sIN), s(sIN))]
        for i in range(8):
            sched[g + 1 + i] = ["ds_write_b128 %s, %s offset:%d" % (v(VA + 1), v(XR + 4 * i, 4), (1 - p) * 32768 + i * 1024)]
        for i, l in enumerate(in_loads(8)):
            sched[g + 16 + i] = [l]
        gemm(A, 32, ACC2[p], FR, kind == "v", base=p * 32768, sched=sched)
        lab = A.uid("w_fl")
        A("s_waitcnt vmcnt(8) lgkmcnt(0)\ns_barrier")
        A("s_cmp_lg_u32 %s, 0\ns_cbranch_scc1 %s" % (s(sWAVE), lab))
        A("v_mov_b32 %s, %s" % (v(VT0), s(sSEG)))
        A("s_mov_b64 exec, 1")
        A("buffer_store_dword %s, off, %s, %s sc1" % (v(VT0), WS, s(sFLG)))
        A("s_mov_b64 exec, -1")
        A.label(lab)
        A("s_add_u32 %s, %s, 1" % (s(sSEG), s(sSEG)))
    A("s_cmp_lt_u32 %s, 64\ns_cbranch_scc1 w_top_%s" % (s(sSEG), tg))
    A("s_nop 7")
    A("\n".join(p_epilogue(kind, ACC2[1], OUT)))
    A("s_mov_b32 %s, 63" % s(sSEG))
    post_flag(A, sSEG)
    A("s_branch w_exit")


def role_m(A, kind, o):
    tg = "m" + kind
    A.label("w_" + tg)
    A("s_lshl1_add_u32 %s, %s, %s\ns_lshl_b32 %s, %s, 7\ns_add_u32 %s, %s, %d" % (
        s(sFLG), s(sQ), s(sSEG), s(sFLG), s(sFLG), s(sFLG), s(sFLG), FLAGS + F_M - 32 * 128))
    p_setup(A, kind, True)
    load_weights(A, None, False)
    in_addr(A, 8)
    for r in range(4):
        A("v_mov_b32 %s, 0" % v(XR + r))
    for i in range(8):
        A("ds_write_b128 %s, %s offset:%d" % (v(VA + 1), v(XR, 4), i * 1024))
    A("v_lshrrev_b32 %s, 4, %s" % (v(VT0), v(L)))
    A("v_lshlrev_b32 %s, 9, %s" % (v(VA + 3), v(VT0)))
    A("v_bfe_u32 %s, %s, 1, 1" % (v(VT0), v(L)))
    A("v_lshl_add_u32 %s, %s, 11, %s" % (v(VA + 3), v(VT0), v(VA + 3)))
    A("v_bfe_u32 %s, %s, 2, 2" % (v(VT0), v(L)))
    A("v_lshl_add_u32 %s, %s, 5, %s" % (v(VA + 3), v(VT0), v(VA + 3)))
    A("v_and_b32 %s, 1, %s" % (v(VT0), v(L)))
    A("v_lshl_add_u32 %s, %s, 4, %s" % (v(VA + 3), v(VT0), v(VA + 3)))
    A("s_lshl_b32 %s, %s, 13" % (s(sT0), s(sWAVE)))
    A("v_add_u32 %s, %s, %s" % (v(VA + 3), s(sT0), v(VA + 3)))
    A("s_lshl_b32 %s, %s, 13\ns_lshl_b32 %s, %s, 11" % (s(sIN), s(sSEG), s(sT0), s(sWAVE)))
    A("s_add_u32 %s, %s, %s\ns_add_u32 %s, %s, %d" % (s(sIN), s(sIN), s(sT0), s(sIN), s(sIN), MEMC))
    wait_dbg(A, DBG_INIT, 1)
    wait_dbg(A, DBG_CHAIN_READY, 32, mask=0xffff)
    A("s_waitcnt lgkmcnt(0)")
    A.label("w_mem_" + tg)
    for i in range(2):
        A("buffer_load_dwordx4 %s, %s, %s, %s offen offset:%d sc1" % (v(XR + 4 * i, 4), v(VL16), WS, s(sIN), 1024 * i))
    A("s_waitcnt vmcnt(0)")
    A("v_max3_u32 %s, %s, %s, %s" % (v(VT0), v(XR), v(XR + 1), v(XR + 2)))
    A("v_max3_u32 %s, %s, %s, %s" % (v(VT0), v(VT0), v(XR + 3), v(XR + 4)))
    A("v_max3_u32 %s, %s, %s, %s" % (v(VT0), v(VT0), v(XR + 5), v(XR + 6)))
    A("v_max_u32 %s, %s, %s" % (v(VT0), v(VT0), v(XR + 7)))
    A("v_cmp_eq_u32 vcc, -1, %s" % v(VT0))
    A("s_cbranch_vccz w_memok_" + tg)
    budget(A, "w_memok_" + tg)
    A("s_sleep %d\ns_branch w_mem_%s" % (o.get("msleep", 2), tg))
    A.label("w_memok_" + tg)
    rt(A, 4)
    for i in range(2):
        A("ds_write_b128 %s, %s offset:%d" % (v(VA + 3), v(XR + 4 * i, 4), 4096 * i))
    A("s_add_u32 %s, %s, 16384" % (s(sIN), s(sIN)))
    A("s_waitcnt lgkmcnt(0)\ns_barrier")
    gemm(A, 32, ACC, FR, kind == "v")
    A("\n".join(p_epilogue(kind, ACC, OUT)))
    post_flag(A, sSEG)
    A("s_add_u32 %s, %s, 2" % (s(sSEG), s(sSEG)))
    A("s_add_u32 %s, %s, %d" % (s(sOUT), s(sOUT), 2 * SEGB))
    A("s_cmp_lt_u32 %s, 64\ns_cbranch_scc1 w_mem_%s" % (s(sSEG), tg))
    A("s_branch w_exit")


def part_setup(A, src_sgpr, ch_sgpr):
    A("s_lshl2_add_u32 %s, %s, %s" % (s(sT0), s(ch_sgpr), s(sWAVE)))
    A("s_lshl_b32 %s, %s, 7\ns_add_u32 %s, %s, %s\ns_add_u32 %s, %s, 64" % (
        s(sT1), s(sT0), s(sB0), s(sB0), s(sT1), s(sB1), s(sB0)))
    A("s_lshl_b32 %s, %s, 12\ns_lshl_b32 %s, %s, 15\ns_add_u32 %s, %s, %s" % (
        s(sOUT), s(sT0), s(sT1), s(src_sgpr), s(sOUT), s(sOUT), s(sT1)))
    A("s_mul_i32 %s, %s, %d\ns_add_u32 %s, %s, %s\ns_add_u32 %s, %s, %d" % (
        s(sT1), s(sSEG), PARTB, s(sOUT), s(sOUT), s(sT1), s(sOUT), s(sOUT), PART))
    A("s_mov_b32 %s, 1024" % s(sRS))
    A("v_mov_b32 %s, %s" % (v(VST), v(VL16)))


PART_OFFS, PART_ORD = ((0, 1024), (2048, 3072)), ((0, 1), (2, 3))


def role_d(A, o):
    A.label("w_d")
    J = sQ
    srd(A, W0, 80, 1792 * 1024)
    A("s_and_b32 %s, %s, 1" % (s(sSEG), s(J)))
    A("s_lshr_b32 %s, %s, 1" % (s(sT0), s(J)))
    A("s_lshl_b32 %s, %s, 3\ns_add_u32 %s, %s, %s" % (s(sFLG), s(sSEG), s(sFLG), s(sFLG), s(sT0)))
    A("s_lshl_b32 %s, %s, 7\ns_add_u32 %s, %s, %d" % (s(sFLG), s(sFLG), s(sFLG), s(sFLG), FLAGS + F_D))
    A("s_and_b32 %s, %s, 3\ns_lshr_b32 %s, %s, 3" % (s(sX), s(sT0), s(sSET3), s(J)))
    A("s_mul_i32 %s, %s, %d" % (s(sB0), s(sX), 448 * 1024))
    A("s_mul_i32 %s, %s, %d\ns_mul_i32 %s, %s, %d" % (s(sIN), s(sX), 28 * 1024, s(sT1), s(sSEG), HSEG))
    A("s_add_u32 %s, %s, %s\ns_add_u32 %s, %s, %d" % (s(sIN), s(sIN), s(sT1), s(sIN), s(sIN), HB))
    A("s_add_u32 %s, %s, 8" % (s(sX), s(sX)))
    part_setup(A, sX, sSET3)
    A("s_mov_b32 %s, %d" % (s(sPOLL), FLAGS + F_P + 48 * 128))
    A("v_lshlrev_b32 %s, 7, %s" % (v(VPO), v(L)))
    A("s_waitcnt lgkmcnt(0)")
    load_weights(A, "col", False)
    in_addr(A, 7)
    wait_dbg(A, DBG_INIT, 1)
    A("s_add_u32 %s, %s, 1" % (s(sNEED), s(sSEG)))
    poll(A, 14, VPO, sPOLL, sNEED, sleep=8)
    A("\n".join(in_loads(7)))
    A("s_waitcnt vmcnt(0)")
    rt(A, 2)
    A.label("w_top_d")
    in_writes(A, 7)
    A("s_add_u32 %s, %s, %d" % (s(sIN), s(sIN), 2 * HSEG))
    A("s_add_u32 %s, %s, 3" % (s(sNEED), s(sSEG)))
    A("s_cmp_gt_u32 %s, 64\ns_cbranch_scc1 w_gemm_d" % s(sNEED))
    poll(A, 14, VPO, sPOLL, sNEED, sleep=8)
    A("\n".join(in_loads(7)))
    A.label("w_gemm_d")
    gemm(A, 28, ACC, FR, False)
    pack_store(A, ACC, OUT, PART_OFFS, PART_ORD)
    post_flag(A, sSEG)
    A("s_add_u32 %s, %s, 2" % (s(sSEG), s(sSEG)))
    A("s_add_u32 %s, %s, %d" % (s(sOUT), s(sOUT), 2 * PARTB))
    A("s_cmp_lt_u32 %s, 64\ns_cbranch_scc1 w_top_d" % s(sSEG))
    A("s_branch w_exit")


def mf16(d, a_, b_, c=None):
    return "v_mfma_f32_16x16x16_bf16 %s, %s, %s, %s" % (v(d, 4), v(a_, 2), v(b_, 2), "0" if c is None else v(c, 4))


def mf32(d, a_, b_, c=None):
    return "v_mfma_f32_16x16x32_bf16 %s, %s, %s, %s" % (v(d, 4), v(a_, 4), v(b_, 4), "0" if c is None else v(c, 4))


def role_xy(A, o):
    A.label("w_xy")
    J = sQ
    Q, K, V_, KM_, VM_ = 0, 32, 64, 96, 112
    S00, S01, S11, SM0, SM1 = 128, 132, 136, 140, 144
    O = 148
    acc, fr, out = 148, 180, 196
    M0, M1, L0, L1, TA, NEG, OW = 212, 213, 214, 215, 216, 218, 219
    P0, P1, PM0, PM1 = 220, 224, 222, 228
    srd(A, W0, 40, 4096 * 1024)
    A("s_mul_i32 %s, %s, 43\ns_lshr_b32 %s, %s, 7" % (s(sT0), s(J), s(sT0), s(sT0)))
    A("s_mul_i32 %s, %s, 3\ns_sub_u32 %s, %s, %s" % (s(sT1), s(sT0), s(sSEG), s(J), s(sT1)))
    A("s_and_b32 %s, %s, 1\ns_lshr_b32 %s, %s, 1" % (s(sSET3), s(sT0), s(sX), s(sT0)))
    A("s_lshl1_add_u32 %s, %s, %s\ns_lshl3_add_u32 %s, %s, %s" % (s(sFLG), s(sSEG), s(sSET3), s(sFLG), s(sFLG), s(sX)))
    A("s_lshl_b32 %s, %s, 7\ns_add_u32 %s, %s, %d" % (s(sFLG), s(sFLG), s(sFLG), s(sFLG), FLAGS + F_Y))
    A("s_lshl_b32 %s, %s, 19" % (s(sB0), s(sX)))
    part_setup(A, sX, sSET3)
    A("s_lshl2_add_u32 %s, %s, %s" % (s(sT0), s(sX), s(sWAVE)))
    A("s_lshl_b32 %s, %s, 13\ns_lshl_b32 %s, %s, 18\ns_add_u32 %s, %s, %s" % (
        s(sIN), s(sT0), s(sT1), s(sSEG), s(sIN), s(sIN), s(sT1)))
    A("s_add_u32 %s, %s, %d" % (s(sIN), s(sIN), QX))
    A("s_lshr_b32 %s, %s, 1\ns_lshl_b32 %s, %s, 7" % (s(sKM2), s(sT0), s(sKM2), s(sKM2)))
    A("s_mov_b32 %s, %d" % (s(sPOLL), FLAGS))
    A("s_waitcnt lgkmcnt(0)")
    load_weights(A, "col", False)
    A("v_lshrrev_b32 %s, 4, %s" % (v(VT1), v(L)))
    A("v_and_b32 %s, 15, %s" % (v(VT2), v(L)))
    A("v_lshlrev_b32 %s, 2, %s" % (v(VT3), v(VT1)))
    for r in range(4):
        A("v_cmp_le_u32 %s, %s, %s" % (s(sMASK + 2 * r, 2), v(VT3), v(VT2)))
        A("v_add_u32 %s, 1, %s" % (v(VT3), v(VT3)))
    A("s_mov_b32 %s, -1\ns_mov_b32 %s, 0" % (s(sMASK + 8), s(sMASK + 9)))
    A("v_mov_b32 %s, 0xff800000" % v(NEG))
    A("v_lshlrev_b32 %s, 9, %s" % (v(OW), v(VT1)))
    A("v_lshl_add_u32 %s, %s, 4, %s" % (v(OW), v(VT2), v(OW)))
    A("s_lshl_b32 %s, %s, 13" % (s(sT0), s(sWAVE)))
    A("v_add_u32 %s, %s, %s" % (v(OW), s(sT0), v(OW)))
    A("v_add_u32 %s, 4096, %s" % (v(VA + 1), v(VL16)))
    wait_dbg(A, DBG_INIT, 1, sleep=16)
    PX, NB, NV = 232, 233, 234
    A("v_lshlrev_b32 %s, 11, %s" % (v(VT1), v(L)))
    A("v_add_u32 %s, %s, %s" % (v(VT1), s(sKM2), v(VT1)))
    A("s_lshl_b32 %s, %s, 7\ns_and_b32 %s, %s, 128\ns_add_u32 %s, %s, %d" % (s(sT0), s(sSEG), s(sT0), s(sT0), s(sT0), s(sT0), F_M))
    A("v_lshl_add_u32 %s, %s, 1, %s" % (v(VT2), v(VT1), s(sT0)))
    A("v_add_u32 %s, %d, %s" % (v(VT3), (F_P - 4096) & 0xffffffff, v(VT1)))
    A("v_cmp_gt_u32 vcc, 2, %s" % v(L))
    A("v_cndmask_b32 %s, %s, %s, vcc" % (v(VPO), v(VT3), v(VT2)))
    A("v_mov_b32 %s, 128" % v(VT2))
    A("v_cndmask_b32 %s, 0, %s, vcc" % (v(PX), v(VT2)))
    A("v_cndmask_b32 %s, 4, 1, vcc" % v(NB))
    A("s_add_u32 %s, %s, 1" % (s(sNEED), s(sSEG)))
    A("v_mov_b32 %s, %s" % (v(NV), s(sNEED)))
    A("v_cndmask_b32 %s, %s, 0, vcc" % (v(NV), v(NV)))
    poll(A, 5, VPO, sPOLL, NV, sleep=16, vneed=True)

    def qkv_loads():
        res = []
        for base, off in ((Q, 0), (K, KX - QX), (V_, VX - QX)):
            res.append("s_add_u32 %s, %s, %d" % (s(sT2), s(sIN), off))
            for i in range(8):
                res.append("buffer_load_dwordx4 %s, %s, %s, %s offen offset:%d sc1" % (
                    v(base + 4 * i, 4), v(VL16 if i < 4 else VA + 1), WS, s(sT2), (i % 4) * 1024))
        return res

    A("\n".join(qkv_loads()))
    A("s_waitcnt vmcnt(0)")
    rt(A, 2)
    A.label("w_top_xy")
    for w in range(4):
        A(mf32(S00, K + 8 * w, Q + 8 * w, S00 if w else None))
        A(mf32(S01, K + 8 * w, Q + 8 * w + 4, S01 if w else None))
        A(mf32(S11, K + 8 * w + 4, Q + 8 * w + 4, S11 if w else None))
    A("v_add_u32 %s, %s, %s" % (v(NV), s(sSEG), v(NB)))
    A("v_min_u32 %s, 64, %s" % (v(NV), v(NV)))
    for r in range(4):
        for S in (S00, S11):
            A("v_cndmask_b32 %s, %s, %s, %s" % (v(S + r), v(NEG), v(S + r), s(sMASK + 2 * r, 2)))
    A("v_max3_f32 %s, %s, %s, %s" % (v(M0), v(S00), v(S00 + 1), v(S00 + 2)))
    A("v_max_f32 %s, %s, %s" % (v(M0), v(M0), v(S00 + 3)))
    A("v_max3_f32 %s, %s, %s, %s" % (v(M1), v(S01), v(S01 + 1), v(S01 + 2)))
    A("v_max3_f32 %s, %s, %s, %s" % (v(M1), v(M1), v(S01 + 3), v(S11)))
    A("v_max3_f32 %s, %s, %s, %s" % (v(M1), v(M1), v(S11 + 1), v(S11 + 2)))
    A("v_max_f32 %s, %s, %s" % (v(M1), v(M1), v(S11 + 3)))
    rt(A, 3)
    poll(A, 5, VPO, sPOLL, NV, vneed=True)
    A("v_xor_b32 %s, %s, %s" % (v(VPO), v(VPO), v(PX)))
    rt(A, 4)
    A("s_add_u32 %s, %s, %d" % (s(sT2), s(sIN), KX - QX + 64 * SEGB))
    for w in range(4):
        A("buffer_load_dwordx4 %s, %s, %s, %s offen offset:%d sc1" % (
            v(KM_ + 4 * w, 4), v(VL16 if w < 2 else VA + 1), WS, s(sT2), (w % 2) * 2048))
    A("s_add_u32 %s, %s, %d" % (s(sT2), s(sIN), VX - QX + 64 * SEGB))
    for f in range(8):
        A("buffer_load_dwordx2 %s, %s, %s, %s offen offset:%d sc1" % (
            v(VM_ + 2 * f, 2), v(VL16 if f < 4 else VA + 1), WS, s(sT2), (f % 4) * 1024))
    A("s_add_u32 %s, %s, %d" % (s(sIN), s(sIN), 3 * SEGB))
    for w in range(4):
        A("s_waitcnt vmcnt(%d)" % (11 - w))
        A(mf32(SM0, KM_ + 4 * w, Q + 8 * w, SM0 if w else None))
        A(mf32(SM1, KM_ + 4 * w, Q + 8 * w + 4, SM1 if w else None))
    for S, M in ((SM0, M0), (SM1, M1)):
        for r in range(4):
            A("v_cndmask_b32 %s, %s, %s, %s" % (v(S + r), v(NEG), v(S + r), s(sMASK + 8, 2)))
        A("v_max3_f32 %s, %s, %s, %s" % (v(M), v(M), v(S), v(S + 1)))
        A("v_max3_f32 %s, %s, %s, %s" % (v(M), v(M), v(S + 2), v(S + 3)))

    def xred(op, r0, r1):
        for sw in ("v_permlane16_swap_b32", "v_permlane32_swap_b32"):
            A("v_mov_b32 %s, %s\nv_mov_b32 %s, %s" % (v(TA), v(r0), v(TA + 1), v(r1)))
            A("%s %s, %s\n%s %s, %s" % (sw, v(r0), v(TA), sw, v(r1), v(TA + 1)))
            A("s_nop 0")
            A("%s %s, %s, %s\n%s %s, %s, %s" % (op, v(r0), v(r0), v(TA), op, v(r1), v(r1), v(TA + 1)))

    xred("v_max_f32", M0, M1)
    grp = ((M0, L0, (S00, SM0)), (M1, L1, (S01, S11, SM1)))
    for M, Lr, SS in grp:
        for S in SS:
            for r in range(4):
                A("v_sub_f32 %s, %s, %s" % (v(S + r), v(S + r), v(M)))
            for r in range(4):
                A("v_exp_f32 %s, %s" % (v(S + r), v(S + r)))
    for M, Lr, SS in grp:
        regs = [S + r for S in SS for r in range(4)]
        A("v_add_f32 %s, %s, %s" % (v(Lr), v(regs[0]), v(regs[1])))
        for r in regs[2:]:
            A("v_add_f32 %s, %s, %s" % (v(Lr), v(Lr), v(r)))
    xred("v_add_f32", L0, L1)
    A("v_rcp_f32 %s, %s\nv_rcp_f32 %s, %s" % (v(L0), v(L0), v(L1), v(L1)))
    for Lr, S, P in ((L0, S00, P0), (L1, S01, P1), (L1, S11, P1 + 2), (L0, SM0, PM0), (L1, SM1, PM1)):
        for r in range(4):
            A("v_mul_f32 %s, %s, %s" % (v(S + r), v(S + r), v(Lr)))
        A(cvt(P, S, S + 1))
        A(cvt(P + 1, S + 2, S + 3))
    Or = lambda f, kt: O + 8 * f + 4 * kt
    for f in range(8):
        A(mf16(Or(f, 0), V_ + 4 * f, P0))
        A(mf32(Or(f, 1), V_ + 4 * f, P1))
    A("s_waitcnt vmcnt(0)")
    for f in range(8):
        A(mf16(Or(f, 0), VM_ + 2 * f, PM0, Or(f, 0)))
        A(mf16(Or(f, 1), VM_ + 2 * f, PM1, Or(f, 1)))
    for a_ in range(4):
        for kt in range(2):
            d = KM_ + 4 * ((2 * a_ + kt) % 4)
            for e in range(2):
                A(cvt(d + 2 * e, Or(2 * a_ + e, kt), Or(2 * a_ + e, kt) + 1))
                A(cvt(d + 2 * e + 1, Or(2 * a_ + e, kt) + 2, Or(2 * a_ + e, kt) + 3))
            if 2 * a_ + kt == 4:
                pass
            A("ds_write_b128 %s, %s offset:%d" % (v(OW), v(d, 4), a_ * 2048 + kt * 256))
            if (2 * a_ + kt) % 4 == 3:
                A("s_waitcnt lgkmcnt(0)")
    A("s_barrier")
    rt(A, 5)
    gemm(A, 32, acc, fr, False, fill=qkv_loads())
    rt(A, 6)
    pack_store(A, acc, out, PART_OFFS, PART_ORD)
    post_flag(A, sSEG)
    A("s_add_u32 %s, %s, 3" % (s(sSEG), s(sSEG)))
    A("s_add_u32 %s, %s, %d" % (s(sOUT), s(sOUT), 3 * PARTB))
    A("s_cmp_lt_u32 %s, 64\ns_cbranch_scc1 w_top_xy" % s(sSEG))
    A("s_branch w_exit")


def role_z(A, o):
    A.label("w_z")
    J = sQ
    PR, XV, FA, FB, T = 0, 48, 52, 60, 68
    srd(A, SXI, 0, 2048 * 1024)
    srd(A, SOUT, 88, 2048 * 1024)
    A("s_lshr_b32 %s, %s, 3\ns_and_b32 %s, %s, 7" % (s(sSEG), s(J), s(J), s(J)))
    A("s_lshl2_add_u32 %s, %s, %s" % (s(sT0), s(J), s(sWAVE)))
    A("s_lshl_b32 %s, %s, 10\ns_mul_i32 %s, %s, %d" % (s(sIN), s(sT0), s(sT1), s(sSEG), PARTB))
    A("s_add_u32 %s, %s, %s\ns_add_u32 %s, %s, %d" % (s(sIN), s(sIN), s(sT1), s(sIN), s(sIN), PART))
    A("s_lshr_b32 %s, %s, 1\ns_lshl_b32 %s, %s, 6" % (s(sT1), s(sT0), s(sT1), s(sT1)))
    A("s_and_b32 %s, %s, 1\ns_lshl4_add_u32 %s, %s, %s" % (s(sT0), s(sT0), s(sX), s(sT0), s(sT1)))
    A("s_lshl_b32 %s, %s, 15\ns_add_u32 %s, %s, %s" % (s(sT1), s(sSEG), s(sX), s(sX), s(sT1)))
    A("s_lshr_b32 %s, %s, 2" % (s(J), s(J)))
    A("s_and_b32 %s, %s, 1\ns_lshl1_add_u32 %s, %s, %s\ns_lshl_b32 %s, %s, 9" % (
        s(sT0), s(sSEG), s(sT0), s(sT0), s(J), s(sT0), s(sT0)))
    A("s_add_u32 %s, %s, %d" % (s(sPOLL), s(sT0), FLAGS + F_D))
    A("s_lshl_b32 %s, %s, 10\ns_add_u32 %s, %s, %d" % (s(sFLG), s(J), s(sFLG), s(sFLG), FLAGS + F_Y))
    A("s_cmp_eq_u32 %s, 3\ns_cselect_b32 %s, 0, %s" % (s(sSEG), s(sSET3), s(sSEG)))
    A("v_lshlrev_b32 %s, 7, %s" % (v(VPO), v(L)))
    A("v_lshlrev_b32 %s, 10, %s" % (v(VST), v(N32)))
    A("v_lshl_add_u32 %s, %s, 5, %s" % (v(VST), v(HI), v(VST)))
    A("s_mov_b32 %s, 0xffff0000" % s(sSC))
    A("s_waitcnt lgkmcnt(0)")
    wait_dbg(A, DBG_INIT, 1, sleep=16)
    A.label("w_top_z")
    A("s_add_u32 %s, %s, 1" % (s(sNEED), s(sSEG)))
    A("buffer_load_dwordx4 %s, %s, %s, %s offen" % (v(XV, 4), v(VST), s(SXI, 4), s(sX)))
    poll(A, 4, VPO, sPOLL, sNEED, sleep=16)

    def loads(lo, hi):
        for i in range(lo, hi):
            A("s_add_u32 %s, %s, %d" % (s(sT0), s(sIN), 32768 * i))
            A("buffer_load_dwordx4 %s, %s, %s, %s offen sc1" % (v(PR + 4 * i, 4), v(VL16), WS, s(sT0)))

    def unpack(dst, src):
        A("v_lshlrev_b32 %s, 16, %s" % (v(dst), v(src)))
        A("v_and_b32 %s, %s, %s" % (v(dst + 1), s(sSC), v(src)))

    def summ(F, lo, hi):
        for i in range(lo, hi):
            A("s_waitcnt vmcnt(%d)" % (hi - 1 - i))
            for j in range(4):
                unpack(F + 2 * j if i == lo else T + 2 * j, PR + 4 * i + j)
            if i > lo:
                for j in range(4):
                    A("v_pk_add_f32 %s, %s, %s" % (v(F + 2 * j, 2), v(F + 2 * j, 2), v(T + 2 * j, 2)))

    def rnd(F):
        for j in range(4):
            A(cvt(F + 2 * j + 1, F + 2 * j, F + 2 * j + 1))
        for j in range(4):
            A("v_lshlrev_b32 %s, 16, %s" % (v(F + 2 * j), v(F + 2 * j + 1)))
            A("v_and_b32 %s, %s, %s" % (v(F + 2 * j + 1), s(sSC), v(F + 2 * j + 1)))

    loads(8, 12)
    summ(FB, 8, 12)
    rnd(FB)
    XF = PR + 32
    for j in range(4):
        unpack(XF + 2 * j, XV + j)
    A("s_lshl_b32 %s, %s, 11\ns_add_u32 %s, %s, %s" % (s(sT2), s(sSET3), s(sT2), s(sT2), s(sFLG)))
    poll(A, 8, VPO, sT2, sNEED, sleep=o.get("zsleep", 2))
    rt(A, 4)
    loads(0, 8)
    summ(FA, 0, 8)
    rnd(FA)
    for j in range(4):
        A("v_pk_add_f32 %s, %s, %s" % (v(FA + 2 * j, 2), v(FA + 2 * j, 2), v(XF + 2 * j, 2)))
    rnd(FA)
    for j in range(4):
        A("v_pk_add_f32 %s, %s, %s" % (v(FA + 2 * j, 2), v(FA + 2 * j, 2), v(FB + 2 * j, 2)))
    for j in range(4):
        A(cvt(T + j, FA + 2 * j, FA + 2 * j + 1))
    A("buffer_store_dwordx4 %s, %s, %s, %s offen" % (v(T, 4), v(VST), s(SOUT, 4), s(sX)))
    A("s_add_u32 %s, %s, 4" % (s(sSEG), s(sSEG)))
    A("s_add_u32 %s, %s, %d\ns_add_u32 %s, %s, %d" % (s(sIN), s(sIN), 4 * PARTB, s(sX), s(sX), 4 * 32768))
    A("s_add_u32 %s, %s, 1\ns_cmp_eq_u32 %s, 3\ns_cselect_b32 %s, 0, %s" % (s(sSET3), s(sSET3), s(sSET3), s(sSET3), s(sSET3)))
    A("s_cmp_lt_u32 %s, 64\ns_cbranch_scc1 w_top_z" % s(sSEG))
    A("s_branch w_exit")


def role_init(A):
    A.label("w_init")
    A("v_lshlrev_b32 %s, 7, v0" % v(VT1))
    for r in range(4):
        A("v_mov_b32 %s, 0" % v(r + 4))
    for k in range(2):
        A("s_mov_b32 %s, %d" % (s(sT0), FLAGS + 32768 * k))
        A("buffer_store_dwordx4 %s, %s, %s, %s offen sc1" % (v(4, 4), v(VT1), WS, s(sT0)))
    A("s_waitcnt vmcnt(0)\ns_barrier")
    A("s_cmp_lg_u32 %s, 0\ns_cbranch_scc1 w_exit" % s(sWAVE))
    A("v_mov_b32 %s, 1\ns_mov_b64 exec, 1" % v(VT0))
    A("buffer_store_dword %s, off, %s, 0 offset:%d sc1" % (v(VT0), DBG, DBG_INIT))
    A("s_branch w_exit")


def dispatch(E, opts):
    E("s_branch w_start")


def emit(A0, opts):
    A = Asm()
    A._uid = 50000
    WST[0] = opts.get("wst", False)
    A.label("w_start")
    if WST[0]:
        for k in range(16):
            A("s_mov_b32 %s, 0" % s(70 + k))
    rt(A, 0)
    common(A)
    A("s_branch w_map")
    A.label("w_exit")
    A("s_waitcnt vmcnt(0)")
    if opts.get("hst"):
        A("s_memrealtime s[98:99]\ns_waitcnt lgkmcnt(0)")
        hst(A, [(100, 1, 2), (100, 0, 3), (98, 0, 4)], 0)
    if WST[0]:
        rt(A, 7)
        A("s_cmp_lg_u32 %s, 0\ns_cbranch_scc1 w_exit2" % s(sWAVE))
        for k in range(8):
            A("v_mov_b32 %s, %s" % (v(k), s(70 + 2 * k)))
        A("s_lshl_b32 %s, %s, 5\ns_add_u32 %s, %s, %d" % (s(sT0), s(sROLE), s(sT0), s(sT0), STAMP + 0x80000))
        A("s_mov_b64 exec, 1")
        A("buffer_store_dwordx4 v[0:3], off, %s, %s\nbuffer_store_dwordx4 v[4:7], off, %s, %s offset:16" % (WS, s(sT0), WS, s(sT0)))
        A("s_waitcnt vmcnt(0)")
        A.label("w_exit2")
    A("s_endpgm")
    A.label("w_map")
    PP, TT = sX, sSET3
    A("s_lshr_b32 %s, %s, 5\ns_sub_u32 %s, %s, 1\ns_and_b32 %s, %s, 31" % (s(PP), s(sROLE), s(PP), s(PP), s(TT), s(sROLE)))
    A("s_cmp_ge_u32 %s, 21\ns_cbranch_scc1 w_single" % s(TT))
    A("s_mul_i32 %s, %s, 6\ns_add_u32 %s, %s, %s\ns_sub_u32 %s, %s, 15" % (s(sSEG), s(PP), s(sSEG), s(sSEG), s(TT), s(sSEG), s(sSEG)))
    A("s_cmp_ge_u32 %s, 15\ns_cbranch_scc1 w_ln" % s(TT))
    A("s_mul_i32 %s, %s, 15\ns_add_u32 %s, %s, %s" % (s(sT0), s(PP), s(sT0), s(sT0), s(TT)))
    A("s_cmp_lt_u32 %s, 96\ns_cbranch_scc1 w_kv" % s(sT0))
    A("s_sub_u32 %s, %s, 54" % (s(sSEG), s(sT0)))
    A("s_cmp_lt_u32 %s, 102\ns_cbranch_scc1 w_ln" % s(sT0))
    A("s_mov_b32 %s, 31" % s(sQ))
    A("s_cmp_eq_u32 %s, 102\ns_cbranch_scc1 w_z" % s(sT0))
    A("s_cmp_eq_u32 %s, 103\ns_cbranch_scc1 w_init\ns_branch w_exit" % s(sT0))
    A.label("w_single")
    A("s_sub_u32 %s, %s, 21\ns_mul_i32 %s, %s, 7\ns_add_u32 %s, %s, %s" % (s(sQ), s(TT), s(sQ), s(sQ), s(sQ), s(sQ), s(PP)))
    A("s_cmp_lt_u32 %s, 16\ns_cbranch_scc1 w_pqk" % s(sQ))
    A("s_add_u32 %s, %s, 32" % (s(sQ), s(sQ)))
    A("s_cmp_lt_u32 %s, 62\ns_cbranch_scc1 w_pgu" % s(sQ))
    A("s_sub_u32 %s, %s, 14" % (s(sSEG), s(sQ)))
    A("s_sub_u32 %s, %s, 78\ns_cbranch_scc0 w_z" % (s(sQ), s(sQ)))
    A.label("w_ln")
    layernorm(A)
    rt(A, 3)
    A("s_mov_b32 %s, %s" % (s(sQ), s(sSEG)))
    A("s_cmp_lt_u32 %s, %d\ns_cbranch_scc1 w_xy" % (s(sQ), NXY))
    A("s_sub_u32 %s, %s, %d\ns_branch w_d" % (s(sQ), s(sQ), NXY))
    A.label("w_kv")
    A("s_mul_i32 %s, %s, 171\ns_lshr_b32 %s, %s, 9" % (s(sQ), s(sT0), s(sQ), s(sQ)))
    A("s_mul_i32 %s, %s, 3\ns_sub_u32 %s, %s, %s" % (s(sT1), s(sQ), s(sSEG), s(sT0), s(sT1)))
    A("s_add_u32 %s, %s, 16" % (s(sQ), s(sQ)))
    A("s_sub_u32 %s, %s, 1\ns_cbranch_scc0 w_ism" % (s(sSEG), s(sSEG)))
    A("s_cmp_lt_u32 %s, 32\ns_cbranch_scc1 w_pqk\ns_branch w_pv" % s(sQ))
    A.label("w_ism")
    A("s_cmp_lt_u32 %s, 32\ns_cbranch_scc1 w_mqk\ns_branch w_mv" % s(sQ))
    role_init(A)
    role_z(A, opts)
    for kind in ("gu", "qk", "v"):
        role_p(A, kind, opts)
    for kind in ("qk", "v"):
        role_m(A, kind, opts)
    role_d(A, opts)
    role_xy(A, opts)
    A0.extend(fix_hazards(A.lines))


def role_ranges():
    r = {k: [] for k in ("chain", "KV", "M0", "M1", "Q", "GU", "XY", "D", "Z")}
    for role in range(256):
        p, t = role // 32 - 1, role % 32
        if p < 0:
            k = "chain"
        elif t >= 21:
            j = (t - 21) * 7 + p
            k = "Q" if j < 16 else "GU" if j < 30 else "D" if j < 46 else "Z"
        elif t >= 15:
            k = "XY"
        else:
            j = 15 * p + t
            k = ("KV", "M0", "M1")[j % 3] if j < 96 else "XY" if j < 102 else "Z" if j == 102 else None
        if k:
            r[k].append(role)
    return list(r.items())
```

```python
import re


def v(i, n=1):
    return "v%d" % i if n == 1 else "v[%d:%d]" % (i, i + n - 1)


def a(i, n=1):
    return "a%d" % i if n == 1 else "a[%d:%d]" % (i, i + n - 1)


def s(i, n=1):
    return "s%d" % i if n == 1 else "s[%d:%d]" % (i, i + n - 1)


def R(i, n=1):
    return v(i, n) if i < 256 else a(i - 256, n)


_REG = re.compile(r"^(-|abs\()?([vas])(?:(\d+)|\[(\d+):(\d+)\])\)?$")


def regs_of(op):
    op = op.strip()
    if op.startswith("|") and op.endswith("|"):
        op = op[1:-1]
    if op.startswith("-|") and op.endswith("|"):
        op = op[2:-1]
    if op in ("vcc", "exec", "m0", "scc"):
        return [op]
    if op in ("vcc_lo", "vcc_hi"):
        return ["vcc"]
    if op in ("exec_lo", "exec_hi"):
        return ["exec"]
    m = _REG.match(op)
    if not m:
        return []
    k = m.group(2)
    if m.group(3) is not None:
        lo = hi = int(m.group(3))
    else:
        lo, hi = int(m.group(4)), int(m.group(5))
    return [(k, i) for i in range(lo, hi + 1)]


TRANS = ("v_exp_f32", "v_log_f32", "v_rcp_f32", "v_rsq_f32", "v_sqrt_f32", "v_sin_f32", "v_cos_f32")


class I:
    __slots__ = ("text", "op", "kind", "rd", "wr", "srcC", "passes", "ab", "wide_store", "dpp", "lds_dma")

    def __init__(self, text):
        self.text = text
        t = text.split(";")[0].strip()
        self.rd, self.wr, self.srcC, self.ab = set(), set(), set(), set()
        self.passes = 0
        self.wide_store = set()
        self.dpp = False
        self.lds_dma = False
        if not t or t.startswith("."):
            self.kind, self.op = "none", ""
            return
        if t.endswith(":"):
            self.kind, self.op = "label", t[:-1]
            return
        parts = t.split(None, 1)
        op = parts[0]
        self.op = op
        rest = parts[1] if len(parts) > 1 else ""
        ops, cur, depth = [], "", 0
        for ch in rest:
            if ch in "[(":
                depth += 1
            if ch in "])":
                depth -= 1
            if ch == "," and depth == 0:
                ops.append(cur.strip())
                cur = ""
            else:
                cur += ch
        if cur.strip():
            ops.append(cur.strip())
        mods = ""
        if ops:
            last = ops[-1].split(None, 1)
            if len(last) > 1:
                ops[-1], mods = last[0], last[1]
        rg = [regs_of(o) for o in ops]
        flat = lambda l: set(x for y in l for x in y)
        if op.startswith("v_mfma") or op.startswith("v_smfmac"):
            self.kind = "mfma"
            self.passes = 8 if "32x32" in op else 4
            self.wr = set(rg[0])
            if op.startswith("v_smfmac"):
                self.srcC = set(rg[0])
                self.ab = flat(rg[1:4])
            else:
                self.srcC = set(rg[3])
                self.ab = flat(rg[1:3])
            self.rd = self.ab | self.srcC
        elif op.startswith("v_"):
            self.kind = "trans" if any(op.startswith(x) for x in TRANS) else "valu"
            self.dpp = "_dpp" in op or "row_" in mods or "quad_perm" in mods
            if op.startswith("v_permlane") and "swap" in op:
                self.wr = flat(rg[0:2])
                self.rd = flat(rg[0:2])
                self.kind = "permlane"
            elif op.startswith("v_cmp"):
                self.wr = set(rg[0])
                self.rd = flat(rg[1:])
                if op.startswith("v_cmpx"):
                    self.wr.add("exec")
            elif op.startswith(("v_add_co", "v_sub_co", "v_addc_co", "v_subb_co")):
                self.wr = flat(rg[0:2])
                self.rd = flat(rg[2:])
            elif op.startswith(("v_readfirstlane", "v_readlane")):
                self.wr = set(rg[0])
                self.rd = flat(rg[1:])
                self.kind = "readlane"
            else:
                self.wr = set(rg[0])
                self.rd = flat(rg[1:])
                if op.startswith(("v_fmac", "v_writelane")) or self.dpp:
                    self.rd |= set(rg[0])
        elif op.startswith("ds_"):
            self.kind = "ds"
            if op.startswith(("ds_read", "ds_bpermute", "ds_permute", "ds_swizzle")):
                self.wr = set(rg[0])
                self.rd = flat(rg[1:])
            else:
                self.rd = flat(rg)
                if "b128" in op or "b96" in op:
                    self.wide_store = flat(rg[1:])
        elif op.startswith(("buffer_", "global_")):
            self.kind = "vmem"
            words = (" " + mods + " ")
            if op in ("buffer_inv", "buffer_wbl2"):
                pass
            elif " lds " in words or "load_lds" in op:
                self.rd = flat(rg) | {"m0"}
                self.lds_dma = True
            elif "load" in op:
                self.wr = set(rg[0])
                self.rd = flat(rg[1:])
            elif "atomic" in op:
                self.rd = flat(rg)
                if " sc0 " in words:
                    self.wr = set(rg[0])
            else:
                self.rd = flat(rg)
                if "x4" in op or "x3" in op:
                    self.wide_store = set(rg[0]) if op.startswith("buffer_") else set(rg[1])
        elif op == "s_nop":
            self.kind = "nop"
            self.passes = int(ops[0], 0)
        elif op.startswith(("s_branch", "s_cbranch", "s_endpgm", "s_setpc")):
            self.kind = "branch"
        elif op.startswith(("s_waitcnt", "s_barrier", "s_sleep", "s_setprio")):
            self.kind = "wait"
        elif op.startswith("s_"):
            self.kind = "salu"
            if op.startswith("s_cmp"):
                self.rd = flat(rg)
                self.wr = {"scc"}
            else:
                self.wr = set(rg[0]) if rg else set()
                self.rd = flat(rg[1:])
        else:
            raise ValueError("unknown instruction: " + text)


VALU_KINDS = ("valu", "trans", "permlane", "readlane")


def need(p, c):
    n = 0
    pv = p.kind in VALU_KINDS
    cv = c.kind in VALU_KINDS
    isv = lambda r: isinstance(r, tuple) and r[0] in "va"
    iss = lambda r: (isinstance(r, tuple) and r[0] == "s") or r == "vcc"
    if pv:
        wv = set(filter(isv, p.wr))
        ws = set(filter(iss, p.wr))
        if c.kind == "mfma" and wv & c.rd:
            n = max(n, 2)
        if c.kind == "permlane" and wv & c.rd:
            n = max(n, 2)
        if c.dpp and wv & c.rd:
            n = max(n, 2)
        if c.kind == "readlane" and wv & c.rd:
            n = max(n, 1)
        if p.kind == "trans" and cv and c.kind != "trans" and wv & c.rd:
            n = max(n, 1)
        if p.kind == "trans" and c.kind in ("ds", "vmem") and wv & c.rd:
            n = max(n, 1)
        if ws and cv and ws & c.rd:
            n = max(n, 4 if c.kind == "readlane" else 2)
        if ws and c.kind == "vmem" and ws & c.rd:
            n = max(n, 5)
        if "exec" in p.wr and (c.kind == "mfma" or c.kind in ("permlane", "readlane") or c.dpp):
            n = max(n, 5)
    if p.kind == "mfma":
        big = {4: 8, 8: 12}[p.passes]
        if c.kind == "mfma":
            if p.wr & c.ab:
                n = max(n, big)
            if p.wr & c.srcC:
                if not (p.wr == c.srcC and p.passes == c.passes):
                    n = max(n, big - 2)
            elif p.wr & c.wr:
                if p.passes != c.passes:
                    n = max(n, big)
        elif cv or c.kind in ("ds", "vmem"):
            if p.wr & (c.rd | c.wr):
                n = max(n, big)
            if cv and p.srcC & c.wr:
                n = max(n, {4: 3, 8: 7}[p.passes])
    if p.wide_store and (p.wide_store & c.wr):
        n = max(n, 2)
    if p.kind == "salu" and "m0" in p.wr and c.lds_dma:
        n = max(n, 1)
    return n


class Asm:
    def __init__(self):
        self.lines = []
        self._uid = 0

    def __call__(self, text):
        for ln in text.split("\n"):
            ln = ln.strip()
            if ln:
                self.lines.append(ln)

    def label(self, name):
        self.lines.append(name + ":")

    def uid(self, p="L"):
        self._uid += 1
        return "%s_%d" % (p, self._uid)

    def extend(self, other):
        self.lines.extend(other.lines if isinstance(other, Asm) else other)


WINDOW = 16


def _dist(seq, c):
    t = 0
    lm_t, lm_p = None, 0
    for k, x in enumerate(seq + [c]):
        if x.kind == "mfma":
            if lm_t is not None:
                t = max(t, lm_t + 4 * lm_p)
            lm_t, lm_p = t, x.passes
        if k == len(seq):
            return t
        t += 4 * (x.passes + 1) if x.kind == "nop" else 4


def fix_hazards(lines, verbose=False):
    out = []
    hist = []
    for ln in lines:
        c = I(ln)
        if c.kind in ("none", "label"):
            out.append(ln)
            continue
        add = 0
        while ";NOHZ" not in ln:
            pad = [I("s_nop %d" % (add - 1))] if add else []
            ok = True
            for k, p in enumerate(hist):
                n = need(p, c)
                if n and _dist(hist[k:] + pad, c) < 4 * (n + 1):
                    ok = False
                    break
            if ok:
                break
            add += 1
        if add:
            out.append("s_nop %d" % (add - 1))
            hist.append(I("s_nop %d" % (add - 1)))
        out.append(ln)
        hist.append(c)
        hist = hist[-14:]
    return out


def estimate(lines, lat_ds_r=64, lat_ds_w=64, lat_vm=250, v2m=14):
    t = 0
    port_free = 0
    pipe_free = 0
    lds_free = 0
    last_valu = -100
    lg = []
    vm = []
    res = []
    for ln in lines:
        c = I(ln)
        if c.kind in ("none", "label"):
            continue
        ti = t
        if c.kind == "mfma":
            ti = max(ti, pipe_free, port_free)
            pipe_free = ti + 4 * c.passes
            blk = 12 if "smfmac" in c.op else (4 if "16x16x16" in c.op else 8)
            port_free = ti + blk
            t = ti + 4
        elif c.kind in VALU_KINDS:
            ti = max(ti, port_free)
            d = 8 if c.kind == "trans" else 4
            port_free = ti + d
            t = ti + d
            last_valu = ti + d - 4
        elif c.kind == "ds":
            ti = max(ti, last_valu + v2m)
            occ = 16 if "b128" in c.op else 8
            if not c.wr:
                ti = max(ti, port_free)
                port_free = ti + (24 if "b128" in c.op else 12)
                occ *= 2
            st = max(ti, lds_free)
            lds_free = st + occ
            lg.append(st + (lat_ds_r if c.wr else (96 if 'b128' in c.op else 72)))
            t = ti + 4
        elif c.kind == "vmem":
            ti = max(ti, last_valu + v2m)
            if "store" in c.op:
                ti = max(ti, port_free)
                port_free = ti + (22 if "x4" in c.op else 11)
            vm.append(ti + lat_vm)
            t = ti + 4
        elif c.kind == "nop":
            t = ti + 4 * (c.passes + 1)
        elif c.op == "s_waitcnt":
            m = re.search(r"lgkmcnt\((\d+)\)", ln)
            if m:
                n = int(m.group(1))
                while len(lg) > n:
                    ti = max(ti, lg.pop(0))
            m = re.search(r"vmcnt\((\d+)\)", ln)
            if m:
                n = int(m.group(1))
                while len(vm) > n:
                    ti = max(ti, vm.pop(0))
            t = ti + 4
        elif c.op == "s_barrier":
            t = ti + 8
        else:
            t = ti + 4
        res.append((ti, ln))
    return res


def hst(A, items, tmp):
    A("s_mov_b64 exec, 1")
    for sg, inv, word in items:
        A(("v_not_b32 %s, %s" if inv else "v_mov_b32 %s, %s") % (v(tmp), s(sg)))
        A("buffer_atomic_umax %s, off, s[28:31], 0 offset:%d" % (v(tmp), 4 * word))
        A("s_waitcnt vmcnt(0)")
```

```python
from asmlib import *
from layout import *

WS = "s[4:7]"
SQ, SK, SV, SO, SM0 = 8, 12, 16, 20, 24
sROLE, sWAVE, sXCC, sBUD = 32, 33, 34, 35
sH, sSTEP, sH2L, sH1S0, sH1L, sKX, sVX, sH1S1, sPH = 36, 37, 38, 39, 40, 41, 42, 43, 44
sKM, sVM, sFLAG, _unused, sH2S, sPF, sPROG, sT0, sT1, sBIG = 45, 46, 47, 48, 49, 50, 51, 52, 53, 54
sC1S, sC1L, sH1L2, sNEED = 55, 56, 57, 58
sH2C, sSEEN, sFS = 48, 59, 55
sFL = 8
sCM = 98
sST = 60

MEM = 112
AQ, AK, AV = 144, 152, 160
KXR, VXR = 168, 176
P = [184 + 8 * i for i in range(6)]
T0, T1 = 232, 236
IDX, VH2, SELQ, SELK, HALF, SELR = 240, 241, 242, 244, 246, 248
VL0, VL1, VSX, VH1 = 252, 253, 254, 255
VPFA, VPFD, VPRG = 248, 249, 250

LB = 147456
RA, RB = 0, 8192
WREG = 36864

STREAM_UNITS = [("Q", 0), ("K", 0), ("Q", 1), ("K", 5), ("K", 6), ("K", 7), ("O", 1, 1), ("O", 2, 1), ("O", 3, 1)]
ALL_UNITS = ([("Q", i) for i in range(8)] + [("K", i) for i in range(8)] + [("V", i) for i in range(8)]
             + [("O", u, p) for u in range(4) for p in range(2)])
RES_UNITS = [u for u in ALL_UNITS if u not in STREAM_UNITS]
assert len(RES_UNITS) == 23
RES_REG = {}
for i, u in enumerate(RES_UNITS):
    RES_REG[u] = 256 + 16 * i if i < 16 else 16 * (i - 16)
CUR = [0]


def slot_of(unit):
    if unit[0] == "K":
        return {0: 5, 5: 6, 6: 7, 7: 8}[unit[1]]
    if unit[0] == "Q":
        return 2 + unit[1]
    order = [u for u in ((gu - CUR[0]) % 4 for gu in range(4)) if u]
    return (4, 0, 1)[order.index(unit[1])]


STAGE = {
    ("Q", 0, 0): P[0], ("Q", 0, 1): P[1], ("K", 0, 0): P[2], ("K", 0, 1): P[3], ("Q", 1, 0): P[4], ("Q", 1, 1): P[5],
    ("K", 5, 0): P[0], ("K", 6, 0): P[1], ("K", 7, 0): P[2], ("K", 5, 1): P[3], ("K", 6, 1): P[4], ("K", 7, 1): P[5],
    ("O", 1, 1, 0): P[4], ("O", 1, 1, 1): P[5], ("O", 2, 1, 0): MEM, ("O", 2, 1, 1): MEM + 8,
    ("O", 3, 1, 0): MEM + 16, ("O", 3, 1, 1): MEM + 24,
}


def opreg(unit, t):
    if unit in RES_REG:
        return RES_REG[unit] + 8 * t
    return STAGE[unit + (t,)]


def stream_rd(unit, t):
    r = STAGE[unit + (t,)]
    off = slot_of(unit) * 4096 + t * 2048
    return ["ds_read_b128 %s, %s offset:%d" % (v(r, 4), v(VL0), off),
            "ds_read_b128 %s, %s offset:%d" % (v(r + 4, 4), v(VL0), off + 1024)]


def smf(acc, aop, breg):
    return "v_smfmac_f32_16x16x64_bf16 %s, %s, %s, %s" % (v(acc, 4), v(aop, 4), R(breg, 8), v(IDX))


def W(m, t, i):
    acc = {"Q": AQ, "K": AK, "V": AV}[m] + 4 * t
    return smf(acc, MEM + 4 * i, opreg((m, i), t))


ACCO = [AK, AK + 4, P[0] + 4, T1]
OOP = [AV, AV + 4, P[1], P[3] + 4]


def WO(a_, u):
    return smf(ACCO[a_], OOP[u], opreg(("O", u, a_ // 2), a_ % 2))


def mf16(d, a_, b_, c=None):
    return "v_mfma_f32_16x16x16_bf16 %s, %s, %s, %s" % (v(d, 4), v(a_, 2), v(b_, 2), "0" if c is None else v(c, 4))


def mf32(d, a_, b_, c=None):
    return "v_mfma_f32_16x16x32_bf16 %s, %s, %s, %s" % (v(d, 4), v(a_, 4), v(b_, 4), "0" if c is None else v(c, 4))


def cvt(d, x, y):
    return "v_cvt_pk_bf16_f32 %s, %s, %s" % (v(d), v(x), v(y))


def zero(r):
    return "v_mov_b32 %s, 0" % v(r)


class Chain:
    def __init__(self, opts):
        self.o = opts
        self.dbg = opts.get("stamps", False)
        self.tot = self.dbg or opts.get("total", False)

    def prologue(self, A, w):
        o = self.o
        nt = "nt " if o.get("w_nt", False) else ""
        A("s_mov_b32 %s, %s" % (s(sH), s(sROLE)))
        if o.get("hst"):
            A("s_memrealtime s[86:87]")
        A("s_load_dwordx4 s[8:11], s[0:1], 8")
        A("s_load_dwordx4 s[12:15], s[0:1], 24")
        A("s_load_dwordx2 s[20:21], s[0:1], 40")
        A("s_waitcnt lgkmcnt(0)")
        A("s_mov_b32 s24, s8\ns_mov_b32 s25, s9\ns_mov_b32 s26, 8192\ns_mov_b32 s27, 0x20000")
        A("s_mov_b32 s8, s10\ns_mov_b32 s9, s11\ns_mov_b32 s10, 0x400000\ns_mov_b32 s11, 0x20000")
        A("s_mov_b32 s16, s14\ns_mov_b32 s17, s15\ns_mov_b32 s18, 0x400000\ns_mov_b32 s19, 0x20000")
        A("s_mov_b32 s14, 0x400000\ns_mov_b32 s15, 0x20000")
        A("s_mov_b32 s22, 0x400000\ns_mov_b32 s23, 0x20000")
        L, N, G = T0, T0 + 1, T0 + 2
        X, Y, Z = T1, T1 + 1, T1 + 2
        DW, DO, TRW, TRO, M0A, INI, RDY, PRK, PRV, MCD = AK, AK + 2, AK + 4, AK + 8, AK + 10, AK + 11, AK + 12, AK + 13, AK + 14, AK + 15
        sWB, sOB = sKM, sVM
        vq = []

        def vm(line, tag=None):
            A(line)
            vq.append(tag)

        def vwait(tag):
            last = max(i for i, x in enumerate(vq) if x == tag)
            A("s_waitcnt vmcnt(%d)" % (len(vq) - 1 - last))
            del vq[:last + 1]

        self.vm = vm
        stages = ([("K", i) for i in range(8)] + [("V", i) for i in range(8)] + [("O", i, 0) for i in range(4)]
                  + [("Q", i) for i in range(8)] + [("O", i, 1) for i in range(4)])
        RING = 5

        def dma(n):
            st = stages[n]
            for q in range(4):
                A("s_mov_b32 m0, %d" % (w * WREG + (n % RING) * 4096 + q * 1024))
                if st[0] == "O":
                    off = st[1] * 32768 + 512 * st[2] + (8 * (w // 2) + 2 * (w % 2) + 16 * (q % 2) + 4 * (q // 2)) * 1024
                    srd, vo, sb = SO, DO, sOB
                else:
                    off = (64 * st[1] + 16 * (w // 2) + 2 * (w % 2) + 4 * q) * 8192
                    srd, vo, sb = {"Q": SQ, "K": SK, "V": SV}[st[0]], DW, sWB
                A("s_add_u32 %s, %s, %d" % (s(sT1), s(sb), off))
                vm("buffer_load_dwordx4 %s, %s, %s offen %slds" % (v(vo + q % 2), s(srd, 4), s(sT1), nt), n)

        A("v_and_b32 %s, 63, v0" % v(L))
        A("v_and_b32 %s, 15, %s" % (v(N), v(L)))
        A("v_lshrrev_b32 %s, 4, %s" % (v(G), v(L)))
        A("v_and_b32 %s, 1, %s" % (v(X), v(G)))
        A("v_lshrrev_b32 %s, 1, %s" % (v(Y), v(G)))
        A("v_lshl_add_u32 %s, %s, 5, %s" % (v(X), v(Y), v(X)))
        A("v_lshlrev_b32 %s, 13, %s" % (v(X), v(X)))
        A("v_lshlrev_b32 %s, 1, %s" % (v(Z), v(G)))
        A("v_xor_b32 %s, %s, %s" % (v(Z), v(Z), v(N)))
        A("v_lshl_add_u32 %s, %s, 4, %s" % (v(DW), v(Z), v(X)))
        A("v_xor_b32 %s, 128, %s" % (v(DW + 1), v(DW)))
        A("s_lshl_b32 %s, %s, 8\ns_lshl_b32 %s, %s, 17" % (s(sWB), s(sH), s(sOB), s(sH)))
        for n in range(RING - 1):
            dma(n)
        A("v_and_b32 %s, 31, %s" % (v(X), v(L)))
        A("v_lshlrev_b32 %s, 2, %s" % (v(Z), v(Y)))
        A("v_xor_b32 %s, %s, %s" % (v(X), v(X), v(Z)))
        A("v_lshlrev_b32 %s, 4, %s" % (v(X), v(X)))
        A("v_lshl_add_u32 %s, %s, 10, %s" % (v(DO), v(Y), v(X)))
        A("v_xor_b32 %s, 128, %s" % (v(DO + 1), v(DO)))
        A("s_mov_b32 %s, %d" % (s(sT0), w * WREG))
        A("v_lshrrev_b32 %s, 2, %s" % (v(X), v(L)))
        A("v_and_b32 %s, 7, %s" % (v(Z), v(X)))
        A("v_xor_b32 %s, %d, %s" % (v(Z), 2 * w, v(Z)))
        A("v_lshlrev_b32 %s, 8, %s" % (v(X), v(X)))
        A("v_lshl_add_u32 %s, %s, 5, %s" % (v(X), v(Z), v(X)))
        A("v_and_b32 %s, 3, %s" % (v(Y), v(L)))
        A("v_lshl_add_u32 %s, %s, 3, %s" % (v(TRW), v(Y), v(X)))
        A("v_xor_b32 %s, 32, %s" % (v(TRW + 1), v(TRW)))
        A("v_add_u32 %s, %d, %s" % (v(TRW + 2), 2 * WREG, v(TRW)))
        A("v_add_u32 %s, %d, %s" % (v(TRW + 3), 2 * WREG, v(TRW + 1)))
        A("v_bfe_u32 %s, %s, 2, 1" % (v(X), v(L)))
        A("v_lshl_add_u32 %s, %s, 1, %s" % (v(X), v(G), v(X)))
        A("v_and_b32 %s, 3, %s" % (v(Z), v(X)))
        A("v_xor_b32 %s, %d, %s" % (v(Z), w, v(Z)))
        A("v_lshlrev_b32 %s, 9, %s" % (v(X), v(X)))
        A("v_lshl_add_u32 %s, %s, 6, %s" % (v(X), v(Z), v(X)))
        A("v_lshl_add_u32 %s, %s, 4, %s" % (v(X), v(Y), v(X)))
        A("v_bfe_u32 %s, %s, 3, 1" % (v(Y), v(L)))
        A("v_lshl_add_u32 %s, %s, 3, %s" % (v(TRO), v(Y), v(X)))
        A("v_add_u32 %s, %d, %s" % (v(TRO + 1), 2 * WREG, v(TRO)))
        CB, N4 = T0 + 3, T1 + 3
        A("v_bfe_u32 %s, %s, 1, 1" % (v(CB), v(L)))
        A("v_bfe_u32 %s, %s, 2, 2" % (v(N4), v(L)))
        A("v_lshlrev_b32 %s, 4, %s" % (v(X), v(L)))
        A("v_add_u32 %s, %s, %s" % (v(VL0), s(sT0), v(X)))
        A("v_add_u32 %s, %d, %s" % (v(VL1), LB, v(X)))
        A("v_lshl_add_u32 %s, %s, 10, %s" % (v(VSX), v(CB), v(VL1)))
        A("v_lshrrev_b32 %s, 3, %s" % (v(X), v(L)))
        A("s_lshl1_add_u32 %s, %s, %s" % (s(sT1), s(sWAVE), s(sH)))
        A("v_lshl_add_u32 %s, %s, 2, %s" % (v(Y), v(X), s(sT1)))
        A("v_and_b32 %s, 31, %s" % (v(Y), v(Y)))
        A("v_lshlrev_b32 %s, 13, %s" % (v(X), v(X)))
        A("v_lshl_add_u32 %s, %s, 6, %s" % (v(X), v(Y), v(X)))
        A("v_and_b32 %s, 7, %s" % (v(Y), v(L)))
        A("v_lshl_add_u32 %s, %s, 3, %s" % (v(VH1), v(Y), v(X)))
        A("v_mul_u32_u24 %s, 0xAAAA, %s" % (v(IDX), v(CB)))
        A("v_add_u32 %s, 0x4444, %s" % (v(IDX), v(IDX)))
        A("v_mov_b32 %s, 0x3F003F00\nv_mov_b32 %s, 0x3F003F00" % (v(HALF), v(HALF + 1)))
        A("v_and_b32 %s, 1, %s" % (v(X), v(L)))
        A("v_lshlrev_b32 %s, 4, %s" % (v(X), v(X)))
        A("v_cmp_eq_u32 vcc, %s, %s" % (v(G), v(N4)))
        for base, val in ((SELQ, SA_BF), (SELK, SB_BF)):
            A("v_mov_b32 %s, 0x%x" % (v(Y), val))
            A("v_lshlrev_b32 %s, %s, %s" % (v(Y), v(X), v(Y)))
            A("v_cndmask_b32 %s, 0, %s, vcc" % (v(base), v(Y)))
            A("v_mov_b32 %s, %s" % (v(base + 1), v(base)))
        A("v_bfe_u32 %s, %s, 2, 1" % (v(X), v(L)))
        A("v_lshlrev_b32 %s, 4, %s" % (v(X), v(X)))
        A("v_mov_b32 %s, 0x3F80" % v(Y))
        A("v_lshlrev_b32 %s, %s, %s" % (v(Y), v(X), v(Y)))
        A("v_bfe_u32 %s, %s, 3, 1" % (v(Z), v(L)))
        A("v_and_b32 %s, 1, %s" % (v(X), v(L)))
        A("v_lshl_add_u32 %s, %s, 1, %s" % (v(Z), v(X), v(Z)))
        for rho in range(4):
            A("v_cmp_eq_u32 vcc, %d, %s" % (rho, v(Z)))
            A("v_cndmask_b32 %s, 0, %s, vcc" % (v(SELR + rho), v(Y)))
        A("v_lshlrev_b32 %s, 2, %s" % (v(X), v(X)))
        A("v_lshl_add_u32 %s, %s, 28, %s" % (v(X), v(N4), v(X)))
        A("v_lshl_add_u32 %s, %s, 8, %s" % (v(X), v(CB), v(X)))
        A("v_and_b32 %s, 16, %s" % (v(Y), v(L)))
        A("v_add_u32 %s, %s, %s" % (v(X), v(Y), v(X)))
        A("v_bfe_u32 %s, %s, 5, 1" % (v(Y), v(L)))
        A("v_lshl_add_u32 %s, %s, 3, %s" % (v(VH2), v(Y), v(X)))
        A("v_and_b32 %s, 1, %s" % (v(X), v(L)))
        A("v_lshl_add_u32 %s, %s, 1, %s" % (v(X), v(N4), v(X)))
        A("v_lshlrev_b32 %s, 10, %s" % (v(X), v(X)))
        A("v_lshl_add_u32 %s, %s, 6, %s" % (v(X), v(CB), v(X)))
        A("v_lshl_add_u32 %s, %s, 4, %s" % (v(M0A), v(G), v(X)))

        self.poison_init(A)
        A("s_mov_b32 %s, 0" % s(sSTEP))
        A("s_lshl_b32 %s, %s, 11" % (s(sT0), s(sWAVE)))
        A("s_add_u32 %s, %s, %d" % (s(sH2L), s(sT0), MEMB - LB))
        A("s_lshr_b32 %s, %s, 4\ns_lshl_b32 %s, %s, 10\ns_add_u32 %s, %s, %s" % (s(sT1), s(sH), s(sT1), s(sT1), s(sT1), s(sT1), s(sT0)))
        A("s_and_b32 %s, %s, 6\ns_lshl_b32 %s, %s, 5\ns_add_u32 %s, %s, %s" % (s(sPH), s(sH), s(sPH), s(sPH), s(sT1), s(sT1), s(sPH)))
        A("s_and_b32 %s, %s, 8\ns_lshl2_add_u32 %s, %s, %s" % (s(sPH), s(sH), s(sT1), s(sPH), s(sT1)))
        A("s_and_b32 %s, %s, 1\ns_lshl_b32 %s, %s, 9\ns_add_u32 %s, %s, %s" % (s(sPH), s(sH), s(sPH), s(sPH), s(sT1), s(sT1), s(sPH)))
        A("s_add_u32 %s, %s, %d" % (s(sH2S), s(sT1), MEMB + 8192))
        A("s_add_u32 %s, %s, %d" % (s(sH2C), s(sT1), MEMC))
        A("s_lshl_b32 %s, %s, 16" % (s(sH1S0), s(sWAVE)))
        A("s_add_u32 %s, %s, %d" % (s(sH1S0), s(sH1S0), INB1))
        A("s_add_u32 %s, %s, 4096" % (s(sH1S1), s(sH1S0)))
        A("s_lshl_b32 %s, %s, 13" % (s(sT1), s(sH)))
        A("s_add_u32 %s, %s, %s" % (s(sKX), s(sT1), s(sT0)))
        A("s_add_u32 %s, %s, %d" % (s(sH1L), s(sKX), INB1 - LB))
        A("s_mov_b32 %s, 0" % s(sPH))
        A("s_add_u32 %s, %s, %d" % (s(sKX), s(sKX), KX - LB))
        A("s_add_u32 %s, %s, %d" % (s(sVX), s(sKX), VX - KX))
        A("s_cmp_eq_u32 %s, 2" % s(sWAVE))
        A("s_cselect_b32 %s, %d, 0" % (s(sPF), VX - KX))
        A("s_add_u32 %s, %s, %d" % (s(sPF), s(sPF), KX + 262144 - 8 * LB))
        A("s_add_u32 %s, %s, %s" % (s(sPF), s(sPF), s(sT1)))
        A("s_cmp_eq_u32 %s, 3" % s(sWAVE))
        A("s_cselect_b32 %s, %d, %s" % (s(sPF), MEMB + 8192 - 8 * LB, s(sPF)))
        A("s_cmp_eq_u32 %s, 2" % s(sWAVE))
        A("s_cselect_b32 %s, %d, 0" % (s(sPROG), 16 * 128))
        A("s_add_u32 %s, %s, %d" % (s(sPROG), s(sPROG), FLAGS + F_P + 16 * 128))
        A("s_lshr_b32 %s, %s, 1\ns_lshl_b32 %s, %s, 7" % (s(sT1), s(sH), s(sT1), s(sT1)))
        A("s_add_u32 %s, %s, %s" % (s(sPROG), s(sPROG), s(sT1)))
        A("s_mov_b32 %s, 0x5D800000" % s(sBIG))
        A("s_mov_b32 %s, 0xCCCCCCCC\ns_mov_b32 %s, 0xCCCCCCCC" % (s(sCM), s(sCM + 1)))
        for q in range(2):
            vm("buffer_load_dwordx4 %s, %s, %s, 0 offen offset:%d" % (v(MEM + 4 * q, 4), v(M0A), s(SM0, 4), 256 * w + 128 * q))
        A("v_and_b32 %s, 12, %s" % (v(X), v(VH2)))
        A("v_bfe_u32 %s, %s, 4, 1" % (v(Y), v(VH2)))
        A("v_lshl_add_u32 %s, %s, 10, %s" % (v(X), v(Y), v(X)))
        A("v_bfe_u32 %s, %s, 8, 1" % (v(Y), v(VH2)))
        A("v_lshl_add_u32 %s, %s, 4, %s" % (v(X), v(Y), v(X)))
        A("s_and_b32 %s, %s, 6\ns_lshl_b32 %s, %s, 10\ns_and_b32 %s, %s, 24\ns_lshl3_add_u32 %s, %s, %s" % (
            s(sT0), s(sH), s(sT0), s(sT0), s(sT1), s(sH), s(sT0), s(sT1), s(sT0)))
        A("s_and_b32 %s, %s, 1\ns_lshl_b32 %s, %s, 5\ns_add_u32 %s, %s, %s" % (
            s(sT1), s(sH), s(sT1), s(sT1), s(sT0), s(sT0), s(sT1)))
        vm("buffer_load_dword %s, %s, %s, %s offen offset:%d" % (v(MCD), v(X), s(SM0, 4), s(sT0), 256 * w))
        A("v_lshlrev_b32 %s, 3, %s" % (v(T0), v(VL1)))
        HOLD = {("Q", 0): P[0], ("Q", 1): P[4], ("O", 1, 1): P[2], ("O", 2, 1): MEM + 8, ("O", 3, 1): MEM + 24}
        held = []

        def put(u, src):
            for q in range(4):
                A("ds_write_b128 %s, %s offset:%d" % (v(VL0), v(src + 4 * q, 4), slot_of(u) * 4096 + q * 1024))

        pft = "buffer_load_dword %s, %s, %%s offen lds" % (v(T0), WS)
        for n, st in enumerate(stages):
            vwait(n)
            A("s_waitcnt lgkmcnt(0)\ns_barrier")
            if n + RING - 1 < 32:
                dma(n + RING - 1)
            u = ("O", (st[1] - w) % 4, st[2]) if st[0] == "O" else (st[0], (st[1] - 2 * w) % 8)
            dst = RES_REG[u] if u in RES_REG else HOLD.get(u, P[0])
            for t_ in range(2):
                for r in range(4):
                    off = (r % 2) * WREG + (n % RING) * 4096
                    ad = (TRO + r // 2, off + 256 * t_) if st[0] == "O" else (TRW + t_ + 2 * (r // 2), off)
                    A("ds_read_b64_tr_b16 %s, %s offset:%d" % (R(dst + 8 * t_ + 2 * r, 2), v(ad[0]), ad[1]))
            if n >= 28:
                c = [x for x in held if slot_of(x) == (n - 1) % RING]
                put(c[0], HOLD[c[0]])
                held.remove(c[0])
            if u in HOLD:
                held.append(u)
            elif u not in RES_REG:
                A("s_waitcnt lgkmcnt(0)")
                put(u, dst)
            if n == 5 and w == 0:
                A("s_cmp_lg_u32 %s, 0\ns_cselect_b32 %s, 0x10001, 1" % (s(sXCC), s(sT0)))
                A("v_mov_b32 %s, %s" % (v(X), s(sT0)))
                A("s_mov_b64 exec, 1")
                vm("buffer_atomic_add %s, off, s[28:31], 0 offset:%d" % (v(X), DBG_CHAIN_READY))
                A("s_mov_b64 exec, -1")
            if n == 14:
                vm("buffer_load_dword %s, off, s[28:31], 0 offset:%d sc1" % (v(INI), DBG_INIT))
                vm("buffer_load_dword %s, off, s[28:31], 0 offset:%d sc1" % (v(RDY), DBG_CHAIN_READY))
            if n == 20:
                lab = A.uid("c_fl")
                A("v_readfirstlane_b32 %s, %s\nv_readfirstlane_b32 %s, %s" % (s(sT0), v(INI), s(sT1), v(RDY)))
                A("s_lshl_b32 %s, %s, 5\ns_and_b32 %s, %s, %s\ns_cbranch_scc1 %s" % (s(sT0), s(sT0), s(sT0), s(sT0), s(sT1), lab))
                self.wait_dbg(A, DBG_INIT, 1, mask=None)
                self.wait_dbg(A, DBG_CHAIN_READY, 32, mask=0xFFFF)
                A.label(lab)
                A("s_lshr_b32 %s, %s, 16" % (s(sXCC), s(sT1)))
            if n == 27:
                A("s_add_u32 %s, %s, %d" % (s(sT0), s(sPROG), -2048 if w == 2 else 2048))
                vm("buffer_load_dword %s, off, %s, %s sc1" % (v(PRK), WS, s(sPROG)), "prg")
                vm("buffer_load_dword %s, off, %s, %s sc1" % (v(PRV), WS, s(sT0)), "prg")
                if w in (0, 3):
                    A("s_mov_b32 m0, %d" % (LB + RB + 4096))
                    A("s_lshl_b32 %s, %s, 13\ns_add_u32 %s, %s, %d" % (s(sT0), s(sH), s(sT0), s(sT0), INB1 - 8 * LB))
                    vm(pft % s(sT0 if w == 0 else sPF))
        A("s_mov_b32 m0, %d" % (LB + RB + 4096 + (0 if w else 1024)))
        vwait("prg")
        A("v_min_u32 %s, %s, %s" % (v(PRK), v(PRK), v(PRV)))
        A("s_mov_b32 %s, %d" % (s(sNEED), o.get("need0", 3)))
        A("v_readfirstlane_b32 %s, %s" % (s(sSEEN), v(PRK)))
        lab = A.uid("c_rdy")
        A("s_cmp_ge_u32 %s, %s\ns_cbranch_scc1 %s" % (s(sSEEN), s(sNEED), lab))
        A("s_xor_b32 %s, %s, %d" % (s(sPROG), s(sPROG), 0x1800))
        self.progress(A)
        A("s_xor_b32 %s, %s, %d" % (s(sPROG), s(sPROG), 0x1800))
        self.progress(A)
        A.label(lab)
        for r, sb in ((KXR, sKX), (VXR, sVX)):
            A("buffer_load_dwordx4 %s, %s, %s, %s offen sc1" % (v(r, 4), v(VL1), WS, s(sb)))
            A("buffer_load_dwordx4 %s, %s, %s, %s offen offset:1024 sc1" % (v(r + 4, 4), v(VL1), WS, s(sb)))
        if w in (1, 2):
            A(pft % s(sPF))
        A("s_add_u32 %s, %s, %d" % (s(sPF), s(sPF), 8192 if w == 3 else 262144))
        A("s_add_u32 %s, %s, 262144\ns_add_u32 %s, %s, 262144" % (s(sKX), s(sKX), s(sVX), s(sVX)))
        A("v_mov_b32 %s, %s" % (v(T0 + 1), v(MCD)))
        A("s_waitcnt lgkmcnt(0)\ns_barrier")
        put(held[0], HOLD[held[0]])
        A("s_waitcnt lgkmcnt(0)")
        A("\n".join(stream_rd(("K", 0), 0) + stream_rd(("K", 0), 1)))
        self.window_b(A)
        A("s_waitcnt lgkmcnt(0)")
        if self.dbg:
            self.calib(A, 0)
        if self.tot:
            A("s_memtime s[92:93]\ns_memrealtime s[88:89]\ns_waitcnt lgkmcnt(0)")
        if o.get("hst"):
            A("s_memrealtime s[88:89]\ns_waitcnt lgkmcnt(0)")
        A("s_cmp_lg_u32 %s, 0\ns_cbranch_scc1 c_entry_1_%d\ns_branch c_entry_0_%d" % (s(sXCC), w, w))

    def calib(self, A, slot):
        lab = A.uid("c_cal")
        A("s_memrealtime s[60:61]\ns_waitcnt lgkmcnt(0)")
        A.label(lab)
        A("s_memrealtime s[62:63]\ns_memtime s[64:65]\ns_waitcnt lgkmcnt(0)")
        A("s_cmp_eq_u32 s62, s60\ns_cbranch_scc1 %s" % lab)
        A("v_mov_b32 %s, s62\nv_mov_b32 %s, s64" % (v(T0), v(T0 + 1)))
        A("s_lshl_b32 %s, %s, 6\ns_lshl_b32 %s, %s, 4\ns_add_u32 %s, %s, %s\ns_add_u32 %s, %s, %d" % (
            s(sT0), s(sH), s(sT1), s(sWAVE), s(sT0), s(sT0), s(sT1), s(sT0), s(sT0), STAMP + 2048 + 8 * slot))
        A("buffer_store_dwordx2 %s, off, %s, %s" % (v(T0, 2), WS, s(sT0)))
        A("s_waitcnt vmcnt(0)")

    def poison_init(self, A):
        PO = KXR
        for i in range(4):
            A("v_mov_b32 %s, -1" % v(PO + i))
        A("s_lshl_b32 %s, %s, 13\ns_lshl_b32 %s, %s, 11" % (s(sT0), s(sH), s(sT1), s(sWAVE)))
        A("s_add_u32 %s, %s, %s\ns_add_u32 %s, %s, %d" % (s(sT0), s(sT0), s(sT1), s(sT0), s(sT0), INB1 - LB))
        for q in range(2):
            self.vm("buffer_store_dwordx4 %s, %s, %s, %s offen offset:%d sc1" % (v(PO, 4), v(VL1), WS, s(sT0), 1024 * q))
        X = PO + 4
        A("v_lshlrev_b32 %s, 13, %s" % (v(X), v(T0 + 2)))
        A("v_lshl_add_u32 %s, %s, 4, %s" % (v(X), v(T0 + 1), v(X)))
        A("s_lshl_b32 %s, %s, 8\ns_lshl_b32 %s, %s, 17" % (s(sT0), s(sH), s(sT1), s(sWAVE)))
        A("s_add_u32 %s, %s, %s\ns_add_u32 %s, %s, %d" % (s(sT0), s(sT0), s(sT1), s(sT0), s(sT0), MEMB))
        for q in range(4):
            self.vm("buffer_store_dwordx4 %s, %s, %s, %s offen sc1" % (v(PO, 4), v(X), WS, s(sT0)))
            A("s_add_u32 %s, %s, %d" % (s(sT1), s(sT0), MEMC - MEMB))
            self.vm("buffer_store_dwordx4 %s, %s, %s, %s offen sc1" % (v(PO, 4), v(X), WS, s(sT1)))
            A("s_add_u32 %s, %s, 32768" % (s(sT0), s(sT0)))

    def budget(self, A, give_up):
        A("s_cmp_eq_u32 %s, 0\ns_cbranch_scc1 %s\ns_sub_u32 %s, %s, 1" % (s(sBUD), give_up, s(sBUD), s(sBUD)))

    def wait_dbg(self, A, off, want, mask):
        top, done = A.uid("c_wd"), A.uid("c_wdd")
        A.label(top)
        A("buffer_load_dword %s, off, s[28:31], 0 offset:%d sc1" % (v(T1), off))
        A("s_waitcnt vmcnt(0)")
        A("v_readfirstlane_b32 %s, %s" % (s(sT1), v(T1)))
        if mask is None:
            A("s_cmp_ge_u32 %s, %d" % (s(sT1), want))
        else:
            A("s_and_b32 %s, %s, 0x%x\ns_cmp_ge_u32 %s, %d" % (s(sT0), s(sT1), mask, s(sT0), want))
        A("s_cbranch_scc1 %s" % done)
        self.budget(A, done)
        A("s_sleep 2\ns_branch %s" % top)
        A.label(done)

    def spin_ge(self, A, soff, want, vreg):
        top, done = A.uid("c_sp"), A.uid("c_spd")
        A.label(top)
        A("buffer_load_dword %s, off, %s, %s sc1" % (v(vreg), WS, s(soff)))
        A("s_waitcnt vmcnt(0)")
        A("v_readfirstlane_b32 %s, %s" % (s(sT1), v(vreg)))
        A("s_cmp_ge_u32 %s, %s" % (s(sT1), want))
        A("s_cbranch_scc1 %s" % done)
        self.budget(A, done)
        A("s_sleep 2\ns_branch %s" % top)
        A.label(done)

    def progress(self, A):
        top, done = A.uid("c_sp"), A.uid("c_spd")
        A.label(top)
        A("buffer_load_dword %s, off, %s, %s sc1" % (v(T1), WS, s(sPROG)))
        A("s_waitcnt vmcnt(0)")
        A("v_readfirstlane_b32 %s, %s" % (s(sSEEN), v(T1)))
        A("s_cmp_ge_u32 %s, %s" % (s(sSEEN), s(sNEED)))
        A("s_cbranch_scc1 %s" % done)
        self.budget(A, done)
        A("s_sleep 2\ns_branch %s" % top)
        A.label(done)

    def window_a(self, A):
        for u in STREAM_UNITS[:3]:
            for t in range(2):
                A("\n".join(stream_rd(u, t)))

    def window_b(self, A):
        for k, r in enumerate(range(AQ, AQ + 24, 2)):
            A("v_mov_b64 %s, 0" % v(r, 2))
            if k % 2 == 1:
                A("s_nop 0")

    def stamp(self, A, k):
        pass

    def add_stamps(self, lines, main=True):
        import re
        out, k = [], 0
        stride, phase = self.o.get("every", (20, 0))
        at = [re.compile(p) for p in self.o.get("at", [])]
        n = 0
        self.stamp_pos = []
        for l in lines:
            if l == "; DUMP":
                break
            if not at and not l.endswith(":") and not l.startswith(";"):
                if n % stride == phase and k < 15:
                    out.append("s_memtime s[%d:%d]" % (sST + 2 * k, sST + 2 * k + 1))
                    self.stamp_pos.append(n)
                    k += 1
                n += 1
            if not l.endswith(":") and not l.startswith(";"):
                if at and main and n == self.o.get("nth", -1):
                    out.append("s_memtime s[%d:%d]" % (sST + 28, sST + 29))
                n += 1 if at else 0
            out.append(l)
            for q, p in enumerate(at):
                if p.search(l):
                    out.append("s_memtime s[%d:%d]" % (sST + 2 * q, sST + 2 * q + 1))
        return out + lines[lines.index("; DUMP") + 1:]

    def loop(self, w, slow):
        CUR[0] = w
        A = Asm()
        B = Asm()
        A._uid = B._uid = 1000 * (1 + w + 4 * slow)
        B._uid += 500
        o = {k: (x[w] if isinstance(x, list) and k not in ("at", "more", "drop", "every") else x) for k, x in self.o.items()}
        hs = " sc1" if slow else ""
        ks = lambda i: (2 * w + i) % 8
        tag = "%d_%d" % (slow, w)
        top, entry, fin = "c_top_" + tag, "c_entry_" + tag, "c_fin_" + tag
        E, Lr = MEM, MEM + 4
        CK, FL = T1 + 2, T1 + 3

        ldE = "buffer_load_dwordx4 %s, %s, %s, %s offen sc1" % (v(E, 4), v(VL1), WS, s(sH2L))
        ldL = "buffer_load_dwordx4 %s, %s, %s, %s offen offset:1024 sc1" % (v(Lr, 4), v(VL1), WS, s(sH2L))

        def check(r, bad):
            A("v_max3_u32 %s, %s, %s, %s" % (v(CK), v(r), v(r + 1), v(r + 2)))
            A("v_max_u32 %s, %s, %s" % (v(CK), v(CK), v(r + 3)))
            A("v_cmp_eq_u32 vcc, -1, %s" % v(CK))
            A("s_cbranch_vccnz %s" % bad)

        def nops(n):
            while n > 0:
                A("s_nop %d" % (min(n, 16) - 1))
                n -= 16

        A.label(entry)
        A.label("c_okL_" + tag)
        if o.get("lateexit"):
            A("s_cmp_eq_u32 %s, %d\ns_cbranch_scc1 %s" % (s(sSTEP), NSEG - 1, fin))
        A("ds_write_b128 %s, %s offset:%d" % (v(VL1), v(E, 4), RA + ks(0) * 1024))
        A("ds_write_b128 %s, %s offset:%d" % (v(VL1), v(Lr, 4), RA + ks(1) * 1024))
        A(W("Q", 0, 0))
        A(W("Q", 1, 0))
        A(W("K", 0, 0))
        A(W("K", 1, 0))
        A(W("Q", 0, 1))
        A(W("Q", 1, 1))
        A("s_waitcnt lgkmcnt(0)")
        A("s_barrier ; B1")
        rd = ["ds_read_b128 %s, %s offset:%d" % (v(MEM + 4 * i, 4), v(VL1), RA + ks(i) * 1024) for i in range(2, 8)]
        A(rd[0])
        A(rd[1])
        A(W("K", 0, 1))
        A(rd[2])
        A(rd[3])
        A(W("K", 1, 1))
        A(rd[4])
        A(rd[5])
        A(W("V", 0, 0))
        A(W("V", 1, 0))
        A(W("V", 0, 1))
        if w > 0:
            A("v_lshlrev_b32 %s, 3, %s" % (v(T0 + 2), v(VL1)))
        else:
            A("v_lshlrev_b32 %s, 7, %s" % (v(T0 + 2), v(VL0)))
        A(W("V", 1, 1))
        gb = []
        for t in range(2):
            for i in (5, 6, 7):
                gb += stream_rd(("K", i), t)
        fill = []
        memc = "buffer_store_dword %s, %s, %s, %s offen sc1" % (v(T0 + 1), v(VH2), WS, s(sH2C))
        pf = "buffer_load_dword %s, %s, %s offen lds" % (v(T0 + 2), WS, s(sPF))
        npend = 2
        QB, QOP, KOP, VB = T0, T1, P[2], P[2] + 4
        for i in range(2, 8):
            A("s_waitcnt lgkmcnt(5)")
            A(W("Q", 0, i))
            A(gb[i - 2])
            if fill:
                A(fill.pop(0))
        A(W("Q", 1, 2))
        A(gb[6])
        A(W("Q", 1, 3))
        A(gb[7])
        A(cvt(QB, AQ, AQ + 1))
        A(W("Q", 1, 4))
        A(gb[8])
        A(cvt(QB + 1, AQ + 2, AQ + 3))
        A(W("Q", 1, 5))
        A(gb[9])
        A(mf16(AQ, QB, SELQ))
        A(gb[10])
        A(W("Q", 1, 6))
        A(gb[11])
        A(W("Q", 1, 7))
        z64 = lambda r: "v_mov_b64 %s, 0" % v(r, 2)
        add = lambda d, x, y: "v_add_f32 %s, %s, %s" % (v(d), v(x), v(y))
        dpp = lambda d, x, q: "v_mov_b32_dpp %s, %s quad_perm:%s row_mask:0xf bank_mask:0xf" % (v(d), v(x), q)
        addx = lambda r: "v_add_f32_dpp %s, %s, %s quad_perm:[2,3,0,1] row_mask:0xf bank_mask:0xf" % (v(r), v(r), v(r))
        ex = lambda d, x: "v_exp_f32 %s, %s" % (v(d), v(x))
        X = [P[0], P[0] + 4, P[1], P[1] + 4]
        M = P[3]
        EX, EB, AL, EM = X[1], X[2], X[3], T0
        RR, TT = T0 + 2, T0 + 3
        sel = ["v_cndmask_b32 %s, %s, %s, %s" % (v(AQ + r), v(AQ + r), v(AQ + 4 + r), s(sCM, 2)) for r in range(4)]
        xr = ["ds_read_b128 %s, %s offset:%d" % (v(X[q], 4), v(VL1), RB + q * 1024) for q in range(4)]
        gc1 = stream_rd(("O", 1, 1), 0) + stream_rd(("O", 1, 1), 1)
        gc2 = stream_rd(("O", 2, 1), 0) + stream_rd(("O", 3, 1), 0) + stream_rd(("O", 2, 1), 1) + stream_rd(("O", 3, 1), 1)
        kvl = ["buffer_load_dwordx4 %s, %s, %s, %s offen offset:%d sc1" % (v(r + 4 * q, 4), v(VL1), WS, s(sb), 1024 * q)
               for r, sb in ((KXR, sKX), (VXR, sVX)) for q in range(2)]
        seq = [
            cvt(QOP, AQ, AQ + 1), W("K", 0, 2), cvt(QOP + 1, AQ + 2, AQ + 3), W("K", 0, 3),
            cvt(QB + 2, AQ + 4, AQ + 5), cvt(QB + 3, AQ + 6, AQ + 7), W("K", 0, 4), mf16(AQ + 4, QB + 2, SELQ),
            "s_waitcnt lgkmcnt(0)", W("K", 0, 5), W("K", 0, 6),
            cvt(QOP + 2, AQ + 4, AQ + 5), cvt(QOP + 3, AQ + 6, AQ + 7), W("K", 0, 7),
            "s_waitcnt vmcnt(%d)" % npend, mf32(AQ, KXR, QOP), mf32(AQ + 4, KXR + 4, QOP),
            cvt(QB, AK, AK + 1), cvt(QB + 1, AK + 2, AK + 3), W("K", 1, 2), mf16(AK, QB, SELK),
            sel[0], sel[1], sel[2], sel[3], W("K", 1, 3),
            "ds_write_b128 %s, %s offset:%d" % (v(VL1), v(AQ, 4), RB + w * 1024),
            W("K", 1, 4), cvt(KOP, AK, AK + 1), W("K", 1, 5), cvt(KOP + 1, AK + 2, AK + 3), W("K", 1, 6), W("K", 1, 7),
            W("V", 0, 2), W("V", 1, 2), cvt(QB + 2, AK + 4, AK + 5), cvt(QB + 3, AK + 6, AK + 7),
            "s_waitcnt lgkmcnt(0)", "s_barrier ; B2", mf16(AK + 4, QB + 2, SELK), xr[0], xr[1],
            W("V", 0, 3), xr[2], xr[3], W("V", 1, 3),
            cvt(KOP + 2, AK + 4, AK + 5), cvt(KOP + 3, AK + 6, AK + 7), W("V", 0, 4), mf32(AK, KOP, QOP),
            "s_waitcnt lgkmcnt(2)"] + [add(X[0] + r, X[0] + r, X[1] + r) for r in range(4)] + [
            W("V", 1, 4),
            "ds_write_b64 %s, %s offset:%d" % (v(VL1), v(AK, 2), RA + (w // 2) * 1024 + (w % 2) * 8),
            "s_waitcnt lgkmcnt(1)"] + [add(X[2] + r, X[2] + r, X[3] + r) for r in range(4)] + [
            W("V", 0, 5)] + [add(X[0] + r, X[0] + r, X[2] + r) for r in range(4)] + [
            ex(EX, X[0]), ex(EX + 1, X[0] + 1), W("V", 1, 5),
            "s_waitcnt lgkmcnt(0)", "s_barrier ; B3",
            "ds_read_b128 %s, %s offset:%d" % (v(M, 4), v(VSX), RA), W("V", 0, 6), gc1[0], gc1[1],
            ex(EX + 2, X[0] + 2), ex(EX + 3, X[0] + 3), cvt(EX, EX, EX + 1), cvt(EX + 1, EX + 2, EX + 3),
            W("V", 0, 7), gc1[2], gc1[3], dpp(EB, EX, "[0,1,0,1]"), mf16(AL, HALF, EX),
            dpp(EB + 1, EX + 1, "[0,1,0,1]"), dpp(EB + 2, EX, "[2,3,2,3]"), dpp(EB + 3, EX + 1, "[2,3,2,3]"),
            W("V", 1, 6), "s_waitcnt lgkmcnt(4)", add(M, M, M + 2), W("V", 1, 7), gc2[0], gc2[1], add(M + 1, M + 1, M + 3),
            mf32(AQ, VXR, EB), gc2[2], addx(M), addx(M + 1),
            mf32(AQ + 4, VXR + 4, EB), gc2[3], ex(M + 2, M), ex(M + 3, M + 1), addx(AL),
            cvt(EM, M + 2, M + 3), cvt(EM + 1, M + 2, M + 3), add(AL, AL, AL),
            cvt(VB, AV, AV + 1), cvt(VB + 1, AV + 2, AV + 3),
            mf16(AL, HALF, EM, AL), cvt(VB + 2, AV + 4, AV + 5), cvt(VB + 3, AV + 6, AV + 7), z64(ACCO[0]),
            mf16(AQ, VB, EM, AQ), z64(ACCO[0] + 2), z64(ACCO[1]), z64(ACCO[1] + 2),
            mf16(AQ + 4, VB + 2, EM, AQ + 4)]
        A("\n".join(seq))
        self.normalize(A, w, AL, [z64(ACCO[2]), z64(ACCO[2] + 2), "v_max_f32 %s, %s, %s" % (v(TT), v(AL), v(RR))], [])
        A(WO(0, 0))
        A("v_cmp_ngt_f32 vcc, %s, %s" % (s(sBIG), v(TT)))
        A(WO(1, 0))
        A(z64(ACCO[3]))
        A(z64(ACCO[3] + 2))
        A("s_cbranch_vccnz c_slow_" + tag)
        A.label("c_back_" + tag)
        self.fallback(B, w, tag, X, M)
        A("s_waitcnt lgkmcnt(0)")
        A("s_barrier ; B4")
        for u in range(1, 4):
            A("ds_read_b128 %s, %s offset:%d" % (v(OOP[u], 4), v(VL1), RB + ((w + u) % 4) * 1024))
        A(WO(2, 0))
        A(gc2[4])
        A(WO(3, 0))
        sal = ["s_add_u32 %s, %s, 1" % (s(sSTEP), s(sSTEP)), "s_add_u32 %s, %s, 8192" % (s(sH2L), s(sH2L))]
        sal += ["s_add_u32 %s, %s, 262144" % (s(r), s(r)) for r in (sKX, sVX)]
        sal += ["s_add_u32 %s, %s, %d" % (s(sPF), s(sPF), 8192 if w == 3 else 262144)]
        sal += ["s_add_u32 %s, %s, 3" % (s(sNEED), s(sSTEP)), "s_min_u32 %s, %s, %d" % (s(sNEED), s(sNEED), NSEG - 1)]
        tagd = lambda r: "v_bfi_b32 %s, 1, %s, %s" % (v(r), s(sPH), v(r))
        st1 = lambda a_: "buffer_store_dwordx2 %s, %s, %s, %s offen offset:%d%s ; S%d" % (
            v(AQ + 2 * a_, 2), v(VH1), WS, s(sH1S1 if a_ > 1 else sH1S0), 2048 * (a_ % 2), hs, a_)
        c0 = lambda a_: cvt(AQ + 2 * a_, ACCO[a_], ACCO[a_] + 1)
        c1 = lambda a_: cvt(AQ + 2 * a_ + 1, ACCO[a_] + 2, ACCO[a_] + 3)
        t0 = lambda a_: tagd(AQ + 2 * a_)
        t1 = lambda a_: tagd(AQ + 2 * a_ + 1)
        seq = ["s_waitcnt lgkmcnt(3)", WO(0, 1), gc2[5], sal[0], "s_waitcnt lgkmcnt(3)", WO(0, 2), gc2[6], sal[1],
               "s_waitcnt lgkmcnt(3)", WO(0, 3), gc2[7], sal[2], WO(1, 1), sal[3], sal[4], WO(1, 2), c0(0), c1(0),
               WO(1, 3), t0(0), t1(0), WO(2, 1), st1(0), WO(2, 2), c0(1), c1(1), WO(2, 3), t0(1), t1(1),
               WO(3, 1), st1(1), "s_waitcnt lgkmcnt(0)", WO(3, 2), c0(2), c1(2), WO(3, 3), t0(2), t1(2), sal[5], sal[6], st1(2),
               c0(3), c1(3), t0(3), t1(3), st1(3)]
        A("\n".join(seq))
        ins = {}
        ins.setdefault(o.get("mc0", 7) + o.get("mcs", 1) * w, []).extend([memc, "s_add_u32 %s, %s, 8192" % (s(sH2C), s(sH2C))])
        if w == 0:
            ins.setdefault(o.get("pg0", 22), []).extend([
                "s_mov_b64 exec, 3", "buffer_load_dword %s, %s, %s offen sc1 lds" % (v(T0 + 2), WS, s(sPROG)), "s_mov_b64 exec, -1"])
        if w:
            ins.setdefault(o.get("pf0", 12) + o.get("pfs", 4) * (w - 1), []).append(pf)
        for q in range(2):
            ins.setdefault(o.get("kx0", 36) + o.get("kxs", 1) * w + o.get("kxq", 16) * q, []).append(kvl[q])
        for q in range(2):
            ins.setdefault(o.get("vx", [[58, 61], [59, 62], [60, 63], [61, 64]][w])[q], []).append(kvl[2 + q])
        hint = o.get("hint", 0) and not slow
        if hint and w == 0:
            fp = o.get("fp", 66)
            ins.setdefault(fp - 1, []).extend(["s_sub_u32 %s, %s, 1" % (s(sT0), s(sPH)), "v_mov_b32 %s, %s" % (v(T0), s(sT0))])
            ins.setdefault(fp, []).extend(["s_mov_b64 exec, 1", "buffer_store_byte %s, off, %s, %s" % (v(T0), WS, s(sFS)), "s_mov_b64 exec, -1"])
        res, k = [], 0
        for l in A.lines:
            res.append(l)
            if "mfma" in l:
                res += ins.pop(k, [])
                k += 1
        assert not ins
        A.lines = res
        if self.dbg and o.get("lastonly"):
            A("; DUMP0")
            A("; DUMP1")
        elif self.dbg:
            A("; DUMP0")
            A("s_waitcnt lgkmcnt(0)")
            self.dump_stamps(A, w)
            A("; DUMP1")
        H, AR, TG, XS = MEM + 8, T1, T0, T0 + 1
        wa = Asm()
        self.window_a(wa)
        wa = wa.lines
        zr = ["v_mov_b64 %s, 0" % v(r, 2) for r in range(AQ, AQ + 24, 2)]
        zr = zr[4:] + zr[:4]
        n1, n2, n3, z1, z2 = o.get("n1", 6), o.get("n2", 6), o.get("n3", 12), o.get("z1", 0), o.get("z2", 12)
        two1, two2 = o.get("two1", 1), o.get("two2", 1)
        A("\n".join(zr[:z1] + wa[:n1]))
        if o.get("ack1") is not None:
            A("s_waitcnt vmcnt(%d)" % o["ack1"])
        nops(o.get("delay1", 0))
        hl = lambda r: "\n".join("buffer_load_dwordx4 %s, %s, %s, %s offen offset:%d sc1" % (
            v(r + 4 * it, 4), v(VL1), WS, s(sH1L), it * 1024) for it in range(2))
        A.label("c_pfd_" + tag)
        A(hl(H))
        A("\n".join(wa[n1:n2] + zr[z1:z2]))
        if o.get("fine2"):
            for q in range(4):
                A("v_mov_b64 %s, -1" % v(E + 2 * q, 2))
            two2 = 0
        nops(o.get("gap1", 0))
        if two1:
            A(hl(H + 8))
        A("s_cmp_lg_u32 %s, 0\ns_cbranch_scc1 c_h1c1_%s" % (s(sPH), tag))
        for ph in (0, 1):
            Z = A if ph == 0 else B
            fn, fl_ = ("0xfe", "0xa8") if ph == 0 else ("0x80", "0x80")
            Z.label("c_h1c%d_%s" % (ph, tag))
            for r in ((H, H + 8) if two1 else (H,)):
                Z("s_waitcnt vmcnt(%d)" % (1 + 2 * two1))
                Z(mf32(AR, SELR, r))
                Z("s_waitcnt vmcnt(%d)" % (2 * two1))
                Z(mf32(AR, SELR, r + 4, AR))
                Z("v_bitop3_b32 %s, %s, %s, %s bitop3:%s" % (v(TG), v(r), v(r + 1), v(r + 2), fn))
                Z("v_bitop3_b32 %s, %s, %s, %s bitop3:%s" % (v(TG), v(TG), v(r + 3), v(r + 4), fn))
                Z("v_bitop3_b32 %s, %s, %s, %s bitop3:%s" % (v(TG), v(TG), v(r + 5), v(r + 6), fn))
                Z("v_bitop3_b32 %s, %s, %s, 1 bitop3:%s" % (v(TG), v(TG), v(r + 7), fl_))
                Z("v_cmp_ne_u32 vcc, %d, %s" % (ph, v(TG)))
                Z("s_cbranch_vccz c_h1ok_" + tag)
                Z("s_mov_b64 exec, vcc")
                Z(hl(r))
                Z("s_mov_b64 exec, -1")
                if self.tot:
                    Z("s_add_u32 s94, s94, 1")
            self.budget(Z, "c_h1ok_" + tag)
            Z("s_branch c_h1c%d_%s" % (ph, tag))
        A.label("c_h1ok_" + tag)
        A("s_xor_b32 %s, %s, 1" % (s(sPH), s(sPH)))
        A("s_nop 0")
        for ro in (4, 8):
            for r in range(2):
                A("v_add_f32_dpp %s, %s, %s row_ror:%d row_mask:0xf bank_mask:0xf" % (v(AR + r), v(AR + r), v(AR + r), ro))
        A(cvt(XS, AR, AR + 1))
        A("buffer_store_dword %s, %s, %s, %s offen%s" % (v(XS), v(VH2), WS, s(sH2S), hs))
        A("s_add_u32 %s, %s, 8192" % (s(sH2S), s(sH2S)))
        if not o.get("lateexit"):
            A("s_cmp_eq_u32 %s, %d\ns_cbranch_scc1 %s" % (s(sSTEP), NSEG - 1, fin))
        if w == 0:
            A("ds_read_b64 %s, %s offset:%d" % (v(T1, 2), v(VL1), RB + 4096 + 1024))
            A("s_waitcnt lgkmcnt(0)")
            A("v_min_u32 %s, %s, %s" % (v(T1), v(T1), v(T1 + 1)))
            A("v_readfirstlane_b32 %s, %s" % (s(sSEEN), v(T1)))
            A("s_cmp_lt_u32 %s, %s\ns_cbranch_scc1 c_prg_%s" % (s(sSEEN), s(sNEED), tag))
            A.label("c_prgok_" + tag)
            B.label("c_prg_" + tag)
            for _ in range(2):
                B("s_xor_b32 %s, %s, %d" % (s(sPROG), s(sPROG), 0x1800))
                self.progress(B)
            B("s_branch c_prgok_" + tag)
        A("\n".join(wa[n2:n3] + zr[z2:]))
        if o.get("lg2", 1):
            A("s_waitcnt lgkmcnt(0)")
        if o.get("ack2"):
            A("s_waitcnt vmcnt(0)")
        nops(o.get("delay2", 0))
        A(ldE)
        A(ldL + " ; first")
        A("\n".join(wa[n3:]))
        A("s_waitcnt lgkmcnt(0)")
        nops(o.get("gap2", 0))
        if two2:
            A(ldE)
            A(ldL)
        A.label(top)
        A("s_waitcnt vmcnt(%d)" % (40 if o.get("fine2") else 2 * two2))
        nops(o.get("fnop", 0))
        for q in range(1):
            A("v_max3_u32 %s, %s, %s, %s" % (v(CK), v(E), v(E + 1), v(E + 2)))
            A("v_max3_u32 %s, %s, %s, %s" % (v(CK), v(CK), v(E + 3), v(Lr)))
            A("v_max3_u32 %s, %s, %s, %s" % (v(CK), v(CK), v(Lr + 1), v(Lr + 2)))
            A("v_max_u32 %s, %s, %s" % (v(CK), v(CK), v(Lr + 3)))
            A("v_cmp_eq_u32 vcc, -1, %s" % v(CK))
            A("s_cbranch_vccz c_okL_" + tag)
        A("; DUMP")
        if self.tot:
            A("s_add_u32 s95, s95, 1")
        A("s_mov_b64 exec, vcc")
        A(ldE)
        A(ldL)
        A("s_mov_b64 exec, -1")
        self.budget(A, "c_okL_" + tag)
        A("s_branch " + top)
        A.label(fin)
        A(memc)
        if o.get("hst"):
            A("s_memrealtime s[90:91]\ns_waitcnt lgkmcnt(0)")
            hst(A, [(100, 1, 5), (100, 0, 6), (86, 0, 7), (88, 1, 10), (88, 0, 11), (90, 0, 12)], T0)
        A("s_nop 7")
        A("s_mov_b64 exec, 1")
        if self.tot:
            A("s_memtime s[90:91]\ns_waitcnt lgkmcnt(0)")
            A("s_sub_u32 s90, s90, s92\ns_sub_u32 s92, s92, s96")
            A("v_mov_b32 %s, s90\nv_mov_b32 %s, s94\nv_mov_b32 %s, %s\nv_mov_b32 %s, %s" % (
                v(T0), v(T0 + 1), v(T0 + 2), "s95", v(T0 + 3), "s92"))
            A("s_lshl_b32 %s, %s, 6\ns_add_u32 %s, %s, %d" % (s(sT0), s(sH), s(sT0), s(sT0), STAMP + 16 * w))
            A("buffer_store_dwordx4 %s, off, %s, %s" % (v(T0, 4), WS, s(sT0)))
            if o.get("wst"):
                A("s_memrealtime s[90:91]\ns_waitcnt lgkmcnt(0)")
                A("v_mov_b32 %s, s88\nv_mov_b32 %s, s90" % (v(T1), v(T1 + 1)))
                A("s_lshl_b32 %s, %s, 5\ns_add_u32 %s, %s, %d" % (s(sT0), s(sH), s(sT0), s(sT0), STAMP + 0x80000 + 24))
                A("buffer_store_dwordx2 %s, off, %s, %s" % (v(T1, 2), WS, s(sT0)))
        A("s_waitcnt vmcnt(0)")
        if self.dbg:
            if o.get("lastonly"):
                A("s_mov_b64 exec, -1")
                self.dump_stamps(A, w)
                A("s_waitcnt vmcnt(0)")
            self.calib(A, 1)
        A("s_endpgm")
        if o.get("drop"):
            import re
            cut = A.lines.index("; DUMP")
            pats = [re.compile(p) for p in o["drop"]]
            keep = range(A.lines.index("; DUMP0"), A.lines.index("; DUMP1")) if self.dbg else range(0)
            A.lines = [l for k, l in enumerate(A.lines[:cut]) if k in keep or not any(p.search(l) for p in pats)] + A.lines[cut:]
        main = fix_hazards(A.lines)
        if self.dbg:
            main = self.add_stamps(main)
        ool = fix_hazards(B.lines)
        if self.dbg and o.get("at"):
            ool = self.add_stamps(ool + ["; DUMP"], False)
        return main + ["s_nop 7"] + ool

    def dump_stamps(self, A, w):
        A("s_lshl_b32 %s, %s, 5\ns_add_u32 %s, %s, %s\ns_lshl_b32 %s, %s, 8" % (
            s(sT0), s(sSTEP), s(sT0), s(sT0), s(sH), s(sT0), s(sT0)))
        A("s_add_u32 %s, %s, %d" % (s(sT0), s(sT0), STAMP + 4096 + 64 * w))
        R0 = AQ + 8
        for k in range(15):
            A("v_mov_b32 %s, %s" % (v(R0 + k), s(sST + 2 * k)))
        A("v_mov_b32 %s, %s" % (v(R0 + 15), s(sBUD)))
        A("s_mov_b64 exec, 1")
        for q in range(4):
            A("buffer_store_dwordx4 %s, off, %s, %s offset:%d" % (v(R0 + 4 * q, 4), WS, s(sT0), 16 * q))
        A("s_mov_b64 exec, -1")

    def softmax_tail(self, A, X, M, fill, first):
        EX, EB, AL, EM = X[1], X[2], X[3], T0
        VB = P[2] + 4
        fill = list(fill)
        f = lambda: A(fill.pop(0)) if fill else None
        dpp = lambda d, x, q: A("v_mov_b32_dpp %s, %s quad_perm:%s row_mask:0xf bank_mask:0xf" % (v(d), v(x), q))
        src = M if first else M + 2
        A(mf16(AL, HALF, EX))
        dpp(EB, EX, "[0,1,0,1]")
        dpp(EB + 1, EX + 1, "[0,1,0,1]")
        dpp(EB + 2, EX, "[2,3,2,3]")
        dpp(EB + 3, EX + 1, "[2,3,2,3]")
        A("v_exp_f32 %s, %s" % (v(M + 2), v(src)))
        A("v_exp_f32 %s, %s" % (v(M + 3), v(src + 1)))
        A(mf32(AQ, VXR, EB))
        A("v_add_f32_dpp %s, %s, %s quad_perm:[2,3,0,1] row_mask:0xf bank_mask:0xf" % (v(AL), v(AL), v(AL)))
        A(cvt(EM, M + 2, M + 3))
        A(mf32(AQ + 4, VXR + 4, EB))
        A(cvt(EM + 1, M + 2, M + 3))
        A("v_add_f32 %s, %s, %s" % (v(AL), v(AL), v(AL)))
        if first:
            A(cvt(VB, AV, AV + 1))
            A(cvt(VB + 1, AV + 2, AV + 3))
        A(mf16(AL, HALF, EM, AL))
        if first:
            A(cvt(VB + 2, AV + 4, AV + 5))
            A(cvt(VB + 3, AV + 6, AV + 7))
        A(mf16(AQ, VB, EM, AQ))
        f()
        f()
        f()
        A(mf16(AQ + 4, VB + 2, EM, AQ + 4))
        while fill:
            f()

    def normalize(self, A, w, AL, f0=(), f1=()):
        RR = T0 + 2
        pk = lambda r: A("v_pk_mul_f32 %s, %s, %s op_sel_hi:[1,0]" % (v(r, 2), v(r, 2), v(RR, 2)))
        A("v_rcp_f32 %s, %s" % (v(RR), v(AL)))
        A("\n".join(f0))
        pk(AQ)
        pk(AQ + 2)
        for q in range(2):
            A(cvt(OOP[0] + q, AQ + 2 * q, AQ + 2 * q + 1))
        pk(AQ + 4)
        pk(AQ + 6)
        for q in range(2, 4):
            A(cvt(OOP[0] + q, AQ + 2 * q, AQ + 2 * q + 1))
        A("ds_write_b128 %s, %s offset:%d" % (v(VL1), v(OOP[0], 4), RB + w * 1024))
        A("\n".join(f1))

    def fallback(self, B, w, tag, X, M):
        EX, AL = X[1], X[3]
        MX, TM = T0 + 2, T0 + 3
        B.label("c_slow_" + tag)
        vl = lambda so: "\n".join("buffer_load_dwordx4 %s, %s, %s, %s offen offset:%d sc1" % (
            v(VXR + 4 * q, 4), v(VL1), WS, s(so), 1024 * q) for q in range(2))
        B("s_waitcnt vmcnt(0)")
        B("s_sub_u32 %s, %s, 262144" % (s(sT0), s(sVX)))
        B(vl(sT0))
        B("s_waitcnt vmcnt(0)")
        B("s_nop 15")
        B("v_max3_f32 %s, %s, %s, %s" % (v(MX), v(X[0]), v(X[0] + 1), v(X[0] + 2)))
        B("v_max3_f32 %s, %s, %s, %s" % (v(MX), v(MX), v(X[0] + 3), v(M)))
        B("v_max_f32 %s, %s, %s" % (v(MX), v(MX), v(M + 1)))
        B("v_max_f32_dpp %s, %s, %s quad_perm:[2,3,0,1] row_mask:0xf bank_mask:0xf" % (v(MX), v(MX), v(MX)))
        for sw in ("v_permlane16_swap_b32", "v_permlane32_swap_b32"):
            B("v_mov_b32 %s, %s" % (v(TM), v(MX)))
            B("%s %s, %s" % (sw, v(MX), v(TM)))
            B("s_nop 1")
            B("v_max_f32 %s, %s, %s" % (v(MX), v(MX), v(TM)))
        for r in range(4):
            B("v_sub_f32 %s, %s, %s" % (v(EX + r), v(X[0] + r), v(MX)))
        for r in range(2):
            B("v_sub_f32 %s, %s, %s" % (v(M + 2 + r), v(M + r), v(MX)))
        for r in range(4):
            B("v_exp_f32 %s, %s" % (v(EX + r), v(EX + r)))
        B(cvt(EX, EX, EX + 1))
        B(cvt(EX + 1, EX + 2, EX + 3))
        self.softmax_tail(B, X, M, [], first=False)
        B("s_waitcnt lgkmcnt(0)")
        self.normalize(B, w, AL)
        for a_ in range(4):
            B("v_mov_b64 %s, 0\nv_mov_b64 %s, 0" % (v(ACCO[a_], 2), v(ACCO[a_] + 2, 2)))
        for a_ in range(2):
            B(WO(a_, 0))
        B(vl(sVX))
        B("s_nop 7")
        B("s_branch c_back_" + tag)

    def emit(self, A):
        for w in range(1, 4):
            A("s_cmp_eq_u32 %s, %d\ns_cbranch_scc1 c_pro_%d" % (s(sWAVE), w, w))
        for w in range(4):
            CUR[0] = w
            P_ = Asm()
            P_._uid = 100 + 200 * w
            P_.label("c_pro_%d" % w)
            self.prologue(P_, w)
            A.extend(fix_hazards(P_.lines))
        for slow in (0, 1):
            for w in range(4):
                A(".p2align 6")
                A.extend(self.loop(w, slow))
```

```python
from asmlib import *
from layout import *

WS = "s[4:7]"
SQ, SK, SV, SO, SM0 = 8, 12, 16, 20, 24
sROLE, sWAVE, sXCC, sBUD = 32, 33, 34, 35
sH, sSTEP, sH2L, sH1S0, sH1L, sKX, sVX, sH1S1, sPH = 36, 37, 38, 39, 40, 41, 42, 43, 44
sKM, sVM, sFLAG, _unused, sH2S, sPF, sPROG, sT0, sT1, sBIG = 45, 46, 47, 48, 49, 50, 51, 52, 53, 54
sC1S, sC1L, sH1L2, sNEED = 55, 56, 57, 58
sH2C, sSEEN, sFS = 48, 59, 55
sFL = 8
sCM = 98
sST = 60

MEM = 112
AQ, AK, AV = 144, 152, 160
KXR, VXR = 168, 176
P = [184 + 8 * i for i in range(6)]
T0, T1 = 232, 236
IDX, VH2, SELQ, SELK, HALF, SELR = 240, 241, 242, 244, 246, 248
VL0, VL1, VSX, VH1 = 252, 253, 254, 255
VPFA, VPFD, VPRG = 248, 249, 250

LB = 147456
RA, RB = 0, 8192
WREG = 36864

STREAM_UNITS = [("Q", 0), ("K", 0), ("Q", 1), ("K", 5), ("K", 6), ("K", 7), ("O", 1, 1), ("O", 2, 1), ("O", 3, 1)]
ALL_UNITS = ([("Q", i) for i in range(8)] + [("K", i) for i in range(8)] + [("V", i) for i in range(8)]
             + [("O", u, p) for u in range(4) for p in range(2)])
RES_UNITS = [u for u in ALL_UNITS if u not in STREAM_UNITS]
assert len(RES_UNITS) == 23
RES_REG = {}
for i, u in enumerate(RES_UNITS):
    RES_REG[u] = 256 + 16 * i if i < 16 else 16 * (i - 16)
CUR = [0]


def slot_of(unit):
    if unit[0] == "K":
        return {0: 5, 5: 6, 6: 7, 7: 8}[unit[1]]
    if unit[0] == "Q":
        return 2 + unit[1]
    order = [u for u in ((gu - CUR[0]) % 4 for gu in range(4)) if u]
    return (4, 0, 1)[order.index(unit[1])]


STAGE = {
    ("Q", 0, 0): P[0], ("Q", 0, 1): P[1], ("K", 0, 0): P[2], ("K", 0, 1): P[3], ("Q", 1, 0): P[4], ("Q", 1, 1): P[5],
    ("K", 5, 0): P[0], ("K", 6, 0): P[1], ("K", 7, 0): P[2], ("K", 5, 1): P[3], ("K", 6, 1): P[4], ("K", 7, 1): P[5],
    ("O", 1, 1, 0): P[4], ("O", 1, 1, 1): P[5], ("O", 2, 1, 0): MEM, ("O", 2, 1, 1): MEM + 8,
    ("O", 3, 1, 0): MEM + 16, ("O", 3, 1, 1): MEM + 24,
}


def opreg(unit, t):
    if unit in RES_REG:
        return RES_REG[unit] + 8 * t
    return STAGE[unit + (t,)]


def stream_rd(unit, t):
    r = STAGE[unit + (t,)]
    off = slot_of(unit) * 4096 + t * 2048
    return ["ds_read_b128 %s, %s offset:%d" % (v(r, 4), v(VL0), off),
            "ds_read_b128 %s, %s offset:%d" % (v(r + 4, 4), v(VL0), off + 1024)]


def smf(acc, aop, breg):
    return "v_smfmac_f32_16x16x64_bf16 %s, %s, %s, %s" % (v(acc, 4), v(aop, 4), R(breg, 8), v(IDX))


def W(m, t, i):
    acc = {"Q": AQ, "K": AK, "V": AV}[m] + 4 * t
    return smf(acc, MEM + 4 * i, opreg((m, i), t))


ACCO = [AK, AK + 4, P[0] + 4, T1]
OOP = [AV, AV + 4, P[1], P[3] + 4]


def WO(a_, u):
    return smf(ACCO[a_], OOP[u], opreg(("O", u, a_ // 2), a_ % 2))


def mf16(d, a_, b_, c=None):
    return "v_mfma_f32_16x16x16_bf16 %s, %s, %s, %s" % (v(d, 4), v(a_, 2), v(b_, 2), "0" if c is None else v(c, 4))


def mf32(d, a_, b_, c=None):
    return "v_mfma_f32_16x16x32_bf16 %s, %s, %s, %s" % (v(d, 4), v(a_, 4), v(b_, 4), "0" if c is None else v(c, 4))


def cvt(d, x, y):
    return "v_cvt_pk_bf16_f32 %s, %s, %s" % (v(d), v(x), v(y))


def zero(r):
    return "v_mov_b32 %s, 0" % v(r)


class Chain:
    def __init__(self, opts):
        self.o = opts
        self.dbg = opts.get("stamps", False)
        self.tot = self.dbg or opts.get("total", False)

    def prologue(self, A, w):
        o = self.o
        nt = "nt " if o.get("w_nt", False) else ""
        A("s_mov_b32 %s, %s" % (s(sH), s(sROLE)))
        if o.get("hst"):
            A("s_memrealtime s[86:87]")
        A("s_load_dwordx4 s[8:11], s[0:1], 8")
        A("s_load_dwordx4 s[12:15], s[0:1], 24")
        A("s_load_dwordx2 s[20:21], s[0:1], 40")
        A("s_waitcnt lgkmcnt(0)")
        A("s_mov_b32 s24, s8\ns_mov_b32 s25, s9\ns_mov_b32 s26, 8192\ns_mov_b32 s27, 0x20000")
        A("s_mov_b32 s8, s10\ns_mov_b32 s9, s11\ns_mov_b32 s10, 0x400000\ns_mov_b32 s11, 0x20000")
        A("s_mov_b32 s16, s14\ns_mov_b32 s17, s15\ns_mov_b32 s18, 0x400000\ns_mov_b32 s19, 0x20000")
        A("s_mov_b32 s14, 0x400000\ns_mov_b32 s15, 0x20000")
        A("s_mov_b32 s22, 0x400000\ns_mov_b32 s23, 0x20000")
        L, N, G = T0, T0 + 1, T0 + 2
        X, Y, Z = T1, T1 + 1, T1 + 2
        DW, DO, TRW, TRO, M0A, INI, RDY, PRK, PRV, MCD = AK, AK + 2, AK + 4, AK + 8, AK + 10, AK + 11, AK + 12, AK + 13, AK + 14, AK + 15
        sWB, sOB = sKM, sVM
        vq = []

        def vm(line, tag=None):
            A(line)
            vq.append(tag)

        def vwait(tag):
            last = max(i for i, x in enumerate(vq) if x == tag)
            A("s_waitcnt vmcnt(%d)" % (len(vq) - 1 - last))
            del vq[:last + 1]

        self.vm = vm
        stages = ([("K", i) for i in range(8)] + [("V", i) for i in range(8)] + [("O", i, 0) for i in range(4)]
                  + [("Q", i) for i in range(8)] + [("O", i, 1) for i in range(4)])
        RING = 5

        def dma(n):
            st = stages[n]
            for q in range(4):
                A("s_mov_b32 m0, %d" % (w * WREG + (n % RING) * 4096 + q * 1024))
                if st[0] == "O":
                    off = st[1] * 32768 + 512 * st[2] + (8 * (w // 2) + 2 * (w % 2) + 16 * (q % 2) + 4 * (q // 2)) * 1024
                    srd, vo, sb = SO, DO, sOB
                else:
                    off = (64 * st[1] + 16 * (w // 2) + 2 * (w % 2) + 4 * q) * 8192
                    srd, vo, sb = {"Q": SQ, "K": SK, "V": SV}[st[0]], DW, sWB
                A("s_add_u32 %s, %s, %d" % (s(sT1), s(sb), off))
                vm("buffer_load_dwordx4 %s, %s, %s offen %slds" % (v(vo + q % 2), s(srd, 4), s(sT1), nt), n)

        A("v_and_b32 %s, 63, v0" % v(L))
        A("v_and_b32 %s, 15, %s" % (v(N), v(L)))
        A("v_lshrrev_b32 %s, 4, %s" % (v(G), v(L)))
        A("v_and_b32 %s, 1, %s" % (v(X), v(G)))
        A("v_lshrrev_b32 %s, 1, %s" % (v(Y), v(G)))
        A("v_lshl_add_u32 %s, %s, 5, %s" % (v(X), v(Y), v(X)))
        A("v_lshlrev_b32 %s, 13, %s" % (v(X), v(X)))
        A("v_lshlrev_b32 %s, 1, %s" % (v(Z), v(G)))
        A("v_xor_b32 %s, %s, %s" % (v(Z), v(Z), v(N)))
        A("v_lshl_add_u32 %s, %s, 4, %s" % (v(DW), v(Z), v(X)))
        A("v_xor_b32 %s, 128, %s" % (v(DW + 1), v(DW)))
        A("s_lshl_b32 %s, %s, 8\ns_lshl_b32 %s, %s, 17" % (s(sWB), s(sH), s(sOB), s(sH)))
        for n in range(RING - 1):
            dma(n)
        A("v_and_b32 %s, 31, %s" % (v(X), v(L)))
        A("v_lshlrev_b32 %s, 2, %s" % (v(Z), v(Y)))
        A("v_xor_b32 %s, %s, %s" % (v(X), v(X), v(Z)))
        A("v_lshlrev_b32 %s, 4, %s" % (v(X), v(X)))
        A("v_lshl_add_u32 %s, %s, 10, %s" % (v(DO), v(Y), v(X)))
        A("v_xor_b32 %s, 128, %s" % (v(DO + 1), v(DO)))
        A("s_mov_b32 %s, %d" % (s(sT0), w * WREG))
        A("v_lshrrev_b32 %s, 2, %s" % (v(X), v(L)))
        A("v_and_b32 %s, 7, %s" % (v(Z), v(X)))
        A("v_xor_b32 %s, %d, %s" % (v(Z), 2 * w, v(Z)))
        A("v_lshlrev_b32 %s, 8, %s" % (v(X), v(X)))
        A("v_lshl_add_u32 %s, %s, 5, %s" % (v(X), v(Z), v(X)))
        A("v_and_b32 %s, 3, %s" % (v(Y), v(L)))
        A("v_lshl_add_u32 %s, %s, 3, %s" % (v(TRW), v(Y), v(X)))
        A("v_xor_b32 %s, 32, %s" % (v(TRW + 1), v(TRW)))
        A("v_add_u32 %s, %d, %s" % (v(TRW + 2), 2 * WREG, v(TRW)))
        A("v_add_u32 %s, %d, %s" % (v(TRW + 3), 2 * WREG, v(TRW + 1)))
        A("v_bfe_u32 %s, %s, 2, 1" % (v(X), v(L)))
        A("v_lshl_add_u32 %s, %s, 1, %s" % (v(X), v(G), v(X)))
        A("v_and_b32 %s, 3, %s" % (v(Z), v(X)))
        A("v_xor_b32 %s, %d, %s" % (v(Z), w, v(Z)))
        A("v_lshlrev_b32 %s, 9, %s" % (v(X), v(X)))
        A("v_lshl_add_u32 %s, %s, 6, %s" % (v(X), v(Z), v(X)))
        A("v_lshl_add_u32 %s, %s, 4, %s" % (v(X), v(Y), v(X)))
        A("v_bfe_u32 %s, %s, 3, 1" % (v(Y), v(L)))
        A("v_lshl_add_u32 %s, %s, 3, %s" % (v(TRO), v(Y), v(X)))
        A("v_add_u32 %s, %d, %s" % (v(TRO + 1), 2 * WREG, v(TRO)))
        CB, N4 = T0 + 3, T1 + 3
        A("v_bfe_u32 %s, %s, 1, 1" % (v(CB), v(L)))
        A("v_bfe_u32 %s, %s, 2, 2" % (v(N4), v(L)))
        A("v_lshlrev_b32 %s, 4, %s" % (v(X), v(L)))
        A("v_add_u32 %s, %s, %s" % (v(VL0), s(sT0), v(X)))
        A("v_add_u32 %s, %d, %s" % (v(VL1), LB, v(X)))
        A("v_lshl_add_u32 %s, %s, 10, %s" % (v(VSX), v(CB), v(VL1)))
        A("v_lshrrev_b32 %s, 3, %s" % (v(X), v(L)))
        A("s_lshl1_add_u32 %s, %s, %s" % (s(sT1), s(sWAVE), s(sH)))
        A("v_lshl_add_u32 %s, %s, 2, %s" % (v(Y), v(X), s(sT1)))
        A("v_and_b32 %s, 31, %s" % (v(Y), v(Y)))
        A("v_lshlrev_b32 %s, 13, %s" % (v(X), v(X)))
        A("v_lshl_add_u32 %s, %s, 6, %s" % (v(X), v(Y), v(X)))
        A("v_and_b32 %s, 7, %s" % (v(Y), v(L)))
        A("v_lshl_add_u32 %s, %s, 3, %s" % (v(VH1), v(Y), v(X)))
        A("v_mul_u32_u24 %s, 0xAAAA, %s" % (v(IDX), v(CB)))
        A("v_add_u32 %s, 0x4444, %s" % (v(IDX), v(IDX)))
        A("v_mov_b32 %s, 0x3F003F00\nv_mov_b32 %s, 0x3F003F00" % (v(HALF), v(HALF + 1)))
        A("v_and_b32 %s, 1, %s" % (v(X), v(L)))
        A("v_lshlrev_b32 %s, 4, %s" % (v(X), v(X)))
        A("v_cmp_eq_u32 vcc, %s, %s" % (v(G), v(N4)))
        for base, val in ((SELQ, SA_BF), (SELK, SB_BF)):
            A("v_mov_b32 %s, 0x%x" % (v(Y), val))
            A("v_lshlrev_b32 %s, %s, %s" % (v(Y), v(X), v(Y)))
            A("v_cndmask_b32 %s, 0, %s, vcc" % (v(base), v(Y)))
            A("v_mov_b32 %s, %s" % (v(base + 1), v(base)))
        A("v_bfe_u32 %s, %s, 2, 1" % (v(X), v(L)))
        A("v_lshlrev_b32 %s, 4, %s" % (v(X), v(X)))
        A("v_mov_b32 %s, 0x3F80" % v(Y))
        A("v_lshlrev_b32 %s, %s, %s" % (v(Y), v(X), v(Y)))
        A("v_bfe_u32 %s, %s, 3, 1" % (v(Z), v(L)))
        A("v_and_b32 %s, 1, %s" % (v(X), v(L)))
        A("v_lshl_add_u32 %s, %s, 1, %s" % (v(Z), v(X), v(Z)))
        for rho in range(4):
            A("v_cmp_eq_u32 vcc, %d, %s" % (rho, v(Z)))
            A("v_cndmask_b32 %s, 0, %s, vcc" % (v(SELR + rho), v(Y)))
        A("v_lshlrev_b32 %s, 2, %s" % (v(X), v(X)))
        A("v_lshl_add_u32 %s, %s, 28, %s" % (v(X), v(N4), v(X)))
        A("v_lshl_add_u32 %s, %s, 8, %s" % (v(X), v(CB), v(X)))
        A("v_and_b32 %s, 16, %s" % (v(Y), v(L)))
        A("v_add_u32 %s, %s, %s" % (v(X), v(Y), v(X)))
        A("v_bfe_u32 %s, %s, 5, 1" % (v(Y), v(L)))
        A("v_lshl_add_u32 %s, %s, 3, %s" % (v(VH2), v(Y), v(X)))
        A("v_and_b32 %s, 1, %s" % (v(X), v(L)))
        A("v_lshl_add_u32 %s, %s, 1, %s" % (v(X), v(N4), v(X)))
        A("v_lshlrev_b32 %s, 10, %s" % (v(X), v(X)))
        A("v_lshl_add_u32 %s, %s, 6, %s" % (v(X), v(CB), v(X)))
        A("v_lshl_add_u32 %s, %s, 4, %s" % (v(M0A), v(G), v(X)))

        self.poison_init(A)
        A("s_mov_b32 %s, 0" % s(sSTEP))
        A("s_lshl_b32 %s, %s, 11" % (s(sT0), s(sWAVE)))
        A("s_add_u32 %s, %s, %d" % (s(sH2L), s(sT0), MEMB - LB))
        A("s_lshr_b32 %s, %s, 4\ns_lshl_b32 %s, %s, 10\ns_add_u32 %s, %s, %s" % (s(sT1), s(sH), s(sT1), s(sT1), s(sT1), s(sT1), s(sT0)))
        A("s_and_b32 %s, %s, 6\ns_lshl_b32 %s, %s, 5\ns_add_u32 %s, %s, %s" % (s(sPH), s(sH), s(sPH), s(sPH), s(sT1), s(sT1), s(sPH)))
        A("s_and_b32 %s, %s, 8\ns_lshl2_add_u32 %s, %s, %s" % (s(sPH), s(sH), s(sT1), s(sPH), s(sT1)))
        A("s_and_b32 %s, %s, 1\ns_lshl_b32 %s, %s, 9\ns_add_u32 %s, %s, %s" % (s(sPH), s(sH), s(sPH), s(sPH), s(sT1), s(sT1), s(sPH)))
        A("s_add_u32 %s, %s, %d" % (s(sH2S), s(sT1), MEMB + 8192))
        A("s_add_u32 %s, %s, %d" % (s(sH2C), s(sT1), MEMC))
        A("s_lshl_b32 %s, %s, 16" % (s(sH1S0), s(sWAVE)))
        A("s_add_u32 %s, %s, %d" % (s(sH1S0), s(sH1S0), INB1))
        A("s_add_u32 %s, %s, 4096" % (s(sH1S1), s(sH1S0)))
        A("s_lshl_b32 %s, %s, 13" % (s(sT1), s(sH)))
        A("s_add_u32 %s, %s, %s" % (s(sKX), s(sT1), s(sT0)))
        A("s_add_u32 %s, %s, %d" % (s(sH1L), s(sKX), INB1 - LB))
        A("s_mov_b32 %s, 0" % s(sPH))
        A("s_add_u32 %s, %s, %d" % (s(sKX), s(sKX), KX - LB))
        A("s_add_u32 %s, %s, %d" % (s(sVX), s(sKX), VX - KX))
        A("s_cmp_eq_u32 %s, 2" % s(sWAVE))
        A("s_cselect_b32 %s, %d, 0" % (s(sPF), VX - KX))
        A("s_add_u32 %s, %s, %d" % (s(sPF), s(sPF), KX + 262144 - 8 * LB))
        A("s_add_u32 %s, %s, %s" % (s(sPF), s(sPF), s(sT1)))
        A("s_cmp_eq_u32 %s, 3" % s(sWAVE))
        A("s_cselect_b32 %s, %d, %s" % (s(sPF), MEMB + 8192 - 8 * LB, s(sPF)))
        A("s_cmp_eq_u32 %s, 2" % s(sWAVE))
        A("s_cselect_b32 %s, %d, 0" % (s(sPROG), 16 * 128))
        A("s_add_u32 %s, %s, %d" % (s(sPROG), s(sPROG), FLAGS + F_P + 16 * 128))
        A("s_lshr_b32 %s, %s, 1\ns_lshl_b32 %s, %s, 7" % (s(sT1), s(sH), s(sT1), s(sT1)))
        A("s_add_u32 %s, %s, %s" % (s(sPROG), s(sPROG), s(sT1)))
        A("s_mov_b32 %s, 0x5D800000" % s(sBIG))
        A("s_mov_b32 %s, 0xCCCCCCCC\ns_mov_b32 %s, 0xCCCCCCCC" % (s(sCM), s(sCM + 1)))
        for q in range(2):
            vm("buffer_load_dwordx4 %s, %s, %s, 0 offen offset:%d" % (v(MEM + 4 * q, 4), v(M0A), s(SM0, 4), 256 * w + 128 * q))
        A("v_and_b32 %s, 12, %s" % (v(X), v(VH2)))
        A("v_bfe_u32 %s, %s, 4, 1" % (v(Y), v(VH2)))
        A("v_lshl_add_u32 %s, %s, 10, %s" % (v(X), v(Y), v(X)))
        A("v_bfe_u32 %s, %s, 8, 1" % (v(Y), v(VH2)))
        A("v_lshl_add_u32 %s, %s, 4, %s" % (v(X), v(Y), v(X)))
        A("s_and_b32 %s, %s, 6\ns_lshl_b32 %s, %s, 10\ns_and_b32 %s, %s, 24\ns_lshl3_add_u32 %s, %s, %s" % (
            s(sT0), s(sH), s(sT0), s(sT0), s(sT1), s(sH), s(sT0), s(sT1), s(sT0)))
        A("s_and_b32 %s, %s, 1\ns_lshl_b32 %s, %s, 5\ns_add_u32 %s, %s, %s" % (
            s(sT1), s(sH), s(sT1), s(sT1), s(sT0), s(sT0), s(sT1)))
        vm("buffer_load_dword %s, %s, %s, %s offen offset:%d" % (v(MCD), v(X), s(SM0, 4), s(sT0), 256 * w))
        A("v_lshlrev_b32 %s, 3, %s" % (v(T0), v(VL1)))
        HOLD = {("Q", 0): P[0], ("Q", 1): P[4], ("O", 1, 1): P[2], ("O", 2, 1): MEM + 8, ("O", 3, 1): MEM + 24}
        held = []

        def put(u, src):
            for q in range(4):
                A("ds_write_b128 %s, %s offset:%d" % (v(VL0), v(src + 4 * q, 4), slot_of(u) * 4096 + q * 1024))

        pft = "buffer_load_dword %s, %s, %%s offen lds" % (v(T0), WS)
        for n, st in enumerate(stages):
            vwait(n)
            A("s_waitcnt lgkmcnt(0)\ns_barrier")
            if n + RING - 1 < 32:
                dma(n + RING - 1)
            u = ("O", (st[1] - w) % 4, st[2]) if st[0] == "O" else (st[0], (st[1] - 2 * w) % 8)
            dst = RES_REG[u] if u in RES_REG else HOLD.get(u, P[0])
            for t_ in range(2):
                for r in range(4):
                    off = (r % 2) * WREG + (n % RING) * 4096
                    ad = (TRO + r // 2, off + 256 * t_) if st[0] == "O" else (TRW + t_ + 2 * (r // 2), off)
                    A("ds_read_b64_tr_b16 %s, %s offset:%d" % (R(dst + 8 * t_ + 2 * r, 2), v(ad[0]), ad[1]))
            if n >= 28:
                c = [x for x in held if slot_of(x) == (n - 1) % RING]
                put(c[0], HOLD[c[0]])
                held.remove(c[0])
            if u in HOLD:
                held.append(u)
            elif u not in RES_REG:
                A("s_waitcnt lgkmcnt(0)")
                put(u, dst)
            if n == 5 and w == 0:
                A("s_cmp_lg_u32 %s, 0\ns_cselect_b32 %s, 0x10001, 1" % (s(sXCC), s(sT0)))
                A("v_mov_b32 %s, %s" % (v(X), s(sT0)))
                A("s_mov_b64 exec, 1")
                vm("buffer_atomic_add %s, off, s[28:31], 0 offset:%d" % (v(X), DBG_CHAIN_READY))
                A("s_mov_b64 exec, -1")
            if n == 14:
                vm("buffer_load_dword %s, off, s[28:31], 0 offset:%d sc1" % (v(INI), DBG_INIT))
                vm("buffer_load_dword %s, off, s[28:31], 0 offset:%d sc1" % (v(RDY), DBG_CHAIN_READY))
            if n == 20:
                lab = A.uid("c_fl")
                A("v_readfirstlane_b32 %s, %s\nv_readfirstlane_b32 %s, %s" % (s(sT0), v(INI), s(sT1), v(RDY)))
                A("s_lshl_b32 %s, %s, 5\ns_and_b32 %s, %s, %s\ns_cbranch_scc1 %s" % (s(sT0), s(sT0), s(sT0), s(sT0), s(sT1), lab))
                self.wait_dbg(A, DBG_INIT, 1, mask=None)
                self.wait_dbg(A, DBG_CHAIN_READY, 32, mask=0xFFFF)
                A.label(lab)
                A("s_lshr_b32 %s, %s, 16" % (s(sXCC), s(sT1)))
            if n == 27:
                A("s_add_u32 %s, %s, %d" % (s(sT0), s(sPROG), -2048 if w == 2 else 2048))
                vm("buffer_load_dword %s, off, %s, %s sc1" % (v(PRK), WS, s(sPROG)), "prg")
                vm("buffer_load_dword %s, off, %s, %s sc1" % (v(PRV), WS, s(sT0)), "prg")
                if w in (0, 3):
                    A("s_mov_b32 m0, %d" % (LB + RB + 4096))
                    A("s_lshl_b32 %s, %s, 13\ns_add_u32 %s, %s, %d" % (s(sT0), s(sH), s(sT0), s(sT0), INB1 - 8 * LB))
                    vm(pft % s(sT0 if w == 0 else sPF))
        A("s_mov_b32 m0, %d" % (LB + RB + 4096 + (0 if w else 1024)))
        vwait("prg")
        A("v_min_u32 %s, %s, %s" % (v(PRK), v(PRK), v(PRV)))
        A("s_mov_b32 %s, %d" % (s(sNEED), o.get("need0", 3)))
        A("v_readfirstlane_b32 %s, %s" % (s(sSEEN), v(PRK)))
        lab = A.uid("c_rdy")
        A("s_cmp_ge_u32 %s, %s\ns_cbranch_scc1 %s" % (s(sSEEN), s(sNEED), lab))
        A("s_xor_b32 %s, %s, %d" % (s(sPROG), s(sPROG), 0x1800))
        self.progress(A)
        A("s_xor_b32 %s, %s, %d" % (s(sPROG), s(sPROG), 0x1800))
        self.progress(A)
        A.label(lab)
        for r, sb in ((KXR, sKX), (VXR, sVX)):
            A("buffer_load_dwordx4 %s, %s, %s, %s offen sc1" % (v(r, 4), v(VL1), WS, s(sb)))
            A("buffer_load_dwordx4 %s, %s, %s, %s offen offset:1024 sc1" % (v(r + 4, 4), v(VL1), WS, s(sb)))
        if w in (1, 2):
            A(pft % s(sPF))
        A("s_add_u32 %s, %s, %d" % (s(sPF), s(sPF), 8192 if w == 3 else 262144))
        A("s_add_u32 %s, %s, 262144\ns_add_u32 %s, %s, 262144" % (s(sKX), s(sKX), s(sVX), s(sVX)))
        A("v_mov_b32 %s, %s" % (v(T0 + 1), v(MCD)))
        A("s_waitcnt lgkmcnt(0)\ns_barrier")
        put(held[0], HOLD[held[0]])
        A("s_waitcnt lgkmcnt(0)")
        A("\n".join(stream_rd(("K", 0), 0) + stream_rd(("K", 0), 1)))
        self.window_b(A)
        A("s_waitcnt lgkmcnt(0)")
        if self.dbg:
            self.calib(A, 0)
        if self.tot:
            A("s_memtime s[92:93]\ns_memrealtime s[88:89]\ns_waitcnt lgkmcnt(0)")
        if o.get("hst"):
            A("s_memrealtime s[88:89]\ns_waitcnt lgkmcnt(0)")
        A("s_cmp_lg_u32 %s, 0\ns_cbranch_scc1 c_entry_1_%d\ns_branch c_entry_0_%d" % (s(sXCC), w, w))

    def calib(self, A, slot):
        lab = A.uid("c_cal")
        A("s_memrealtime s[60:61]\ns_waitcnt lgkmcnt(0)")
        A.label(lab)
        A("s_memrealtime s[62:63]\ns_memtime s[64:65]\ns_waitcnt lgkmcnt(0)")
        A("s_cmp_eq_u32 s62, s60\ns_cbranch_scc1 %s" % lab)
        A("v_mov_b32 %s, s62\nv_mov_b32 %s, s64" % (v(T0), v(T0 + 1)))
        A("s_lshl_b32 %s, %s, 6\ns_lshl_b32 %s, %s, 4\ns_add_u32 %s, %s, %s\ns_add_u32 %s, %s, %d" % (
            s(sT0), s(sH), s(sT1), s(sWAVE), s(sT0), s(sT0), s(sT1), s(sT0), s(sT0), STAMP + 2048 + 8 * slot))
        A("buffer_store_dwordx2 %s, off, %s, %s" % (v(T0, 2), WS, s(sT0)))
        A("s_waitcnt vmcnt(0)")

    def poison_init(self, A):
        PO = KXR
        for i in range(4):
            A("v_mov_b32 %s, -1" % v(PO + i))
        A("s_lshl_b32 %s, %s, 13\ns_lshl_b32 %s, %s, 11" % (s(sT0), s(sH), s(sT1), s(sWAVE)))
        A("s_add_u32 %s, %s, %s\ns_add_u32 %s, %s, %d" % (s(sT0), s(sT0), s(sT1), s(sT0), s(sT0), INB1 - LB))
        for q in range(2):
            self.vm("buffer_store_dwordx4 %s, %s, %s, %s offen offset:%d sc1" % (v(PO, 4), v(VL1), WS, s(sT0), 1024 * q))
        X = PO + 4
        A("v_lshlrev_b32 %s, 13, %s" % (v(X), v(T0 + 2)))
        A("v_lshl_add_u32 %s, %s, 4, %s" % (v(X), v(T0 + 1), v(X)))
        A("s_lshl_b32 %s, %s, 8\ns_lshl_b32 %s, %s, 17" % (s(sT0), s(sH), s(sT1), s(sWAVE)))
        A("s_add_u32 %s, %s, %s\ns_add_u32 %s, %s, %d" % (s(sT0), s(sT0), s(sT1), s(sT0), s(sT0), MEMB))
        for q in range(4):
            self.vm("buffer_store_dwordx4 %s, %s, %s, %s offen sc1" % (v(PO, 4), v(X), WS, s(sT0)))
            A("s_add_u32 %s, %s, %d" % (s(sT1), s(sT0), MEMC - MEMB))
            self.vm("buffer_store_dwordx4 %s, %s, %s, %s offen sc1" % (v(PO, 4), v(X), WS, s(sT1)))
            A("s_add_u32 %s, %s, 32768" % (s(sT0), s(sT0)))

    def budget(self, A, give_up):
        A("s_cmp_eq_u32 %s, 0\ns_cbranch_scc1 %s\ns_sub_u32 %s, %s, 1" % (s(sBUD), give_up, s(sBUD), s(sBUD)))

    def wait_dbg(self, A, off, want, mask):
        top, done = A.uid("c_wd"), A.uid("c_wdd")
        A.label(top)
        A("buffer_load_dword %s, off, s[28:31], 0 offset:%d sc1" % (v(T1), off))
        A("s_waitcnt vmcnt(0)")
        A("v_readfirstlane_b32 %s, %s" % (s(sT1), v(T1)))
        if mask is None:
            A("s_cmp_ge_u32 %s, %d" % (s(sT1), want))
        else:
            A("s_and_b32 %s, %s, 0x%x\ns_cmp_ge_u32 %s, %d" % (s(sT0), s(sT1), mask, s(sT0), want))
        A("s_cbranch_scc1 %s" % done)
        self.budget(A, done)
        A("s_sleep 2\ns_branch %s" % top)
        A.label(done)

    def spin_ge(self, A, soff, want, vreg):
        top, done = A.uid("c_sp"), A.uid("c_spd")
        A.label(top)
        A("buffer_load_dword %s, off, %s, %s sc1" % (v(vreg), WS, s(soff)))
        A("s_waitcnt vmcnt(0)")
        A("v_readfirstlane_b32 %s, %s" % (s(sT1), v(vreg)))
        A("s_cmp_ge_u32 %s, %s" % (s(sT1), want))
        A("s_cbranch_scc1 %s" % done)
        self.budget(A, done)
        A("s_sleep 2\ns_branch %s" % top)
        A.label(done)

    def progress(self, A):
        top, done = A.uid("c_sp"), A.uid("c_spd")
        A.label(top)
        A("buffer_load_dword %s, off, %s, %s sc1" % (v(T1), WS, s(sPROG)))
        A("s_waitcnt vmcnt(0)")
        A("v_readfirstlane_b32 %s, %s" % (s(sSEEN), v(T1)))
        A("s_cmp_ge_u32 %s, %s" % (s(sSEEN), s(sNEED)))
        A("s_cbranch_scc1 %s" % done)
        self.budget(A, done)
        A("s_sleep 2\ns_branch %s" % top)
        A.label(done)

    def window_a(self, A):
        for u in STREAM_UNITS[:3]:
            for t in range(2):
                A("\n".join(stream_rd(u, t)))

    def window_b(self, A):
        for k, r in enumerate(range(AQ, AQ + 24, 2)):
            A("v_mov_b64 %s, 0" % v(r, 2))
            if k % 2 == 1:
                A("s_nop 0")

    def stamp(self, A, k):
        pass

    def add_stamps(self, lines, main=True):
        import re
        out, k = [], 0
        stride, phase = self.o.get("every", (20, 0))
        at = [re.compile(p) for p in self.o.get("at", [])]
        n = 0
        self.stamp_pos = []
        for l in lines:
            if l == "; DUMP":
                break
            if not at and not l.endswith(":") and not l.startswith(";"):
                if n % stride == phase and k < 15:
                    out.append("s_memtime s[%d:%d]" % (sST + 2 * k, sST + 2 * k + 1))
                    self.stamp_pos.append(n)
                    k += 1
                n += 1
            if not l.endswith(":") and not l.startswith(";"):
                if at and main and n == self.o.get("nth", -1):
                    out.append("s_memtime s[%d:%d]" % (sST + 28, sST + 29))
                n += 1 if at else 0
            out.append(l)
            for q, p in enumerate(at):
                if p.search(l):
                    out.append("s_memtime s[%d:%d]" % (sST + 2 * q, sST + 2 * q + 1))
        return out + lines[lines.index("; DUMP") + 1:]

    def loop(self, w, slow):
        CUR[0] = w
        A = Asm()
        B = Asm()
        A._uid = B._uid = 1000 * (1 + w + 4 * slow)
        B._uid += 500
        o = {k: (x[w] if isinstance(x, list) and k not in ("at", "more", "drop", "every") else x) for k, x in self.o.items()}
        hs = " sc1" if slow else ""
        ks = lambda i: (2 * w + i) % 8
        tag = "%d_%d" % (slow, w)
        top, entry, fin = "c_top_" + tag, "c_entry_" + tag, "c_fin_" + tag
        E, Lr = MEM, MEM + 4
        CK, FL = T1 + 2, T1 + 3

        ldE = "buffer_load_dwordx4 %s, %s, %s, %s offen sc1" % (v(E, 4), v(VL1), WS, s(sH2L))
        ldL = "buffer_load_dwordx4 %s, %s, %s, %s offen offset:1024 sc1" % (v(Lr, 4), v(VL1), WS, s(sH2L))

        def check(r, bad):
            A("v_max3_u32 %s, %s, %s, %s" % (v(CK), v(r), v(r + 1), v(r + 2)))
            A("v_max_u32 %s, %s, %s" % (v(CK), v(CK), v(r + 3)))
            A("v_cmp_eq_u32 vcc, -1, %s" % v(CK))
            A("s_cbranch_vccnz %s" % bad)

        def nops(n):
            while n > 0:
                A("s_nop %d" % (min(n, 16) - 1))
                n -= 16

        two2 = o.get("two2", 1)
        wr = ["ds_write_b128 %s, %s offset:%d" % (v(VL1), v(r, 4), RA + ks(q) * 1024) for q, r in enumerate((E, Lr))]
        A.label(top)
        A("s_waitcnt vmcnt(%d)" % (2 * two2 + 1))
        A("v_max3_u32 %s, %s, %s, %s" % (v(CK), v(E), v(E + 1), v(E + 2)))
        A("s_waitcnt vmcnt(%d)" % (2 * two2))
        A("v_max3_u32 %s, %s, %s, %s" % (v(CK), v(CK), v(E + 3), v(Lr)))
        A("v_max3_u32 %s, %s, %s, %s" % (v(CK), v(CK), v(Lr + 1), v(Lr + 2)))
        A("v_max_u32 %s, %s, %s" % (v(CK), v(CK), v(Lr + 3)))
        A("v_cmp_eq_u32 vcc, -1, %s" % v(CK))
        if o.get("specw", 1):
            A(wr[0])
        A("s_cbranch_vccnz c_bad_" + tag)
        B.label("c_bad_" + tag)
        if self.tot:
            B("s_add_u32 s95, s95, 1")
        B("s_mov_b64 exec, vcc")
        B(ldE)
        B(ldL)
        B("s_mov_b64 exec, -1")
        self.budget(B, "c_okL_" + tag)
        B("s_branch " + top)
        B.label(entry)
        B(wr[0])
        B("s_branch c_okL_" + tag)
        A.label("c_okL_" + tag)
        if o.get("lateexit"):
            A("s_cmp_eq_u32 %s, %d\ns_cbranch_scc1 %s" % (s(sSTEP), NSEG - 1, fin))
        if not o.get("specw", 1):
            A(wr[0])
        A(wr[1])
        A(W("Q", 0, 0))
        A(W("Q", 1, 0))
        A(W("K", 0, 0))
        A(W("K", 1, 0))
        A(W("Q", 0, 1))
        A(W("Q", 1, 1))
        A("s_waitcnt lgkmcnt(0)")
        A("s_barrier ; B1")
        rd = ["ds_read_b128 %s, %s offset:%d" % (v(MEM + 4 * i, 4), v(VL1), RA + ks(i) * 1024) for i in range(2, 8)]
        A(rd[0])
        A(rd[1])
        A(W("K", 0, 1))
        A(rd[2])
        A(rd[3])
        A(W("K", 1, 1))
        A(rd[4])
        A(rd[5])
        A(W("V", 0, 0))
        A(W("V", 1, 0))
        A(W("V", 0, 1))
        if w > 0:
            A("v_lshlrev_b32 %s, 3, %s" % (v(T0 + 2), v(VL1)))
        else:
            A("v_lshlrev_b32 %s, 7, %s" % (v(T0 + 2), v(VL0)))
        A(W("V", 1, 1))
        gb = []
        for t in range(2):
            for i in (5, 6, 7):
                gb += stream_rd(("K", i), t)
        fill = []
        memc = "buffer_store_dword %s, %s, %s, %s offen sc1" % (v(T0 + 1), v(VH2), WS, s(sH2C))
        pf = "buffer_load_dword %s, %s, %s offen lds" % (v(T0 + 2), WS, s(sPF))
        npend = 2
        QB, QOP, KOP, VB = T0, T1, P[2], P[2] + 4
        for i in range(2, 8):
            A("s_waitcnt lgkmcnt(5)")
            A(W("Q", 0, i))
            A(gb[i - 2])
            if fill:
                A(fill.pop(0))
        A(W("Q", 1, 2))
        A(gb[6])
        A(W("Q", 1, 3))
        A(gb[7])
        A(cvt(QB, AQ, AQ + 1))
        A(W("Q", 1, 4))
        A(gb[8])
        A(cvt(QB + 1, AQ + 2, AQ + 3))
        A(W("Q", 1, 5))
        A(gb[9])
        A(mf16(AQ, QB, SELQ))
        A(gb[10])
        A(W("Q", 1, 6))
        A(gb[11])
        A(W("Q", 1, 7))
        z64 = lambda r: "v_mov_b64 %s, 0" % v(r, 2)
        add = lambda d, x, y: "v_add_f32 %s, %s, %s" % (v(d), v(x), v(y))
        dpp = lambda d, x, q: "v_mov_b32_dpp %s, %s quad_perm:%s row_mask:0xf bank_mask:0xf" % (v(d), v(x), q)
        addx = lambda r: "v_add_f32_dpp %s, %s, %s quad_perm:[2,3,0,1] row_mask:0xf bank_mask:0xf" % (v(r), v(r), v(r))
        ex = lambda d, x: "v_exp_f32 %s, %s" % (v(d), v(x))
        X = [P[0], P[0] + 4, P[1], P[1] + 4]
        M = P[3]
        EX, EB, AL, EM = X[1], X[2], X[3], T0
        RR, TT = T0 + 2, T0 + 3
        sel = ["v_cndmask_b32 %s, %s, %s, %s" % (v(AQ + r), v(AQ + r), v(AQ + 4 + r), s(sCM, 2)) for r in range(4)]
        xr = ["ds_read_b128 %s, %s offset:%d" % (v(X[q], 4), v(VL1), RB + q * 1024) for q in range(4)]
        gc1 = stream_rd(("O", 1, 1), 0) + stream_rd(("O", 1, 1), 1)
        gc2 = stream_rd(("O", 2, 1), 0) + stream_rd(("O", 3, 1), 0) + stream_rd(("O", 2, 1), 1) + stream_rd(("O", 3, 1), 1)
        kvl = ["buffer_load_dwordx4 %s, %s, %s, %s offen offset:%d sc1" % (v(r + 4 * q, 4), v(VL1), WS, s(sb), 1024 * q)
               for r, sb in ((KXR, sKX), (VXR, sVX)) for q in range(2)]
        seq = [
            cvt(QOP, AQ, AQ + 1), W("K", 0, 2), cvt(QOP + 1, AQ + 2, AQ + 3), W("K", 0, 3),
            cvt(QB + 2, AQ + 4, AQ + 5), cvt(QB + 3, AQ + 6, AQ + 7), W("K", 0, 4), mf16(AQ + 4, QB + 2, SELQ),
            "s_waitcnt lgkmcnt(0)", W("K", 0, 5), W("K", 0, 6),
            cvt(QOP + 2, AQ + 4, AQ + 5), cvt(QOP + 3, AQ + 6, AQ + 7), W("K", 0, 7),
            "s_waitcnt vmcnt(%d)" % npend, mf32(AQ, KXR, QOP), mf32(AQ + 4, KXR + 4, QOP),
            cvt(QB, AK, AK + 1), cvt(QB + 1, AK + 2, AK + 3), W("K", 1, 2), mf16(AK, QB, SELK),
            sel[0], sel[1], sel[2], sel[3], W("K", 1, 3),
            "ds_write_b128 %s, %s offset:%d" % (v(VL1), v(AQ, 4), RB + w * 1024),
            W("K", 1, 4), cvt(KOP, AK, AK + 1), W("K", 1, 5), cvt(KOP + 1, AK + 2, AK + 3), W("K", 1, 6), W("K", 1, 7),
            W("V", 0, 2), W("V", 1, 2), cvt(QB + 2, AK + 4, AK + 5), cvt(QB + 3, AK + 6, AK + 7),
            "s_waitcnt lgkmcnt(0)", "s_barrier ; B2", mf16(AK + 4, QB + 2, SELK), xr[0], xr[1],
            W("V", 0, 3), xr[2], xr[3], W("V", 1, 3),
            cvt(KOP + 2, AK + 4, AK + 5), cvt(KOP + 3, AK + 6, AK + 7), W("V", 0, 4), mf32(AK, KOP, QOP),
            "s_waitcnt lgkmcnt(2)"] + [add(X[0] + r, X[0] + r, X[1] + r) for r in range(4)] + [
            W("V", 1, 4),
            "ds_write_b64 %s, %s offset:%d" % (v(VL1), v(AK, 2), RA + (w // 2) * 1024 + (w % 2) * 8),
            "s_waitcnt lgkmcnt(1)"] + [add(X[2] + r, X[2] + r, X[3] + r) for r in range(4)] + [
            W("V", 0, 5)] + [add(X[0] + r, X[0] + r, X[2] + r) for r in range(4)] + [
            ex(EX, X[0]), ex(EX + 1, X[0] + 1), W("V", 1, 5),
            "s_waitcnt lgkmcnt(0)", "s_barrier ; B3",
            "ds_read_b128 %s, %s offset:%d" % (v(M, 4), v(VSX), RA), W("V", 0, 6), gc1[0], gc1[1],
            ex(EX + 2, X[0] + 2), ex(EX + 3, X[0] + 3), cvt(EX, EX, EX + 1), cvt(EX + 1, EX + 2, EX + 3),
            W("V", 0, 7), gc1[2], gc1[3], dpp(EB, EX, "[0,1,0,1]"), mf16(AL, HALF, EX),
            dpp(EB + 1, EX + 1, "[0,1,0,1]"), dpp(EB + 2, EX, "[2,3,2,3]"), dpp(EB + 3, EX + 1, "[2,3,2,3]"),
            W("V", 1, 6), "s_waitcnt lgkmcnt(4)", add(M, M, M + 2), W("V", 1, 7), gc2[0], gc2[1], add(M + 1, M + 1, M + 3),
            mf32(AQ, VXR, EB), gc2[2], addx(M), addx(M + 1),
            mf32(AQ + 4, VXR + 4, EB), gc2[3], ex(M + 2, M), ex(M + 3, M + 1), addx(AL),
            cvt(EM, M + 2, M + 3), cvt(EM + 1, M + 2, M + 3), add(AL, AL, AL),
            cvt(VB, AV, AV + 1), cvt(VB + 1, AV + 2, AV + 3),
            mf16(AL, HALF, EM, AL), cvt(VB + 2, AV + 4, AV + 5), cvt(VB + 3, AV + 6, AV + 7), z64(ACCO[0]),
            mf16(AQ, VB, EM, AQ), z64(ACCO[0] + 2), z64(ACCO[1]), z64(ACCO[1] + 2),
            mf16(AQ + 4, VB + 2, EM, AQ + 4)]
        A("\n".join(seq))
        self.normalize(A, w, AL, [z64(ACCO[2]), z64(ACCO[2] + 2), "v_max_f32 %s, %s, %s" % (v(TT), v(AL), v(RR))], [])
        A(WO(0, 0))
        A("v_cmp_ngt_f32 vcc, %s, %s" % (s(sBIG), v(TT)))
        A(WO(1, 0))
        A(z64(ACCO[3]))
        A(z64(ACCO[3] + 2))
        A("s_cbranch_vccnz c_slow_" + tag)
        A.label("c_back_" + tag)
        self.fallback(B, w, tag, X, M)
        A("s_waitcnt lgkmcnt(0)")
        A("s_barrier ; B4")
        for u in range(1, 4):
            A("ds_read_b128 %s, %s offset:%d" % (v(OOP[u], 4), v(VL1), RB + ((w + u) % 4) * 1024))
        A(WO(2, 0))
        A(gc2[4])
        A(WO(3, 0))
        sal = ["s_add_u32 %s, %s, 1" % (s(sSTEP), s(sSTEP)), "s_add_u32 %s, %s, 8192" % (s(sH2L), s(sH2L))]
        sal += ["s_add_u32 %s, %s, 262144" % (s(r), s(r)) for r in (sKX, sVX)]
        sal += ["s_add_u32 %s, %s, %d" % (s(sPF), s(sPF), 8192 if w == 3 else 262144)]
        sal += ["s_add_u32 %s, %s, 3" % (s(sNEED), s(sSTEP)), "s_min_u32 %s, %s, %d" % (s(sNEED), s(sNEED), NSEG - 1)]
        tagd = lambda r: "v_bfi_b32 %s, 1, %s, %s" % (v(r), s(sPH), v(r))
        st1 = lambda a_: "buffer_store_dwordx2 %s, %s, %s, %s offen offset:%d%s ; S%d" % (
            v(AQ + 2 * a_, 2), v(VH1), WS, s(sH1S1 if a_ > 1 else sH1S0), 2048 * (a_ % 2), hs, a_)
        c0 = lambda a_: cvt(AQ + 2 * a_, ACCO[a_], ACCO[a_] + 1)
        c1 = lambda a_: cvt(AQ + 2 * a_ + 1, ACCO[a_] + 2, ACCO[a_] + 3)
        t0 = lambda a_: tagd(AQ + 2 * a_)
        t1 = lambda a_: tagd(AQ + 2 * a_ + 1)
        seq = ["s_waitcnt lgkmcnt(3)", WO(0, 1), gc2[5], sal[0], "s_waitcnt lgkmcnt(3)", WO(0, 2), gc2[6], sal[1],
               "s_waitcnt lgkmcnt(3)", WO(0, 3), gc2[7], sal[2], WO(1, 1), sal[3], sal[4], WO(1, 2), c0(0), c1(0),
               WO(1, 3), t0(0), t1(0), WO(2, 1), st1(0), WO(2, 2), c0(1), c1(1), WO(2, 3), t0(1), t1(1),
               WO(3, 1), st1(1), "s_waitcnt lgkmcnt(0)", WO(3, 2), c0(2), c1(2), WO(3, 3), t0(2), t1(2), sal[5], sal[6], st1(2),
               c0(3), c1(3), t0(3), t1(3), st1(3)]
        A("\n".join(seq))
        ins = {}
        ins.setdefault(o.get("mc0", 7) + o.get("mcs", 1) * w, []).extend([memc, "s_add_u32 %s, %s, 8192" % (s(sH2C), s(sH2C))])
        if w == 0:
            ins.setdefault(o.get("pg0", 22), []).extend([
                "s_mov_b64 exec, 3", "buffer_load_dword %s, %s, %s offen sc1 lds" % (v(T0 + 2), WS, s(sPROG)), "s_mov_b64 exec, -1"])
        if w:
            ins.setdefault(o.get("pf0", 12) + o.get("pfs", 4) * (w - 1), []).append(pf)
        for q in range(2):
            ins.setdefault(o.get("kx0", 36) + o.get("kxs", 1) * w + o.get("kxq", 16) * q, []).append(kvl[q])
        for q in range(2):
            ins.setdefault(o.get("vx", [[58, 61], [59, 62], [60, 63], [61, 64]][w])[q], []).append(kvl[2 + q])
        hint = o.get("hint", 0) and not slow
        if hint and w == 0:
            fp = o.get("fp", 66)
            ins.setdefault(fp - 1, []).extend(["s_sub_u32 %s, %s, 1" % (s(sT0), s(sPH)), "v_mov_b32 %s, %s" % (v(T0), s(sT0))])
            ins.setdefault(fp, []).extend(["s_mov_b64 exec, 1", "buffer_store_byte %s, off, %s, %s" % (v(T0), WS, s(sFS)), "s_mov_b64 exec, -1"])
        res, k = [], 0
        for l in A.lines:
            res.append(l)
            if "mfma" in l:
                res += ins.pop(k, [])
                k += 1
        assert not ins
        A.lines = res
        if self.dbg and o.get("lastonly"):
            A("; DUMP0")
            A("; DUMP1")
        elif self.dbg:
            A("; DUMP0")
            A("s_waitcnt lgkmcnt(0)")
            self.dump_stamps(A, w)
            A("; DUMP1")
        H, AR, TG, XS = MEM + 8, T1, T0, T0 + 1
        wa = Asm()
        self.window_a(wa)
        wa = wa.lines
        zr = ["v_mov_b64 %s, 0" % v(r, 2) for r in range(AQ, AQ + 24, 2)]
        zr = zr[4:] + zr[:4]
        n1, n2, n3, z1, z2 = o.get("n1", 6), o.get("n2", 6), o.get("n3", 12), o.get("z1", 0), o.get("z2", 12)
        two1, two2 = o.get("two1", 1), o.get("two2", 1)
        A("\n".join(zr[:z1] + wa[:n1]))
        if o.get("ack1") is not None:
            A("s_waitcnt vmcnt(%d)" % o["ack1"])
        nops(o.get("delay1", 0))
        hl = lambda r: "\n".join("buffer_load_dwordx4 %s, %s, %s, %s offen offset:%d sc1" % (
            v(r + 4 * it, 4), v(VL1), WS, s(sH1L), it * 1024) for it in range(2))
        A.label("c_pfd_" + tag)
        A(hl(H))
        A("\n".join(wa[n1:n2] + zr[z1:z2]))
        nops(o.get("gap1", 0))
        if two1:
            A(hl(H + 8))
        A("s_cmp_lg_u32 %s, 0\ns_cbranch_scc1 c_h1c1_%s" % (s(sPH), tag))
        C = Asm()
        for ph in (0, 1):
            Z = A if ph == 0 else B
            fn, fl_ = ("0xfe", "0xa8") if ph == 0 else ("0x80", "0x80")

            def red(Z, r):
                Z("s_waitcnt vmcnt(%d)" % (1 + 2 * two1))
                Z(mf32(AR, SELR, r))
                Z("s_waitcnt vmcnt(%d)" % (2 * two1))
                Z(mf32(AR, SELR, r + 4, AR))
                Z("v_bitop3_b32 %s, %s, %s, %s bitop3:%s" % (v(TG), v(r), v(r + 1), v(r + 2), fn))
                Z("v_bitop3_b32 %s, %s, %s, %s bitop3:%s" % (v(TG), v(TG), v(r + 3), v(r + 4), fn))
                Z("v_bitop3_b32 %s, %s, %s, %s bitop3:%s" % (v(TG), v(TG), v(r + 5), v(r + 6), fn))
                Z("v_bitop3_b32 %s, %s, %s, 1 bitop3:%s" % (v(TG), v(TG), v(r + 7), fl_))
                Z("v_cmp_ne_u32 vcc, %d, %s" % (ph, v(TG)))
                for ro in (4, 8):
                    for q in range(2):
                        Z("v_add_f32_dpp %s, %s, %s row_ror:%d row_mask:0xf bank_mask:0xf" % (v(AR + q), v(AR + q), v(AR + q), ro))
                Z(cvt(XS, AR, AR + 1))

            def again(r):
                C("s_mov_b64 exec, vcc")
                C(hl(r))
                C("s_mov_b64 exec, -1")
                if self.tot:
                    C("s_add_u32 s94, s94, 1")

            Z.label("c_h1c%d_%s" % (ph, tag))
            red(Z, H)
            Z("s_cbranch_vccnz c_h1b%d_%s" % (ph, tag))
            Z.label("c_h1ok%d_%s" % (ph, tag))
            Z("buffer_store_dword %s, %s, %s, %s offen%s" % (v(XS), v(VH2), WS, s(sH2S), hs))
            if ph:
                Z("s_branch c_pub_" + tag)
            C.label("c_h1b%d_%s" % (ph, tag))
            again(H)
            if two1:
                red(C, H + 8)
                C("s_cbranch_vccz c_h1ok%d_%s" % (ph, tag))
                again(H + 8)
            self.budget(C, "c_h1ok%d_%s" % (ph, tag))
            C("s_branch c_h1c%d_%s" % (ph, tag))
        B.extend(C)
        A.label("c_pub_" + tag)
        A("s_xor_b32 %s, %s, 1" % (s(sPH), s(sPH)))
        A("s_add_u32 %s, %s, 8192" % (s(sH2S), s(sH2S)))
        if not o.get("lateexit"):
            A("s_cmp_eq_u32 %s, %d\ns_cbranch_scc1 %s" % (s(sSTEP), NSEG - 1, fin))
        if w == 0:
            A("ds_read_b64 %s, %s offset:%d" % (v(T1, 2), v(VL1), RB + 4096 + 1024))
            A("s_waitcnt lgkmcnt(0)")
            A("v_min_u32 %s, %s, %s" % (v(T1), v(T1), v(T1 + 1)))
            A("v_readfirstlane_b32 %s, %s" % (s(sSEEN), v(T1)))
            A("s_cmp_lt_u32 %s, %s\ns_cbranch_scc1 c_prg_%s" % (s(sSEEN), s(sNEED), tag))
            A.label("c_prgok_" + tag)
            B.label("c_prg_" + tag)
            for _ in range(2):
                B("s_xor_b32 %s, %s, %d" % (s(sPROG), s(sPROG), 0x1800))
                self.progress(B)
            B("s_branch c_prgok_" + tag)
        A("\n".join(wa[n2:n3] + zr[z2:]))
        if o.get("lg2", 1):
            A("s_waitcnt lgkmcnt(0)")
        if o.get("ack2"):
            A("s_waitcnt vmcnt(0)")
        nops(o.get("delay2", 0))
        A(ldE)
        A(ldL + " ; first")
        A("\n".join(wa[n3:]))
        A("s_waitcnt lgkmcnt(0)")
        nops(o.get("gap2", 0))
        if two2:
            A(ldE)
            A(ldL)
        A("; DUMP")
        A("s_branch " + top)
        A.label(fin)
        A(memc)
        if o.get("hst"):
            A("s_memrealtime s[90:91]\ns_waitcnt lgkmcnt(0)")
            hst(A, [(100, 1, 5), (100, 0, 6), (86, 0, 7), (88, 1, 10), (88, 0, 11), (90, 0, 12)], T0)
        A("s_nop 7")
        A("s_mov_b64 exec, 1")
        if self.tot:
            A("s_memtime s[90:91]\ns_waitcnt lgkmcnt(0)")
            A("s_sub_u32 s90, s90, s92\ns_sub_u32 s92, s92, s96")
            A("v_mov_b32 %s, s90\nv_mov_b32 %s, s94\nv_mov_b32 %s, %s\nv_mov_b32 %s, %s" % (
                v(T0), v(T0 + 1), v(T0 + 2), "s95", v(T0 + 3), "s92"))
            A("s_lshl_b32 %s, %s, 6\ns_add_u32 %s, %s, %d" % (s(sT0), s(sH), s(sT0), s(sT0), STAMP + 16 * w))
            A("buffer_store_dwordx4 %s, off, %s, %s" % (v(T0, 4), WS, s(sT0)))
            if o.get("wst"):
                A("s_memrealtime s[90:91]\ns_waitcnt lgkmcnt(0)")
                A("v_mov_b32 %s, s88\nv_mov_b32 %s, s90" % (v(T1), v(T1 + 1)))
                A("s_lshl_b32 %s, %s, 5\ns_add_u32 %s, %s, %d" % (s(sT0), s(sH), s(sT0), s(sT0), STAMP + 0x80000 + 24))
                A("buffer_store_dwordx2 %s, off, %s, %s" % (v(T1, 2), WS, s(sT0)))
        A("s_waitcnt vmcnt(0)")
        if self.dbg:
            if o.get("lastonly"):
                A("s_mov_b64 exec, -1")
                self.dump_stamps(A, w)
                A("s_waitcnt vmcnt(0)")
            self.calib(A, 1)
        A("s_endpgm")
        if o.get("drop"):
            import re
            cut = A.lines.index("; DUMP")
            pats = [re.compile(p) for p in o["drop"]]
            keep = range(A.lines.index("; DUMP0"), A.lines.index("; DUMP1")) if self.dbg else range(0)
            A.lines = [l for k, l in enumerate(A.lines[:cut]) if k in keep or not any(p.search(l) for p in pats)] + A.lines[cut:]
        main = fix_hazards(A.lines)
        if self.dbg:
            main = self.add_stamps(main)
        ool = fix_hazards(B.lines)
        if self.dbg and o.get("at"):
            ool = self.add_stamps(ool + ["; DUMP"], False)
        return main + ["s_nop 7"] + ool

    def dump_stamps(self, A, w):
        A("s_lshl_b32 %s, %s, 5\ns_add_u32 %s, %s, %s\ns_lshl_b32 %s, %s, 8" % (
            s(sT0), s(sSTEP), s(sT0), s(sT0), s(sH), s(sT0), s(sT0)))
        A("s_add_u32 %s, %s, %d" % (s(sT0), s(sT0), STAMP + 4096 + 64 * w))
        R0 = AQ + 8
        for k in range(15):
            A("v_mov_b32 %s, %s" % (v(R0 + k), s(sST + 2 * k)))
        A("v_mov_b32 %s, %s" % (v(R0 + 15), s(sBUD)))
        A("s_mov_b64 exec, 1")
        for q in range(4):
            A("buffer_store_dwordx4 %s, off, %s, %s offset:%d" % (v(R0 + 4 * q, 4), WS, s(sT0), 16 * q))
        A("s_mov_b64 exec, -1")

    def softmax_tail(self, A, X, M, fill, first):
        EX, EB, AL, EM = X[1], X[2], X[3], T0
        VB = P[2] + 4
        fill = list(fill)
        f = lambda: A(fill.pop(0)) if fill else None
        dpp = lambda d, x, q: A("v_mov_b32_dpp %s, %s quad_perm:%s row_mask:0xf bank_mask:0xf" % (v(d), v(x), q))
        src = M if first else M + 2
        A(mf16(AL, HALF, EX))
        dpp(EB, EX, "[0,1,0,1]")
        dpp(EB + 1, EX + 1, "[0,1,0,1]")
        dpp(EB + 2, EX, "[2,3,2,3]")
        dpp(EB + 3, EX + 1, "[2,3,2,3]")
        A("v_exp_f32 %s, %s" % (v(M + 2), v(src)))
        A("v_exp_f32 %s, %s" % (v(M + 3), v(src + 1)))
        A(mf32(AQ, VXR, EB))
        A("v_add_f32_dpp %s, %s, %s quad_perm:[2,3,0,1] row_mask:0xf bank_mask:0xf" % (v(AL), v(AL), v(AL)))
        A(cvt(EM, M + 2, M + 3))
        A(mf32(AQ + 4, VXR + 4, EB))
        A(cvt(EM + 1, M + 2, M + 3))
        A("v_add_f32 %s, %s, %s" % (v(AL), v(AL), v(AL)))
        if first:
            A(cvt(VB, AV, AV + 1))
            A(cvt(VB + 1, AV + 2, AV + 3))
        A(mf16(AL, HALF, EM, AL))
        if first:
            A(cvt(VB + 2, AV + 4, AV + 5))
            A(cvt(VB + 3, AV + 6, AV + 7))
        A(mf16(AQ, VB, EM, AQ))
        f()
        f()
        f()
        A(mf16(AQ + 4, VB + 2, EM, AQ + 4))
        while fill:
            f()

    def normalize(self, A, w, AL, f0=(), f1=()):
        RR = T0 + 2
        pk = lambda r: A("v_pk_mul_f32 %s, %s, %s op_sel_hi:[1,0]" % (v(r, 2), v(r, 2), v(RR, 2)))
        A("v_rcp_f32 %s, %s" % (v(RR), v(AL)))
        A("\n".join(f0))
        pk(AQ)
        pk(AQ + 2)
        for q in range(2):
            A(cvt(OOP[0] + q, AQ + 2 * q, AQ + 2 * q + 1))
        pk(AQ + 4)
        pk(AQ + 6)
        for q in range(2, 4):
            A(cvt(OOP[0] + q, AQ + 2 * q, AQ + 2 * q + 1))
        A("ds_write_b128 %s, %s offset:%d" % (v(VL1), v(OOP[0], 4), RB + w * 1024))
        A("\n".join(f1))

    def fallback(self, B, w, tag, X, M):
        EX, AL = X[1], X[3]
        MX, TM = T0 + 2, T0 + 3
        B.label("c_slow_" + tag)
        vl = lambda so: "\n".join("buffer_load_dwordx4 %s, %s, %s, %s offen offset:%d sc1" % (
            v(VXR + 4 * q, 4), v(VL1), WS, s(so), 1024 * q) for q in range(2))
        B("s_waitcnt vmcnt(0)")
        B("s_sub_u32 %s, %s, 262144" % (s(sT0), s(sVX)))
        B(vl(sT0))
        B("s_waitcnt vmcnt(0)")
        B("s_nop 15")
        B("v_max3_f32 %s, %s, %s, %s" % (v(MX), v(X[0]), v(X[0] + 1), v(X[0] + 2)))
        B("v_max3_f32 %s, %s, %s, %s" % (v(MX), v(MX), v(X[0] + 3), v(M)))
        B("v_max_f32 %s, %s, %s" % (v(MX), v(MX), v(M + 1)))
        B("v_max_f32_dpp %s, %s, %s quad_perm:[2,3,0,1] row_mask:0xf bank_mask:0xf" % (v(MX), v(MX), v(MX)))
        for sw in ("v_permlane16_swap_b32", "v_permlane32_swap_b32"):
            B("v_mov_b32 %s, %s" % (v(TM), v(MX)))
            B("%s %s, %s" % (sw, v(MX), v(TM)))
            B("s_nop 1")
            B("v_max_f32 %s, %s, %s" % (v(MX), v(MX), v(TM)))
        for r in range(4):
            B("v_sub_f32 %s, %s, %s" % (v(EX + r), v(X[0] + r), v(MX)))
        for r in range(2):
            B("v_sub_f32 %s, %s, %s" % (v(M + 2 + r), v(M + r), v(MX)))
        for r in range(4):
            B("v_exp_f32 %s, %s" % (v(EX + r), v(EX + r)))
        B(cvt(EX, EX, EX + 1))
        B(cvt(EX + 1, EX + 2, EX + 3))
        self.softmax_tail(B, X, M, [], first=False)
        B("s_waitcnt lgkmcnt(0)")
        self.normalize(B, w, AL)
        for a_ in range(4):
            B("v_mov_b64 %s, 0\nv_mov_b64 %s, 0" % (v(ACCO[a_], 2), v(ACCO[a_] + 2, 2)))
        for a_ in range(2):
            B(WO(a_, 0))
        B(vl(sVX))
        B("s_nop 7")
        B("s_branch c_back_" + tag)

    def emit(self, A):
        for w in range(1, 4):
            A("s_cmp_eq_u32 %s, %d\ns_cbranch_scc1 c_pro_%d" % (s(sWAVE), w, w))
        for w in range(4):
            CUR[0] = w
            P_ = Asm()
            P_._uid = 100 + 200 * w
            P_.label("c_pro_%d" % w)
            self.prologue(P_, w)
            A.extend(fix_hazards(P_.lines))
        for slow in (0, 1):
            for w in range(4):
                A(".p2align 6")
                A.extend(self.loop(w, slow))
```

```python
from asmlib import *
from layout import *

WS, DBG = "s[4:7]", "s[28:31]"
sROLE, sWAVE, sBUD = 32, 33, 35
sSEG, sEND, sIN, sOUT, sFLG, sSC, sT0, sT1, sT2, sRS, sB0, sB1, sLW = range(36, 49)
sPOLL, sNEED, sX, sSET3, sQ, sKM2 = range(49, 55)
sMASK = 56
W0, W1 = 8, 12
SXI, SOUT = 16, 20
NP, NM, NXY, ND, NZ = 62, 64, 48, 16, 32
SEGB = 262144
PARTB = 12 * 32768
HSEG = 112 * 1024

L, N32, HI, VL16, VST, VT0, VT1, VT2, VT3, VPO = 255, 254, 253, 252, 251, 250, 249, 248, 247, 246
VA = 240


def cvt(d, x, y):
    return "v_cvt_pk_bf16_f32 %s, %s, %s" % (v(d), v(x), v(y))


WST = [False]


def rt(A, k):
    if WST[0]:
        A("s_memrealtime %s\ns_waitcnt lgkmcnt(0)" % s(70 + 2 * k, 2))


def budget(A, give_up):
    A("s_cmp_eq_u32 %s, 0\ns_cbranch_scc1 %s\ns_sub_u32 %s, %s, 1" % (s(sBUD), give_up, s(sBUD), s(sBUD)))


def wait_dbg(A, off, want, mask=None, sleep=4):
    top, done, skip = A.uid("w_wd"), A.uid("w_wdd"), A.uid("w_wds")
    A("s_cmp_lg_u32 %s, 0\ns_cbranch_scc1 %s" % (s(sWAVE), skip))
    A("s_mov_b64 exec, 1")
    A.label(top)
    A("buffer_load_dword %s, off, %s, 0 offset:%d sc1" % (v(VT0), DBG, off))
    A("s_waitcnt vmcnt(0)")
    A("v_readfirstlane_b32 %s, %s" % (s(sT1), v(VT0)))
    if mask:
        A("s_and_b32 %s, %s, 0x%x" % (s(sT1), s(sT1), mask))
    A("s_cmp_ge_u32 %s, %d\ns_cbranch_scc1 %s" % (s(sT1), want, done))
    budget(A, done)
    A("s_sleep %d\ns_branch %s" % (sleep, top))
    A.label(done)
    A("s_mov_b64 exec, -1")
    A.label(skip)
    A("s_barrier")


def poll(A, nl, vaddr, soff, need, sleep=2, vneed=False):
    top, done = A.uid("w_pl"), A.uid("w_pld")
    A("s_mov_b64 exec, 0x%x" % ((1 << nl) - 1))
    A.label(top)
    A("buffer_load_dword %s, %s, %s, %s offen sc1" % (v(VT0), v(vaddr), WS, s(soff)))
    A("s_waitcnt vmcnt(0)")
    A("v_cmp_gt_u32 vcc, %s, %s" % (v(need) if vneed else s(need), v(VT0)))
    A("s_cbranch_vccz %s" % done)
    budget(A, done)
    A("s_sleep %d\ns_branch %s" % (sleep, top))
    A.label(done)
    A("s_mov_b64 exec, -1")


def post_flag(A, val_sgpr_plus1):
    lab = A.uid("w_fl")
    A("s_waitcnt vmcnt(0)\ns_barrier")
    A("s_cmp_lg_u32 %s, 0\ns_cbranch_scc1 %s" % (s(sWAVE), lab))
    A("s_add_u32 %s, %s, 1" % (s(sT0), s(val_sgpr_plus1)))
    A("v_mov_b32 %s, %s" % (v(VT0), s(sT0)))
    A("s_mov_b64 exec, 1")
    A("buffer_store_dword %s, off, %s, %s sc1" % (v(VT0), WS, s(sFLG)))
    A("s_mov_b64 exec, -1")
    A.label(lab)


def count_up(A, off):
    lab = A.uid("w_cu")
    A("s_waitcnt vmcnt(0)\ns_barrier")
    A("s_cmp_lg_u32 %s, 0\ns_cbranch_scc1 %s" % (s(sWAVE), lab))
    A("v_mov_b32 %s, 1" % v(VT0))
    A("s_mov_b64 exec, 1")
    A("buffer_atomic_add %s, off, %s, 0 offset:%d" % (v(VT0), DBG, off))
    A("s_mov_b64 exec, -1")
    A.label(lab)


def poison_check(A, regs, ok, again, sleep):
    A("v_max3_u32 %s, %s, %s, %s" % (v(VT0), v(regs[0]), v(regs[1]), v(regs[2])))
    rest = regs[3:]
    while len(rest) > 1:
        A("v_max3_u32 %s, %s, %s, %s" % (v(VT0), v(VT0), v(rest[0]), v(rest[1])))
        rest = rest[2:]
    if rest:
        A("v_max_u32 %s, %s, %s" % (v(VT0), v(VT0), v(rest[0])))
    A("v_cmp_eq_u32 vcc, -1, %s" % v(VT0))
    A("s_cbranch_vccz " + ok)
    budget(A, ok)
    if sleep:
        A("s_sleep %d" % sleep)
    A("s_branch " + again)
    A.label(ok)


def srd(A, d, karg, size, sreg=None):
    if sreg is None:
        A("s_load_dwordx2 %s, s[0:1], %d" % (s(d, 2), karg))
    else:
        A("s_load_dwordx2 %s, s[0:1], %s" % (s(d, 2), s(sreg)))
    A("s_mov_b32 %s, 0x%x\ns_mov_b32 %s, 0x20000" % (s(d + 2), size, s(d + 3)))


def common(A):
    A("v_and_b32 %s, 63, v0" % v(L))
    A("v_and_b32 %s, 31, v0" % v(N32))
    A("v_lshrrev_b32 %s, 5, %s" % (v(HI), v(L)))
    A("v_lshlrev_b32 %s, 4, %s" % (v(VL16), v(L)))


def load_weights(A, perm, two_srd, nt=False):
    X, Y, Z, DV = VT0, VT1, VT2, VT3
    full = not two_srd
    rowb = 128 if full else 64
    A("s_lshl_b32 %s, %s, 15" % (s(sLW), s(sWAVE)))
    A("v_lshrrev_b32 %s, %d, %s" % (v(X), 3 if full else 2, v(L)))
    A("v_mul_lo_u32 %s, %s, %s" % (v(X), v(X), s(sRS)))
    if full:
        A("v_bfe_u32 %s, %s, 4, 1" % (v(Z), v(L)))
        A("v_lshlrev_b32 %s, 2, %s" % (v(Z), v(Z)))
        A("v_xor_b32 %s, %s, %s" % (v(Y), v(Z), v(L)))
        A("v_and_b32 %s, 7, %s" % (v(Y), v(Y)))
    else:
        A("v_and_b32 %s, 3, %s" % (v(Y), v(L)))
    A("v_lshl_add_u32 %s, %s, 4, %s" % (v(DV), v(Y), v(X)))
    A("s_lshl_b32 %s, %s, %d" % (s(sT2), s(sRS), 3 if full else 4))

    def dma(u):
        for half in range(2):
            for t in range(2):
                A("s_add_u32 m0, %s, %d" % (s(sLW), (u % 8) * 4096 + ((2 * half + t) * 1024 if full else t * 2048 + half * 1024)))
                A("buffer_load_dwordx4 %s, %s, %s offen %slds" % (
                    v(DV), s(W1 if (t and two_srd) else W0, 4), s(sB0), "nt " if nt else ""))
                if full or t:
                    A("s_add_u32 %s, %s, %s" % (s(sB0), s(sB0), s(sT2)))

    for u in range(8):
        dma(u)
    A("v_and_b32 %s, 3, %s" % (v(Y), v(L)))
    A("v_bfe_u32 %s, %s, 2, 2" % (v(X), v(L)))
    A("v_lshl_add_u32 %s, %s, %d, %s" % (v(X), v(HI), 2 if perm else 3, v(X)))
    A("v_lshlrev_b32 %s, %d, %s" % (v(X), 7 if full else 6, v(X)))
    A("v_bfe_u32 %s, %s, 4, 1" % (v(Z), v(L)))
    if perm == "col":
        A("v_lshl_add_u32 %s, %s, 4, %s" % (v(X), v(Z), v(X)))
        A("v_and_b32 %s, 1, %s" % (v(Z), v(L)))
        A("v_lshl_add_u32 %s, %s, 5, %s" % (v(X), v(Z), v(X)))
        A("v_bfe_u32 %s, %s, 1, 1" % (v(Z), v(L)))
        A("v_lshl_add_u32 %s, %s, 3, %s" % (v(X), v(Z), v(X)))
    else:
        A("v_lshl_add_u32 %s, %s, 5, %s" % (v(X), v(Z), v(X)))
        A("v_lshl_add_u32 %s, %s, 3, %s" % (v(X), v(Y), v(X)))
    TR = VA
    if full:
        A("v_bfe_u32 %s, %s, 3, 1" % (v(Z), v(L)))
        A("v_lshl_add_u32 %s, %s, 6, %s" % (v(X), v(Z), v(X)))
    A("v_add_u32 %s, %s, %s" % (v(TR), s(sLW), v(X)))
    A("v_xor_b32 %s, %d, %s" % (v(TR + 1), 64 if full else 2048, v(TR)))
    bs, qs = (8, 16) if perm else (16, 4)
    for u in range(16):
        A("s_waitcnt vmcnt(%d)" % (4 * min(7, 15 - u)))
        for b in range(2):
            for t in range(2):
                for q in range(2):
                    A("ds_read_b64_tr_b16 %s, %s offset:%d" % (
                        a(((2 * u + b) * 2 + t) * 4 + 2 * q, 2), v(TR + t), (u % 8) * 4096 + (bs * b + qs * q) * rowb))
        A("s_waitcnt lgkmcnt(0)")
        if u + 8 < 16:
            dma(u + 8)
    A("s_barrier")
    rt(A, 1)


def gemm(A, nk, acc, fr, swap, fill=(), base=0, sched=None):
    fill = list(fill)
    sched = dict(sched or {})
    q = []

    def emit(l):
        A(l)
        if l.startswith("ds_"):
            q.append(None)

    def rd(k):
        A("ds_read_b128 %s, %s offset:%d" % (v(fr + 4 * (k % 4), 4), v(VL16), base + k * 1024))
        q.append(k)

    for k in range(3):
        rd(k)
    for k in range(nk):
        n = len(q) - 1 - q.index(k)
        A("s_waitcnt lgkmcnt(%d)" % n)
        del q[:len(q) - n]
        for t in range(2):
            w_, x_ = a((2 * k + t) * 4, 4), v(fr + 4 * (k % 4), 4)
            c = "0" if k == 0 else v(acc + 16 * t, 16)
            A("v_mfma_f32_32x32x16_bf16 %s, %s, %s, %s" % (v(acc + 16 * t, 16), x_ if swap else w_, w_ if swap else x_, c))
            if t == 0 and k + 3 < nk:
                rd(k + 3)
            elif fill:
                emit(fill.pop(0))
            for l in sched.pop(2 * k + t, []):
                emit(l)
    assert not fill and not sched


def layernorm(A):
    XR, F, S0, S1 = 0, 32, 96, 98
    X, Y = VT1, VT2
    srd(A, SXI, 0, 2048 * 1024)
    A("v_lshrrev_b32 %s, 3, %s" % (v(X), v(L)))
    A("v_and_b32 %s, 7, %s" % (v(Y), v(L)))
    A("v_lshlrev_b32 %s, 10, %s" % (v(VT3), v(X)))
    A("v_lshl_add_u32 %s, %s, 4, %s" % (v(VT3), v(Y), v(VT3)))
    A("v_lshlrev_b32 %s, 4, %s" % (v(VST), v(X)))
    A("v_lshl_add_u32 %s, %s, 9, %s" % (v(VST), v(Y), v(VST)))
    A("s_lshl_b32 %s, %s, 15\ns_lshl_b32 %s, %s, 13" % (s(sT0), s(sSEG), s(sT1), s(sWAVE)))
    A("s_add_u32 %s, %s, %s" % (s(sT1), s(sT1), s(sT0)))
    A("s_waitcnt lgkmcnt(0)")
    for i in range(8):
        A("buffer_load_dwordx4 %s, %s, %s, %s offen offset:%d" % (v(XR + 4 * i, 4), v(VT3), s(SXI, 4), s(sT1), 128 * i))
    A("s_lshl_b32 %s, %s, 7\ns_add_u32 %s, %s, %s\ns_add_u32 %s, %s, %d" % (
        s(sT1), s(sWAVE), s(sT0), s(sT0), s(sT1), s(sT0), s(sT0), XN))
    A("s_mov_b32 %s, 0xffff0000" % s(sT2))

    def red8(r):
        for m in ("quad_perm:[1,0,3,2]", "quad_perm:[2,3,0,1]", "row_half_mirror"):
            A("v_add_f32_dpp %s, %s, %s %s row_mask:0xf bank_mask:0xf" % (v(r), v(r), v(r), m))

    def rnd(r):
        A(cvt(r, r, r))
        A("v_lshlrev_b32 %s, 16, %s" % (v(r), v(r)))

    for i in range(8):
        A("s_waitcnt vmcnt(%d)" % (7 - i))
        for j in range(4):
            r = 4 * i + j
            A("v_lshlrev_b32 %s, 16, %s" % (v(F + 2 * r), v(XR + r)))
            A("v_and_b32 %s, %s, %s" % (v(F + 2 * r + 1), s(sT2), v(XR + r)))
            if r == 0:
                A("v_mov_b64 %s, %s" % (v(S0, 2), v(F, 2)))
            else:
                A("v_pk_add_f32 %s, %s, %s" % (v(S0, 2), v(S0, 2), v(F + 2 * r, 2)))
    A("v_add_f32 %s, %s, %s" % (v(S0), v(S0), v(S0 + 1)))
    red8(S0)
    A("v_mul_f32 %s, 0xbb000000, %s" % (v(S0), v(S0)))
    A("v_mov_b32 %s, %s" % (v(S0 + 1), v(S0)))
    A("v_mov_b64 %s, 0" % v(S1, 2))
    for r in range(32):
        t = XR + 2 * (r % 8)
        A("v_pk_add_f32 %s, %s, %s" % (v(t, 2), v(F + 2 * r, 2), v(S0, 2)))
        A("v_pk_fma_f32 %s, %s, %s, %s" % (v(S1, 2), v(t, 2), v(t, 2), v(S1, 2)))
    A("v_add_f32 %s, %s, %s" % (v(S1), v(S1), v(S1 + 1)))
    red8(S1)
    A("v_mul_f32 %s, 0x3b000000, %s" % (v(S1), v(S1)))
    rnd(S1)
    A("v_add_f32 %s, 0x3727c5ac, %s" % (v(S1), v(S1)))
    rnd(S1)
    A("v_sqrt_f32 %s, %s" % (v(S1), v(S1)))
    rnd(S1)
    A("v_rcp_f32 %s, %s" % (v(S1), v(S1)))
    rnd(S0)
    A("v_mov_b32 %s, %s" % (v(S0 + 1), v(S0)))
    A("v_mov_b32 %s, %s" % (v(S1 + 1), v(S1)))
    for i in range(8):
        for j in range(4):
            r = 4 * i + j
            f = F + 2 * r
            A("v_pk_add_f32 %s, %s, %s" % (v(f, 2), v(f, 2), v(S0, 2)))
            A(cvt(f + 1, f, f + 1))
            A("v_lshlrev_b32 %s, 16, %s" % (v(f), v(f + 1)))
            A("v_and_b32 %s, %s, %s" % (v(f + 1), s(sT2), v(f + 1)))
            A("v_pk_mul_f32 %s, %s, %s" % (v(f, 2), v(f, 2), v(S1, 2)))
            A(cvt(XR + r, f, f + 1))
        A("buffer_store_dwordx4 %s, %s, %s, %s offen sc1" % (v(XR + 4 * i, 4), v(VST), WS, s(sT0)))
        A("s_add_u32 %s, %s, 4096" % (s(sT0), s(sT0)))
    count_up(A, DBG_LN)


XR, FR, ACC, OUT = 0, 32, 48, 80


def pack_store(A, acc, out, offs, order):
    for t in range(2):
        for p in range(2):
            o = out + 8 * t + 4 * p
            for k, q in enumerate(order[p]):
                A(cvt(o + 2 * k, acc + 16 * t + 4 * q, acc + 16 * t + 4 * q + 1))
                A(cvt(o + 2 * k + 1, acc + 16 * t + 4 * q + 2, acc + 16 * t + 4 * q + 3))
            A("buffer_store_dwordx4 %s, %s, %s, %s offen offset:%d sc1" % (v(o, 4), v(VST), WS, s(sOUT), offs[t][p]))


def in_loads(n):
    return ["buffer_load_dwordx4 %s, %s, %s, %s offen offset:%d sc1" % (
        v(XR + 4 * i, 4), v(VA + 1 + i // 4), WS, s(sIN), (i % 4) * 1024) for i in range(n)]


def in_addr(A, n):
    A("s_mul_i32 %s, %s, %d" % (s(sT0), s(sWAVE), n * 1024))
    A("v_add_u32 %s, %s, %s" % (v(VA + 1), s(sT0), v(VL16)))
    A("v_add_u32 %s, 4096, %s" % (v(VA + 2), v(VA + 1)))


def in_writes(A, n):
    for i in range(n):
        A("ds_write_b128 %s, %s offset:%d" % (v(VA + 1), v(XR + 4 * i, 4), i * 1024))
    A("s_waitcnt lgkmcnt(0)\ns_barrier")


def p_setup(A, kind, mem):
    G = sQ
    if kind == "gu":
        srd(A, W0, 64, 512 * 3584)
        srd(A, W1, 72, 512 * 3584)
        A("s_mov_b32 %s, 3584" % s(sRS))
        A("s_sub_u32 %s, %s, 48" % (s(G), s(G)))
        A("s_lshl2_add_u32 %s, %s, %s" % (s(sT0), s(G), s(sWAVE)))
        A("s_lshl_b32 %s, %s, 6\ns_mov_b32 %s, %s" % (s(sB0), s(sT0), s(sB1), s(sB0)))
        A("s_lshl_b32 %s, %s, 11\ns_add_u32 %s, %s, %d" % (s(sOUT), s(sT0), s(sOUT), s(sOUT), HB))
        A("v_mov_b32 %s, %s" % (v(VST), v(VL16)))
    else:
        A("s_lshr_b32 %s, %s, 4" % (s(sT0), s(G)))
        A("s_lshl_b32 %s, %s, 3\ns_add_u32 %s, %s, 16" % (s(sT1), s(sT0), s(sT1), s(sT1)))
        srd(A, W0, None, 512 * 8192, sreg=sT1)
        A("s_cmp_eq_u32 %s, 0" % s(sT0))
        A("s_mov_b32 %s, 0x%x" % (s(sSC), SB_BF << 16))
        A("s_cselect_b32 %s, 0x%x, %s" % (s(sSC), SA_BF << 16, s(sSC)))
        A("s_lshl_b32 %s, 0x%x, %s" % (s(sOUT), QX, s(sT0)))
        A("s_and_b32 %s, %s, 15" % (s(G), s(G)))
        A("s_lshl2_add_u32 %s, %s, %s" % (s(sT0), s(G), s(sWAVE)))
        A("s_lshl_b32 %s, %s, 7\ns_add_u32 %s, %s, 64" % (s(sB0), s(sT0), s(sB1), s(sB0)))
        A("s_lshl_b32 %s, %s, 12\ns_add_u32 %s, %s, %s" % (s(sT0), s(sT0), s(sOUT), s(sOUT), s(sT0)))
        if mem:
            A("s_add_u32 %s, %s, 64\ns_lshl_b32 %s, %s, 18\ns_add_u32 %s, %s, %s" % (
                s(sT0), s(sSEG), s(sT0), s(sT0), s(sOUT), s(sOUT), s(sT0)))
        A("s_mov_b32 %s, 8192" % s(sRS))
        A("v_and_b32 %s, 15, %s" % (v(VT0), v(L)))
        A("v_lshlrev_b32 %s, 4, %s" % (v(VST), v(VT0)))
        A("v_lshl_add_u32 %s, %s, 8, %s" % (v(VST), v(HI), v(VST)))
        A("v_bfe_u32 %s, %s, 4, 1" % (v(VT0), v(L)))
        A("v_lshl_add_u32 %s, %s, 10, %s" % (v(VST), v(VT0), v(VST)))
    A("s_waitcnt lgkmcnt(0)")


def p_epilogue(kind, acc, out):
    E = Asm()
    if kind == "gu":
        for p in range(2):
            for k, q in enumerate(((0, 2), (1, 3))[p]):
                for e in range(2):
                    g, u_ = acc + 4 * q + 2 * e, acc + 16 + 4 * q + 2 * e
                    E("v_max_f32 %s, 0, %s" % (v(g), v(g)))
                    E("v_max_f32 %s, 0, %s" % (v(g + 1), v(g + 1)))
                    for r in (g, u_):
                        E(cvt(r + 1, r, r + 1))
                        E("v_lshlrev_b32 %s, 16, %s" % (v(r), v(r + 1)))
                        E("v_and_b32 %s, 0xffff0000, %s" % (v(r + 1), v(r + 1)))
                    E("v_mul_f32 %s, %s, %s" % (v(g), v(g), v(u_)))
                    E("v_mul_f32 %s, %s, %s" % (v(g + 1), v(g + 1), v(u_ + 1)))
                    E(cvt(out + 4 * p + 2 * k + e, g, g + 1))
            E("buffer_store_dwordx4 %s, %s, %s, %s offen offset:%d sc1" % (v(out + 4 * p, 4), v(VST), WS, s(sOUT), 1024 * p))
    else:
        offs, order = ((0, 512), (2048, 2560)), ((0, 2), (1, 3))
        for t in range(2):
            for p in range(2):
                o_ = out + 8 * t + 4 * p
                for k, q in enumerate(order[p]):
                    r0 = acc + 16 * t + 4 * q
                    if kind == "qk":
                        for r in range(4):
                            E("v_mul_f32 %s, %s, %s" % (v(r0 + r), s(sSC), v(r0 + r)))
                    E(cvt(o_ + 2 * k, r0, r0 + 1))
                    E(cvt(o_ + 2 * k + 1, r0 + 2, r0 + 3))
                E("buffer_store_dwordx4 %s, %s, %s, %s offen offset:%d sc1" % (v(o_, 4), v(VST), WS, s(sOUT), offs[t][p]))
    return E.lines


def role_p(A, kind, o):
    tg = "p" + kind
    ACC2 = (48, 96)
    step = HSEG if kind == "gu" else SEGB
    nst = 2 if kind == "gu" else 4
    A.label("w_" + tg)
    A("s_lshl_b32 %s, %s, 7\ns_add_u32 %s, %s, %d" % (s(sFLG), s(sQ), s(sFLG), s(sFLG), FLAGS + F_P))
    A("s_mov_b32 %s, 0" % s(sSEG))
    if kind != "v" and o.get("lateq", 0):
        lab = A.uid("w_lq")
        if kind == "qk":
            A("s_cmp_ge_u32 %s, 16\ns_cbranch_scc1 %s" % (s(sQ), lab))
        wait_dbg(A, DBG_LN, 64, sleep=o.get("lsleep", 48))
        A.label(lab)
    p_setup(A, kind, False)
    load_weights(A, None, kind == "gu", nt=o.get("p_nt"))
    in_addr(A, 8)
    A("s_mov_b32 %s, %d" % (s(sIN), XN))
    A("s_mov_b32 %s, %s\ns_mov_b32 %s, %d" % (s(sX), s(sOUT), s(sOUT), DUMMY))
    wait_dbg(A, DBG_LN, 64)
    A("\n".join(in_loads(8)))
    wait_dbg(A, DBG_INIT, 1)
    A("s_waitcnt vmcnt(0)")
    in_writes(A, 8)
    A("s_add_u32 %s, %s, 32768" % (s(sIN), s(sIN)))
    A("\n".join(in_loads(8)))
    rt(A, 2)
    A.label("w_top_" + tg)
    for p in range(2):
        ep = p_epilogue(kind, ACC2[1 - p], OUT)
        sched = {}
        g = 2
        while ep:
            n = 3 if g % 2 == 0 else 4
            sched[g], ep = ep[:n], ep[n:]
            g += 1
        g = max(g, 30)
        sched[g] = ["s_waitcnt vmcnt(%d)" % nst, "s_mov_b32 %s, %s" % (s(sOUT), s(sX)),
                    "s_add_u32 %s, %s, %d" % (s(sX), s(sX), step), "s_add_u32 %s, %s, 32768" % (s(sIN), s(sIN))]
        for i in range(8):
            sched[g + 1 + i] = ["ds_write_b128 %s, %s offset:%d" % (v(VA + 1), v(XR + 4 * i, 4), (1 - p) * 32768 + i * 1024)]
        for i, l in enumerate(in_loads(8)):
            sched[g + 16 + i] = [l]
        gemm(A, 32, ACC2[p], FR, kind == "v", base=p * 32768, sched=sched)
        lab = A.uid("w_fl")
        A("s_waitcnt vmcnt(8) lgkmcnt(0)\ns_barrier")
        A("s_cmp_lg_u32 %s, 0\ns_cbranch_scc1 %s" % (s(sWAVE), lab))
        A("v_mov_b32 %s, %s" % (v(VT0), s(sSEG)))
        A("s_mov_b64 exec, 1")
        A("buffer_store_dword %s, off, %s, %s sc1" % (v(VT0), WS, s(sFLG)))
        A("s_mov_b64 exec, -1")
        A.label(lab)
        A("s_add_u32 %s, %s, 1" % (s(sSEG), s(sSEG)))
    A("s_cmp_lt_u32 %s, 64\ns_cbranch_scc1 w_top_%s" % (s(sSEG), tg))
    A("s_nop 7")
    A("\n".join(p_epilogue(kind, ACC2[1], OUT)))
    A("s_mov_b32 %s, 63" % s(sSEG))
    post_flag(A, sSEG)
    A("s_branch w_exit")


def role_m(A, kind, o):
    tg = "m" + kind
    A.label("w_" + tg)
    p_setup(A, kind, True)
    A("s_lshl2_add_u32 %s, %s, %s\ns_lshl_b32 %s, %s, 10" % (s(sT0), s(sQ), s(sWAVE), s(sT0), s(sT0)))
    A("s_lshl_b32 %s, %s, 16\ns_add_u32 %s, %s, %s\ns_add_u32 %s, %s, %d" % (
        s(sOUT), s(sSEG), s(sOUT), s(sOUT), s(sT0), s(sOUT), s(sOUT), KM if kind == "qk" else VM))
    load_weights(A, None, False)
    in_addr(A, 8)
    PZ = 16
    for r in range(4):
        A("v_mov_b32 %s, 0" % v(XR + r))
        A("v_mov_b32 %s, -1" % v(PZ + r))
    for i in range(8):
        A("ds_write_b128 %s, %s offset:%d" % (v(VA + 1), v(XR, 4), i * 1024))
    A("s_mov_b32 %s, %s" % (s(sX), s(sOUT)))
    pz = "buffer_store_dwordx4 %s, %s, %s, %s offen sc1\ns_add_u32 %s, %s, 131072" % (v(PZ, 4), v(VL16), WS, s(sX), s(sX), s(sX))
    for i in range(4):
        A(pz)
    A("v_lshlrev_b32 %s, 3, %s" % (v(VST), v(L)))
    sh = 5 if kind == "qk" else 4
    A("v_lshrrev_b32 %s, 4, %s" % (v(VT0), v(L)))
    A("v_lshlrev_b32 %s, 9, %s" % (v(VA + 3), v(VT0)))
    A("v_bfe_u32 %s, %s, 1, 1" % (v(VT0), v(L)))
    A("v_lshl_add_u32 %s, %s, 11, %s" % (v(VA + 3), v(VT0), v(VA + 3)))
    A("v_bfe_u32 %s, %s, 2, 2" % (v(VT0), v(L)))
    A("v_lshl_add_u32 %s, %s, %d, %s" % (v(VA + 3), v(VT0), sh + 1, v(VA + 3)))
    A("v_and_b32 %s, 1, %s" % (v(VT0), v(L)))
    A("v_lshl_add_u32 %s, %s, %d, %s" % (v(VA + 3), v(VT0), sh, v(VA + 3)))
    A("s_lshl_b32 %s, %s, 13" % (s(sT0), s(sWAVE)))
    A("v_add_u32 %s, %s, %s" % (v(VA + 3), s(sT0), v(VA + 3)))
    A("s_lshl_b32 %s, %s, 13\ns_lshl_b32 %s, %s, 11" % (s(sIN), s(sSEG), s(sT0), s(sWAVE)))
    A("s_add_u32 %s, %s, %s\ns_add_u32 %s, %s, %d" % (s(sIN), s(sIN), s(sT0), s(sIN), s(sIN), MEMC))
    count_up(A, DBG_POISON)
    wait_dbg(A, DBG_CHAIN_READY, 32, mask=0xffff)
    A("s_waitcnt lgkmcnt(0)")
    A.label("w_mem_" + tg)
    for i in range(2):
        A("buffer_load_dwordx4 %s, %s, %s, %s offen offset:%d sc1" % (v(XR + 4 * i, 4), v(VL16), WS, s(sIN), 1024 * i))
    A("s_waitcnt vmcnt(0)")
    poison_check(A, list(range(XR, XR + 8)), "w_memok_" + tg, "w_mem_" + tg, o.get("msleep", 1))
    rt(A, 4)
    for i in range(2):
        for sel in range(2):
            A("ds_write_b128 %s, %s offset:%d" % (v(VA + 3), v(XR + 4 * i, 4), 4096 * i + sel * (272 if kind == "qk" else 384)))
    A("s_add_u32 %s, %s, 16384" % (s(sIN), s(sIN)))
    A("s_waitcnt lgkmcnt(0)\ns_barrier")
    F8 = 96
    rd = lambda k: A("ds_read_b128 %s, %s offset:%d" % (v(F8 + 4 * (k % 8), 4), v(VL16), k * 1024))
    for k in range(6):
        rd(k)
    for k in range(32):
        A("s_waitcnt lgkmcnt(%d)" % min(5, 31 - k))
        for t in range(2):
            w_, x_ = a((2 * k + t) * 4, 4), v(F8 + 4 * (k % 8), 4)
            c = "0" if k == 0 else v(ACC + 4 * t, 4)
            A("v_mfma_f32_16x16x32_bf16 %s, %s, %s, %s" % ((v(ACC + 4 * t, 4),) + ((x_, w_) if kind == "v" else (w_, x_)) + (c,)))
            if t == 0 and k + 6 < 32:
                rd(k + 6)
    for t in range(2):
        r0 = ACC + 4 * t
        if kind == "qk":
            for r in range(4):
                A("v_mul_f32 %s, %s, %s" % (v(r0 + r), s(sSC), v(r0 + r)))
        A(cvt(OUT + 2 * t, r0, r0 + 1))
        A(cvt(OUT + 2 * t + 1, r0 + 2, r0 + 3))
        A("buffer_store_dwordx2 %s, %s, %s, %s offen offset:%d sc1" % (v(OUT + 2 * t, 2), v(VST), WS, s(sOUT), 512 * t))
    A(pz)
    A("s_barrier")
    A("s_add_u32 %s, %s, 2" % (s(sSEG), s(sSEG)))
    A("s_add_u32 %s, %s, %d" % (s(sOUT), s(sOUT), 131072))
    A("s_cmp_lt_u32 %s, 64\ns_cbranch_scc1 w_mem_%s" % (s(sSEG), tg))
    A("s_branch w_exit")


def part_setup(A, src_sgpr, ch_sgpr):
    A("s_lshl2_add_u32 %s, %s, %s" % (s(sT0), s(ch_sgpr), s(sWAVE)))
    A("s_lshl_b32 %s, %s, 7\ns_add_u32 %s, %s, %s\ns_add_u32 %s, %s, 64" % (
        s(sT1), s(sT0), s(sB0), s(sB0), s(sT1), s(sB1), s(sB0)))
    A("s_lshl_b32 %s, %s, 12\ns_lshl_b32 %s, %s, 15\ns_add_u32 %s, %s, %s" % (
        s(sOUT), s(sT0), s(sT1), s(src_sgpr), s(sOUT), s(sOUT), s(sT1)))
    A("s_mul_i32 %s, %s, %d\ns_add_u32 %s, %s, %s\ns_add_u32 %s, %s, %d" % (
        s(sT1), s(sSEG), PARTB, s(sOUT), s(sOUT), s(sT1), s(sOUT), s(sOUT), PART))
    A("s_mov_b32 %s, 1024" % s(sRS))
    A("v_mov_b32 %s, %s" % (v(VST), v(VL16)))


PART_OFFS, PART_ORD = ((0, 1024), (2048, 3072)), ((0, 1), (2, 3))


def role_d(A, o):
    A.label("w_d")
    J = sQ
    srd(A, W0, 80, 1792 * 1024)
    A("s_and_b32 %s, %s, 1" % (s(sSEG), s(J)))
    A("s_lshr_b32 %s, %s, 1" % (s(sT0), s(J)))
    A("s_lshl_b32 %s, %s, 3\ns_add_u32 %s, %s, %s" % (s(sFLG), s(sSEG), s(sFLG), s(sFLG), s(sT0)))
    A("s_lshl_b32 %s, %s, 7\ns_add_u32 %s, %s, %d" % (s(sFLG), s(sFLG), s(sFLG), s(sFLG), FLAGS + F_D))
    A("s_and_b32 %s, %s, 3\ns_lshr_b32 %s, %s, 3" % (s(sX), s(sT0), s(sSET3), s(J)))
    A("s_mul_i32 %s, %s, %d" % (s(sB0), s(sX), 448 * 1024))
    A("s_mul_i32 %s, %s, %d\ns_mul_i32 %s, %s, %d" % (s(sIN), s(sX), 28 * 1024, s(sT1), s(sSEG), HSEG))
    A("s_add_u32 %s, %s, %s\ns_add_u32 %s, %s, %d" % (s(sIN), s(sIN), s(sT1), s(sIN), s(sIN), HB))
    A("s_add_u32 %s, %s, 8" % (s(sX), s(sX)))
    part_setup(A, sX, sSET3)
    A("s_mov_b32 %s, %d" % (s(sPOLL), FLAGS + F_P + 48 * 128))
    A("v_lshlrev_b32 %s, 7, %s" % (v(VPO), v(L)))
    A("s_waitcnt lgkmcnt(0)")
    wait_dbg(A, DBG_INIT, 1)
    if o.get("latex", 0):
        wait_dbg(A, DBG_POISON, 96, sleep=o.get("lsleep", 48))
    load_weights(A, "col", False)
    in_addr(A, 7)
    A("s_add_u32 %s, %s, 1" % (s(sNEED), s(sSEG)))
    poll(A, 14, VPO, sPOLL, sNEED, sleep=16)
    A("\n".join(in_loads(7)))
    A("s_waitcnt vmcnt(0)")
    rt(A, 2)
    A.label("w_top_d")
    in_writes(A, 7)
    A("s_add_u32 %s, %s, %d" % (s(sIN), s(sIN), 2 * HSEG))
    A("s_add_u32 %s, %s, 3" % (s(sNEED), s(sSEG)))
    A("s_cmp_gt_u32 %s, 64\ns_cbranch_scc1 w_gemm_d" % s(sNEED))
    poll(A, 14, VPO, sPOLL, sNEED, sleep=8)
    A("\n".join(in_loads(7)))
    A.label("w_gemm_d")
    gemm(A, 28, ACC, FR, False)
    pack_store(A, ACC, OUT, PART_OFFS, PART_ORD)
    post_flag(A, sSEG)
    A("s_add_u32 %s, %s, 2" % (s(sSEG), s(sSEG)))
    A("s_add_u32 %s, %s, %d" % (s(sOUT), s(sOUT), 2 * PARTB))
    A("s_cmp_lt_u32 %s, 64\ns_cbranch_scc1 w_top_d" % s(sSEG))
    A("s_branch w_exit")


def mf16(d, a_, b_, c=None):
    return "v_mfma_f32_16x16x16_bf16 %s, %s, %s, %s" % (v(d, 4), v(a_, 2), v(b_, 2), "0" if c is None else v(c, 4))


def mf32(d, a_, b_, c=None):
    return "v_mfma_f32_16x16x32_bf16 %s, %s, %s, %s" % (v(d, 4), v(a_, 4), v(b_, 4), "0" if c is None else v(c, 4))


def role_xy(A, o):
    A.label("w_xy")
    J = sQ
    Q, K, V_, KM_, VM_ = 0, 32, 64, 96, 112
    S00, S01, S11, SM0, SM1 = 128, 132, 136, 140, 144
    O = 148
    acc, fr, out = 148, 180, 196
    M0, M1, L0, L1, TA, NEG, OW = 212, 213, 214, 215, 216, 218, 219
    P0, P1, PM0, PM1 = 220, 224, 222, 228
    srd(A, W0, 40, 4096 * 1024)
    A("s_mul_i32 %s, %s, 43\ns_lshr_b32 %s, %s, 7" % (s(sT0), s(J), s(sT0), s(sT0)))
    A("s_mul_i32 %s, %s, 3\ns_sub_u32 %s, %s, %s" % (s(sT1), s(sT0), s(sSEG), s(J), s(sT1)))
    A("s_and_b32 %s, %s, 1\ns_lshr_b32 %s, %s, 1" % (s(sSET3), s(sT0), s(sX), s(sT0)))
    A("s_lshl1_add_u32 %s, %s, %s\ns_lshl3_add_u32 %s, %s, %s" % (s(sFLG), s(sSEG), s(sSET3), s(sFLG), s(sFLG), s(sX)))
    A("s_lshl_b32 %s, %s, 7\ns_add_u32 %s, %s, %d" % (s(sFLG), s(sFLG), s(sFLG), s(sFLG), FLAGS + F_Y))
    A("s_lshl_b32 %s, %s, 19" % (s(sB0), s(sX)))
    part_setup(A, sX, sSET3)
    A("s_lshl2_add_u32 %s, %s, %s" % (s(sT0), s(sX), s(sWAVE)))
    A("s_lshl_b32 %s, %s, 13\ns_lshl_b32 %s, %s, 18\ns_add_u32 %s, %s, %s" % (
        s(sIN), s(sT0), s(sT1), s(sSEG), s(sIN), s(sIN), s(sT1)))
    A("s_add_u32 %s, %s, %d" % (s(sIN), s(sIN), QX))
    A("s_lshl_b32 %s, %s, 11\ns_lshl_b32 %s, %s, 16\ns_add_u32 %s, %s, %s\ns_add_u32 %s, %s, %d" % (
        s(sKM2), s(sT0), s(sT1), s(sSEG), s(sKM2), s(sKM2), s(sT1), s(sKM2), s(sKM2), KM))
    A("s_lshr_b32 %s, %s, 1\ns_lshl_b32 %s, %s, 7\ns_add_u32 %s, %s, %d" % (
        s(sPOLL), s(sT0), s(sPOLL), s(sPOLL), s(sPOLL), s(sPOLL), FLAGS + F_P))
    A("s_waitcnt lgkmcnt(0)")
    wait_dbg(A, DBG_INIT, 1, sleep=16)
    if o.get("latex", 0):
        wait_dbg(A, DBG_POISON, 96, sleep=o.get("lsleep", 48))
    load_weights(A, "col", False)
    A("v_lshrrev_b32 %s, 4, %s" % (v(VT1), v(L)))
    A("v_and_b32 %s, 15, %s" % (v(VT2), v(L)))
    A("v_lshlrev_b32 %s, 2, %s" % (v(VT3), v(VT1)))
    for r in range(4):
        A("v_cmp_le_u32 %s, %s, %s" % (s(sMASK + 2 * r, 2), v(VT3), v(VT2)))
        A("v_add_u32 %s, 1, %s" % (v(VT3), v(VT3)))
    A("s_mov_b32 %s, -1\ns_mov_b32 %s, 0" % (s(sMASK + 8), s(sMASK + 9)))
    A("v_mov_b32 %s, 0xff800000" % v(NEG))
    A("v_lshlrev_b32 %s, 9, %s" % (v(OW), v(VT1)))
    A("v_lshl_add_u32 %s, %s, 4, %s" % (v(OW), v(VT2), v(OW)))
    A("s_lshl_b32 %s, %s, 13" % (s(sT0), s(sWAVE)))
    A("v_add_u32 %s, %s, %s" % (v(OW), s(sT0), v(OW)))
    A("v_add_u32 %s, 4096, %s" % (v(VA + 1), v(VL16)))
    KA, VAD = 232, 233
    A("v_and_b32 %s, 7, %s" % (v(KA), v(L)))
    A("v_lshlrev_b32 %s, 4, %s" % (v(KA), v(KA)))
    A("v_lshl_add_u32 %s, %s, 7, %s" % (v(KA), v(VT1), v(KA)))
    A("v_lshlrev_b32 %s, 3, %s" % (v(VAD), v(N32)))
    A("v_lshlrev_b32 %s, 11, %s" % (v(VPO), v(L)))
    wait_dbg(A, DBG_POISON, 96, sleep=16)
    A("s_add_u32 %s, %s, 1" % (s(sNEED), s(sSEG)))
    poll(A, 3, VPO, sPOLL, sNEED, sleep=16)

    def qkv_loads():
        res = []
        for base, off in ((Q, 0), (K, KX - QX), (V_, VX - QX)):
            res.append("s_add_u32 %s, %s, %d" % (s(sT2), s(sIN), off))
            for i in range(8):
                res.append("buffer_load_dwordx4 %s, %s, %s, %s offen offset:%d sc1" % (
                    v(base + 4 * i, 4), v(VL16 if i < 4 else VA + 1), WS, s(sT2), (i % 4) * 1024))
        return res

    A("\n".join(qkv_loads()))
    A("s_waitcnt vmcnt(0)")
    rt(A, 2)
    A.label("w_top_xy")
    for w in range(4):
        A(mf32(S00, K + 8 * w, Q + 8 * w, S00 if w else None))
        A(mf32(S01, K + 8 * w, Q + 8 * w + 4, S01 if w else None))
        A(mf32(S11, K + 8 * w + 4, Q + 8 * w + 4, S11 if w else None))
    A("s_add_u32 %s, %s, 4\ns_min_u32 %s, %s, 64" % (s(sNEED), s(sSEG), s(sNEED), s(sNEED)))
    for r in range(4):
        for S in (S00, S11):
            A("v_cndmask_b32 %s, %s, %s, %s" % (v(S + r), v(NEG), v(S + r), s(sMASK + 2 * r, 2)))
    A("v_max3_f32 %s, %s, %s, %s" % (v(M0), v(S00), v(S00 + 1), v(S00 + 2)))
    A("v_max_f32 %s, %s, %s" % (v(M0), v(M0), v(S00 + 3)))
    A("v_max3_f32 %s, %s, %s, %s" % (v(M1), v(S01), v(S01 + 1), v(S01 + 2)))
    A("v_max3_f32 %s, %s, %s, %s" % (v(M1), v(M1), v(S01 + 3), v(S11)))
    A("v_max3_f32 %s, %s, %s, %s" % (v(M1), v(M1), v(S11 + 1), v(S11 + 2)))
    A("v_max_f32 %s, %s, %s" % (v(M1), v(M1), v(S11 + 3)))
    poll(A, 3, VPO, sPOLL, sNEED)
    rt(A, 3)
    A("s_add_u32 %s, %s, %d" % (s(sT2), s(sKM2), VM - KM))
    A("s_cmp_lt_u32 %s, 61\ns_cselect_b32 %s, %d, 0\ns_add_u32 %s, %s, %s" % (s(sSEG), s(sT0), 3 * SEGB, s(sIN), s(sIN), s(sT0)))
    A.label("w_km_xy")
    for w in range(4):
        A("buffer_load_dwordx4 %s, %s, %s, %s offen offset:%d sc1" % (v(KM_ + 4 * w, 4), v(KA), WS, s(sKM2), w * 512))
    for f in range(8):
        A("buffer_load_dwordx2 %s, %s, %s, %s offen offset:%d sc1" % (v(VM_ + 2 * f, 2), v(VAD), WS, s(sT2), f * 256))
    A("s_waitcnt vmcnt(0)")
    poison_check(A, list(range(KM_, KM_ + 32)), "w_kmok_xy", "w_km_xy", o.get("xsleep", 1))
    rt(A, 4)
    A("s_add_u32 %s, %s, %d" % (s(sKM2), s(sKM2), 3 * 65536))
    for w in range(4):
        A(mf32(SM0, KM_ + 4 * w, Q + 8 * w, SM0 if w else None))
        A(mf32(SM1, KM_ + 4 * w, Q + 8 * w + 4, SM1 if w else None))
    for S, M in ((SM0, M0), (SM1, M1)):
        for r in range(4):
            A("v_cndmask_b32 %s, %s, %s, %s" % (v(S + r), v(NEG), v(S + r), s(sMASK + 8, 2)))
        A("v_max3_f32 %s, %s, %s, %s" % (v(M), v(M), v(S), v(S + 1)))
        A("v_max3_f32 %s, %s, %s, %s" % (v(M), v(M), v(S + 2), v(S + 3)))

    def xred(op, r0, r1):
        for sw in ("v_permlane16_swap_b32", "v_permlane32_swap_b32"):
            A("v_mov_b32 %s, %s\nv_mov_b32 %s, %s" % (v(TA), v(r0), v(TA + 1), v(r1)))
            A("%s %s, %s\n%s %s, %s" % (sw, v(r0), v(TA), sw, v(r1), v(TA + 1)))
            A("s_nop 0")
            A("%s %s, %s, %s\n%s %s, %s, %s" % (op, v(r0), v(r0), v(TA), op, v(r1), v(r1), v(TA + 1)))

    xred("v_max_f32", M0, M1)
    grp = ((M0, L0, (S00, SM0)), (M1, L1, (S01, S11, SM1)))
    for M, Lr, SS in grp:
        for S in SS:
            for r in range(4):
                A("v_sub_f32 %s, %s, %s" % (v(S + r), v(S + r), v(M)))
            for r in range(4):
                A("v_exp_f32 %s, %s" % (v(S + r), v(S + r)))
    for M, Lr, SS in grp:
        regs = [S + r for S in SS for r in range(4)]
        A("v_add_f32 %s, %s, %s" % (v(Lr), v(regs[0]), v(regs[1])))
        for r in regs[2:]:
            A("v_add_f32 %s, %s, %s" % (v(Lr), v(Lr), v(r)))
    xred("v_add_f32", L0, L1)
    A("v_rcp_f32 %s, %s\nv_rcp_f32 %s, %s" % (v(L0), v(L0), v(L1), v(L1)))
    for Lr, S, P in ((L0, S00, P0), (L1, S01, P1), (L1, S11, P1 + 2), (L0, SM0, PM0), (L1, SM1, PM1)):
        for r in range(4):
            A("v_mul_f32 %s, %s, %s" % (v(S + r), v(S + r), v(Lr)))
        A(cvt(P, S, S + 1))
        A(cvt(P + 1, S + 2, S + 3))
    Or = lambda f, kt: O + 8 * f + 4 * kt
    for f in range(8):
        A(mf16(Or(f, 0), V_ + 4 * f, P0))
        A(mf32(Or(f, 1), V_ + 4 * f, P1))
    for f in range(8):
        A(mf16(Or(f, 0), VM_ + 2 * f, PM0, Or(f, 0)))
        A(mf16(Or(f, 1), VM_ + 2 * f, PM1, Or(f, 1)))
    for a_ in range(4):
        for kt in range(2):
            d = KM_ + 4 * ((2 * a_ + kt) % 4)
            for e in range(2):
                A(cvt(d + 2 * e, Or(2 * a_ + e, kt), Or(2 * a_ + e, kt) + 1))
                A(cvt(d + 2 * e + 1, Or(2 * a_ + e, kt) + 2, Or(2 * a_ + e, kt) + 3))
            if 2 * a_ + kt == 4:
                pass
            A("ds_write_b128 %s, %s offset:%d" % (v(OW), v(d, 4), a_ * 2048 + kt * 256))
            if (2 * a_ + kt) % 4 == 3:
                A("s_waitcnt lgkmcnt(0)")
    A("s_barrier")
    rt(A, 5)
    gemm(A, 32, acc, fr, False, fill=qkv_loads())
    rt(A, 6)
    pack_store(A, acc, out, PART_OFFS, PART_ORD)
    post_flag(A, sSEG)
    A("s_add_u32 %s, %s, 3" % (s(sSEG), s(sSEG)))
    A("s_add_u32 %s, %s, %d" % (s(sOUT), s(sOUT), 3 * PARTB))
    A("s_cmp_lt_u32 %s, 64\ns_cbranch_scc1 w_top_xy" % s(sSEG))
    A("s_branch w_exit")


def role_z(A, o):
    A.label("w_z")
    J = sQ
    PR, XV, FA, FB, T = 0, 48, 52, 60, 68
    srd(A, SXI, 0, 2048 * 1024)
    srd(A, SOUT, 88, 2048 * 1024)
    A("s_lshr_b32 %s, %s, 3\ns_and_b32 %s, %s, 7" % (s(sSEG), s(J), s(J), s(J)))
    A("s_lshl2_add_u32 %s, %s, %s" % (s(sT0), s(J), s(sWAVE)))
    A("s_lshl_b32 %s, %s, 10\ns_mul_i32 %s, %s, %d" % (s(sIN), s(sT0), s(sT1), s(sSEG), PARTB))
    A("s_add_u32 %s, %s, %s\ns_add_u32 %s, %s, %d" % (s(sIN), s(sIN), s(sT1), s(sIN), s(sIN), PART))
    A("s_lshr_b32 %s, %s, 1\ns_lshl_b32 %s, %s, 6" % (s(sT1), s(sT0), s(sT1), s(sT1)))
    A("s_and_b32 %s, %s, 1\ns_lshl4_add_u32 %s, %s, %s" % (s(sT0), s(sT0), s(sX), s(sT0), s(sT1)))
    A("s_lshl_b32 %s, %s, 15\ns_add_u32 %s, %s, %s" % (s(sT1), s(sSEG), s(sX), s(sX), s(sT1)))
    A("s_lshr_b32 %s, %s, 2" % (s(J), s(J)))
    A("s_and_b32 %s, %s, 1\ns_lshl1_add_u32 %s, %s, %s\ns_lshl_b32 %s, %s, 9" % (
        s(sT0), s(sSEG), s(sT0), s(sT0), s(J), s(sT0), s(sT0)))
    A("s_add_u32 %s, %s, %d" % (s(sPOLL), s(sT0), FLAGS + F_D))
    A("s_lshl_b32 %s, %s, 10\ns_add_u32 %s, %s, %d" % (s(sFLG), s(J), s(sFLG), s(sFLG), FLAGS + F_Y))
    A("s_cmp_eq_u32 %s, 3\ns_cselect_b32 %s, 0, %s" % (s(sSEG), s(sSET3), s(sSEG)))
    A("v_lshlrev_b32 %s, 7, %s" % (v(VPO), v(L)))
    A("v_lshlrev_b32 %s, 10, %s" % (v(VST), v(N32)))
    A("v_lshl_add_u32 %s, %s, 5, %s" % (v(VST), v(HI), v(VST)))
    A("s_mov_b32 %s, 0xffff0000" % s(sSC))
    A("s_waitcnt lgkmcnt(0)")
    for r in range(4):
        A("v_mov_b32 %s, -1" % v(r))
    for i in range(8):
        A("s_add_u32 %s, %s, %d" % (s(sT0), s(sIN), 60 * PARTB + 32768 * i))
        A("buffer_store_dwordx4 %s, %s, %s, %s offen sc1" % (v(0, 4), v(VL16), WS, s(sT0)))
    count_up(A, DBG_POISON)
    wait_dbg(A, DBG_INIT, 1, sleep=16)
    A.label("w_top_z")
    A("s_add_u32 %s, %s, 1" % (s(sNEED), s(sSEG)))
    A("buffer_load_dwordx4 %s, %s, %s, %s offen" % (v(XV, 4), v(VST), s(SXI, 4), s(sX)))
    poll(A, 4, VPO, sPOLL, sNEED, sleep=16)

    def loads(lo, hi):
        for i in range(lo, hi):
            A("s_add_u32 %s, %s, %d" % (s(sT0), s(sIN), 32768 * i))
            A("buffer_load_dwordx4 %s, %s, %s, %s offen sc1" % (v(PR + 4 * i, 4), v(VL16), WS, s(sT0)))

    def unpack(dst, src):
        A("v_lshlrev_b32 %s, 16, %s" % (v(dst), v(src)))
        A("v_and_b32 %s, %s, %s" % (v(dst + 1), s(sSC), v(src)))

    def summ(F, lo, hi):
        for i in range(lo, hi):
            A("s_waitcnt vmcnt(%d)" % (hi - 1 - i))
            for j in range(4):
                unpack(F + 2 * j if i == lo else T + 2 * j, PR + 4 * i + j)
            if i > lo:
                for j in range(4):
                    A("v_pk_add_f32 %s, %s, %s" % (v(F + 2 * j, 2), v(F + 2 * j, 2), v(T + 2 * j, 2)))

    def rnd(F):
        for j in range(4):
            A(cvt(F + 2 * j + 1, F + 2 * j, F + 2 * j + 1))
        for j in range(4):
            A("v_lshlrev_b32 %s, 16, %s" % (v(F + 2 * j), v(F + 2 * j + 1)))
            A("v_and_b32 %s, %s, %s" % (v(F + 2 * j + 1), s(sSC), v(F + 2 * j + 1)))

    loads(8, 12)
    summ(FB, 8, 12)
    rnd(FB)
    XF = PR + 32
    for j in range(4):
        unpack(XF + 2 * j, XV + j)
    A("s_lshl_b32 %s, %s, 11\ns_add_u32 %s, %s, %s" % (s(sT2), s(sSET3), s(sT2), s(sT2), s(sFLG)))
    A("s_cmp_ge_u32 %s, 60\ns_cbranch_scc1 w_last_z" % s(sSEG))
    poll(A, 8, VPO, sT2, sNEED, sleep=8)
    A.label("w_last_z")
    loads(0, 8)
    A("s_cmp_lt_u32 %s, 60\ns_cbranch_scc1 w_ok_z" % s(sSEG))
    A("s_waitcnt vmcnt(0)")
    poison_check(A, list(range(PR, PR + 32)), "w_ok_z", "w_last_z", o.get("zsleep", 1))
    rt(A, 4)
    summ(FA, 0, 8)
    rnd(FA)
    for j in range(4):
        A("v_pk_add_f32 %s, %s, %s" % (v(FA + 2 * j, 2), v(FA + 2 * j, 2), v(XF + 2 * j, 2)))
    rnd(FA)
    for j in range(4):
        A("v_pk_add_f32 %s, %s, %s" % (v(FA + 2 * j, 2), v(FA + 2 * j, 2), v(FB + 2 * j, 2)))
    for j in range(4):
        A(cvt(T + j, FA + 2 * j, FA + 2 * j + 1))
    A("buffer_store_dwordx4 %s, %s, %s, %s offen" % (v(T, 4), v(VST), s(SOUT, 4), s(sX)))
    A("s_add_u32 %s, %s, 4" % (s(sSEG), s(sSEG)))
    A("s_add_u32 %s, %s, %d\ns_add_u32 %s, %s, %d" % (s(sIN), s(sIN), 4 * PARTB, s(sX), s(sX), 4 * 32768))
    A("s_add_u32 %s, %s, 1\ns_cmp_eq_u32 %s, 3\ns_cselect_b32 %s, 0, %s" % (s(sSET3), s(sSET3), s(sSET3), s(sSET3), s(sSET3)))
    A("s_cmp_lt_u32 %s, 64\ns_cbranch_scc1 w_top_z" % s(sSEG))
    A("s_branch w_exit")


def role_init(A):
    A.label("w_init")
    A("v_lshlrev_b32 %s, 7, v0" % v(VT1))
    for r in range(4):
        A("v_mov_b32 %s, 0" % v(r + 4))
    for k in range(2):
        A("s_mov_b32 %s, %d" % (s(sT0), FLAGS + 32768 * k))
        A("buffer_store_dwordx4 %s, %s, %s, %s offen sc1" % (v(4, 4), v(VT1), WS, s(sT0)))
    A("s_waitcnt vmcnt(0)\ns_barrier")
    A("s_cmp_lg_u32 %s, 0\ns_cbranch_scc1 w_exit" % s(sWAVE))
    A("v_mov_b32 %s, 1\ns_mov_b64 exec, 1" % v(VT0))
    A("buffer_store_dword %s, off, %s, 0 offset:%d sc1" % (v(VT0), DBG, DBG_INIT))
    A("s_branch w_exit")


def dispatch(E, opts):
    E("s_branch w_start")


def emit(A0, opts):
    A = Asm()
    A._uid = 50000
    WST[0] = opts.get("wst", False)
    A.label("w_start")
    if WST[0]:
        for k in range(16):
            A("s_mov_b32 %s, 0" % s(70 + k))
    rt(A, 0)
    common(A)
    A("s_branch w_map")
    A.label("w_exit")
    A("s_waitcnt vmcnt(0)")
    if opts.get("hst"):
        A("s_memrealtime s[98:99]\ns_waitcnt lgkmcnt(0)")
        hst(A, [(100, 1, 2), (100, 0, 3), (98, 0, 4)], 0)
    if WST[0]:
        rt(A, 7)
        A("s_cmp_lg_u32 %s, 0\ns_cbranch_scc1 w_exit2" % s(sWAVE))
        for k in range(8):
            A("v_mov_b32 %s, %s" % (v(k), s(70 + 2 * k)))
        A("s_lshl_b32 %s, %s, 5\ns_add_u32 %s, %s, %d" % (s(sT0), s(sROLE), s(sT0), s(sT0), STAMP + 0x80000))
        A("s_mov_b64 exec, 1")
        A("buffer_store_dwordx4 v[0:3], off, %s, %s\nbuffer_store_dwordx4 v[4:7], off, %s, %s offset:16" % (WS, s(sT0), WS, s(sT0)))
        A("s_waitcnt vmcnt(0)")
        A.label("w_exit2")
    A("s_endpgm")
    A.label("w_map")
    PP, TT = sX, sSET3
    A("s_lshr_b32 %s, %s, 5\ns_sub_u32 %s, %s, 1\ns_and_b32 %s, %s, 31" % (s(PP), s(sROLE), s(PP), s(PP), s(TT), s(sROLE)))
    A("s_cmp_ge_u32 %s, 21\ns_cbranch_scc1 w_single" % s(TT))
    A("s_mul_i32 %s, %s, 6\ns_add_u32 %s, %s, %s\ns_sub_u32 %s, %s, 15" % (s(sSEG), s(PP), s(sSEG), s(sSEG), s(TT), s(sSEG), s(sSEG)))
    A("s_cmp_ge_u32 %s, 15\ns_cbranch_scc1 w_ln" % s(TT))
    A("s_mul_i32 %s, %s, 15\ns_add_u32 %s, %s, %s" % (s(sT0), s(PP), s(sT0), s(sT0), s(TT)))
    A("s_cmp_lt_u32 %s, 96\ns_cbranch_scc1 w_kv" % s(sT0))
    A("s_sub_u32 %s, %s, 54" % (s(sSEG), s(sT0)))
    A("s_cmp_lt_u32 %s, 102\ns_cbranch_scc1 w_ln" % s(sT0))
    A("s_mov_b32 %s, 31" % s(sQ))
    A("s_cmp_eq_u32 %s, 102\ns_cbranch_scc1 w_z" % s(sT0))
    A("s_cmp_eq_u32 %s, 103\ns_cbranch_scc1 w_init\ns_branch w_exit" % s(sT0))
    A.label("w_single")
    A("s_sub_u32 %s, %s, 21\ns_mul_i32 %s, %s, 7\ns_add_u32 %s, %s, %s" % (s(sQ), s(TT), s(sQ), s(sQ), s(sQ), s(sQ), s(PP)))
    A("s_cmp_lt_u32 %s, 16\ns_cbranch_scc1 w_pqk" % s(sQ))
    A("s_add_u32 %s, %s, 32" % (s(sQ), s(sQ)))
    A("s_cmp_lt_u32 %s, 62\ns_cbranch_scc1 w_pgu" % s(sQ))
    A("s_sub_u32 %s, %s, 14" % (s(sSEG), s(sQ)))
    A("s_sub_u32 %s, %s, 78\ns_cbranch_scc0 w_z" % (s(sQ), s(sQ)))
    A.label("w_ln")
    layernorm(A)
    rt(A, 3)
    A("s_mov_b32 %s, %s" % (s(sQ), s(sSEG)))
    A("s_cmp_lt_u32 %s, %d\ns_cbranch_scc1 w_xy" % (s(sQ), NXY))
    A("s_sub_u32 %s, %s, %d\ns_branch w_d" % (s(sQ), s(sQ), NXY))
    A.label("w_kv")
    A("s_mul_i32 %s, %s, 171\ns_lshr_b32 %s, %s, 9" % (s(sQ), s(sT0), s(sQ), s(sQ)))
    A("s_mul_i32 %s, %s, 3\ns_sub_u32 %s, %s, %s" % (s(sT1), s(sQ), s(sSEG), s(sT0), s(sT1)))
    A("s_add_u32 %s, %s, 16" % (s(sQ), s(sQ)))
    A("s_sub_u32 %s, %s, 1\ns_cbranch_scc0 w_ism" % (s(sSEG), s(sSEG)))
    A("s_cmp_lt_u32 %s, 32\ns_cbranch_scc1 w_pqk\ns_branch w_pv" % s(sQ))
    A.label("w_ism")
    A("s_cmp_lt_u32 %s, 32\ns_cbranch_scc1 w_mqk\ns_branch w_mv" % s(sQ))
    role_init(A)
    role_z(A, opts)
    for kind in ("gu", "qk", "v"):
        role_p(A, kind, opts)
    for kind in ("qk", "v"):
        role_m(A, kind, opts)
    role_d(A, opts)
    role_xy(A, opts)
    A0.extend(fix_hazards(A.lines))


def role_ranges():
    r = {k: [] for k in ("chain", "KV", "M0", "M1", "Q", "GU", "XY", "D", "Z")}
    for role in range(256):
        p, t = role // 32 - 1, role % 32
        if p < 0:
            k = "chain"
        elif t >= 21:
            j = (t - 21) * 7 + p
            k = "Q" if j < 16 else "GU" if j < 30 else "D" if j < 46 else "Z"
        elif t >= 15:
            k = "XY"
        else:
            j = 15 * p + t
            k = ("KV", "M0", "M1")[j % 3] if j < 96 else "XY" if j < 102 else "Z" if j == 102 else None
        if k:
            r[k].append(role)
    return list(r.items())
```

```python
from asmlib import *
from layout import *

WS = "s[4:7]"
SQ, SK, SV, SO, SM0 = 8, 12, 16, 20, 24
sROLE, sWAVE, sXCC, sBUD = 32, 33, 34, 35
sH, sSTEP, sH2L, sH1S0, sH1L, sKX, sVX, sH1S1, sPH = 36, 37, 38, 39, 40, 41, 42, 43, 44
sKM, sVM, sFLAG, _unused, sH2S, sPF, sPROG, sT0, sT1, sBIG = 45, 46, 47, 48, 49, 50, 51, 52, 53, 54
sC1S, sC1L, sH1L2, sNEED = 55, 56, 57, 58
sH2C, sSEEN, sFS = 48, 59, 55
sMX = 24
sFL = 8
sCM = 98
sST = 60

MEM = 112
AQ, AK, AV = 144, 152, 160
KXR, VXR = 168, 176
P = [184 + 8 * i for i in range(6)]
T0, T1 = 232, 236
IDX, VH2, SELQ, SELK, HALF, SELR = 240, 241, 242, 244, 246, 248
VL0, VL1, VSX, VH1 = 252, 253, 254, 255
VPFA, VPFD, VPRG = 248, 249, 250

LB = 147456
RA, RB = 0, 8192
WREG = 36864

STREAM_UNITS = [("Q", 0), ("K", 0), ("Q", 1), ("K", 5), ("K", 6), ("K", 7), ("O", 1, 1), ("O", 2, 1), ("O", 3, 1)]
ALL_UNITS = ([("Q", i) for i in range(8)] + [("K", i) for i in range(8)] + [("V", i) for i in range(8)]
             + [("O", u, p) for u in range(4) for p in range(2)])
RES_UNITS = [u for u in ALL_UNITS if u not in STREAM_UNITS]
assert len(RES_UNITS) == 23
RES_REG = {}
for i, u in enumerate(RES_UNITS):
    RES_REG[u] = 256 + 16 * i if i < 16 else 16 * (i - 16)
CUR = [0]


def slot_of(unit):
    if unit[0] == "K":
        return {0: 5, 5: 6, 6: 7, 7: 8}[unit[1]]
    if unit[0] == "Q":
        return 2 + unit[1]
    order = [u for u in ((gu - CUR[0]) % 4 for gu in range(4)) if u]
    return (4, 0, 1)[order.index(unit[1])]


STAGE = {
    ("Q", 0, 0): P[0], ("Q", 0, 1): P[1], ("K", 0, 0): P[2], ("K", 0, 1): P[3], ("Q", 1, 0): P[4], ("Q", 1, 1): P[5],
    ("K", 5, 0): P[0], ("K", 6, 0): P[1], ("K", 7, 0): P[2], ("K", 5, 1): P[3], ("K", 6, 1): P[4], ("K", 7, 1): P[5],
    ("O", 1, 1, 0): P[4], ("O", 1, 1, 1): P[5], ("O", 2, 1, 0): MEM, ("O", 2, 1, 1): MEM + 8,
    ("O", 3, 1, 0): MEM + 16, ("O", 3, 1, 1): MEM + 24,
}


def opreg(unit, t):
    if unit in RES_REG:
        return RES_REG[unit] + 8 * t
    return STAGE[unit + (t,)]


def stream_rd(unit, t):
    r = STAGE[unit + (t,)]
    off = slot_of(unit) * 4096 + t * 2048
    return ["ds_read_b128 %s, %s offset:%d" % (v(r, 4), v(VL0), off),
            "ds_read_b128 %s, %s offset:%d" % (v(r + 4, 4), v(VL0), off + 1024)]


def smf(acc, aop, breg):
    return "v_smfmac_f32_16x16x64_bf16 %s, %s, %s, %s" % (v(acc, 4), v(aop, 4), R(breg, 8), v(IDX))


def W(m, t, i):
    acc = {"Q": AQ, "K": AK, "V": AV}[m] + 4 * t
    return smf(acc, MEM + 4 * i, opreg((m, i), t))


ACCO = [AK, AK + 4, P[0] + 4, T1]
OOP = [AV, AV + 4, P[1], P[3] + 4]


def WO(a_, u):
    return smf(ACCO[a_], OOP[u], opreg(("O", u, a_ // 2), a_ % 2))


def mf16(d, a_, b_, c=None):
    return "v_mfma_f32_16x16x16_bf16 %s, %s, %s, %s" % (v(d, 4), v(a_, 2), v(b_, 2), "0" if c is None else v(c, 4))


def mf32(d, a_, b_, c=None):
    return "v_mfma_f32_16x16x32_bf16 %s, %s, %s, %s" % (v(d, 4), v(a_, 4), v(b_, 4), "0" if c is None else v(c, 4))


def cvt(d, x, y):
    return "v_cvt_pk_bf16_f32 %s, %s, %s" % (v(d), v(x), v(y))


def zero(r):
    return "v_mov_b32 %s, 0" % v(r)


class Chain:
    def __init__(self, opts):
        self.o = opts
        self.dbg = opts.get("stamps", False)
        self.tot = self.dbg or opts.get("total", False)

    def prologue(self, A, w):
        o = self.o
        nt = "nt " if o.get("w_nt", False) else ""
        A("s_mov_b32 %s, %s" % (s(sH), s(sROLE)))
        if o.get("hst"):
            A("s_memrealtime s[86:87]")
        A("s_load_dwordx4 s[8:11], s[0:1], 8")
        A("s_load_dwordx4 s[12:15], s[0:1], 24")
        A("s_load_dwordx2 s[20:21], s[0:1], 40")
        A("s_waitcnt lgkmcnt(0)")
        A("s_mov_b32 s24, s8\ns_mov_b32 s25, s9\ns_mov_b32 s26, 8192\ns_mov_b32 s27, 0x20000")
        A("s_mov_b32 s8, s10\ns_mov_b32 s9, s11\ns_mov_b32 s10, 0x400000\ns_mov_b32 s11, 0x20000")
        A("s_mov_b32 s16, s14\ns_mov_b32 s17, s15\ns_mov_b32 s18, 0x400000\ns_mov_b32 s19, 0x20000")
        A("s_mov_b32 s14, 0x400000\ns_mov_b32 s15, 0x20000")
        A("s_mov_b32 s22, 0x400000\ns_mov_b32 s23, 0x20000")
        L, N, G = T0, T0 + 1, T0 + 2
        X, Y, Z = T1, T1 + 1, T1 + 2
        DW, DO, TRW, TRO, M0A, INI, RDY, PRK, PRV, MCD = AK, AK + 2, AK + 4, AK + 8, AK + 10, AK + 11, AK + 12, AK + 13, AK + 14, AK + 15
        sWB, sOB = sKM, sVM
        vq = []

        def vm(line, tag=None):
            A(line)
            vq.append(tag)

        def vwait(tag):
            last = max(i for i, x in enumerate(vq) if x == tag)
            A("s_waitcnt vmcnt(%d)" % (len(vq) - 1 - last))
            del vq[:last + 1]

        self.vm = vm
        stages = ([("K", i) for i in range(8)] + [("V", i) for i in range(8)] + [("O", i, 0) for i in range(4)]
                  + [("Q", i) for i in range(8)] + [("O", i, 1) for i in range(4)])
        RING = 5

        def dma(n):
            st = stages[n]
            for q in range(4):
                A("s_mov_b32 m0, %d" % (w * WREG + (n % RING) * 4096 + q * 1024))
                if st[0] == "O":
                    off = st[1] * 32768 + 512 * st[2] + (8 * (w // 2) + 2 * (w % 2) + 16 * (q % 2) + 4 * (q // 2)) * 1024
                    srd, vo, sb = SO, DO, sOB
                else:
                    off = (64 * st[1] + 16 * (w // 2) + 2 * (w % 2) + 4 * q) * 8192
                    srd, vo, sb = {"Q": SQ, "K": SK, "V": SV}[st[0]], DW, sWB
                A("s_add_u32 %s, %s, %d" % (s(sT1), s(sb), off))
                vm("buffer_load_dwordx4 %s, %s, %s offen %slds" % (v(vo + q % 2), s(srd, 4), s(sT1), nt), n)

        A("v_and_b32 %s, 63, v0" % v(L))
        A("v_and_b32 %s, 15, %s" % (v(N), v(L)))
        A("v_lshrrev_b32 %s, 4, %s" % (v(G), v(L)))
        A("v_and_b32 %s, 1, %s" % (v(X), v(G)))
        A("v_lshrrev_b32 %s, 1, %s" % (v(Y), v(G)))
        A("v_lshl_add_u32 %s, %s, 5, %s" % (v(X), v(Y), v(X)))
        A("v_lshlrev_b32 %s, 13, %s" % (v(X), v(X)))
        A("v_lshlrev_b32 %s, 1, %s" % (v(Z), v(G)))
        A("v_xor_b32 %s, %s, %s" % (v(Z), v(Z), v(N)))
        A("v_lshl_add_u32 %s, %s, 4, %s" % (v(DW), v(Z), v(X)))
        A("v_xor_b32 %s, 128, %s" % (v(DW + 1), v(DW)))
        A("s_lshl_b32 %s, %s, 8\ns_lshl_b32 %s, %s, 17" % (s(sWB), s(sH), s(sOB), s(sH)))
        DEP = o.get("dep", 4)
        for n in range(DEP):
            dma(n)
        A("v_and_b32 %s, 31, %s" % (v(X), v(L)))
        A("v_lshlrev_b32 %s, 2, %s" % (v(Z), v(Y)))
        A("v_xor_b32 %s, %s, %s" % (v(X), v(X), v(Z)))
        A("v_lshlrev_b32 %s, 4, %s" % (v(X), v(X)))
        A("v_lshl_add_u32 %s, %s, 10, %s" % (v(DO), v(Y), v(X)))
        A("v_xor_b32 %s, 128, %s" % (v(DO + 1), v(DO)))
        A("s_mov_b32 %s, %d" % (s(sT0), w * WREG))
        A("v_lshrrev_b32 %s, 2, %s" % (v(X), v(L)))
        A("v_and_b32 %s, 7, %s" % (v(Z), v(X)))
        A("v_xor_b32 %s, %d, %s" % (v(Z), 2 * w, v(Z)))
        A("v_lshlrev_b32 %s, 8, %s" % (v(X), v(X)))
        A("v_lshl_add_u32 %s, %s, 5, %s" % (v(X), v(Z), v(X)))
        A("v_and_b32 %s, 3, %s" % (v(Y), v(L)))
        A("v_lshl_add_u32 %s, %s, 3, %s" % (v(TRW), v(Y), v(X)))
        A("v_xor_b32 %s, 32, %s" % (v(TRW + 1), v(TRW)))
        A("v_add_u32 %s, %d, %s" % (v(TRW + 2), 2 * WREG, v(TRW)))
        A("v_add_u32 %s, %d, %s" % (v(TRW + 3), 2 * WREG, v(TRW + 1)))
        A("v_bfe_u32 %s, %s, 2, 1" % (v(X), v(L)))
        A("v_lshl_add_u32 %s, %s, 1, %s" % (v(X), v(G), v(X)))
        A("v_and_b32 %s, 3, %s" % (v(Z), v(X)))
        A("v_xor_b32 %s, %d, %s" % (v(Z), w, v(Z)))
        A("v_lshlrev_b32 %s, 9, %s" % (v(X), v(X)))
        A("v_lshl_add_u32 %s, %s, 6, %s" % (v(X), v(Z), v(X)))
        A("v_lshl_add_u32 %s, %s, 4, %s" % (v(X), v(Y), v(X)))
        A("v_bfe_u32 %s, %s, 3, 1" % (v(Y), v(L)))
        A("v_lshl_add_u32 %s, %s, 3, %s" % (v(TRO), v(Y), v(X)))
        A("v_add_u32 %s, %d, %s" % (v(TRO + 1), 2 * WREG, v(TRO)))
        CB, N4 = T0 + 3, T1 + 3
        A("v_bfe_u32 %s, %s, 1, 1" % (v(CB), v(L)))
        A("v_bfe_u32 %s, %s, 2, 2" % (v(N4), v(L)))
        A("v_lshlrev_b32 %s, 4, %s" % (v(X), v(L)))
        A("v_add_u32 %s, %s, %s" % (v(VL0), s(sT0), v(X)))
        A("v_add_u32 %s, %d, %s" % (v(VL1), LB, v(X)))
        A("v_lshl_add_u32 %s, %s, 10, %s" % (v(VSX), v(CB), v(VL1)))
        A("v_lshrrev_b32 %s, 3, %s" % (v(X), v(L)))
        A("s_lshl1_add_u32 %s, %s, %s" % (s(sT1), s(sWAVE), s(sH)))
        A("v_lshl_add_u32 %s, %s, 2, %s" % (v(Y), v(X), s(sT1)))
        A("v_and_b32 %s, 31, %s" % (v(Y), v(Y)))
        A("v_lshlrev_b32 %s, 13, %s" % (v(X), v(X)))
        A("v_lshl_add_u32 %s, %s, 6, %s" % (v(X), v(Y), v(X)))
        A("v_and_b32 %s, 7, %s" % (v(Y), v(L)))
        A("v_lshl_add_u32 %s, %s, 3, %s" % (v(VH1), v(Y), v(X)))
        A("v_mul_u32_u24 %s, 0xAAAA, %s" % (v(IDX), v(CB)))
        A("v_add_u32 %s, 0x4444, %s" % (v(IDX), v(IDX)))
        A("v_mov_b32 %s, 0x3F003F00\nv_mov_b32 %s, 0x3F003F00" % (v(HALF), v(HALF + 1)))
        A("v_and_b32 %s, 1, %s" % (v(X), v(L)))
        A("v_lshlrev_b32 %s, 4, %s" % (v(X), v(X)))
        A("v_cmp_eq_u32 vcc, %s, %s" % (v(G), v(N4)))
        for base, val in ((SELQ, SA_BF), (SELK, SB_BF)):
            A("v_mov_b32 %s, 0x%x" % (v(Y), val))
            A("v_lshlrev_b32 %s, %s, %s" % (v(Y), v(X), v(Y)))
            A("v_cndmask_b32 %s, 0, %s, vcc" % (v(base), v(Y)))
            A("v_mov_b32 %s, %s" % (v(base + 1), v(base)))
        A("v_bfe_u32 %s, %s, 2, 1" % (v(X), v(L)))
        A("v_lshlrev_b32 %s, 4, %s" % (v(X), v(X)))
        A("v_mov_b32 %s, 0x3F80" % v(Y))
        A("v_lshlrev_b32 %s, %s, %s" % (v(Y), v(X), v(Y)))
        A("v_bfe_u32 %s, %s, 3, 1" % (v(Z), v(L)))
        A("v_and_b32 %s, 1, %s" % (v(X), v(L)))
        A("v_lshl_add_u32 %s, %s, 1, %s" % (v(Z), v(X), v(Z)))
        for rho in range(4):
            A("v_cmp_eq_u32 vcc, %d, %s" % (rho, v(Z)))
            A("v_cndmask_b32 %s, 0, %s, vcc" % (v(SELR + rho), v(Y)))
        A("v_lshlrev_b32 %s, 2, %s" % (v(X), v(X)))
        A("v_lshl_add_u32 %s, %s, 28, %s" % (v(X), v(N4), v(X)))
        A("v_lshl_add_u32 %s, %s, 8, %s" % (v(X), v(CB), v(X)))
        A("v_and_b32 %s, 16, %s" % (v(Y), v(L)))
        A("v_add_u32 %s, %s, %s" % (v(X), v(Y), v(X)))
        A("v_bfe_u32 %s, %s, 5, 1" % (v(Y), v(L)))
        A("v_lshl_add_u32 %s, %s, 3, %s" % (v(VH2), v(Y), v(X)))
        A("v_and_b32 %s, 1, %s" % (v(X), v(L)))
        A("v_lshl_add_u32 %s, %s, 1, %s" % (v(X), v(N4), v(X)))
        A("v_lshlrev_b32 %s, 10, %s" % (v(X), v(X)))
        A("v_lshl_add_u32 %s, %s, 6, %s" % (v(X), v(CB), v(X)))
        A("v_lshl_add_u32 %s, %s, 4, %s" % (v(M0A), v(G), v(X)))

        self.poison_init(A)
        A("s_mov_b32 %s, 0" % s(sSTEP))
        A("s_lshl_b32 %s, %s, 11" % (s(sT0), s(sWAVE)))
        A("s_add_u32 %s, %s, %d" % (s(sH2L), s(sT0), MEMB - LB))
        A("s_lshr_b32 %s, %s, 4\ns_lshl_b32 %s, %s, 10\ns_add_u32 %s, %s, %s" % (s(sT1), s(sH), s(sT1), s(sT1), s(sT1), s(sT1), s(sT0)))
        A("s_and_b32 %s, %s, 6\ns_lshl_b32 %s, %s, 5\ns_add_u32 %s, %s, %s" % (s(sPH), s(sH), s(sPH), s(sPH), s(sT1), s(sT1), s(sPH)))
        A("s_and_b32 %s, %s, 8\ns_lshl2_add_u32 %s, %s, %s" % (s(sPH), s(sH), s(sT1), s(sPH), s(sT1)))
        A("s_and_b32 %s, %s, 1\ns_lshl_b32 %s, %s, 9\ns_add_u32 %s, %s, %s" % (s(sPH), s(sH), s(sPH), s(sPH), s(sT1), s(sT1), s(sPH)))
        A("s_add_u32 %s, %s, %d" % (s(sH2S), s(sT1), MEMB + 8192))
        A("s_add_u32 %s, %s, %d" % (s(sH2C), s(sT1), MEMC))
        A("s_lshl_b32 %s, %s, 16" % (s(sH1S0), s(sWAVE)))
        A("s_add_u32 %s, %s, %d" % (s(sH1S0), s(sH1S0), INB1))
        A("s_add_u32 %s, %s, 4096" % (s(sH1S1), s(sH1S0)))
        A("s_lshl_b32 %s, %s, 13" % (s(sT1), s(sH)))
        A("s_add_u32 %s, %s, %s" % (s(sKX), s(sT1), s(sT0)))
        A("s_add_u32 %s, %s, %d" % (s(sH1L), s(sKX), INB1 - LB))
        A("s_mov_b32 %s, 0" % s(sPH))
        A("s_add_u32 %s, %s, %d" % (s(sKX), s(sKX), KX - LB))
        A("s_add_u32 %s, %s, %d" % (s(sVX), s(sKX), VX - KX))
        A("s_cmp_eq_u32 %s, 2" % s(sWAVE))
        A("s_cselect_b32 %s, %d, 0" % (s(sPF), VX - KX))
        A("s_add_u32 %s, %s, %d" % (s(sPF), s(sPF), KX + 262144 - 8 * LB))
        A("s_add_u32 %s, %s, %s" % (s(sPF), s(sPF), s(sT1)))
        A("s_cmp_eq_u32 %s, 3" % s(sWAVE))
        A("s_cselect_b32 %s, %d, %s" % (s(sPF), MEMB + 8192 - 8 * LB, s(sPF)))
        A("s_cmp_eq_u32 %s, 2" % s(sWAVE))
        A("s_cselect_b32 %s, %d, 0" % (s(sPROG), 16 * 128))
        A("s_add_u32 %s, %s, %d" % (s(sPROG), s(sPROG), FLAGS + F_P + 16 * 128))
        A("s_lshr_b32 %s, %s, 1\ns_lshl_b32 %s, %s, 7" % (s(sT1), s(sH), s(sT1), s(sT1)))
        A("s_add_u32 %s, %s, %s" % (s(sPROG), s(sPROG), s(sT1)))
        A("s_mov_b32 %s, 0x%x" % (s(sBIG), 0 if o.get("forcefb") else 0x5D800000))
        A("s_mov_b32 %s, 0xCCCCCCCC\ns_mov_b32 %s, 0xCCCCCCCC" % (s(sCM), s(sCM + 1)))
        for q in range(2):
            vm("buffer_load_dwordx4 %s, %s, %s, 0 offen offset:%d" % (v(MEM + 4 * q, 4), v(M0A), s(SM0, 4), 256 * w + 128 * q))
        A("v_and_b32 %s, 12, %s" % (v(X), v(VH2)))
        A("v_bfe_u32 %s, %s, 4, 1" % (v(Y), v(VH2)))
        A("v_lshl_add_u32 %s, %s, 10, %s" % (v(X), v(Y), v(X)))
        A("v_bfe_u32 %s, %s, 8, 1" % (v(Y), v(VH2)))
        A("v_lshl_add_u32 %s, %s, 4, %s" % (v(X), v(Y), v(X)))
        A("s_and_b32 %s, %s, 6\ns_lshl_b32 %s, %s, 10\ns_and_b32 %s, %s, 24\ns_lshl3_add_u32 %s, %s, %s" % (
            s(sT0), s(sH), s(sT0), s(sT0), s(sT1), s(sH), s(sT0), s(sT1), s(sT0)))
        A("s_and_b32 %s, %s, 1\ns_lshl_b32 %s, %s, 5\ns_add_u32 %s, %s, %s" % (
            s(sT1), s(sH), s(sT1), s(sT1), s(sT0), s(sT0), s(sT1)))
        vm("buffer_load_dword %s, %s, %s, %s offen offset:%d" % (v(MCD), v(X), s(SM0, 4), s(sT0), 256 * w))
        A("v_lshlrev_b32 %s, 3, %s" % (v(T0), v(VL1)))
        HOLD = {("Q", 0): P[0], ("Q", 1): P[4], ("O", 1, 1): P[2], ("O", 2, 1): MEM + 8, ("O", 3, 1): MEM + 24}
        held = []

        def put(u, src):
            for q in range(4):
                A("ds_write_b128 %s, %s offset:%d" % (v(VL0), v(src + 4 * q, 4), slot_of(u) * 4096 + q * 1024))

        pft = "buffer_load_dword %s, %s, %%s offen lds" % (v(T0), WS)
        for n, st in enumerate(stages):
            vwait(n)
            A("s_waitcnt lgkmcnt(0)\ns_barrier")
            if n + DEP < 32:
                dma(n + DEP)
            u = ("O", (st[1] - w) % 4, st[2]) if st[0] == "O" else (st[0], (st[1] - 2 * w) % 8)
            dst = RES_REG[u] if u in RES_REG else HOLD.get(u, P[0])
            for t_ in range(2):
                for r in range(4):
                    off = (r % 2) * WREG + (n % RING) * 4096
                    ad = (TRO + r // 2, off + 256 * t_) if st[0] == "O" else (TRW + t_ + 2 * (r // 2), off)
                    A("ds_read_b64_tr_b16 %s, %s offset:%d" % (R(dst + 8 * t_ + 2 * r, 2), v(ad[0]), ad[1]))
            if n >= 28:
                c = [x for x in held if slot_of(x) == (n - 1) % RING]
                put(c[0], HOLD[c[0]])
                held.remove(c[0])
            if u in HOLD:
                held.append(u)
            elif u not in RES_REG:
                A("s_waitcnt lgkmcnt(0)")
                put(u, dst)
            if n == 5 and w == 0:
                A("s_cmp_lg_u32 %s, 0\ns_cselect_b32 %s, 0x10001, 1" % (s(sXCC), s(sT0)))
                A("v_mov_b32 %s, %s" % (v(X), s(sT0)))
                A("s_mov_b64 exec, 1")
                vm("buffer_atomic_add %s, off, s[28:31], 0 offset:%d" % (v(X), DBG_CHAIN_READY))
                A("s_mov_b64 exec, -1")
            if n == 14:
                vm("buffer_load_dword %s, off, s[28:31], 0 offset:%d sc1" % (v(INI), DBG_INIT))
                vm("buffer_load_dword %s, off, s[28:31], 0 offset:%d sc1" % (v(RDY), DBG_CHAIN_READY))
            if n == 20:
                lab = A.uid("c_fl")
                A("v_readfirstlane_b32 %s, %s\nv_readfirstlane_b32 %s, %s" % (s(sT0), v(INI), s(sT1), v(RDY)))
                A("s_lshl_b32 %s, %s, 5\ns_and_b32 %s, %s, %s\ns_cbranch_scc1 %s" % (s(sT0), s(sT0), s(sT0), s(sT0), s(sT1), lab))
                self.wait_dbg(A, DBG_INIT, 1, mask=None)
                self.wait_dbg(A, DBG_CHAIN_READY, 32, mask=0xFFFF)
                A.label(lab)
                A("s_lshr_b32 %s, %s, 16" % (s(sXCC), s(sT1)))
            if n == 31 - DEP:
                A("s_add_u32 %s, %s, %d" % (s(sT0), s(sPROG), -2048 if w == 2 else 2048))
                vm("buffer_load_dword %s, off, %s, %s sc1" % (v(PRK), WS, s(sPROG)), "prg")
                vm("buffer_load_dword %s, off, %s, %s sc1" % (v(PRV), WS, s(sT0)), "prg")
                if w in (0, 3):
                    A("s_mov_b32 m0, %d" % (LB + RB + 4096))
                    A("s_lshl_b32 %s, %s, 13\ns_add_u32 %s, %s, %d" % (s(sT0), s(sH), s(sT0), s(sT0), INB1 - 8 * LB))
                    vm(pft % s(sT0 if w == 0 else sPF))
        A("s_mov_b32 m0, %d" % (LB + RB + 4096 + (0 if w else 1024)))
        vwait("prg")
        A("v_min_u32 %s, %s, %s" % (v(PRK), v(PRK), v(PRV)))
        A("s_mov_b32 %s, %d" % (s(sNEED), o.get("need0", 2)))
        A("v_readfirstlane_b32 %s, %s" % (s(sSEEN), v(PRK)))
        lab = A.uid("c_rdy")
        A("s_cmp_ge_u32 %s, %s\ns_cbranch_scc1 %s" % (s(sSEEN), s(sNEED), lab))
        A("s_xor_b32 %s, %s, %d" % (s(sPROG), s(sPROG), 0x1800))
        self.progress(A)
        A("s_xor_b32 %s, %s, %d" % (s(sPROG), s(sPROG), 0x1800))
        self.progress(A)
        A.label(lab)
        for r, sb in ((KXR, sKX),):
            A("buffer_load_dwordx4 %s, %s, %s, %s offen sc1" % (v(r, 4), v(VL1), WS, s(sb)))
            A("buffer_load_dwordx4 %s, %s, %s, %s offen offset:1024 sc1" % (v(r + 4, 4), v(VL1), WS, s(sb)))
        if w == 3:
            A("s_add_u32 %s, %s, 8192" % (s(sPF), s(sPF)))
        A("s_add_u32 %s, %s, 262144" % (s(sKX), s(sKX)))
        A("v_mov_b32 %s, %s" % (v(T0 + 1), v(MCD)))
        A("s_lshl_b32 %s, %s, 1\ns_lshl_b64 %s, 3, %s" % (s(sT0), s(sH), s(sMX, 2), s(sT0)))
        A("s_waitcnt lgkmcnt(0)\ns_barrier")
        put(held[0], HOLD[held[0]])
        A("s_waitcnt lgkmcnt(0)")
        A("\n".join(stream_rd(("K", 0), 0) + stream_rd(("K", 0), 1)))
        self.window_b(A)
        A("s_waitcnt lgkmcnt(0)")
        if self.dbg:
            self.calib(A, 0)
        if self.tot:
            A("s_memtime s[92:93]\ns_memrealtime s[88:89]\ns_waitcnt lgkmcnt(0)")
        if o.get("hst"):
            A("s_memrealtime s[88:89]\ns_waitcnt lgkmcnt(0)")
        A("s_cmp_lg_u32 %s, 0\ns_cbranch_scc1 c_entry_1_%d\ns_branch c_entry_0_%d" % (s(sXCC), w, w))

    def calib(self, A, slot):
        lab = A.uid("c_cal")
        A("s_memrealtime s[60:61]\ns_waitcnt lgkmcnt(0)")
        A.label(lab)
        A("s_memrealtime s[62:63]\ns_memtime s[64:65]\ns_waitcnt lgkmcnt(0)")
        A("s_cmp_eq_u32 s62, s60\ns_cbranch_scc1 %s" % lab)
        A("v_mov_b32 %s, s62\nv_mov_b32 %s, s64" % (v(T0), v(T0 + 1)))
        A("s_lshl_b32 %s, %s, 6\ns_lshl_b32 %s, %s, 4\ns_add_u32 %s, %s, %s\ns_add_u32 %s, %s, %d" % (
            s(sT0), s(sH), s(sT1), s(sWAVE), s(sT0), s(sT0), s(sT1), s(sT0), s(sT0), STAMP + 2048 + 8 * slot))
        A("buffer_store_dwordx2 %s, off, %s, %s" % (v(T0, 2), WS, s(sT0)))
        A("s_waitcnt vmcnt(0)")

    def poison_init(self, A):
        PO = KXR
        for i in range(4):
            A("v_mov_b32 %s, -1" % v(PO + i))
        A("s_lshl_b32 %s, %s, 13\ns_lshl_b32 %s, %s, 11" % (s(sT0), s(sH), s(sT1), s(sWAVE)))
        A("s_add_u32 %s, %s, %s\ns_add_u32 %s, %s, %d" % (s(sT0), s(sT0), s(sT1), s(sT0), s(sT0), INB1 - LB))
        for q in range(2):
            self.vm("buffer_store_dwordx4 %s, %s, %s, %s offen offset:%d sc1" % (v(PO, 4), v(VL1), WS, s(sT0), 1024 * q))
        X = PO + 4
        A("v_lshlrev_b32 %s, 13, %s" % (v(X), v(T0 + 2)))
        A("v_lshl_add_u32 %s, %s, 4, %s" % (v(X), v(T0 + 1), v(X)))
        A("s_lshl_b32 %s, %s, 8\ns_lshl_b32 %s, %s, 17" % (s(sT0), s(sH), s(sT1), s(sWAVE)))
        A("s_add_u32 %s, %s, %s\ns_add_u32 %s, %s, %d" % (s(sT0), s(sT0), s(sT1), s(sT0), s(sT0), MEMB))
        for q in range(4):
            self.vm("buffer_store_dwordx4 %s, %s, %s, %s offen sc1" % (v(PO, 4), v(X), WS, s(sT0)))
            A("s_add_u32 %s, %s, %d" % (s(sT1), s(sT0), MEMC - MEMB))
            self.vm("buffer_store_dwordx4 %s, %s, %s, %s offen sc1" % (v(PO, 4), v(X), WS, s(sT1)))
            A("s_add_u32 %s, %s, 32768" % (s(sT0), s(sT0)))

    def budget(self, A, give_up):
        A("s_cmp_eq_u32 %s, 0\ns_cbranch_scc1 %s\ns_sub_u32 %s, %s, 1" % (s(sBUD), give_up, s(sBUD), s(sBUD)))

    def wait_dbg(self, A, off, want, mask):
        top, done = A.uid("c_wd"), A.uid("c_wdd")
        A.label(top)
        A("buffer_load_dword %s, off, s[28:31], 0 offset:%d sc1" % (v(T1), off))
        A("s_waitcnt vmcnt(0)")
        A("v_readfirstlane_b32 %s, %s" % (s(sT1), v(T1)))
        if mask is None:
            A("s_cmp_ge_u32 %s, %d" % (s(sT1), want))
        else:
            A("s_and_b32 %s, %s, 0x%x\ns_cmp_ge_u32 %s, %d" % (s(sT0), s(sT1), mask, s(sT0), want))
        A("s_cbranch_scc1 %s" % done)
        self.budget(A, done)
        A("s_sleep 2\ns_branch %s" % top)
        A.label(done)

    def spin_ge(self, A, soff, want, vreg):
        top, done = A.uid("c_sp"), A.uid("c_spd")
        A.label(top)
        A("buffer_load_dword %s, off, %s, %s sc1" % (v(vreg), WS, s(soff)))
        A("s_waitcnt vmcnt(0)")
        A("v_readfirstlane_b32 %s, %s" % (s(sT1), v(vreg)))
        A("s_cmp_ge_u32 %s, %s" % (s(sT1), want))
        A("s_cbranch_scc1 %s" % done)
        self.budget(A, done)
        A("s_sleep 2\ns_branch %s" % top)
        A.label(done)

    def progress(self, A):
        top, done = A.uid("c_sp"), A.uid("c_spd")
        A.label(top)
        A("buffer_load_dword %s, off, %s, %s sc1" % (v(T1), WS, s(sPROG)))
        A("s_waitcnt vmcnt(0)")
        A("v_readfirstlane_b32 %s, %s" % (s(sSEEN), v(T1)))
        A("s_cmp_ge_u32 %s, %s" % (s(sSEEN), s(sNEED)))
        A("s_cbranch_scc1 %s" % done)
        self.budget(A, done)
        A("s_sleep 2\ns_branch %s" % top)
        A.label(done)

    def window_a(self, A):
        for u in STREAM_UNITS[:3]:
            for t in range(2):
                A("\n".join(stream_rd(u, t)))

    def window_b(self, A):
        for k, r in enumerate(range(AQ, AQ + 24, 2)):
            A("v_mov_b64 %s, 0" % v(r, 2))
            if k % 2 == 1:
                A("s_nop 0")

    def stamp(self, A, k):
        pass

    def add_stamps(self, lines, main=True):
        import re
        out, k = [], 0
        stride, phase = self.o.get("every", (20, 0))
        at = [re.compile(p) for p in self.o.get("at", [])]
        n = 0
        self.stamp_pos = []
        for l in lines:
            if l == "; DUMP":
                break
            if not at and not l.endswith(":") and not l.startswith(";"):
                if n % stride == phase and k < 15:
                    out.append("s_memtime s[%d:%d]" % (sST + 2 * k, sST + 2 * k + 1))
                    self.stamp_pos.append(n)
                    k += 1
                n += 1
            if not l.endswith(":") and not l.startswith(";"):
                if at and main and n == self.o.get("nth", -1):
                    out.append("s_memtime s[%d:%d]" % (sST + 28, sST + 29))
                n += 1 if at else 0
            out.append(l)
            for q, p in enumerate(at):
                if p.search(l):
                    out.append("s_memtime s[%d:%d]" % (sST + 2 * q, sST + 2 * q + 1))
        return out + lines[lines.index("; DUMP") + 1:]

    def loop(self, w, slow):
        CUR[0] = w
        A = Asm()
        B = Asm()
        A._uid = B._uid = 1000 * (1 + w + 4 * slow)
        B._uid += 500
        o = {k: (x[w] if isinstance(x, list) and k not in ("at", "more", "drop", "every") else x) for k, x in self.o.items()}
        hs = " sc1" if slow else ""
        ks = lambda i: (2 * w + i) % 8
        tag = "%d_%d" % (slow, w)
        top, entry, fin = "c_top_" + tag, "c_entry_" + tag, "c_fin_" + tag
        E, Lr = MEM, MEM + 4
        CK, FL = T1 + 2, T1 + 3

        ldE = "buffer_load_dwordx4 %s, %s, %s, %s offen sc1" % (v(E, 4), v(VL1), WS, s(sH2L))
        ldL = "buffer_load_dwordx4 %s, %s, %s, %s offen offset:1024 sc1" % (v(Lr, 4), v(VL1), WS, s(sH2L))

        def check(r, bad):
            A("v_max3_u32 %s, %s, %s, %s" % (v(CK), v(r), v(r + 1), v(r + 2)))
            A("v_max_u32 %s, %s, %s" % (v(CK), v(CK), v(r + 3)))
            A("v_cmp_eq_u32 vcc, -1, %s" % v(CK))
            A("s_cbranch_vccnz %s" % bad)

        def nops(n):
            while n > 0:
                A("s_nop %d" % (min(n, 16) - 1))
                n -= 16

        two2 = o.get("two2", 1)
        wr = ["ds_write_b128 %s, %s offset:%d" % (v(VL1), v(r, 4), RA + ks(q) * 1024) for q, r in enumerate((E, Lr))]
        A.label(top)
        A("s_waitcnt vmcnt(%d)" % (2 * two2 + 1))
        A("v_max3_u32 %s, %s, %s, %s" % (v(CK), v(E), v(E + 1), v(E + 2)))
        A("s_waitcnt vmcnt(%d)" % (2 * two2))
        A("v_max3_u32 %s, %s, %s, %s" % (v(CK), v(CK), v(E + 3), v(Lr)))
        A("v_max3_u32 %s, %s, %s, %s" % (v(CK), v(CK), v(Lr + 1), v(Lr + 2)))
        A("v_max_u32 %s, %s, %s" % (v(CK), v(CK), v(Lr + 3)))
        A("v_cmp_eq_u32 vcc, -1, %s" % v(CK))
        if o.get("specw", 1):
            A(wr[0])
        A("s_cbranch_vccnz c_bad_" + tag)
        B.label("c_bad_" + tag)
        if self.tot:
            B("s_add_u32 s95, s95, 1")
        B("s_mov_b64 exec, vcc")
        B(ldE)
        B(ldL)
        B("s_mov_b64 exec, -1")
        self.budget(B, "c_okL_" + tag)
        B("s_branch " + top)
        B.label(entry)
        B(wr[0])
        B("s_branch c_okL_" + tag)
        A.label("c_okL_" + tag)
        if o.get("lateexit"):
            A("s_cmp_eq_u32 %s, %d\ns_cbranch_scc1 %s" % (s(sSTEP), NSEG - 1, fin))
        if not o.get("specw", 1):
            A(wr[0])
        A(wr[1])
        A(W("Q", 0, 0))
        A(W("Q", 1, 0))
        A(W("K", 0, 0))
        A(W("K", 1, 0))
        A(W("Q", 0, 1))
        A(W("Q", 1, 1))
        A("s_waitcnt lgkmcnt(0)")
        A("s_barrier ; B1")
        rd = ["ds_read_b128 %s, %s offset:%d" % (v(MEM + 4 * i, 4), v(VL1), RA + ks(i) * 1024) for i in range(2, 8)]
        A(rd[0])
        A(rd[1])
        A(W("K", 0, 1))
        A(rd[2])
        A(rd[3])
        A(W("K", 1, 1))
        A(rd[4])
        A(rd[5])
        A(W("V", 0, 0))
        A(W("V", 1, 0))
        A(W("V", 0, 1))
        if w > 0:
            A("v_lshlrev_b32 %s, 3, %s" % (v(T0 + 2), v(VL1)))
        else:
            A("v_lshlrev_b32 %s, 7, %s" % (v(T0 + 2), v(VL0)))
        A(W("V", 1, 1))
        gb = []
        for t in range(2):
            for i in (5, 6, 7):
                gb += stream_rd(("K", i), t)
        fill = []
        memc = "buffer_store_dword %s, %s, %s, %s offen sc1" % (v(T0 + 1), v(VH2), WS, s(sH2C))
        pf = "buffer_load_dword %s, %s, %s offen lds" % (v(T0 + 2), WS, s(sPF))
        nokpf = (w == 1 and not o.get("kpf", 0)) or (w == 2 and not o.get("vpf", 0))
        QB, QOP, KOP, VB = T0, T1, P[2], P[2] + 4
        for i in range(2, 8):
            A("s_waitcnt lgkmcnt(5)")
            A(W("Q", 0, i))
            A(gb[i - 2])
            if fill:
                A(fill.pop(0))
        A(W("Q", 1, 2))
        A(gb[6])
        A(W("Q", 1, 3))
        A(gb[7])
        A(cvt(QB, AQ, AQ + 1))
        A(W("Q", 1, 4))
        A(gb[8])
        A(cvt(QB + 1, AQ + 2, AQ + 3))
        A(W("Q", 1, 5))
        A(gb[9])
        A(mf16(AQ, QB, SELQ))
        A(gb[10])
        A(W("Q", 1, 6))
        A(gb[11])
        A(W("Q", 1, 7))
        z64 = lambda r: "v_mov_b64 %s, 0" % v(r, 2)
        add = lambda d, x, y: "v_add_f32 %s, %s, %s" % (v(d), v(x), v(y))
        dpp = lambda d, x, q: "v_mov_b32_dpp %s, %s quad_perm:%s row_mask:0xf bank_mask:0xf" % (v(d), v(x), q)
        addx = lambda r: "v_add_f32_dpp %s, %s, %s quad_perm:[2,3,0,1] row_mask:0xf bank_mask:0xf" % (v(r), v(r), v(r))
        ex = lambda d, x: "v_exp_f32 %s, %s" % (v(d), v(x))
        X = [P[0], P[0] + 4, P[1], P[1] + 4]
        M = P[3]
        EX, EB, AL, EM = X[1], X[2], X[3], T0
        RR, TT = T0 + 2, T0 + 3
        sel = ["v_cndmask_b32 %s, %s, %s, %s" % (v(AQ + r), v(AQ + r), v(AQ + 4 + r), s(sCM, 2)) for r in range(4)]
        xr = ["ds_read_b128 %s, %s offset:%d" % (v(X[q], 4), v(VL1), RB + q * 1024) for q in range(4)]
        gc1 = stream_rd(("O", 1, 1), 0) + stream_rd(("O", 1, 1), 1)
        gc2 = stream_rd(("O", 2, 1), 0) + stream_rd(("O", 3, 1), 0) + stream_rd(("O", 2, 1), 1) + stream_rd(("O", 3, 1), 1)
        kvl = ["buffer_load_dwordx4 %s, %s, %s, %s offen offset:%d sc1" % (v(r + 4 * q, 4), v(VL1), WS, s(sb), 1024 * q)
               for r, sb in ((KXR, sKX), (VXR, sVX)) for q in range(2)]
        seq = [
            cvt(QOP, AQ, AQ + 1), W("K", 0, 2), cvt(QOP + 1, AQ + 2, AQ + 3), W("K", 0, 3),
            cvt(QB + 2, AQ + 4, AQ + 5), cvt(QB + 3, AQ + 6, AQ + 7), W("K", 0, 4), mf16(AQ + 4, QB + 2, SELQ),
            "s_waitcnt lgkmcnt(0)", W("K", 0, 5), W("K", 0, 6),
            cvt(QOP + 2, AQ + 4, AQ + 5), cvt(QOP + 3, AQ + 6, AQ + 7), W("K", 0, 7),
            "WAITK", mf32(AQ, KXR, QOP), mf32(AQ + 4, KXR + 4, QOP),
            cvt(QB, AK, AK + 1), cvt(QB + 1, AK + 2, AK + 3), W("K", 1, 2), mf16(AK, QB, SELK),
            sel[0], sel[1], sel[2], sel[3], W("K", 1, 3),
            "ds_write_b128 %s, %s offset:%d" % (v(VL1), v(AQ, 4), RB + w * 1024),
            W("K", 1, 4), cvt(KOP, AK, AK + 1), W("K", 1, 5), cvt(KOP + 1, AK + 2, AK + 3), W("K", 1, 6), W("K", 1, 7),
            W("V", 0, 2), W("V", 1, 2), cvt(QB + 2, AK + 4, AK + 5), cvt(QB + 3, AK + 6, AK + 7),
            "s_waitcnt lgkmcnt(0)", "s_barrier ; B2", mf16(AK + 4, QB + 2, SELK), xr[0], xr[1],
            W("V", 0, 3), xr[2], xr[3], W("V", 1, 3),
            cvt(KOP + 2, AK + 4, AK + 5), cvt(KOP + 3, AK + 6, AK + 7), W("V", 0, 4), mf32(AK, KOP, QOP),
            "s_waitcnt lgkmcnt(2)"] + [add(X[0] + r, X[0] + r, X[1] + r) for r in range(4)] + [
            W("V", 1, 4),
            "ds_write_b64 %s, %s offset:%d" % (v(VL1), v(AK, 2), RA + (w // 2) * 1024 + (w % 2) * 8),
            "s_waitcnt lgkmcnt(1)"] + [add(X[2] + r, X[2] + r, X[3] + r) for r in range(4)] + [
            W("V", 0, 5)] + [add(X[0] + r, X[0] + r, X[2] + r) for r in range(4)] + [
            ex(EX, X[0]), ex(EX + 1, X[0] + 1), W("V", 1, 5),
            "s_waitcnt lgkmcnt(0)", "s_barrier ; B3",
            "ds_read_b128 %s, %s offset:%d" % (v(M, 4), v(VSX), RA), W("V", 0, 6), gc1[0], gc1[1],
            ex(EX + 2, X[0] + 2), ex(EX + 3, X[0] + 3), cvt(EX, EX, EX + 1), cvt(EX + 1, EX + 2, EX + 3),
            W("V", 0, 7), gc1[2], gc1[3], dpp(EB, EX, "[0,1,0,1]"), mf16(AL, HALF, EX),
            dpp(EB + 1, EX + 1, "[0,1,0,1]"), dpp(EB + 2, EX, "[2,3,2,3]"), dpp(EB + 3, EX + 1, "[2,3,2,3]"),
            W("V", 1, 6), "s_waitcnt lgkmcnt(4)", add(M, M, M + 2), W("V", 1, 7), gc2[0], gc2[1], add(M + 1, M + 1, M + 3),
            "WAITV", mf32(AQ, VXR, EB), gc2[2], addx(M), addx(M + 1),
            mf32(AQ + 4, VXR + 4, EB), gc2[3], ex(M + 2, M), ex(M + 3, M + 1), addx(AL),
            cvt(EM, M + 2, M + 3), cvt(EM + 1, M + 2, M + 3), add(AL, AL, AL),
            cvt(VB, AV, AV + 1), cvt(VB + 1, AV + 2, AV + 3),
            mf16(AL, HALF, EM, AL), cvt(VB + 2, AV + 4, AV + 5), cvt(VB + 3, AV + 6, AV + 7), z64(ACCO[0]),
            mf16(AQ, VB, EM, AQ), z64(ACCO[0] + 2), z64(ACCO[1]), z64(ACCO[1] + 2),
            mf16(AQ + 4, VB + 2, EM, AQ + 4)]
        A("\n".join(seq))
        self.normalize(A, w, AL, [z64(ACCO[2]), z64(ACCO[2] + 2), "v_max_f32 %s, %s, %s" % (v(TT), v(AL), v(RR))], [])
        A(WO(0, 0))
        A("v_cmp_ngt_f32 vcc, %s, %s" % (s(sBIG), v(TT)))
        A(WO(1, 0))
        A(z64(ACCO[3]))
        A(z64(ACCO[3] + 2))
        A("s_cbranch_vccnz c_slow_" + tag)
        A.label("c_back_" + tag)
        self.fallback(B, w, tag, X, M)
        A("s_waitcnt lgkmcnt(0)")
        A("s_barrier ; B4")
        for u in range(1, 4):
            A("ds_read_b128 %s, %s offset:%d" % (v(OOP[u], 4), v(VL1), RB + ((w + u) % 4) * 1024))
        A(WO(2, 0))
        A(gc2[4])
        A(WO(3, 0))
        sal = ["s_add_u32 %s, %s, 1" % (s(sSTEP), s(sSTEP)), "s_add_u32 %s, %s, 8192" % (s(sH2L), s(sH2L))]
        sal += ["s_add_u32 %s, %s, 262144" % (s(r), s(r)) for r in (sKX, sVX)]
        sal += ["s_add_u32 %s, %s, %d" % (s(sPF), s(sPF), 8192 if w == 3 else 262144)]
        sal += ["s_add_u32 %s, %s, 2" % (s(sNEED), s(sSTEP)), "s_min_u32 %s, %s, %d" % (s(sNEED), s(sNEED), NSEG - 1)]
        tagd = lambda r: "v_bfi_b32 %s, 1, %s, %s" % (v(r), s(sPH), v(r))
        st1 = lambda a_: "buffer_store_dwordx2 %s, %s, %s, %s offen offset:%d%s ; S%d" % (
            v(AQ + 2 * a_, 2), v(VH1), WS, s(sH1S1 if a_ > 1 else sH1S0), 2048 * (a_ % 2), hs, a_)
        c0 = lambda a_: cvt(AQ + 2 * a_, ACCO[a_], ACCO[a_] + 1)
        c1 = lambda a_: cvt(AQ + 2 * a_ + 1, ACCO[a_] + 2, ACCO[a_] + 3)
        t0 = lambda a_: tagd(AQ + 2 * a_)
        t1 = lambda a_: tagd(AQ + 2 * a_ + 1)
        seq = ["s_waitcnt lgkmcnt(3)", WO(0, 1), gc2[5], sal[0], "s_waitcnt lgkmcnt(3)", WO(0, 2), gc2[6], sal[1],
               "s_waitcnt lgkmcnt(3)", WO(0, 3), gc2[7], sal[2], WO(1, 1), sal[3], sal[4], WO(1, 2), c0(0), c1(0), t0(0),
               WO(1, 3), st1(0), WO(2, 1), sal[5], sal[6], WO(2, 2), c0(1), c1(1), t0(1), WO(2, 3), st1(1),
               WO(3, 1), "s_waitcnt lgkmcnt(0)", WO(3, 2), c0(2), c1(2), t0(2), WO(3, 3), st1(2),
               c0(3), c1(3), t0(3), st1(3)]
        A("\n".join(seq))
        ins = {}
        ins.setdefault(o.get("mc0", 14) + o.get("mcs", 1) * w, []).extend([memc, "s_add_u32 %s, %s, 8192" % (s(sH2C), s(sH2C))])
        if w == 0:
            ins.setdefault(o.get("pg0", 22), []).extend([
                "s_mov_b64 exec, 3", "buffer_load_dword %s, %s, %s offen sc1 lds" % (v(T0 + 2), WS, s(sPROG)), "s_mov_b64 exec, -1"])
        if w and not nokpf:
            ins.setdefault(o.get("pf0", 14) + o.get("pfs", 4) * (w - 1), []).extend(
                ["s_mov_b64 exec, %s" % s(sMX, 2), pf, "s_mov_b64 exec, -1"] if w == 3 and o.get("pfm", 1) else [pf])
        for q in range(2):
            ins.setdefault(o.get("kx0", 36) + o.get("kxs", 1) * w + o.get("kxq", 4) * q, []).append(kvl[q])
        for q in range(2):
            ins.setdefault(o.get("vx0", 6) + o.get("vxs", 1) * w + o.get("vxq", 4) * q, []).append(kvl[2 + q])
        hint = o.get("hint", 0) and not slow
        if hint and w == 0:
            fp = o.get("fp", 66)
            ins.setdefault(fp - 1, []).extend(["s_sub_u32 %s, %s, 1" % (s(sT0), s(sPH)), "v_mov_b32 %s, %s" % (v(T0), s(sT0))])
            ins.setdefault(fp, []).extend(["s_mov_b64 exec, 1", "buffer_store_byte %s, off, %s, %s" % (v(T0), WS, s(sFS)), "s_mov_b64 exec, -1"])
        res, k = [], 0
        for l in A.lines:
            res.append(l)
            if "mfma" in l:
                res += ins.pop(k, [])
                k += 1
        assert not ins
        isvm = lambda l: l.startswith("buffer_") and "; cond" not in l
        k0 = res.index("c_okL_%s:" % tag)
        kk, kv = res.index("WAITK"), res.index("WAITV")
        res[kk] = "s_waitcnt vmcnt(%d)" % sum(map(isvm, res[k0:kk]))
        res[kv] = "s_waitcnt vmcnt(%d)" % sum(map(isvm, res[res.index(kvl[3]) + 1:kv]))
        A.lines = res
        if self.dbg and o.get("lastonly"):
            A("; DUMP0")
            A("; DUMP1")
        elif self.dbg:
            A("; DUMP0")
            A("s_waitcnt lgkmcnt(0)")
            self.dump_stamps(A, w)
            A("; DUMP1")
        H, AR, TG, XS = MEM + 8, T1, T0, T0 + 1
        wa = Asm()
        self.window_a(wa)
        wa = wa.lines
        zr = ["v_mov_b64 %s, 0" % v(r, 2) for r in range(AQ, AQ + 24, 2)]
        zr = zr[4:] + zr[:4]
        n1, n2, n3, z1, z2 = o.get("n1", 6), o.get("n2", 6), o.get("n3", 12), o.get("z1", 0), o.get("z2", 12)
        two1, two2 = o.get("two1", 1), o.get("two2", 1)
        A("\n".join(zr[:z1] + wa[:n1]))
        if o.get("lg1"):
            A("s_waitcnt lgkmcnt(0)")
        if o.get("sl1"):
            A("s_sleep %d" % o["sl1"])
        if o.get("ack1") is not None:
            A("s_waitcnt vmcnt(%d)" % o["ack1"])
        nops(o.get("delay1", 0))
        hl = lambda r: "\n".join("buffer_load_dwordx4 %s, %s, %s, %s offen offset:%d sc1" % (
            v(r + 4 * it, 4), v(VL1), WS, s(sH1L), it * 1024) for it in range(2))
        A.label("c_pfd_" + tag)
        A(hl(H))
        A("\n".join(wa[n1:n2] + zr[z1:z2]))
        nops(o.get("gap1", 0))
        if o.get("sg1") and two1:
            A("s_sleep %d" % o["sg1"])
        if two1:
            A(hl(H + 8))
        A("s_cmp_lg_u32 %s, 0\ns_cbranch_scc1 c_h1c1_%s" % (s(sPH), tag))
        C = Asm()
        for ph in (0, 1):
            Z = A if ph == 0 else B
            fn, fl_ = ("0xfe", "0xa8") if ph == 0 else ("0x80", "0x80")

            def red(Z, r):
                Z("s_waitcnt vmcnt(%d)" % (1 + 2 * two1))
                Z(mf32(AR, SELR, r))
                Z("s_waitcnt vmcnt(%d)" % (2 * two1))
                Z(mf32(AR, SELR, r + 4, AR))
                Z("v_bitop3_b32 %s, %s, %s, %s bitop3:%s" % (v(TG), v(r), v(r + 2), v(r + 4), fn))
                Z("v_bitop3_b32 %s, %s, %s, 1 bitop3:%s" % (v(TG), v(TG), v(r + 6), fl_))
                Z("v_cmp_ne_u32 vcc, %d, %s" % (ph, v(TG)))
                for ro in (4, 8):
                    for q in range(2):
                        Z("v_add_f32_dpp %s, %s, %s row_ror:%d row_mask:0xf bank_mask:0xf" % (v(AR + q), v(AR + q), v(AR + q), ro))
                Z(cvt(XS, AR, AR + 1))

            def again(r):
                C("s_mov_b64 exec, vcc")
                C(hl(r))
                C("s_mov_b64 exec, -1")
                if self.tot:
                    C("s_add_u32 s94, s94, 1")

            Z.label("c_h1c%d_%s" % (ph, tag))
            red(Z, H)
            Z("s_cbranch_vccnz c_h1b%d_%s" % (ph, tag))
            Z.label("c_h1ok%d_%s" % (ph, tag))
            Z("buffer_store_dword %s, %s, %s, %s offen%s" % (v(XS), v(VH2), WS, s(sH2S), hs))
            if ph:
                Z("s_branch c_pub_" + tag)
            C.label("c_h1b%d_%s" % (ph, tag))
            again(H)
            if two1:
                red(C, H + 8)
                C("s_cbranch_vccz c_h1ok%d_%s" % (ph, tag))
                again(H + 8)
            self.budget(C, "c_h1ok%d_%s" % (ph, tag))
            C("s_branch c_h1c%d_%s" % (ph, tag))
        B.extend(C)
        A.label("c_pub_" + tag)
        A("s_xor_b32 %s, %s, 1" % (s(sPH), s(sPH)))
        A("s_add_u32 %s, %s, 8192" % (s(sH2S), s(sH2S)))
        if not o.get("lateexit"):
            A("s_cmp_eq_u32 %s, %d\ns_cbranch_scc1 %s" % (s(sSTEP), NSEG - 1, fin))
        if w == 0:
            A("ds_read_b64 %s, %s offset:%d" % (v(T1, 2), v(VL1), RB + 4096 + 1024))
            A("s_waitcnt lgkmcnt(0)")
            A("v_min_u32 %s, %s, %s" % (v(T1), v(T1), v(T1 + 1)))
            A("v_readfirstlane_b32 %s, %s" % (s(sSEEN), v(T1)))
            A("s_cmp_lt_u32 %s, %s\ns_cbranch_scc1 c_prg_%s" % (s(sSEEN), s(sNEED), tag))
            A.label("c_prgok_" + tag)
            B.label("c_prg_" + tag)
            for _ in range(2):
                B("s_xor_b32 %s, %s, %d" % (s(sPROG), s(sPROG), 0x1800))
                self.progress(B)
            B("s_branch c_prgok_" + tag)
        A("\n".join(wa[n2:n3] + zr[z2:]))
        if o.get("lg2", 1):
            A("s_waitcnt lgkmcnt(0)")
        if o.get("ack2"):
            A("s_waitcnt vmcnt(0)")
        nops(o.get("delay2", 0))
        if o.get("sl2"):
            A("s_sleep %d" % o["sl2"])
        A(ldE)
        A(ldL + " ; first")
        A("\n".join(wa[n3:]))
        A("s_waitcnt lgkmcnt(0)")
        nops(o.get("gap2", 0))
        if o.get("sg2"):
            A("s_sleep %d" % o["sg2"])
        if two2:
            A(ldE)
            A(ldL)
        A("; DUMP")
        A("s_branch " + top)
        A.label(fin)
        A(memc)
        if o.get("hst"):
            A("s_memrealtime s[90:91]\ns_waitcnt lgkmcnt(0)")
            hst(A, [(100, 1, 5), (100, 0, 6), (86, 0, 7), (88, 1, 10), (88, 0, 11), (90, 0, 12)], T0)
        A("s_nop 7")
        A("s_mov_b64 exec, 1")
        if self.tot:
            A("s_memtime s[90:91]\ns_waitcnt lgkmcnt(0)")
            A("s_sub_u32 s90, s90, s92\ns_sub_u32 s92, s92, s96")
            A("v_mov_b32 %s, s90\nv_mov_b32 %s, s94\nv_mov_b32 %s, %s\nv_mov_b32 %s, %s" % (
                v(T0), v(T0 + 1), v(T0 + 2), "s95", v(T0 + 3), "s92"))
            A("s_lshl_b32 %s, %s, 6\ns_add_u32 %s, %s, %d" % (s(sT0), s(sH), s(sT0), s(sT0), STAMP + 16 * w))
            A("buffer_store_dwordx4 %s, off, %s, %s" % (v(T0, 4), WS, s(sT0)))
            if o.get("wst"):
                A("s_memrealtime s[90:91]\ns_waitcnt lgkmcnt(0)")
                A("v_mov_b32 %s, s88\nv_mov_b32 %s, s90" % (v(T1), v(T1 + 1)))
                A("s_lshl_b32 %s, %s, 5\ns_add_u32 %s, %s, %d" % (s(sT0), s(sH), s(sT0), s(sT0), STAMP + 0x80000 + 24))
                A("buffer_store_dwordx2 %s, off, %s, %s" % (v(T1, 2), WS, s(sT0)))
        A("s_waitcnt vmcnt(0)")
        if self.dbg:
            if o.get("lastonly"):
                A("s_mov_b64 exec, -1")
                self.dump_stamps(A, w)
                A("s_waitcnt vmcnt(0)")
            self.calib(A, 1)
        A("s_endpgm")
        if o.get("drop"):
            import re
            cut = A.lines.index("; DUMP")
            pats = [re.compile(p) for p in o["drop"]]
            keep = range(A.lines.index("; DUMP0"), A.lines.index("; DUMP1")) if self.dbg else range(0)
            A.lines = [l for k, l in enumerate(A.lines[:cut]) if k in keep or not any(p.search(l) for p in pats)] + A.lines[cut:]
        main = fix_hazards(A.lines)
        if self.dbg:
            main = self.add_stamps(main)
        ool = fix_hazards(B.lines)
        if self.dbg and o.get("at"):
            ool = self.add_stamps(ool + ["; DUMP"], False)
        return main + ["s_nop 7"] + ool

    def dump_stamps(self, A, w):
        A("s_lshl_b32 %s, %s, 5\ns_add_u32 %s, %s, %s\ns_lshl_b32 %s, %s, 8" % (
            s(sT0), s(sSTEP), s(sT0), s(sT0), s(sH), s(sT0), s(sT0)))
        A("s_add_u32 %s, %s, %d" % (s(sT0), s(sT0), STAMP + 4096 + 64 * w))
        R0 = AQ + 8
        for k in range(15):
            A("v_mov_b32 %s, %s" % (v(R0 + k), s(sST + 2 * k)))
        A("v_mov_b32 %s, %s" % (v(R0 + 15), s(sBUD)))
        A("s_mov_b64 exec, 1")
        for q in range(4):
            A("buffer_store_dwordx4 %s, off, %s, %s offset:%d" % (v(R0 + 4 * q, 4), WS, s(sT0), 16 * q))
        A("s_mov_b64 exec, -1")

    def softmax_tail(self, A, X, M, fill, first):
        EX, EB, AL, EM = X[1], X[2], X[3], T0
        VB = P[2] + 4
        fill = list(fill)
        f = lambda: A(fill.pop(0)) if fill else None
        dpp = lambda d, x, q: A("v_mov_b32_dpp %s, %s quad_perm:%s row_mask:0xf bank_mask:0xf" % (v(d), v(x), q))
        src = M if first else M + 2
        A(mf16(AL, HALF, EX))
        dpp(EB, EX, "[0,1,0,1]")
        dpp(EB + 1, EX + 1, "[0,1,0,1]")
        dpp(EB + 2, EX, "[2,3,2,3]")
        dpp(EB + 3, EX + 1, "[2,3,2,3]")
        A("v_exp_f32 %s, %s" % (v(M + 2), v(src)))
        A("v_exp_f32 %s, %s" % (v(M + 3), v(src + 1)))
        A(mf32(AQ, VXR, EB))
        A("v_add_f32_dpp %s, %s, %s quad_perm:[2,3,0,1] row_mask:0xf bank_mask:0xf" % (v(AL), v(AL), v(AL)))
        A(cvt(EM, M + 2, M + 3))
        A(mf32(AQ + 4, VXR + 4, EB))
        A(cvt(EM + 1, M + 2, M + 3))
        A("v_add_f32 %s, %s, %s" % (v(AL), v(AL), v(AL)))
        if first:
            A(cvt(VB, AV, AV + 1))
            A(cvt(VB + 1, AV + 2, AV + 3))
        A(mf16(AL, HALF, EM, AL))
        if first:
            A(cvt(VB + 2, AV + 4, AV + 5))
            A(cvt(VB + 3, AV + 6, AV + 7))
        A(mf16(AQ, VB, EM, AQ))
        f()
        f()
        f()
        A(mf16(AQ + 4, VB + 2, EM, AQ + 4))
        while fill:
            f()

    def normalize(self, A, w, AL, f0=(), f1=()):
        RR = T0 + 2
        pk = lambda r: A("v_pk_mul_f32 %s, %s, %s op_sel_hi:[1,0]" % (v(r, 2), v(r, 2), v(RR, 2)))
        A("v_rcp_f32 %s, %s" % (v(RR), v(AL)))
        A("\n".join(f0))
        pk(AQ)
        pk(AQ + 2)
        for q in range(2):
            A(cvt(OOP[0] + q, AQ + 2 * q, AQ + 2 * q + 1))
        pk(AQ + 4)
        pk(AQ + 6)
        for q in range(2, 4):
            A(cvt(OOP[0] + q, AQ + 2 * q, AQ + 2 * q + 1))
        A("ds_write_b128 %s, %s offset:%d" % (v(VL1), v(OOP[0], 4), RB + w * 1024))
        A("\n".join(f1))

    def fallback(self, B, w, tag, X, M):
        EX, AL = X[1], X[3]
        MX, TM = T0 + 2, T0 + 3
        B.label("c_slow_" + tag)
        B("s_nop 15")
        B("v_max3_f32 %s, %s, %s, %s" % (v(MX), v(X[0]), v(X[0] + 1), v(X[0] + 2)))
        B("v_max3_f32 %s, %s, %s, %s" % (v(MX), v(MX), v(X[0] + 3), v(M)))
        B("v_max_f32 %s, %s, %s" % (v(MX), v(MX), v(M + 1)))
        B("v_max_f32_dpp %s, %s, %s quad_perm:[2,3,0,1] row_mask:0xf bank_mask:0xf" % (v(MX), v(MX), v(MX)))
        for sw in ("v_permlane16_swap_b32", "v_permlane32_swap_b32"):
            B("v_mov_b32 %s, %s" % (v(TM), v(MX)))
            B("%s %s, %s" % (sw, v(MX), v(TM)))
            B("s_nop 1")
            B("v_max_f32 %s, %s, %s" % (v(MX), v(MX), v(TM)))
        for r in range(4):
            B("v_sub_f32 %s, %s, %s" % (v(EX + r), v(X[0] + r), v(MX)))
        for r in range(2):
            B("v_sub_f32 %s, %s, %s" % (v(M + 2 + r), v(M + r), v(MX)))
        for r in range(4):
            B("v_exp_f32 %s, %s" % (v(EX + r), v(EX + r)))
        B(cvt(EX, EX, EX + 1))
        B(cvt(EX + 1, EX + 2, EX + 3))
        self.softmax_tail(B, X, M, [], first=False)
        B("s_waitcnt lgkmcnt(0)")
        self.normalize(B, w, AL)
        for a_ in range(4):
            B("v_mov_b64 %s, 0\nv_mov_b64 %s, 0" % (v(ACCO[a_], 2), v(ACCO[a_] + 2, 2)))
        for a_ in range(2):
            B(WO(a_, 0))
        B("s_nop 7")
        B("s_branch c_back_" + tag)

    def emit(self, A):
        for w in range(1, 4):
            A("s_cmp_eq_u32 %s, %d\ns_cbranch_scc1 c_pro_%d" % (s(sWAVE), w, w))
        for w in range(4):
            CUR[0] = w
            P_ = Asm()
            P_._uid = 100 + 200 * w
            P_.label("c_pro_%d" % w)
            self.prologue(P_, w)
            A.extend(fix_hazards(P_.lines))
        for slow in (0, 1):
            for w in range(4):
                A(".p2align 6")
                A.extend(self.loop(w, slow))
```

```python
from asmlib import *
from layout import *

WS, DBG = "s[4:7]", "s[28:31]"
sROLE, sWAVE, sBUD = 32, 33, 35
sSEG, sEND, sIN, sOUT, sFLG, sSC, sT0, sT1, sT2, sRS, sB0, sB1, sLW = range(36, 49)
sPOLL, sNEED, sX, sSET3, sQ, sKM2 = range(49, 55)
sMASK = 56
W0, W1 = 8, 12
SXI, SOUT = 16, 20
NP, NM, NXY, ND, NZ = 62, 64, 48, 16, 32
SEGB = 262144
PARTB = 12 * 32768
HSEG = 112 * 1024

L, N32, HI, VL16, VST, VT0, VT1, VT2, VT3, VPO = 255, 254, 253, 252, 251, 250, 249, 248, 247, 246
VA = 240


def cvt(d, x, y):
    return "v_cvt_pk_bf16_f32 %s, %s, %s" % (v(d), v(x), v(y))


WST = [False]


def rt(A, k):
    if WST[0]:
        A("s_memrealtime %s\ns_waitcnt lgkmcnt(0)" % s(70 + 2 * k, 2))


def budget(A, give_up):
    A("s_cmp_eq_u32 %s, 0\ns_cbranch_scc1 %s\ns_sub_u32 %s, %s, 1" % (s(sBUD), give_up, s(sBUD), s(sBUD)))


def wait_dbg(A, off, want, mask=None, sleep=4, each=False):
    top, done, skip = A.uid("w_wd"), A.uid("w_wdd"), A.uid("w_wds")
    if not each:
        A("s_cmp_lg_u32 %s, 0\ns_cbranch_scc1 %s" % (s(sWAVE), skip))
    A("s_mov_b64 exec, 1")
    A.label(top)
    A("buffer_load_dword %s, off, %s, 0 offset:%d sc1" % (v(VT0), DBG, off))
    A("s_waitcnt vmcnt(0)")
    A("v_readfirstlane_b32 %s, %s" % (s(sT1), v(VT0)))
    if mask:
        A("s_and_b32 %s, %s, 0x%x" % (s(sT1), s(sT1), mask))
    A("s_cmp_ge_u32 %s, %d\ns_cbranch_scc1 %s" % (s(sT1), want, done))
    budget(A, done)
    A("s_sleep %d\ns_branch %s" % (sleep, top))
    A.label(done)
    A("s_mov_b64 exec, -1")
    A.label(skip)
    if not each:
        A("s_barrier")


def poll(A, nl, vaddr, soff, need, sleep=2, vneed=False):
    top, done = A.uid("w_pl"), A.uid("w_pld")
    A("s_mov_b64 exec, 0x%x" % ((1 << nl) - 1))
    A.label(top)
    A("buffer_load_dword %s, %s, %s, %s offen sc1" % (v(VT0), v(vaddr), WS, s(soff)))
    A("s_waitcnt vmcnt(0)")
    A("v_cmp_gt_u32 vcc, %s, %s" % (v(need) if vneed else s(need), v(VT0)))
    A("s_cbranch_vccz %s" % done)
    budget(A, done)
    A("s_sleep %d\ns_branch %s" % (sleep, top))
    A.label(done)
    A("s_mov_b64 exec, -1")


def post_flag(A, val_sgpr_plus1):
    lab = A.uid("w_fl")
    A("s_waitcnt vmcnt(0)\ns_barrier")
    A("s_cmp_lg_u32 %s, 0\ns_cbranch_scc1 %s" % (s(sWAVE), lab))
    A("s_add_u32 %s, %s, 1" % (s(sT0), s(val_sgpr_plus1)))
    A("v_mov_b32 %s, %s" % (v(VT0), s(sT0)))
    A("s_mov_b64 exec, 1")
    A("buffer_store_dword %s, off, %s, %s sc1" % (v(VT0), WS, s(sFLG)))
    A("s_mov_b64 exec, -1")
    A.label(lab)


def count_up(A, off):
    lab = A.uid("w_cu")
    A("s_waitcnt vmcnt(0)\ns_barrier")
    A("s_cmp_lg_u32 %s, 0\ns_cbranch_scc1 %s" % (s(sWAVE), lab))
    A("v_mov_b32 %s, 1" % v(VT0))
    A("s_mov_b64 exec, 1")
    A("buffer_atomic_add %s, off, %s, 0 offset:%d" % (v(VT0), DBG, off))
    A("s_mov_b64 exec, -1")
    A.label(lab)


def poison_check(A, regs, ok, again, sleep):
    A("v_max3_u32 %s, %s, %s, %s" % (v(VT0), v(regs[0]), v(regs[1]), v(regs[2])))
    rest = regs[3:]
    while len(rest) > 1:
        A("v_max3_u32 %s, %s, %s, %s" % (v(VT0), v(VT0), v(rest[0]), v(rest[1])))
        rest = rest[2:]
    if rest:
        A("v_max_u32 %s, %s, %s" % (v(VT0), v(VT0), v(rest[0])))
    A("v_cmp_eq_u32 vcc, -1, %s" % v(VT0))
    A("s_cbranch_vccz " + ok)
    budget(A, ok)
    if sleep:
        A("s_sleep %d" % sleep)
    A("s_branch " + again)
    A.label(ok)


def srd(A, d, karg, size, sreg=None):
    if sreg is None:
        A("s_load_dwordx2 %s, s[0:1], %d" % (s(d, 2), karg))
    else:
        A("s_load_dwordx2 %s, s[0:1], %s" % (s(d, 2), s(sreg)))
    A("s_mov_b32 %s, 0x%x\ns_mov_b32 %s, 0x20000" % (s(d + 2), size, s(d + 3)))


def common(A):
    A("v_and_b32 %s, 63, v0" % v(L))
    A("v_and_b32 %s, 31, v0" % v(N32))
    A("v_lshrrev_b32 %s, 5, %s" % (v(HI), v(L)))
    A("v_lshlrev_b32 %s, 4, %s" % (v(VL16), v(L)))


def load_weights(A, perm, two_srd, nt=False, hook=None):
    X, Y, Z, DV = VT0, VT1, VT2, VT3
    full = not two_srd
    rowb = 128 if full else 64
    A("s_lshl_b32 %s, %s, 15" % (s(sLW), s(sWAVE)))
    A("v_lshrrev_b32 %s, %d, %s" % (v(X), 3 if full else 2, v(L)))
    A("v_mul_lo_u32 %s, %s, %s" % (v(X), v(X), s(sRS)))
    if full:
        A("v_bfe_u32 %s, %s, 4, 1" % (v(Z), v(L)))
        A("v_lshlrev_b32 %s, 2, %s" % (v(Z), v(Z)))
        A("v_xor_b32 %s, %s, %s" % (v(Y), v(Z), v(L)))
        A("v_and_b32 %s, 7, %s" % (v(Y), v(Y)))
    else:
        A("v_and_b32 %s, 3, %s" % (v(Y), v(L)))
    A("v_lshl_add_u32 %s, %s, 4, %s" % (v(DV), v(Y), v(X)))
    A("s_lshl_b32 %s, %s, %d" % (s(sT2), s(sRS), 3 if full else 4))

    def dma(u):
        for half in range(2):
            for t in range(2):
                A("s_add_u32 m0, %s, %d" % (s(sLW), (u % 8) * 4096 + ((2 * half + t) * 1024 if full else t * 2048 + half * 1024)))
                A("buffer_load_dwordx4 %s, %s, %s offen %slds" % (
                    v(DV), s(W1 if (t and two_srd) else W0, 4), s(sB0), "nt " if nt else ""))
                if full or t:
                    A("s_add_u32 %s, %s, %s" % (s(sB0), s(sB0), s(sT2)))

    for u in range(8):
        dma(u)
    A("v_and_b32 %s, 3, %s" % (v(Y), v(L)))
    A("v_bfe_u32 %s, %s, 2, 2" % (v(X), v(L)))
    A("v_lshl_add_u32 %s, %s, %d, %s" % (v(X), v(HI), 2 if perm else 3, v(X)))
    A("v_lshlrev_b32 %s, %d, %s" % (v(X), 7 if full else 6, v(X)))
    A("v_bfe_u32 %s, %s, 4, 1" % (v(Z), v(L)))
    if perm == "col":
        A("v_lshl_add_u32 %s, %s, 4, %s" % (v(X), v(Z), v(X)))
        A("v_and_b32 %s, 1, %s" % (v(Z), v(L)))
        A("v_lshl_add_u32 %s, %s, 5, %s" % (v(X), v(Z), v(X)))
        A("v_bfe_u32 %s, %s, 1, 1" % (v(Z), v(L)))
        A("v_lshl_add_u32 %s, %s, 3, %s" % (v(X), v(Z), v(X)))
    else:
        A("v_lshl_add_u32 %s, %s, 5, %s" % (v(X), v(Z), v(X)))
        A("v_lshl_add_u32 %s, %s, 3, %s" % (v(X), v(Y), v(X)))
    TR = VA
    if full:
        A("v_bfe_u32 %s, %s, 3, 1" % (v(Z), v(L)))
        A("v_lshl_add_u32 %s, %s, 6, %s" % (v(X), v(Z), v(X)))
    A("v_add_u32 %s, %s, %s" % (v(TR), s(sLW), v(X)))
    A("v_xor_b32 %s, %d, %s" % (v(TR + 1), 64 if full else 2048, v(TR)))
    bs, qs = (8, 16) if perm else (16, 4)
    for u in range(16):
        A("s_waitcnt vmcnt(%d)" % (4 * min(7, 15 - u)))
        for b in range(2):
            for t in range(2):
                for q in range(2):
                    A("ds_read_b64_tr_b16 %s, %s offset:%d" % (
                        a(((2 * u + b) * 2 + t) * 4 + 2 * q, 2), v(TR + t), (u % 8) * 4096 + (bs * b + qs * q) * rowb))
        A("s_waitcnt lgkmcnt(0)")
        if u + 8 < 16:
            dma(u + 8)
        if hook:
            hook(u)
    A("s_barrier")
    rt(A, 1)


def gemm(A, nk, acc, fr, swap, fill=(), base=0, sched=None):
    fill = list(fill)
    sched = dict(sched or {})
    q = []

    def emit(l):
        A(l)
        if l.startswith("ds_"):
            q.append(None)

    def rd(k):
        A("ds_read_b128 %s, %s offset:%d" % (v(fr + 4 * (k % 4), 4), v(VL16), base + k * 1024))
        q.append(k)

    for k in range(3):
        rd(k)
    for k in range(nk):
        n = len(q) - 1 - q.index(k)
        A("s_waitcnt lgkmcnt(%d)" % n)
        del q[:len(q) - n]
        for t in range(2):
            w_, x_ = a((2 * k + t) * 4, 4), v(fr + 4 * (k % 4), 4)
            c = "0" if k == 0 else v(acc + 16 * t, 16)
            A("v_mfma_f32_32x32x16_bf16 %s, %s, %s, %s" % (v(acc + 16 * t, 16), x_ if swap else w_, w_ if swap else x_, c))
            if t == 0 and k + 3 < nk:
                rd(k + 3)
            elif fill:
                emit(fill.pop(0))
            for l in sched.pop(2 * k + t, []):
                emit(l)
    assert not fill and not sched


def layernorm(A):
    XR, F, S0, S1 = 0, 32, 96, 98
    X, Y = VT1, VT2
    srd(A, SXI, 0, 2048 * 1024)
    A("v_lshrrev_b32 %s, 3, %s" % (v(X), v(L)))
    A("v_and_b32 %s, 7, %s" % (v(Y), v(L)))
    A("v_lshlrev_b32 %s, 10, %s" % (v(VT3), v(X)))
    A("v_lshl_add_u32 %s, %s, 4, %s" % (v(VT3), v(Y), v(VT3)))
    A("v_lshlrev_b32 %s, 4, %s" % (v(VST), v(X)))
    A("v_lshl_add_u32 %s, %s, 9, %s" % (v(VST), v(Y), v(VST)))
    A("s_lshl_b32 %s, %s, 15\ns_lshl_b32 %s, %s, 13" % (s(sT0), s(sSEG), s(sT1), s(sWAVE)))
    A("s_add_u32 %s, %s, %s" % (s(sT1), s(sT1), s(sT0)))
    A("s_waitcnt lgkmcnt(0)")
    for i in range(8):
        A("buffer_load_dwordx4 %s, %s, %s, %s offen offset:%d" % (v(XR + 4 * i, 4), v(VT3), s(SXI, 4), s(sT1), 128 * i))
    A("s_lshl_b32 %s, %s, 7\ns_add_u32 %s, %s, %s\ns_add_u32 %s, %s, %d" % (
        s(sT1), s(sWAVE), s(sT0), s(sT0), s(sT1), s(sT0), s(sT0), XN))
    A("s_mov_b32 %s, 0xffff0000" % s(sT2))

    def red8(r):
        for m in ("quad_perm:[1,0,3,2]", "quad_perm:[2,3,0,1]", "row_half_mirror"):
            A("v_add_f32_dpp %s, %s, %s %s row_mask:0xf bank_mask:0xf" % (v(r), v(r), v(r), m))

    def rnd(r):
        A(cvt(r, r, r))
        A("v_lshlrev_b32 %s, 16, %s" % (v(r), v(r)))

    for i in range(8):
        A("s_waitcnt vmcnt(%d)" % (7 - i))
        for j in range(4):
            r = 4 * i + j
            A("v_lshlrev_b32 %s, 16, %s" % (v(F + 2 * r), v(XR + r)))
            A("v_and_b32 %s, %s, %s" % (v(F + 2 * r + 1), s(sT2), v(XR + r)))
            if r == 0:
                A("v_mov_b64 %s, %s" % (v(S0, 2), v(F, 2)))
            else:
                A("v_pk_add_f32 %s, %s, %s" % (v(S0, 2), v(S0, 2), v(F + 2 * r, 2)))
    A("v_add_f32 %s, %s, %s" % (v(S0), v(S0), v(S0 + 1)))
    red8(S0)
    A("v_mul_f32 %s, 0xbb000000, %s" % (v(S0), v(S0)))
    A("v_mov_b32 %s, %s" % (v(S0 + 1), v(S0)))
    A("v_mov_b64 %s, 0" % v(S1, 2))
    for r in range(32):
        t = XR + 2 * (r % 8)
        A("v_pk_add_f32 %s, %s, %s" % (v(t, 2), v(F + 2 * r, 2), v(S0, 2)))
        A("v_pk_fma_f32 %s, %s, %s, %s" % (v(S1, 2), v(t, 2), v(t, 2), v(S1, 2)))
    A("v_add_f32 %s, %s, %s" % (v(S1), v(S1), v(S1 + 1)))
    red8(S1)
    A("v_mul_f32 %s, 0x3b000000, %s" % (v(S1), v(S1)))
    rnd(S1)
    A("v_add_f32 %s, 0x3727c5ac, %s" % (v(S1), v(S1)))
    rnd(S1)
    A("v_sqrt_f32 %s, %s" % (v(S1), v(S1)))
    rnd(S1)
    A("v_rcp_f32 %s, %s" % (v(S1), v(S1)))
    rnd(S0)
    A("v_mov_b32 %s, %s" % (v(S0 + 1), v(S0)))
    A("v_mov_b32 %s, %s" % (v(S1 + 1), v(S1)))
    for i in range(8):
        for j in range(4):
            r = 4 * i + j
            f = F + 2 * r
            A("v_pk_add_f32 %s, %s, %s" % (v(f, 2), v(f, 2), v(S0, 2)))
            A(cvt(f + 1, f, f + 1))
            A("v_lshlrev_b32 %s, 16, %s" % (v(f), v(f + 1)))
            A("v_and_b32 %s, %s, %s" % (v(f + 1), s(sT2), v(f + 1)))
            A("v_pk_mul_f32 %s, %s, %s" % (v(f, 2), v(f, 2), v(S1, 2)))
            A(cvt(XR + r, f, f + 1))
        A("buffer_store_dwordx4 %s, %s, %s, %s offen sc1" % (v(XR + 4 * i, 4), v(VST), WS, s(sT0)))
        A("s_add_u32 %s, %s, 4096" % (s(sT0), s(sT0)))
    count_up(A, DBG_LN)


XR, FR, ACC, OUT = 0, 32, 48, 80


def pack_store(A, acc, out, offs, order):
    for t in range(2):
        for p in range(2):
            o = out + 8 * t + 4 * p
            for k, q in enumerate(order[p]):
                A(cvt(o + 2 * k, acc + 16 * t + 4 * q, acc + 16 * t + 4 * q + 1))
                A(cvt(o + 2 * k + 1, acc + 16 * t + 4 * q + 2, acc + 16 * t + 4 * q + 3))
            A("buffer_store_dwordx4 %s, %s, %s, %s offen offset:%d sc1" % (v(o, 4), v(VST), WS, s(sOUT), offs[t][p]))


def in_loads(n):
    return ["buffer_load_dwordx4 %s, %s, %s, %s offen offset:%d sc1" % (
        v(XR + 4 * i, 4), v(VA + 1 + i // 4), WS, s(sIN), (i % 4) * 1024) for i in range(n)]


def in_addr(A, n):
    A("s_mul_i32 %s, %s, %d" % (s(sT0), s(sWAVE), n * 1024))
    A("v_add_u32 %s, %s, %s" % (v(VA + 1), s(sT0), v(VL16)))
    A("v_add_u32 %s, 4096, %s" % (v(VA + 2), v(VA + 1)))


def in_writes(A, n):
    for i in range(n):
        A("ds_write_b128 %s, %s offset:%d" % (v(VA + 1), v(XR + 4 * i, 4), i * 1024))
    A("s_waitcnt lgkmcnt(0)\ns_barrier")


def p_setup(A, kind, mem):
    G = sQ
    if kind == "gu":
        srd(A, W0, 64, 512 * 3584)
        srd(A, W1, 72, 512 * 3584)
        A("s_mov_b32 %s, 3584" % s(sRS))
        A("s_sub_u32 %s, %s, 48" % (s(G), s(G)))
        A("s_lshl2_add_u32 %s, %s, %s" % (s(sT0), s(G), s(sWAVE)))
        A("s_lshl_b32 %s, %s, 6\ns_mov_b32 %s, %s" % (s(sB0), s(sT0), s(sB1), s(sB0)))
        A("s_lshl_b32 %s, %s, 11\ns_add_u32 %s, %s, %d" % (s(sOUT), s(sT0), s(sOUT), s(sOUT), HB))
        A("v_mov_b32 %s, %s" % (v(VST), v(VL16)))
    else:
        A("s_lshr_b32 %s, %s, 4" % (s(sT0), s(G)))
        A("s_lshl_b32 %s, %s, 3\ns_add_u32 %s, %s, 16" % (s(sT1), s(sT0), s(sT1), s(sT1)))
        srd(A, W0, None, 512 * 8192, sreg=sT1)
        A("s_cmp_eq_u32 %s, 0" % s(sT0))
        A("s_mov_b32 %s, 0x%x" % (s(sSC), SB_BF << 16))
        A("s_cselect_b32 %s, 0x%x, %s" % (s(sSC), SA_BF << 16, s(sSC)))
        A("s_lshl_b32 %s, 0x%x, %s" % (s(sOUT), QX, s(sT0)))
        A("s_and_b32 %s, %s, 15" % (s(G), s(G)))
        A("s_lshl2_add_u32 %s, %s, %s" % (s(sT0), s(G), s(sWAVE)))
        A("s_lshl_b32 %s, %s, 7\ns_add_u32 %s, %s, 64" % (s(sB0), s(sT0), s(sB1), s(sB0)))
        A("s_lshl_b32 %s, %s, 12\ns_add_u32 %s, %s, %s" % (s(sT0), s(sT0), s(sOUT), s(sOUT), s(sT0)))
        if mem:
            A("s_add_u32 %s, %s, 64\ns_lshl_b32 %s, %s, 18\ns_add_u32 %s, %s, %s" % (
                s(sT0), s(sSEG), s(sT0), s(sT0), s(sOUT), s(sOUT), s(sT0)))
        A("s_mov_b32 %s, 8192" % s(sRS))
        A("v_and_b32 %s, 15, %s" % (v(VT0), v(L)))
        A("v_lshlrev_b32 %s, 4, %s" % (v(VST), v(VT0)))
        A("v_lshl_add_u32 %s, %s, 8, %s" % (v(VST), v(HI), v(VST)))
        A("v_bfe_u32 %s, %s, 4, 1" % (v(VT0), v(L)))
        A("v_lshl_add_u32 %s, %s, 10, %s" % (v(VST), v(VT0), v(VST)))
    A("s_waitcnt lgkmcnt(0)")


def p_epilogue(kind, acc, out):
    E = Asm()
    if kind == "gu":
        for p in range(2):
            for k, q in enumerate(((0, 2), (1, 3))[p]):
                for e in range(2):
                    g, u_ = acc + 4 * q + 2 * e, acc + 16 + 4 * q + 2 * e
                    E("v_max_f32 %s, 0, %s" % (v(g), v(g)))
                    E("v_max_f32 %s, 0, %s" % (v(g + 1), v(g + 1)))
                    for r in (g, u_):
                        E(cvt(r + 1, r, r + 1))
                        E("v_lshlrev_b32 %s, 16, %s" % (v(r), v(r + 1)))
                        E("v_and_b32 %s, 0xffff0000, %s" % (v(r + 1), v(r + 1)))
                    E("v_mul_f32 %s, %s, %s" % (v(g), v(g), v(u_)))
                    E("v_mul_f32 %s, %s, %s" % (v(g + 1), v(g + 1), v(u_ + 1)))
                    E(cvt(out + 4 * p + 2 * k + e, g, g + 1))
            E("buffer_store_dwordx4 %s, %s, %s, %s offen offset:%d sc1" % (v(out + 4 * p, 4), v(VST), WS, s(sOUT), 1024 * p))
    else:
        offs, order = ((0, 512), (2048, 2560)), ((0, 2), (1, 3))
        for t in range(2):
            for p in range(2):
                o_ = out + 8 * t + 4 * p
                for k, q in enumerate(order[p]):
                    r0 = acc + 16 * t + 4 * q
                    if kind == "qk":
                        for r in range(4):
                            E("v_mul_f32 %s, %s, %s" % (v(r0 + r), s(sSC), v(r0 + r)))
                    E(cvt(o_ + 2 * k, r0, r0 + 1))
                    E(cvt(o_ + 2 * k + 1, r0 + 2, r0 + 3))
                E("buffer_store_dwordx4 %s, %s, %s, %s offen offset:%d sc1" % (v(o_, 4), v(VST), WS, s(sOUT), offs[t][p]))
    return E.lines


def role_p(A, kind, o):
    tg = "p" + kind
    ACC2 = (48, 96)
    step = HSEG if kind == "gu" else SEGB
    nst = 2 if kind == "gu" else 4
    A.label("w_" + tg)
    A("s_lshl_b32 %s, %s, 7\ns_add_u32 %s, %s, %d" % (s(sFLG), s(sQ), s(sFLG), s(sFLG), FLAGS + F_P))
    A("s_mov_b32 %s, 0" % s(sSEG))
    if kind != "v" and o.get("lateq", 0):
        lab = A.uid("w_lq")
        if kind == "qk":
            A("s_cmp_ge_u32 %s, 16\ns_cbranch_scc1 %s" % (s(sQ), lab))
        wait_dbg(A, DBG_LN, 64, sleep=o.get("lsleep", 48))
        A.label(lab)
    p_setup(A, kind, False)
    A("s_mov_b32 %s, %d" % (s(sIN), XN))
    A("s_mov_b32 %s, %s\ns_mov_b32 %s, %d" % (s(sX), s(sOUT), s(sOUT), DUMMY))
    C0 = 128

    def hook(u):
        if u == o.get("pu", 11):
            A("s_mov_b64 exec, 1")
            A("buffer_load_dword %s, off, %s, 0 offset:%d sc1" % (v(C0), DBG, DBG_LN))
            A("buffer_load_dword %s, off, %s, 0 offset:%d sc1" % (v(C0 + 1), DBG, DBG_INIT))
            A("s_mov_b64 exec, -1")
        if u == 15:
            in_addr(A, 8)
            A("v_readfirstlane_b32 %s, %s\nv_readfirstlane_b32 %s, %s" % (s(sT0), v(C0), s(sT1), v(C0 + 1)))
            A("s_lshl_b32 %s, %s, 6\ns_and_b32 %s, %s, %s\ns_cbranch_scc1 w_go_%s" % (s(sT1), s(sT1), s(sT0), s(sT0), s(sT1), tg))
            wait_dbg(A, DBG_LN, 64, each=True)
            wait_dbg(A, DBG_INIT, 1, each=True)
            A.label("w_go_" + tg)
            A("\n".join(in_loads(8)))

    load_weights(A, None, kind == "gu", nt=o.get("p_nt"), hook=hook)
    A("s_waitcnt vmcnt(0)")
    in_writes(A, 8)
    A("s_add_u32 %s, %s, 32768" % (s(sIN), s(sIN)))
    A("\n".join(in_loads(8)))
    rt(A, 2)
    A.label("w_top_" + tg)
    for p in range(2):
        ep = p_epilogue(kind, ACC2[1 - p], OUT)
        sched = {}
        g = 2
        while ep:
            n = 3 if g % 2 == 0 else 4
            sched[g], ep = ep[:n], ep[n:]
            g += 1
        g = max(g, 30)
        sched[g] = ["s_waitcnt vmcnt(%d)" % nst, "s_mov_b32 %s, %s" % (s(sOUT), s(sX)),
                    "s_add_u32 %s, %s, %d" % (s(sX), s(sX), step), "s_add_u32 %s, %s, 32768" % (s(sIN), s(sIN))]
        for i in range(8):
            sched[g + 1 + i] = ["ds_write_b128 %s, %s offset:%d" % (v(VA + 1), v(XR + 4 * i, 4), (1 - p) * 32768 + i * 1024)]
        for i, l in enumerate(in_loads(8)):
            sched[g + 16 + i] = [l]
        gemm(A, 32, ACC2[p], FR, kind == "v", base=p * 32768, sched=sched)
        lab = A.uid("w_fl")
        A("s_waitcnt vmcnt(8) lgkmcnt(0)\ns_barrier")
        A("s_cmp_lg_u32 %s, 0\ns_cbranch_scc1 %s" % (s(sWAVE), lab))
        A("v_mov_b32 %s, %s" % (v(VT0), s(sSEG)))
        A("s_mov_b64 exec, 1")
        A("buffer_store_dword %s, off, %s, %s sc1" % (v(VT0), WS, s(sFLG)))
        A("s_mov_b64 exec, -1")
        A.label(lab)
        A("s_add_u32 %s, %s, 1" % (s(sSEG), s(sSEG)))
    A("s_cmp_lt_u32 %s, 64\ns_cbranch_scc1 w_top_%s" % (s(sSEG), tg))
    A("s_nop 7")
    A("\n".join(p_epilogue(kind, ACC2[1], OUT)))
    A("s_mov_b32 %s, 63" % s(sSEG))
    post_flag(A, sSEG)
    A("s_branch w_exit")


def role_m(A, kind, o):
    tg = "m" + kind
    A.label("w_" + tg)
    p_setup(A, kind, True)
    A("s_lshl2_add_u32 %s, %s, %s\ns_lshl_b32 %s, %s, 10" % (s(sT0), s(sQ), s(sWAVE), s(sT0), s(sT0)))
    A("s_lshl_b32 %s, %s, 16\ns_add_u32 %s, %s, %s\ns_add_u32 %s, %s, %d" % (
        s(sOUT), s(sSEG), s(sOUT), s(sOUT), s(sT0), s(sOUT), s(sOUT), KM if kind == "qk" else VM))
    load_weights(A, None, False)
    in_addr(A, 8)
    PZ = 16
    for r in range(4):
        A("v_mov_b32 %s, 0" % v(XR + r))
        A("v_mov_b32 %s, -1" % v(PZ + r))
    for i in range(8):
        A("ds_write_b128 %s, %s offset:%d" % (v(VA + 1), v(XR, 4), i * 1024))
    A("s_mov_b32 %s, %s" % (s(sX), s(sOUT)))
    pz = "buffer_store_dwordx4 %s, %s, %s, %s offen sc1\ns_add_u32 %s, %s, 131072" % (v(PZ, 4), v(VL16), WS, s(sX), s(sX), s(sX))
    for i in range(4):
        A(pz)
    A("v_lshlrev_b32 %s, 3, %s" % (v(VST), v(L)))
    sh = 5 if kind == "qk" else 4
    A("v_lshrrev_b32 %s, 4, %s" % (v(VT0), v(L)))
    A("v_lshlrev_b32 %s, 9, %s" % (v(VA + 3), v(VT0)))
    A("v_bfe_u32 %s, %s, 1, 1" % (v(VT0), v(L)))
    A("v_lshl_add_u32 %s, %s, 11, %s" % (v(VA + 3), v(VT0), v(VA + 3)))
    A("v_bfe_u32 %s, %s, 2, 2" % (v(VT0), v(L)))
    A("v_lshl_add_u32 %s, %s, %d, %s" % (v(VA + 3), v(VT0), sh + 1, v(VA + 3)))
    A("v_and_b32 %s, 1, %s" % (v(VT0), v(L)))
    A("v_lshl_add_u32 %s, %s, %d, %s" % (v(VA + 3), v(VT0), sh, v(VA + 3)))
    A("s_lshl_b32 %s, %s, 13" % (s(sT0), s(sWAVE)))
    A("v_add_u32 %s, %s, %s" % (v(VA + 3), s(sT0), v(VA + 3)))
    A("s_lshl_b32 %s, %s, 13\ns_lshl_b32 %s, %s, 11" % (s(sIN), s(sSEG), s(sT0), s(sWAVE)))
    A("s_add_u32 %s, %s, %s\ns_add_u32 %s, %s, %d" % (s(sIN), s(sIN), s(sT0), s(sIN), s(sIN), MEMC))
    count_up(A, DBG_POISON)
    wait_dbg(A, DBG_CHAIN_READY, 32, mask=0xffff)
    A("s_waitcnt lgkmcnt(0)")
    A.label("w_mem_" + tg)
    for i in range(2):
        A("buffer_load_dwordx4 %s, %s, %s, %s offen offset:%d sc1" % (v(XR + 4 * i, 4), v(VL16), WS, s(sIN), 1024 * i))
    A("s_waitcnt vmcnt(0)")
    poison_check(A, list(range(XR, XR + 8)), "w_memok_" + tg, "w_mem_" + tg, o.get("msleep", 1))
    rt(A, 4)
    for i in range(2):
        for sel in range(2):
            A("ds_write_b128 %s, %s offset:%d" % (v(VA + 3), v(XR + 4 * i, 4), 4096 * i + sel * (272 if kind == "qk" else 384)))
    A("s_add_u32 %s, %s, 16384" % (s(sIN), s(sIN)))
    A("s_waitcnt lgkmcnt(0)\ns_barrier")
    F8 = 96
    rd = lambda k: A("ds_read_b128 %s, %s offset:%d" % (v(F8 + 4 * (k % 8), 4), v(VL16), k * 1024))
    for k in range(6):
        rd(k)
    for k in range(32):
        A("s_waitcnt lgkmcnt(%d)" % min(5, 31 - k))
        for t in range(2):
            w_, x_ = a((2 * k + t) * 4, 4), v(F8 + 4 * (k % 8), 4)
            c = "0" if k == 0 else v(ACC + 4 * t, 4)
            A("v_mfma_f32_16x16x32_bf16 %s, %s, %s, %s" % ((v(ACC + 4 * t, 4),) + ((x_, w_) if kind == "v" else (w_, x_)) + (c,)))
            if t == 0 and k + 6 < 32:
                rd(k + 6)
    for t in range(2):
        r0 = ACC + 4 * t
        if kind == "qk":
            for r in range(4):
                A("v_mul_f32 %s, %s, %s" % (v(r0 + r), s(sSC), v(r0 + r)))
        A(cvt(OUT + 2 * t, r0, r0 + 1))
        A(cvt(OUT + 2 * t + 1, r0 + 2, r0 + 3))
        A("buffer_store_dwordx2 %s, %s, %s, %s offen offset:%d sc1" % (v(OUT + 2 * t, 2), v(VST), WS, s(sOUT), 512 * t))
    A(pz)
    A("s_barrier")
    A("s_add_u32 %s, %s, 2" % (s(sSEG), s(sSEG)))
    A("s_add_u32 %s, %s, %d" % (s(sOUT), s(sOUT), 131072))
    A("s_cmp_lt_u32 %s, 64\ns_cbranch_scc1 w_mem_%s" % (s(sSEG), tg))
    A("s_branch w_exit")


def part_setup(A, src_sgpr, ch_sgpr):
    A("s_lshl2_add_u32 %s, %s, %s" % (s(sT0), s(ch_sgpr), s(sWAVE)))
    A("s_lshl_b32 %s, %s, 7\ns_add_u32 %s, %s, %s\ns_add_u32 %s, %s, 64" % (
        s(sT1), s(sT0), s(sB0), s(sB0), s(sT1), s(sB1), s(sB0)))
    A("s_lshl_b32 %s, %s, 12\ns_lshl_b32 %s, %s, 15\ns_add_u32 %s, %s, %s" % (
        s(sOUT), s(sT0), s(sT1), s(src_sgpr), s(sOUT), s(sOUT), s(sT1)))
    A("s_mul_i32 %s, %s, %d\ns_add_u32 %s, %s, %s\ns_add_u32 %s, %s, %d" % (
        s(sT1), s(sSEG), PARTB, s(sOUT), s(sOUT), s(sT1), s(sOUT), s(sOUT), PART))
    A("s_mov_b32 %s, 1024" % s(sRS))
    A("v_mov_b32 %s, %s" % (v(VST), v(VL16)))


PART_OFFS, PART_ORD = ((0, 1024), (2048, 3072)), ((0, 1), (2, 3))


def role_d(A, o):
    A.label("w_d")
    J = sQ
    srd(A, W0, 80, 1792 * 1024)
    A("s_and_b32 %s, %s, 1" % (s(sSEG), s(J)))
    A("s_lshr_b32 %s, %s, 1" % (s(sT0), s(J)))
    A("s_lshl_b32 %s, %s, 3\ns_add_u32 %s, %s, %s" % (s(sFLG), s(sSEG), s(sFLG), s(sFLG), s(sT0)))
    A("s_lshl_b32 %s, %s, 7\ns_add_u32 %s, %s, %d" % (s(sFLG), s(sFLG), s(sFLG), s(sFLG), FLAGS + F_D))
    A("s_and_b32 %s, %s, 3\ns_lshr_b32 %s, %s, 3" % (s(sX), s(sT0), s(sSET3), s(J)))
    A("s_mul_i32 %s, %s, %d" % (s(sB0), s(sX), 448 * 1024))
    A("s_mul_i32 %s, %s, %d\ns_mul_i32 %s, %s, %d" % (s(sIN), s(sX), 28 * 1024, s(sT1), s(sSEG), HSEG))
    A("s_add_u32 %s, %s, %s\ns_add_u32 %s, %s, %d" % (s(sIN), s(sIN), s(sT1), s(sIN), s(sIN), HB))
    A("s_add_u32 %s, %s, 8" % (s(sX), s(sX)))
    part_setup(A, sX, sSET3)
    A("s_mov_b32 %s, %d" % (s(sPOLL), FLAGS + F_P + 48 * 128))
    A("v_lshlrev_b32 %s, 7, %s" % (v(VPO), v(L)))
    A("s_waitcnt lgkmcnt(0)")
    wait_dbg(A, DBG_INIT, 1)
    if o.get("latex", 0):
        wait_dbg(A, DBG_POISON, 96, sleep=o.get("lsleep", 48))
    load_weights(A, "col", False)
    in_addr(A, 7)
    A("s_add_u32 %s, %s, 1" % (s(sNEED), s(sSEG)))
    poll(A, 14, VPO, sPOLL, sNEED, sleep=16)
    A("\n".join(in_loads(7)))
    A("s_waitcnt vmcnt(0)")
    rt(A, 2)
    A.label("w_top_d")
    in_writes(A, 7)
    A("s_add_u32 %s, %s, %d" % (s(sIN), s(sIN), 2 * HSEG))
    A("s_add_u32 %s, %s, 3" % (s(sNEED), s(sSEG)))
    A("s_cmp_gt_u32 %s, 64\ns_cbranch_scc1 w_gemm_d" % s(sNEED))
    poll(A, 14, VPO, sPOLL, sNEED, sleep=8)
    A("\n".join(in_loads(7)))
    A.label("w_gemm_d")
    gemm(A, 28, ACC, FR, False)
    pack_store(A, ACC, OUT, PART_OFFS, PART_ORD)
    post_flag(A, sSEG)
    A("s_add_u32 %s, %s, 2" % (s(sSEG), s(sSEG)))
    A("s_add_u32 %s, %s, %d" % (s(sOUT), s(sOUT), 2 * PARTB))
    A("s_cmp_lt_u32 %s, 64\ns_cbranch_scc1 w_top_d" % s(sSEG))
    A("s_branch w_exit")


def mf16(d, a_, b_, c=None):
    return "v_mfma_f32_16x16x16_bf16 %s, %s, %s, %s" % (v(d, 4), v(a_, 2), v(b_, 2), "0" if c is None else v(c, 4))


def mf32(d, a_, b_, c=None):
    return "v_mfma_f32_16x16x32_bf16 %s, %s, %s, %s" % (v(d, 4), v(a_, 4), v(b_, 4), "0" if c is None else v(c, 4))


def role_xy(A, o):
    A.label("w_xy")
    J = sQ
    Q, K, V_, KM_, VM_ = 0, 32, 64, 96, 112
    S00, S01, S11, SM0, SM1 = 128, 132, 136, 140, 144
    O = 148
    acc, fr, out = 148, 180, 196
    M0, M1, L0, L1, TA, NEG, OW = 212, 213, 214, 215, 216, 218, 219
    P0, P1, PM0, PM1 = 220, 224, 222, 228
    srd(A, W0, 40, 4096 * 1024)
    A("s_mul_i32 %s, %s, 43\ns_lshr_b32 %s, %s, 7" % (s(sT0), s(J), s(sT0), s(sT0)))
    A("s_mul_i32 %s, %s, 3\ns_sub_u32 %s, %s, %s" % (s(sT1), s(sT0), s(sSEG), s(J), s(sT1)))
    A("s_and_b32 %s, %s, 1\ns_lshr_b32 %s, %s, 1" % (s(sSET3), s(sT0), s(sX), s(sT0)))
    A("s_lshl1_add_u32 %s, %s, %s\ns_lshl3_add_u32 %s, %s, %s" % (s(sFLG), s(sSEG), s(sSET3), s(sFLG), s(sFLG), s(sX)))
    A("s_lshl_b32 %s, %s, 7\ns_add_u32 %s, %s, %d" % (s(sFLG), s(sFLG), s(sFLG), s(sFLG), FLAGS + F_Y))
    A("s_lshl_b32 %s, %s, 19" % (s(sB0), s(sX)))
    part_setup(A, sX, sSET3)
    A("s_lshl2_add_u32 %s, %s, %s" % (s(sT0), s(sX), s(sWAVE)))
    A("s_lshl_b32 %s, %s, 13\ns_lshl_b32 %s, %s, 18\ns_add_u32 %s, %s, %s" % (
        s(sIN), s(sT0), s(sT1), s(sSEG), s(sIN), s(sIN), s(sT1)))
    A("s_add_u32 %s, %s, %d" % (s(sIN), s(sIN), QX))
    A("s_lshl_b32 %s, %s, 11\ns_lshl_b32 %s, %s, 16\ns_add_u32 %s, %s, %s\ns_add_u32 %s, %s, %d" % (
        s(sKM2), s(sT0), s(sT1), s(sSEG), s(sKM2), s(sKM2), s(sT1), s(sKM2), s(sKM2), KM))
    A("s_lshr_b32 %s, %s, 1\ns_lshl_b32 %s, %s, 7\ns_add_u32 %s, %s, %d" % (
        s(sPOLL), s(sT0), s(sPOLL), s(sPOLL), s(sPOLL), s(sPOLL), FLAGS + F_P))
    A("s_waitcnt lgkmcnt(0)")
    wait_dbg(A, DBG_INIT, 1, sleep=16)
    if o.get("latex", 0):
        wait_dbg(A, DBG_POISON, 96, sleep=o.get("lsleep", 48))
    load_weights(A, "col", False)
    A("v_lshrrev_b32 %s, 4, %s" % (v(VT1), v(L)))
    A("v_and_b32 %s, 15, %s" % (v(VT2), v(L)))
    A("v_lshlrev_b32 %s, 2, %s" % (v(VT3), v(VT1)))
    for r in range(4):
        A("v_cmp_le_u32 %s, %s, %s" % (s(sMASK + 2 * r, 2), v(VT3), v(VT2)))
        A("v_add_u32 %s, 1, %s" % (v(VT3), v(VT3)))
    A("s_mov_b32 %s, -1\ns_mov_b32 %s, 0" % (s(sMASK + 8), s(sMASK + 9)))
    A("v_mov_b32 %s, 0xff800000" % v(NEG))
    A("v_lshlrev_b32 %s, 9, %s" % (v(OW), v(VT1)))
    A("v_lshl_add_u32 %s, %s, 4, %s" % (v(OW), v(VT2), v(OW)))
    A("s_lshl_b32 %s, %s, 13" % (s(sT0), s(sWAVE)))
    A("v_add_u32 %s, %s, %s" % (v(OW), s(sT0), v(OW)))
    A("v_add_u32 %s, 4096, %s" % (v(VA + 1), v(VL16)))
    KA, VAD = 232, 233
    A("v_and_b32 %s, 7, %s" % (v(KA), v(L)))
    A("v_lshlrev_b32 %s, 4, %s" % (v(KA), v(KA)))
    A("v_lshl_add_u32 %s, %s, 7, %s" % (v(KA), v(VT1), v(KA)))
    A("v_lshlrev_b32 %s, 3, %s" % (v(VAD), v(N32)))
    A("v_lshlrev_b32 %s, 11, %s" % (v(VPO), v(L)))
    wait_dbg(A, DBG_POISON, 96, sleep=16)
    A("s_add_u32 %s, %s, 1" % (s(sNEED), s(sSEG)))
    poll(A, 3, VPO, sPOLL, sNEED, sleep=16)

    def qkv_loads():
        res = []
        for base, off in ((Q, 0), (K, KX - QX), (V_, VX - QX)):
            res.append("s_add_u32 %s, %s, %d" % (s(sT2), s(sIN), off))
            for i in range(8):
                res.append("buffer_load_dwordx4 %s, %s, %s, %s offen offset:%d sc1" % (
                    v(base + 4 * i, 4), v(VL16 if i < 4 else VA + 1), WS, s(sT2), (i % 4) * 1024))
        return res

    A("\n".join(qkv_loads()))
    A("s_waitcnt vmcnt(0)")
    rt(A, 2)
    A.label("w_top_xy")
    for w in range(4):
        A(mf32(S00, K + 8 * w, Q + 8 * w, S00 if w else None))
        A(mf32(S01, K + 8 * w, Q + 8 * w + 4, S01 if w else None))
        A(mf32(S11, K + 8 * w + 4, Q + 8 * w + 4, S11 if w else None))
    A("s_add_u32 %s, %s, 4\ns_min_u32 %s, %s, 64" % (s(sNEED), s(sSEG), s(sNEED), s(sNEED)))
    for r in range(4):
        for S in (S00, S11):
            A("v_cndmask_b32 %s, %s, %s, %s" % (v(S + r), v(NEG), v(S + r), s(sMASK + 2 * r, 2)))
    A("v_max3_f32 %s, %s, %s, %s" % (v(M0), v(S00), v(S00 + 1), v(S00 + 2)))
    A("v_max_f32 %s, %s, %s" % (v(M0), v(M0), v(S00 + 3)))
    A("v_max3_f32 %s, %s, %s, %s" % (v(M1), v(S01), v(S01 + 1), v(S01 + 2)))
    A("v_max3_f32 %s, %s, %s, %s" % (v(M1), v(M1), v(S01 + 3), v(S11)))
    A("v_max3_f32 %s, %s, %s, %s" % (v(M1), v(M1), v(S11 + 1), v(S11 + 2)))
    A("v_max_f32 %s, %s, %s" % (v(M1), v(M1), v(S11 + 3)))
    poll(A, 3, VPO, sPOLL, sNEED)
    rt(A, 3)
    A("s_add_u32 %s, %s, %d" % (s(sT2), s(sKM2), VM - KM))
    A("s_cmp_lt_u32 %s, 61\ns_cselect_b32 %s, %d, 0\ns_add_u32 %s, %s, %s" % (s(sSEG), s(sT0), 3 * SEGB, s(sIN), s(sIN), s(sT0)))
    A.label("w_km_xy")
    for w in range(4):
        A("buffer_load_dwordx4 %s, %s, %s, %s offen offset:%d sc1" % (v(KM_ + 4 * w, 4), v(KA), WS, s(sKM2), w * 512))
    for f in range(8):
        A("buffer_load_dwordx2 %s, %s, %s, %s offen offset:%d sc1" % (v(VM_ + 2 * f, 2), v(VAD), WS, s(sT2), f * 256))
    A("s_waitcnt vmcnt(0)")
    poison_check(A, list(range(KM_, KM_ + 32)), "w_kmok_xy", "w_km_xy", o.get("xsleep", 1))
    rt(A, 4)
    A("s_add_u32 %s, %s, %d" % (s(sKM2), s(sKM2), 3 * 65536))
    for w in range(4):
        A(mf32(SM0, KM_ + 4 * w, Q + 8 * w, SM0 if w else None))
        A(mf32(SM1, KM_ + 4 * w, Q + 8 * w + 4, SM1 if w else None))
    for S, M in ((SM0, M0), (SM1, M1)):
        for r in range(4):
            A("v_cndmask_b32 %s, %s, %s, %s" % (v(S + r), v(NEG), v(S + r), s(sMASK + 8, 2)))
        A("v_max3_f32 %s, %s, %s, %s" % (v(M), v(M), v(S), v(S + 1)))
        A("v_max3_f32 %s, %s, %s, %s" % (v(M), v(M), v(S + 2), v(S + 3)))

    def xred(op, r0, r1):
        for sw in ("v_permlane16_swap_b32", "v_permlane32_swap_b32"):
            A("v_mov_b32 %s, %s\nv_mov_b32 %s, %s" % (v(TA), v(r0), v(TA + 1), v(r1)))
            A("%s %s, %s\n%s %s, %s" % (sw, v(r0), v(TA), sw, v(r1), v(TA + 1)))
            A("s_nop 0")
            A("%s %s, %s, %s\n%s %s, %s, %s" % (op, v(r0), v(r0), v(TA), op, v(r1), v(r1), v(TA + 1)))

    xred("v_max_f32", M0, M1)
    grp = ((M0, L0, (S00, SM0)), (M1, L1, (S01, S11, SM1)))
    for M, Lr, SS in grp:
        for S in SS:
            for r in range(4):
                A("v_sub_f32 %s, %s, %s" % (v(S + r), v(S + r), v(M)))
            for r in range(4):
                A("v_exp_f32 %s, %s" % (v(S + r), v(S + r)))
    for M, Lr, SS in grp:
        regs = [S + r for S in SS for r in range(4)]
        A("v_add_f32 %s, %s, %s" % (v(Lr), v(regs[0]), v(regs[1])))
        for r in regs[2:]:
            A("v_add_f32 %s, %s, %s" % (v(Lr), v(Lr), v(r)))
    xred("v_add_f32", L0, L1)
    A("v_rcp_f32 %s, %s\nv_rcp_f32 %s, %s" % (v(L0), v(L0), v(L1), v(L1)))
    for Lr, S, P in ((L0, S00, P0), (L1, S01, P1), (L1, S11, P1 + 2), (L0, SM0, PM0), (L1, SM1, PM1)):
        for r in range(4):
            A("v_mul_f32 %s, %s, %s" % (v(S + r), v(S + r), v(Lr)))
        A(cvt(P, S, S + 1))
        A(cvt(P + 1, S + 2, S + 3))
    Or = lambda f, kt: O + 8 * f + 4 * kt
    for f in range(8):
        A(mf16(Or(f, 0), V_ + 4 * f, P0))
        A(mf32(Or(f, 1), V_ + 4 * f, P1))
    for f in range(8):
        A(mf16(Or(f, 0), VM_ + 2 * f, PM0, Or(f, 0)))
        A(mf16(Or(f, 1), VM_ + 2 * f, PM1, Or(f, 1)))
    for a_ in range(4):
        for kt in range(2):
            d = KM_ + 4 * ((2 * a_ + kt) % 4)
            for e in range(2):
                A(cvt(d + 2 * e, Or(2 * a_ + e, kt), Or(2 * a_ + e, kt) + 1))
                A(cvt(d + 2 * e + 1, Or(2 * a_ + e, kt) + 2, Or(2 * a_ + e, kt) + 3))
            if 2 * a_ + kt == 4:
                pass
            A("ds_write_b128 %s, %s offset:%d" % (v(OW), v(d, 4), a_ * 2048 + kt * 256))
            if (2 * a_ + kt) % 4 == 3:
                A("s_waitcnt lgkmcnt(0)")
    A("s_barrier")
    rt(A, 5)
    gemm(A, 32, acc, fr, False, fill=qkv_loads())
    rt(A, 6)
    pack_store(A, acc, out, PART_OFFS, PART_ORD)
    post_flag(A, sSEG)
    A("s_add_u32 %s, %s, 3" % (s(sSEG), s(sSEG)))
    A("s_add_u32 %s, %s, %d" % (s(sOUT), s(sOUT), 3 * PARTB))
    A("s_cmp_lt_u32 %s, 64\ns_cbranch_scc1 w_top_xy" % s(sSEG))
    A("s_branch w_exit")


def role_z(A, o):
    A.label("w_z")
    J = sQ
    PR, XV, FA, FB, T = 0, 48, 52, 60, 68
    srd(A, SXI, 0, 2048 * 1024)
    srd(A, SOUT, 88, 2048 * 1024)
    A("s_lshr_b32 %s, %s, 3\ns_and_b32 %s, %s, 7" % (s(sSEG), s(J), s(J), s(J)))
    A("s_lshl2_add_u32 %s, %s, %s" % (s(sT0), s(J), s(sWAVE)))
    A("s_lshl_b32 %s, %s, 10\ns_mul_i32 %s, %s, %d" % (s(sIN), s(sT0), s(sT1), s(sSEG), PARTB))
    A("s_add_u32 %s, %s, %s\ns_add_u32 %s, %s, %d" % (s(sIN), s(sIN), s(sT1), s(sIN), s(sIN), PART))
    A("s_lshr_b32 %s, %s, 1\ns_lshl_b32 %s, %s, 6" % (s(sT1), s(sT0), s(sT1), s(sT1)))
    A("s_and_b32 %s, %s, 1\ns_lshl4_add_u32 %s, %s, %s" % (s(sT0), s(sT0), s(sX), s(sT0), s(sT1)))
    A("s_lshl_b32 %s, %s, 15\ns_add_u32 %s, %s, %s" % (s(sT1), s(sSEG), s(sX), s(sX), s(sT1)))
    A("s_lshr_b32 %s, %s, 2" % (s(J), s(J)))
    A("s_and_b32 %s, %s, 1\ns_lshl1_add_u32 %s, %s, %s\ns_lshl_b32 %s, %s, 9" % (
        s(sT0), s(sSEG), s(sT0), s(sT0), s(J), s(sT0), s(sT0)))
    A("s_add_u32 %s, %s, %d" % (s(sPOLL), s(sT0), FLAGS + F_D))
    A("s_lshl_b32 %s, %s, 10\ns_add_u32 %s, %s, %d" % (s(sFLG), s(J), s(sFLG), s(sFLG), FLAGS + F_Y))
    A("s_cmp_eq_u32 %s, 3\ns_cselect_b32 %s, 0, %s" % (s(sSEG), s(sSET3), s(sSEG)))
    A("v_lshlrev_b32 %s, 7, %s" % (v(VPO), v(L)))
    A("v_lshlrev_b32 %s, 10, %s" % (v(VST), v(N32)))
    A("v_lshl_add_u32 %s, %s, 5, %s" % (v(VST), v(HI), v(VST)))
    A("s_mov_b32 %s, 0xffff0000" % s(sSC))
    A("s_waitcnt lgkmcnt(0)")
    for r in range(4):
        A("v_mov_b32 %s, -1" % v(r))
    for i in range(8):
        A("s_add_u32 %s, %s, %d" % (s(sT0), s(sIN), 60 * PARTB + 32768 * i))
        A("buffer_store_dwordx4 %s, %s, %s, %s offen sc1" % (v(0, 4), v(VL16), WS, s(sT0)))
    count_up(A, DBG_POISON)
    wait_dbg(A, DBG_INIT, 1, sleep=16)
    A.label("w_top_z")
    A("s_add_u32 %s, %s, 1" % (s(sNEED), s(sSEG)))
    A("buffer_load_dwordx4 %s, %s, %s, %s offen" % (v(XV, 4), v(VST), s(SXI, 4), s(sX)))
    poll(A, 4, VPO, sPOLL, sNEED, sleep=16)

    def loads(lo, hi):
        for i in range(lo, hi):
            A("s_add_u32 %s, %s, %d" % (s(sT0), s(sIN), 32768 * i))
            A("buffer_load_dwordx4 %s, %s, %s, %s offen sc1" % (v(PR + 4 * i, 4), v(VL16), WS, s(sT0)))

    def unpack(dst, src):
        A("v_lshlrev_b32 %s, 16, %s" % (v(dst), v(src)))
        A("v_and_b32 %s, %s, %s" % (v(dst + 1), s(sSC), v(src)))

    def summ(F, lo, hi):
        for i in range(lo, hi):
            A("s_waitcnt vmcnt(%d)" % (hi - 1 - i))
            for j in range(4):
                unpack(F + 2 * j if i == lo else T + 2 * j, PR + 4 * i + j)
            if i > lo:
                for j in range(4):
                    A("v_pk_add_f32 %s, %s, %s" % (v(F + 2 * j, 2), v(F + 2 * j, 2), v(T + 2 * j, 2)))

    def rnd(F):
        for j in range(4):
            A(cvt(F + 2 * j + 1, F + 2 * j, F + 2 * j + 1))
        for j in range(4):
            A("v_lshlrev_b32 %s, 16, %s" % (v(F + 2 * j), v(F + 2 * j + 1)))
            A("v_and_b32 %s, %s, %s" % (v(F + 2 * j + 1), s(sSC), v(F + 2 * j + 1)))

    loads(8, 12)
    summ(FB, 8, 12)
    rnd(FB)
    XF = PR + 32
    for j in range(4):
        unpack(XF + 2 * j, XV + j)
    A("s_lshl_b32 %s, %s, 11\ns_add_u32 %s, %s, %s" % (s(sT2), s(sSET3), s(sT2), s(sT2), s(sFLG)))
    A("s_cmp_ge_u32 %s, 60\ns_cbranch_scc1 w_last_z" % s(sSEG))
    poll(A, 8, VPO, sT2, sNEED, sleep=8)
    A.label("w_last_z")
    loads(0, 8)
    A("s_cmp_lt_u32 %s, 60\ns_cbranch_scc1 w_ok_z" % s(sSEG))
    A("s_waitcnt vmcnt(0)")
    poison_check(A, list(range(PR, PR + 32)), "w_ok_z", "w_last_z", o.get("zsleep", 1))
    rt(A, 4)
    summ(FA, 0, 8)
    rnd(FA)
    for j in range(4):
        A("v_pk_add_f32 %s, %s, %s" % (v(FA + 2 * j, 2), v(FA + 2 * j, 2), v(XF + 2 * j, 2)))
    rnd(FA)
    for j in range(4):
        A("v_pk_add_f32 %s, %s, %s" % (v(FA + 2 * j, 2), v(FA + 2 * j, 2), v(FB + 2 * j, 2)))
    for j in range(4):
        A(cvt(T + j, FA + 2 * j, FA + 2 * j + 1))
    A("buffer_store_dwordx4 %s, %s, %s, %s offen %s" % (v(T, 4), v(VST), s(SOUT, 4), s(sX), o.get("ofl", "")))
    A("s_add_u32 %s, %s, 4" % (s(sSEG), s(sSEG)))
    A("s_add_u32 %s, %s, %d\ns_add_u32 %s, %s, %d" % (s(sIN), s(sIN), 4 * PARTB, s(sX), s(sX), 4 * 32768))
    A("s_add_u32 %s, %s, 1\ns_cmp_eq_u32 %s, 3\ns_cselect_b32 %s, 0, %s" % (s(sSET3), s(sSET3), s(sSET3), s(sSET3), s(sSET3)))
    A("s_cmp_lt_u32 %s, 64\ns_cbranch_scc1 w_top_z" % s(sSEG))
    A("s_branch w_exit")


def role_init(A):
    A.label("w_init")
    A("v_lshlrev_b32 %s, 7, v0" % v(VT1))
    for r in range(4):
        A("v_mov_b32 %s, 0" % v(r + 4))
    for k in range(2):
        A("s_mov_b32 %s, %d" % (s(sT0), FLAGS + 32768 * k))
        A("buffer_store_dwordx4 %s, %s, %s, %s offen sc1" % (v(4, 4), v(VT1), WS, s(sT0)))
    A("s_waitcnt vmcnt(0)\ns_barrier")
    A("s_cmp_lg_u32 %s, 0\ns_cbranch_scc1 w_exit" % s(sWAVE))
    A("v_mov_b32 %s, 1\ns_mov_b64 exec, 1" % v(VT0))
    A("buffer_store_dword %s, off, %s, 0 offset:%d sc1" % (v(VT0), DBG, DBG_INIT))
    A("s_branch w_exit")


def dispatch(E, opts):
    E("s_branch w_start")


def emit(A0, opts):
    A = Asm()
    A._uid = 50000
    WST[0] = opts.get("wst", False)
    A.label("w_start")
    if WST[0]:
        for k in range(16):
            A("s_mov_b32 %s, 0" % s(70 + k))
    rt(A, 0)
    common(A)
    A("s_branch w_map")
    A.label("w_exit")
    A("s_waitcnt vmcnt(0)")
    if opts.get("hst"):
        A("s_memrealtime s[98:99]\ns_waitcnt lgkmcnt(0)")
        hst(A, [(100, 1, 2), (100, 0, 3), (98, 0, 4)], 0)
    if WST[0]:
        rt(A, 7)
        A("s_cmp_lg_u32 %s, 0\ns_cbranch_scc1 w_exit2" % s(sWAVE))
        for k in range(8):
            A("v_mov_b32 %s, %s" % (v(k), s(70 + 2 * k)))
        A("s_lshl_b32 %s, %s, 5\ns_add_u32 %s, %s, %d" % (s(sT0), s(sROLE), s(sT0), s(sT0), STAMP + 0x80000))
        A("s_mov_b64 exec, 1")
        A("buffer_store_dwordx4 v[0:3], off, %s, %s\nbuffer_store_dwordx4 v[4:7], off, %s, %s offset:16" % (WS, s(sT0), WS, s(sT0)))
        A("s_waitcnt vmcnt(0)")
        A.label("w_exit2")
    A("s_endpgm")
    A.label("w_map")
    PP, TT = sX, sSET3
    A("s_lshr_b32 %s, %s, 5\ns_sub_u32 %s, %s, 1\ns_and_b32 %s, %s, 31" % (s(PP), s(sROLE), s(PP), s(PP), s(TT), s(sROLE)))
    A("s_cmp_ge_u32 %s, 21\ns_cbranch_scc1 w_single" % s(TT))
    A("s_mul_i32 %s, %s, 6\ns_add_u32 %s, %s, %s\ns_sub_u32 %s, %s, 15" % (s(sSEG), s(PP), s(sSEG), s(sSEG), s(TT), s(sSEG), s(sSEG)))
    A("s_cmp_ge_u32 %s, 15\ns_cbranch_scc1 w_ln" % s(TT))
    A("s_mul_i32 %s, %s, 15\ns_add_u32 %s, %s, %s" % (s(sT0), s(PP), s(sT0), s(sT0), s(TT)))
    A("s_cmp_lt_u32 %s, 96\ns_cbranch_scc1 w_kv" % s(sT0))
    A("s_sub_u32 %s, %s, 54" % (s(sSEG), s(sT0)))
    A("s_cmp_lt_u32 %s, 102\ns_cbranch_scc1 w_ln" % s(sT0))
    A("s_mov_b32 %s, 31" % s(sQ))
    A("s_cmp_eq_u32 %s, 102\ns_cbranch_scc1 w_z" % s(sT0))
    A("s_cmp_eq_u32 %s, 103\ns_cbranch_scc1 w_init\ns_branch w_exit" % s(sT0))
    A.label("w_single")
    A("s_sub_u32 %s, %s, 21\ns_mul_i32 %s, %s, 7\ns_add_u32 %s, %s, %s" % (s(sQ), s(TT), s(sQ), s(sQ), s(sQ), s(sQ), s(PP)))
    A("s_cmp_lt_u32 %s, 16\ns_cbranch_scc1 w_pqk" % s(sQ))
    A("s_add_u32 %s, %s, 32" % (s(sQ), s(sQ)))
    A("s_cmp_lt_u32 %s, 62\ns_cbranch_scc1 w_pgu" % s(sQ))
    A("s_sub_u32 %s, %s, 14" % (s(sSEG), s(sQ)))
    A("s_sub_u32 %s, %s, 78\ns_cbranch_scc0 w_z" % (s(sQ), s(sQ)))
    A.label("w_ln")
    layernorm(A)
    rt(A, 3)
    A("s_mov_b32 %s, %s" % (s(sQ), s(sSEG)))
    A("s_cmp_lt_u32 %s, %d\ns_cbranch_scc1 w_xy" % (s(sQ), NXY))
    A("s_sub_u32 %s, %s, %d\ns_branch w_d" % (s(sQ), s(sQ), NXY))
    A.label("w_kv")
    A("s_mul_i32 %s, %s, 171\ns_lshr_b32 %s, %s, 9" % (s(sQ), s(sT0), s(sQ), s(sQ)))
    A("s_mul_i32 %s, %s, 3\ns_sub_u32 %s, %s, %s" % (s(sT1), s(sQ), s(sSEG), s(sT0), s(sT1)))
    A("s_add_u32 %s, %s, 16" % (s(sQ), s(sQ)))
    A("s_sub_u32 %s, %s, 1\ns_cbranch_scc0 w_ism" % (s(sSEG), s(sSEG)))
    A("s_cmp_lt_u32 %s, 32\ns_cbranch_scc1 w_pqk\ns_branch w_pv" % s(sQ))
    A.label("w_ism")
    A("s_cmp_lt_u32 %s, 32\ns_cbranch_scc1 w_mqk\ns_branch w_mv" % s(sQ))
    role_init(A)
    role_z(A, opts)
    for kind in ("gu", "qk", "v"):
        role_p(A, kind, opts)
    for kind in ("qk", "v"):
        role_m(A, kind, opts)
    role_d(A, opts)
    role_xy(A, opts)
    A0.extend(fix_hazards(A.lines))


def role_ranges():
    r = {k: [] for k in ("chain", "KV", "M0", "M1", "Q", "GU", "XY", "D", "Z")}
    for role in range(256):
        p, t = role // 32 - 1, role % 32
        if p < 0:
            k = "chain"
        elif t >= 21:
            j = (t - 21) * 7 + p
            k = "Q" if j < 16 else "GU" if j < 30 else "D" if j < 46 else "Z"
        elif t >= 15:
            k = "XY"
        else:
            j = 15 * p + t
            k = ("KV", "M0", "M1")[j % 3] if j < 96 else "XY" if j < 102 else "Z" if j == 102 else None
        if k:
            r[k].append(role)
    return list(r.items())
```

```python
import sys
from asmlib import *
from layout import *
import chain as C

HEADER_COMMENT = open('cdna_kernels/%s.s.ref' % NAME).read().split('; Override launch')[0]


DEFAULT = dict(z1=12, ack1=[2, 1, 0, 0], ack2=1, two1=[0, 0, 0, 1], two2=1, n1=0, n2=6, n3=6)


def build(opts):
    K = NAME + "_kernel"
    A = Asm()
    E = Asm()
    E("s_cmp_ge_u32 s2, 256\ns_cbranch_scc1 k_exit")
    if opts.get("total") or opts.get("stamps"):
        E("s_memtime s[96:97]")
    if opts.get("hst"):
        E("s_memrealtime s[100:101]")
    E("s_load_dwordx4 s[28:31], s[0:1], 96")
    E("s_getreg_b32 s34, hwreg(HW_REG_XCC_ID, 0, 4)")
    E("v_lshrrev_b32 v1, 6, v0")
    E("s_mov_b32 s35, 0x%x" % opts.get("budget", 0x10000))
    E("s_mov_b32 s94, 0\ns_mov_b32 s95, 0")
    E("v_readfirstlane_b32 s33, v1")
    E("s_and_b32 s34, s34, 7")
    E("s_waitcnt lgkmcnt(0)")
    E("s_mov_b32 s4, s30\ns_mov_b32 s5, s31\ns_mov_b32 s6, 0x%x\ns_mov_b32 s7, 0x20000" % WS_SIZE)
    E("s_mov_b32 s30, 256\ns_mov_b32 s31, 0x20000")
    E("s_cmp_lg_u32 s33, 0\ns_cbranch_scc1 k_noticket")
    E("s_mov_b32 s36, s34\ns_mov_b32 s37, 0")
    if opts.get("scatter"):
        E("s_lshr_b32 s36, s2, %d\ns_and_b32 s36, s36, %d" % tuple(opts["scatter"]))
    E("s_mov_b64 exec, 1")
    E.label("k_ticket")
    E("v_mov_b32 v2, 1")
    E("s_lshl_b32 s38, s36, 5")
    if opts.get("tk", 1):
        E("s_mul_i32 s40, s36, 24\ns_cmp_eq_u32 s36, 0\ns_cselect_b32 s40, 192, s40")
        E("buffer_atomic_add v2, off, s[28:31], s40 sc0")
    else:
        E("buffer_atomic_add v2, off, s[28:31], s38 sc0")
    E("s_waitcnt vmcnt(0)")
    E("v_readfirstlane_b32 s39, v2")
    E("s_cmp_lt_u32 s39, 32\ns_cbranch_scc1 k_gotticket")
    E("s_add_u32 s36, s36, 1\ns_and_b32 s36, s36, 7\ns_add_u32 s37, s37, 1")
    E("s_cmp_lt_u32 s37, 8\ns_cbranch_scc1 k_ticket")
    E("s_mov_b32 s38, 256\ns_mov_b32 s39, 0")
    E.label("k_gotticket")
    E("s_add_u32 s39, s39, s38")
    E("v_mov_b32 v2, s39\nv_mov_b32 v3, 0")
    E("ds_write_b32 v3, v2")
    E("s_waitcnt lgkmcnt(0)")
    E("s_mov_b64 exec, -1")
    E.label("k_noticket")
    E("s_barrier")
    E("v_mov_b32 v3, 0")
    E("ds_read_b32 v2, v3")
    E("s_waitcnt lgkmcnt(0)")
    E("v_readfirstlane_b32 s32, v2")
    E("s_barrier")
    E("s_cmp_lt_u32 s32, 32\ns_cbranch_scc1 k_chain")
    if opts.get("standalone_chain"):
        E("s_cmp_lg_u32 s32, 255\ns_cbranch_scc1 k_exit")
        E("v_mov_b32 v2, 1\ns_mov_b64 exec, 1")
        E("buffer_store_dword v2, off, s[28:31], 0 offset:%d sc1" % DBG_INIT)
        E("s_waitcnt vmcnt(0)")
    else:
        import workers
        workers.dispatch(E, opts)
    E.label("k_exit")
    E("s_endpgm")
    A.extend(fix_hazards(E.lines))
    A.label("k_chain")
    C.Chain(opts).emit(A)
    if not opts.get("standalone_chain"):
        import workers
        workers.emit(A, opts)
    A("s_endpgm")
    out = HEADER_COMMENT
    out += "; @launch grid=(256,1,1) block=(256,1,1) lds=%d\n" % LDS_BYTES
    out += '.amdgcn_target "amdgcn-amd-amdhsa--gfx950"\n.text\n.globl %s\n.p2align 8\n.type %s,@function\n%s:\n' % (K, K, K)
    out += "\n".join(("" if l.endswith(":") or l.startswith(".") else "  ") + l for l in A.lines) + "\n"
    out += """.section .rodata,"a"
.p2align 6
.amdhsa_kernel %s
  .amdhsa_next_free_vgpr 512
  .amdhsa_next_free_sgpr 102
  .amdhsa_accum_offset 256
  .amdhsa_group_segment_fixed_size 0
  .amdhsa_kernarg_size 112
  .amdhsa_user_sgpr_count 2
  .amdhsa_user_sgpr_kernarg_segment_ptr 1
  .amdhsa_system_sgpr_workgroup_id_x 1
.end_amdhsa_kernel
""" % K
    return out


if __name__ == "__main__":
    import json
    opts = dict(DEFAULT)
    opts.update(json.loads(sys.argv[2]) if len(sys.argv) > 2 else {})
    open(sys.argv[1], "w").write(build(opts))
```

```python
from asmlib import *
from layout import *

WS = "s[4:7]"
SQ, SK, SV, SO, SM0 = 8, 12, 16, 20, 24
sROLE, sWAVE, sXCC, sBUD = 32, 33, 34, 35
sH, sSTEP, sH2L, sH1S0, sH1L, sKX, sVX, sH1S1, sPH = 36, 37, 38, 39, 40, 41, 42, 43, 44
sKM, sVM, sFLAG, _unused, sH2S, sPF, sPROG, sT0, sT1, sBIG = 45, 46, 47, 48, 49, 50, 51, 52, 53, 54
sC1S, sC1L, sH1L2, sNEED = 55, 56, 57, 58
sH2C, sSEEN, sFS = 48, 59, 55
sMX = 24
sFL = 8
sCM = 98
sST = 60

MEM = 112
AQ, AK, AV = 144, 152, 160
KXR, VXR = 168, 176
P = [184 + 8 * i for i in range(6)]
T0, T1 = 232, 236
IDX, VH2, SELQ, SELK, HALF, SELR = 240, 241, 242, 244, 246, 248
VL0, VL1, VSX, VH1 = 252, 253, 254, 255
VPFA, VPFD, VPRG = 248, 249, 250

LB = 147456
RA, RB = 0, 8192
WREG = 36864

STREAM_UNITS = [("Q", 0), ("K", 0), ("Q", 1), ("K", 5), ("K", 6), ("K", 7), ("O", 1, 1), ("O", 2, 1), ("O", 3, 1)]
ALL_UNITS = ([("Q", i) for i in range(8)] + [("K", i) for i in range(8)] + [("V", i) for i in range(8)]
             + [("O", u, p) for u in range(4) for p in range(2)])
RES_UNITS = [u for u in ALL_UNITS if u not in STREAM_UNITS]
assert len(RES_UNITS) == 23
RES_REG = {}
for i, u in enumerate(RES_UNITS):
    RES_REG[u] = 256 + 16 * i if i < 16 else 16 * (i - 16)
CUR = [0]


def slot_of(unit):
    if unit[0] == "K":
        return {0: 5, 5: 6, 6: 7, 7: 8}[unit[1]]
    if unit[0] == "Q":
        return 2 + unit[1]
    order = [u for u in ((gu - CUR[0]) % 4 for gu in range(4)) if u]
    return (4, 0, 1)[order.index(unit[1])]


STAGE = {
    ("Q", 0, 0): P[0], ("Q", 0, 1): P[1], ("K", 0, 0): P[2], ("K", 0, 1): P[3], ("Q", 1, 0): P[4], ("Q", 1, 1): P[5],
    ("K", 5, 0): P[0], ("K", 6, 0): P[1], ("K", 7, 0): P[2], ("K", 5, 1): P[3], ("K", 6, 1): P[4], ("K", 7, 1): P[5],
    ("O", 1, 1, 0): P[4], ("O", 1, 1, 1): P[5], ("O", 2, 1, 0): MEM, ("O", 2, 1, 1): MEM + 8,
    ("O", 3, 1, 0): MEM + 16, ("O", 3, 1, 1): MEM + 24,
}


def opreg(unit, t):
    if unit in RES_REG:
        return RES_REG[unit] + 8 * t
    return STAGE[unit + (t,)]


def stream_rd(unit, t):
    r = STAGE[unit + (t,)]
    off = slot_of(unit) * 4096 + t * 2048
    return ["ds_read_b128 %s, %s offset:%d" % (v(r, 4), v(VL0), off),
            "ds_read_b128 %s, %s offset:%d" % (v(r + 4, 4), v(VL0), off + 1024)]


def smf(acc, aop, breg):
    return "v_smfmac_f32_16x16x64_bf16 %s, %s, %s, %s" % (v(acc, 4), v(aop, 4), R(breg, 8), v(IDX))


def W(m, t, i):
    acc = {"Q": AQ, "K": AK, "V": AV}[m] + 4 * t
    return smf(acc, MEM + 4 * i, opreg((m, i), t))


ACCO = [AK, AK + 4, P[0] + 4, T1]
OOP = [AV, AV + 4, P[1], P[3] + 4]


def WO(a_, u):
    return smf(ACCO[a_], OOP[u], opreg(("O", u, a_ // 2), a_ % 2))


def mf16(d, a_, b_, c=None):
    return "v_mfma_f32_16x16x16_bf16 %s, %s, %s, %s" % (v(d, 4), v(a_, 2), v(b_, 2), "0" if c is None else v(c, 4))


def mf32(d, a_, b_, c=None):
    return "v_mfma_f32_16x16x32_bf16 %s, %s, %s, %s" % (v(d, 4), v(a_, 4), v(b_, 4), "0" if c is None else v(c, 4))


def cvt(d, x, y):
    return "v_cvt_pk_bf16_f32 %s, %s, %s" % (v(d), v(x), v(y))


def zero(r):
    return "v_mov_b32 %s, 0" % v(r)


class Chain:
    def __init__(self, opts):
        self.o = opts
        self.dbg = opts.get("stamps", False)
        self.tot = self.dbg or opts.get("total", False)

    def prologue(self, A, w):
        o = self.o
        nt = "nt " if o.get("w_nt", False) else ""
        A("s_mov_b32 %s, %s" % (s(sH), s(sROLE)))
        if o.get("hst"):
            A("s_memrealtime s[86:87]")
        A("s_load_dwordx4 s[8:11], s[0:1], 8")
        A("s_load_dwordx4 s[12:15], s[0:1], 24")
        A("s_load_dwordx2 s[20:21], s[0:1], 40")
        A("s_waitcnt lgkmcnt(0)")
        A("s_mov_b32 s24, s8\ns_mov_b32 s25, s9\ns_mov_b32 s26, 8192\ns_mov_b32 s27, 0x20000")
        A("s_mov_b32 s8, s10\ns_mov_b32 s9, s11\ns_mov_b32 s10, 0x400000\ns_mov_b32 s11, 0x20000")
        A("s_mov_b32 s16, s14\ns_mov_b32 s17, s15\ns_mov_b32 s18, 0x400000\ns_mov_b32 s19, 0x20000")
        A("s_mov_b32 s14, 0x400000\ns_mov_b32 s15, 0x20000")
        A("s_mov_b32 s22, 0x400000\ns_mov_b32 s23, 0x20000")
        L, N, G = T0, T0 + 1, T0 + 2
        X, Y, Z = T1, T1 + 1, T1 + 2
        DW, DO, TRW, TRO, M0A, INI, RDY, PRK, PRV, MCD = AK, AK + 2, AK + 4, AK + 8, AK + 10, AK + 11, AK + 12, AK + 13, AK + 14, AK + 15
        sWB, sOB = sKM, sVM
        vq = []

        def vm(line, tag=None):
            A(line)
            vq.append(tag)

        def vwait(tag):
            last = max(i for i, x in enumerate(vq) if x == tag)
            A("s_waitcnt vmcnt(%d)" % (len(vq) - 1 - last))
            del vq[:last + 1]

        self.vm = vm
        stages = ([("K", i) for i in range(8)] + [("V", i) for i in range(8)] + [("O", i, 0) for i in range(4)]
                  + [("Q", i) for i in range(8)] + [("O", i, 1) for i in range(4)])
        RING = 5

        def dma(n):
            st = stages[n]
            for q in range(4):
                A("s_mov_b32 m0, %d" % (w * WREG + (n % RING) * 4096 + q * 1024))
                if st[0] == "O":
                    off = st[1] * 32768 + 512 * st[2] + (8 * (w // 2) + 2 * (w % 2) + 16 * (q % 2) + 4 * (q // 2)) * 1024
                    srd, vo, sb = SO, DO, sOB
                else:
                    off = (64 * st[1] + 16 * (w // 2) + 2 * (w % 2) + 4 * q) * 8192
                    srd, vo, sb = {"Q": SQ, "K": SK, "V": SV}[st[0]], DW, sWB
                A("s_add_u32 %s, %s, %d" % (s(sT1), s(sb), off))
                vm("buffer_load_dwordx4 %s, %s, %s offen %slds" % (v(vo + q % 2), s(srd, 4), s(sT1), nt), n)

        A("v_and_b32 %s, 63, v0" % v(L))
        A("v_and_b32 %s, 15, %s" % (v(N), v(L)))
        A("v_lshrrev_b32 %s, 4, %s" % (v(G), v(L)))
        A("v_and_b32 %s, 1, %s" % (v(X), v(G)))
        A("v_lshrrev_b32 %s, 1, %s" % (v(Y), v(G)))
        A("v_lshl_add_u32 %s, %s, 5, %s" % (v(X), v(Y), v(X)))
        A("v_lshlrev_b32 %s, 13, %s" % (v(X), v(X)))
        A("v_lshlrev_b32 %s, 1, %s" % (v(Z), v(G)))
        A("v_xor_b32 %s, %s, %s" % (v(Z), v(Z), v(N)))
        A("v_lshl_add_u32 %s, %s, 4, %s" % (v(DW), v(Z), v(X)))
        A("v_xor_b32 %s, 128, %s" % (v(DW + 1), v(DW)))
        A("s_lshl_b32 %s, %s, 8\ns_lshl_b32 %s, %s, 17" % (s(sWB), s(sH), s(sOB), s(sH)))
        DEP = o.get("dep", 4)
        for n in range(DEP):
            dma(n)
        A("v_and_b32 %s, 31, %s" % (v(X), v(L)))
        A("v_lshlrev_b32 %s, 2, %s" % (v(Z), v(Y)))
        A("v_xor_b32 %s, %s, %s" % (v(X), v(X), v(Z)))
        A("v_lshlrev_b32 %s, 4, %s" % (v(X), v(X)))
        A("v_lshl_add_u32 %s, %s, 10, %s" % (v(DO), v(Y), v(X)))
        A("v_xor_b32 %s, 128, %s" % (v(DO + 1), v(DO)))
        A("s_mov_b32 %s, %d" % (s(sT0), w * WREG))
        A("v_lshrrev_b32 %s, 2, %s" % (v(X), v(L)))
        A("v_and_b32 %s, 7, %s" % (v(Z), v(X)))
        A("v_xor_b32 %s, %d, %s" % (v(Z), 2 * w, v(Z)))
        A("v_lshlrev_b32 %s, 8, %s" % (v(X), v(X)))
        A("v_lshl_add_u32 %s, %s, 5, %s" % (v(X), v(Z), v(X)))
        A("v_and_b32 %s, 3, %s" % (v(Y), v(L)))
        A("v_lshl_add_u32 %s, %s, 3, %s" % (v(TRW), v(Y), v(X)))
        A("v_xor_b32 %s, 32, %s" % (v(TRW + 1), v(TRW)))
        A("v_add_u32 %s, %d, %s" % (v(TRW + 2), 2 * WREG, v(TRW)))
        A("v_add_u32 %s, %d, %s" % (v(TRW + 3), 2 * WREG, v(TRW + 1)))
        A("v_bfe_u32 %s, %s, 2, 1" % (v(X), v(L)))
        A("v_lshl_add_u32 %s, %s, 1, %s" % (v(X), v(G), v(X)))
        A("v_and_b32 %s, 3, %s" % (v(Z), v(X)))
        A("v_xor_b32 %s, %d, %s" % (v(Z), w, v(Z)))
        A("v_lshlrev_b32 %s, 9, %s" % (v(X), v(X)))
        A("v_lshl_add_u32 %s, %s, 6, %s" % (v(X), v(Z), v(X)))
        A("v_lshl_add_u32 %s, %s, 4, %s" % (v(X), v(Y), v(X)))
        A("v_bfe_u32 %s, %s, 3, 1" % (v(Y), v(L)))
        A("v_lshl_add_u32 %s, %s, 3, %s" % (v(TRO), v(Y), v(X)))
        A("v_add_u32 %s, %d, %s" % (v(TRO + 1), 2 * WREG, v(TRO)))
        CB, N4 = T0 + 3, T1 + 3
        A("v_bfe_u32 %s, %s, 1, 1" % (v(CB), v(L)))
        A("v_bfe_u32 %s, %s, 2, 2" % (v(N4), v(L)))
        A("v_lshlrev_b32 %s, 4, %s" % (v(X), v(L)))
        A("v_add_u32 %s, %s, %s" % (v(VL0), s(sT0), v(X)))
        A("v_add_u32 %s, %d, %s" % (v(VL1), LB, v(X)))
        A("v_lshl_add_u32 %s, %s, 10, %s" % (v(VSX), v(CB), v(VL1)))
        A("v_lshrrev_b32 %s, 3, %s" % (v(X), v(L)))
        A("s_lshl1_add_u32 %s, %s, %s" % (s(sT1), s(sWAVE), s(sH)))
        A("v_lshl_add_u32 %s, %s, 2, %s" % (v(Y), v(X), s(sT1)))
        A("v_and_b32 %s, 31, %s" % (v(Y), v(Y)))
        A("v_lshlrev_b32 %s, 13, %s" % (v(X), v(X)))
        A("v_lshl_add_u32 %s, %s, 6, %s" % (v(X), v(Y), v(X)))
        A("v_and_b32 %s, 7, %s" % (v(Y), v(L)))
        A("v_lshl_add_u32 %s, %s, 3, %s" % (v(VH1), v(Y), v(X)))
        A("v_mul_u32_u24 %s, 0xAAAA, %s" % (v(IDX), v(CB)))
        A("v_add_u32 %s, 0x4444, %s" % (v(IDX), v(IDX)))
        A("v_mov_b32 %s, 0x3F003F00\nv_mov_b32 %s, 0x3F003F00" % (v(HALF), v(HALF + 1)))
        A("v_and_b32 %s, 1, %s" % (v(X), v(L)))
        A("v_lshlrev_b32 %s, 4, %s" % (v(X), v(X)))
        A("v_cmp_eq_u32 vcc, %s, %s" % (v(G), v(N4)))
        for base, val in ((SELQ, SA_BF), (SELK, SB_BF)):
            A("v_mov_b32 %s, 0x%x" % (v(Y), val))
            A("v_lshlrev_b32 %s, %s, %s" % (v(Y), v(X), v(Y)))
            A("v_cndmask_b32 %s, 0, %s, vcc" % (v(base), v(Y)))
            A("v_mov_b32 %s, %s" % (v(base + 1), v(base)))
        A("v_bfe_u32 %s, %s, 2, 1" % (v(X), v(L)))
        A("v_lshlrev_b32 %s, 4, %s" % (v(X), v(X)))
        A("v_mov_b32 %s, 0x3F80" % v(Y))
        A("v_lshlrev_b32 %s, %s, %s" % (v(Y), v(X), v(Y)))
        A("v_bfe_u32 %s, %s, 3, 1" % (v(Z), v(L)))
        A("v_and_b32 %s, 1, %s" % (v(X), v(L)))
        A("v_lshl_add_u32 %s, %s, 1, %s" % (v(Z), v(X), v(Z)))
        for rho in range(4):
            A("v_cmp_eq_u32 vcc, %d, %s" % (rho, v(Z)))
            A("v_cndmask_b32 %s, 0, %s, vcc" % (v(SELR + rho), v(Y)))
        A("v_lshlrev_b32 %s, 2, %s" % (v(X), v(X)))
        NR = o.get("rep", 1)
        A("v_and_b32 %s, %d, %s" % (v(Y), NR - 1, v(N4)))
        A("v_mul_u32_u24 %s, %d, %s" % (v(Y), REPB, v(Y)))
        A("v_add_u32 %s, %s, %s" % (v(X), v(Y), v(X)))
        A("v_lshrrev_b32 %s, %d, %s" % (v(Y), NR // 2, v(N4)))
        A("v_lshl_add_u32 %s, %s, 28, %s" % (v(X), v(Y), v(X)))
        A("v_lshl_add_u32 %s, %s, 8, %s" % (v(X), v(CB), v(X)))
        A("v_and_b32 %s, 16, %s" % (v(Y), v(L)))
        A("v_add_u32 %s, %s, %s" % (v(X), v(Y), v(X)))
        A("v_bfe_u32 %s, %s, 5, 1" % (v(Y), v(L)))
        A("v_lshl_add_u32 %s, %s, 3, %s" % (v(VH2), v(Y), v(X)))
        A("v_and_b32 %s, 1, %s" % (v(X), v(L)))
        A("v_lshl_add_u32 %s, %s, 1, %s" % (v(X), v(N4), v(X)))
        A("v_lshlrev_b32 %s, 10, %s" % (v(X), v(X)))
        A("v_lshl_add_u32 %s, %s, 6, %s" % (v(X), v(CB), v(X)))
        A("v_lshl_add_u32 %s, %s, 4, %s" % (v(M0A), v(G), v(X)))

        self.poison_init(A)
        A("s_mov_b32 %s, 0" % s(sSTEP))
        A("s_lshl_b32 %s, %s, 11" % (s(sT0), s(sWAVE)))
        A("s_and_b32 %s, %s, %d\ns_mul_i32 %s, %s, %d" % (s(sC1L), s(sH), NR - 1, s(sC1L), s(sC1L), REPB))
        A("s_add_u32 %s, %s, %s\ns_add_u32 %s, %s, %d" % (s(sH2L), s(sT0), s(sC1L), s(sH2L), s(sH2L), MEMB - LB))
        A("s_lshr_b32 %s, %s, 4\ns_lshl_b32 %s, %s, 10\ns_add_u32 %s, %s, %s" % (s(sT1), s(sH), s(sT1), s(sT1), s(sT1), s(sT1), s(sT0)))
        A("s_and_b32 %s, %s, 6\ns_lshl_b32 %s, %s, 5\ns_add_u32 %s, %s, %s" % (s(sPH), s(sH), s(sPH), s(sPH), s(sT1), s(sT1), s(sPH)))
        A("s_and_b32 %s, %s, 8\ns_lshl2_add_u32 %s, %s, %s" % (s(sPH), s(sH), s(sT1), s(sPH), s(sT1)))
        A("s_and_b32 %s, %s, 1\ns_lshl_b32 %s, %s, 9\ns_add_u32 %s, %s, %s" % (s(sPH), s(sH), s(sPH), s(sPH), s(sT1), s(sT1), s(sPH)))
        A("s_add_u32 %s, %s, %d" % (s(sH2S), s(sT1), MEMB + 8192))
        A("s_add_u32 %s, %s, %d" % (s(sH2C), s(sT1), MEMC))
        A("s_lshl_b32 %s, %s, 16" % (s(sH1S0), s(sWAVE)))
        A("s_add_u32 %s, %s, %d" % (s(sH1S0), s(sH1S0), INB1))
        A("s_add_u32 %s, %s, 4096" % (s(sH1S1), s(sH1S0)))
        A("s_lshl_b32 %s, %s, 13" % (s(sT1), s(sH)))
        A("s_add_u32 %s, %s, %s" % (s(sKX), s(sT1), s(sT0)))
        A("s_add_u32 %s, %s, %d" % (s(sH1L), s(sKX), INB1 - LB))
        A("s_mov_b32 %s, 0" % s(sPH))
        A("s_add_u32 %s, %s, %d" % (s(sKX), s(sKX), KX - LB))
        A("s_add_u32 %s, %s, %d" % (s(sVX), s(sKX), VX - KX))
        A("s_cmp_eq_u32 %s, 2" % s(sWAVE))
        A("s_cselect_b32 %s, %d, 0" % (s(sPF), VX - KX))
        A("s_add_u32 %s, %s, %d" % (s(sPF), s(sPF), KX + 262144 - 8 * LB))
        A("s_add_u32 %s, %s, %s" % (s(sPF), s(sPF), s(sT1)))
        A("s_cmp_eq_u32 %s, 3" % s(sWAVE))
        A("s_cselect_b32 %s, %d, %s" % (s(sPF), MEMB + 8192 - 8 * LB, s(sPF)))
        if w == 3:
            A("s_add_u32 %s, %s, %s" % (s(sPF), s(sPF), s(sC1L)))
        A("s_cmp_eq_u32 %s, 2" % s(sWAVE))
        A("s_cselect_b32 %s, %d, 0" % (s(sPROG), 16 * 128))
        A("s_add_u32 %s, %s, %d" % (s(sPROG), s(sPROG), FLAGS + F_P + 16 * 128))
        A("s_lshr_b32 %s, %s, 1\ns_lshl_b32 %s, %s, 7" % (s(sT1), s(sH), s(sT1), s(sT1)))
        A("s_add_u32 %s, %s, %s" % (s(sPROG), s(sPROG), s(sT1)))
        A("s_mov_b32 %s, 0x%x" % (s(sBIG), 0 if o.get("forcefb") else 0x5D800000))
        A("s_mov_b32 %s, 0xCCCCCCCC\ns_mov_b32 %s, 0xCCCCCCCC" % (s(sCM), s(sCM + 1)))
        for q in range(2):
            vm("buffer_load_dwordx4 %s, %s, %s, 0 offen offset:%d" % (v(MEM + 4 * q, 4), v(M0A), s(SM0, 4), 256 * w + 128 * q))
        A("v_and_b32 %s, 12, %s" % (v(X), v(VH2)))
        A("v_bfe_u32 %s, %s, 4, 1" % (v(Y), v(VH2)))
        A("v_lshl_add_u32 %s, %s, 10, %s" % (v(X), v(Y), v(X)))
        A("v_bfe_u32 %s, %s, 8, 1" % (v(Y), v(VH2)))
        A("v_lshl_add_u32 %s, %s, 4, %s" % (v(X), v(Y), v(X)))
        A("s_and_b32 %s, %s, 6\ns_lshl_b32 %s, %s, 10\ns_and_b32 %s, %s, 24\ns_lshl3_add_u32 %s, %s, %s" % (
            s(sT0), s(sH), s(sT0), s(sT0), s(sT1), s(sH), s(sT0), s(sT1), s(sT0)))
        A("s_and_b32 %s, %s, 1\ns_lshl_b32 %s, %s, 5\ns_add_u32 %s, %s, %s" % (
            s(sT1), s(sH), s(sT1), s(sT1), s(sT0), s(sT0), s(sT1)))
        vm("buffer_load_dword %s, %s, %s, %s offen offset:%d" % (v(MCD), v(X), s(SM0, 4), s(sT0), 256 * w))
        A("v_lshlrev_b32 %s, 3, %s" % (v(T0), v(VL1)))
        HOLD = {("Q", 0): P[0], ("Q", 1): P[4], ("O", 1, 1): P[2], ("O", 2, 1): MEM + 8, ("O", 3, 1): MEM + 24}
        held = []

        def put(u, src):
            for q in range(4):
                A("ds_write_b128 %s, %s offset:%d" % (v(VL0), v(src + 4 * q, 4), slot_of(u) * 4096 + q * 1024))

        pft = "buffer_load_dword %s, %s, %%s offen lds" % (v(T0), WS)
        for n, st in enumerate(stages):
            vwait(n)
            A("s_waitcnt lgkmcnt(0)\ns_barrier")
            if n + DEP < 32:
                dma(n + DEP)
            u = ("O", (st[1] - w) % 4, st[2]) if st[0] == "O" else (st[0], (st[1] - 2 * w) % 8)
            dst = RES_REG[u] if u in RES_REG else HOLD.get(u, P[0])
            for t_ in range(2):
                for r in range(4):
                    off = (r % 2) * WREG + (n % RING) * 4096
                    ad = (TRO + r // 2, off + 256 * t_) if st[0] == "O" else (TRW + t_ + 2 * (r // 2), off)
                    A("ds_read_b64_tr_b16 %s, %s offset:%d" % (R(dst + 8 * t_ + 2 * r, 2), v(ad[0]), ad[1]))
            if n >= 28:
                c = [x for x in held if slot_of(x) == (n - 1) % RING]
                put(c[0], HOLD[c[0]])
                held.remove(c[0])
            if u in HOLD:
                held.append(u)
            elif u not in RES_REG:
                A("s_waitcnt lgkmcnt(0)")
                put(u, dst)
            if n == 5 and w == 0:
                A("s_cmp_lg_u32 %s, 0\ns_cselect_b32 %s, 0x10001, 1" % (s(sXCC), s(sT0)))
                A("v_mov_b32 %s, %s" % (v(X), s(sT0)))
                A("s_mov_b64 exec, 1")
                vm("buffer_atomic_add %s, off, s[28:31], 0 offset:%d" % (v(X), DBG_CHAIN_READY))
                A("s_mov_b64 exec, -1")
            if n == 14:
                vm("buffer_load_dword %s, off, s[28:31], 0 offset:%d sc1" % (v(INI), DBG_INIT))
                vm("buffer_load_dword %s, off, s[28:31], 0 offset:%d sc1" % (v(RDY), DBG_CHAIN_READY))
            if n == 20:
                lab = A.uid("c_fl")
                A("v_readfirstlane_b32 %s, %s\nv_readfirstlane_b32 %s, %s" % (s(sT0), v(INI), s(sT1), v(RDY)))
                A("s_lshl_b32 %s, %s, 5\ns_and_b32 %s, %s, %s\ns_cbranch_scc1 %s" % (s(sT0), s(sT0), s(sT0), s(sT0), s(sT1), lab))
                self.wait_dbg(A, DBG_INIT, 1, mask=None)
                self.wait_dbg(A, DBG_CHAIN_READY, 32, mask=0xFFFF)
                A.label(lab)
                A("s_lshr_b32 %s, %s, 16" % (s(sXCC), s(sT1)))
            if n == 31 - DEP:
                A("s_add_u32 %s, %s, %d" % (s(sT0), s(sPROG), -2048 if w == 2 else 2048))
                vm("buffer_load_dword %s, off, %s, %s sc1" % (v(PRK), WS, s(sPROG)), "prg")
                vm("buffer_load_dword %s, off, %s, %s sc1" % (v(PRV), WS, s(sT0)), "prg")
                if w in (0, 3):
                    A("s_mov_b32 m0, %d" % (LB + RB + 4096))
                    A("s_lshl_b32 %s, %s, 13\ns_add_u32 %s, %s, %d" % (s(sT0), s(sH), s(sT0), s(sT0), INB1 - 8 * LB))
                    vm(pft % s(sT0 if w == 0 else sPF))
        A("s_mov_b32 m0, %d" % (LB + RB + 4096 + (0 if w else 1024)))
        vwait("prg")
        A("v_min_u32 %s, %s, %s" % (v(PRK), v(PRK), v(PRV)))
        A("s_mov_b32 %s, %d" % (s(sNEED), o.get("need0", 2)))
        A("v_readfirstlane_b32 %s, %s" % (s(sSEEN), v(PRK)))
        lab = A.uid("c_rdy")
        A("s_cmp_ge_u32 %s, %s\ns_cbranch_scc1 %s" % (s(sSEEN), s(sNEED), lab))
        A("s_xor_b32 %s, %s, %d" % (s(sPROG), s(sPROG), 0x1800))
        self.progress(A)
        A("s_xor_b32 %s, %s, %d" % (s(sPROG), s(sPROG), 0x1800))
        self.progress(A)
        A.label(lab)
        for r, sb in ((KXR, sKX),):
            A("buffer_load_dwordx4 %s, %s, %s, %s offen sc1" % (v(r, 4), v(VL1), WS, s(sb)))
            A("buffer_load_dwordx4 %s, %s, %s, %s offen offset:1024 sc1" % (v(r + 4, 4), v(VL1), WS, s(sb)))
        if w == 3:
            A("s_add_u32 %s, %s, 8192" % (s(sPF), s(sPF)))
        A("s_add_u32 %s, %s, 262144" % (s(sKX), s(sKX)))
        A("v_mov_b32 %s, %s" % (v(T0 + 1), v(MCD)))
        A("s_and_b32 %s, %s, %d\ns_lshl_b32 %s, %s, 1\ns_lshl_b64 %s, %d, %s" % (
            s(sT0), s(sH), 32 - NR, s(sT0), s(sT0), s(sMX, 2), (1 << (2 * NR)) - 1, s(sT0)))
        A("s_mov_b32 %s, 0x000f000f\ns_mov_b32 %s, 0x000f000f" % (s(sMX + 2), s(sMX + 3)))
        A("s_waitcnt lgkmcnt(0)\ns_barrier")
        put(held[0], HOLD[held[0]])
        A("s_waitcnt lgkmcnt(0)")
        A("\n".join(stream_rd(("K", 0), 0) + stream_rd(("K", 0), 1)))
        self.window_b(A)
        A("s_waitcnt lgkmcnt(0)")
        if self.dbg:
            self.calib(A, 0)
        if self.tot:
            A("s_memtime s[92:93]\ns_memrealtime s[88:89]\ns_waitcnt lgkmcnt(0)")
        if o.get("hst"):
            A("s_memrealtime s[88:89]\ns_waitcnt lgkmcnt(0)")
        A("s_cmp_lg_u32 %s, 0\ns_cbranch_scc1 c_entry_1_%d\ns_branch c_entry_0_%d" % (s(sXCC), w, w))

    def calib(self, A, slot):
        lab = A.uid("c_cal")
        A("s_memrealtime s[60:61]\ns_waitcnt lgkmcnt(0)")
        A.label(lab)
        A("s_memrealtime s[62:63]\ns_memtime s[64:65]\ns_waitcnt lgkmcnt(0)")
        A("s_cmp_eq_u32 s62, s60\ns_cbranch_scc1 %s" % lab)
        A("v_mov_b32 %s, s62\nv_mov_b32 %s, s64" % (v(T0), v(T0 + 1)))
        A("s_lshl_b32 %s, %s, 6\ns_lshl_b32 %s, %s, 4\ns_add_u32 %s, %s, %s\ns_add_u32 %s, %s, %d" % (
            s(sT0), s(sH), s(sT1), s(sWAVE), s(sT0), s(sT0), s(sT1), s(sT0), s(sT0), STAMP + 2048 + 8 * slot))
        A("buffer_store_dwordx2 %s, off, %s, %s" % (v(T0, 2), WS, s(sT0)))
        A("s_waitcnt vmcnt(0)")

    def poison_init(self, A):
        PO = KXR
        for i in range(4):
            A("v_mov_b32 %s, -1" % v(PO + i))
        A("s_lshl_b32 %s, %s, 13\ns_lshl_b32 %s, %s, 11" % (s(sT0), s(sH), s(sT1), s(sWAVE)))
        A("s_add_u32 %s, %s, %s\ns_add_u32 %s, %s, %d" % (s(sT0), s(sT0), s(sT1), s(sT0), s(sT0), INB1 - LB))
        for q in range(2):
            self.vm("buffer_store_dwordx4 %s, %s, %s, %s offen offset:%d sc1" % (v(PO, 4), v(VL1), WS, s(sT0), 1024 * q))
        X = PO + 4
        A("v_lshlrev_b32 %s, 13, %s" % (v(X), v(T0 + 2)))
        A("v_lshl_add_u32 %s, %s, 4, %s" % (v(X), v(T0 + 1), v(X)))
        A("s_lshl_b32 %s, %s, 8\ns_lshl_b32 %s, %s, 17" % (s(sT0), s(sH), s(sT1), s(sWAVE)))
        A("s_add_u32 %s, %s, %s\ns_add_u32 %s, %s, %d" % (s(sT0), s(sT0), s(sT1), s(sT0), s(sT0), MEMB))
        for q in range(4):
            self.vm("buffer_store_dwordx4 %s, %s, %s, %s offen sc1" % (v(PO, 4), v(X), WS, s(sT0)))
            for r_ in range(1, self.o.get("rep", 1)):
                A("s_add_u32 %s, %s, %d" % (s(sT1), s(sT0), r_ * REPB))
                self.vm("buffer_store_dwordx4 %s, %s, %s, %s offen sc1" % (v(PO, 4), v(X), WS, s(sT1)))
            A("s_add_u32 %s, %s, %d" % (s(sT1), s(sT0), MEMC - MEMB))
            self.vm("buffer_store_dwordx4 %s, %s, %s, %s offen sc1" % (v(PO, 4), v(X), WS, s(sT1)))
            A("s_add_u32 %s, %s, 32768" % (s(sT0), s(sT0)))

    def budget(self, A, give_up):
        A("s_cmp_eq_u32 %s, 0\ns_cbranch_scc1 %s\ns_sub_u32 %s, %s, 1" % (s(sBUD), give_up, s(sBUD), s(sBUD)))

    def wait_dbg(self, A, off, want, mask):
        top, done = A.uid("c_wd"), A.uid("c_wdd")
        A.label(top)
        A("buffer_load_dword %s, off, s[28:31], 0 offset:%d sc1" % (v(T1), off))
        A("s_waitcnt vmcnt(0)")
        A("v_readfirstlane_b32 %s, %s" % (s(sT1), v(T1)))
        if mask is None:
            A("s_cmp_ge_u32 %s, %d" % (s(sT1), want))
        else:
            A("s_and_b32 %s, %s, 0x%x\ns_cmp_ge_u32 %s, %d" % (s(sT0), s(sT1), mask, s(sT0), want))
        A("s_cbranch_scc1 %s" % done)
        self.budget(A, done)
        A("s_sleep 2\ns_branch %s" % top)
        A.label(done)

    def spin_ge(self, A, soff, want, vreg):
        top, done = A.uid("c_sp"), A.uid("c_spd")
        A.label(top)
        A("buffer_load_dword %s, off, %s, %s sc1" % (v(vreg), WS, s(soff)))
        A("s_waitcnt vmcnt(0)")
        A("v_readfirstlane_b32 %s, %s" % (s(sT1), v(vreg)))
        A("s_cmp_ge_u32 %s, %s" % (s(sT1), want))
        A("s_cbranch_scc1 %s" % done)
        self.budget(A, done)
        A("s_sleep 2\ns_branch %s" % top)
        A.label(done)

    def progress(self, A):
        top, done = A.uid("c_sp"), A.uid("c_spd")
        A.label(top)
        A("buffer_load_dword %s, off, %s, %s sc1" % (v(T1), WS, s(sPROG)))
        A("s_waitcnt vmcnt(0)")
        A("v_readfirstlane_b32 %s, %s" % (s(sSEEN), v(T1)))
        A("s_cmp_ge_u32 %s, %s" % (s(sSEEN), s(sNEED)))
        A("s_cbranch_scc1 %s" % done)
        self.budget(A, done)
        A("s_sleep 2\ns_branch %s" % top)
        A.label(done)

    def window_a(self, A):
        for u in STREAM_UNITS[:3]:
            for t in range(2):
                A("\n".join(stream_rd(u, t)))

    def window_b(self, A):
        for k, r in enumerate(range(AQ, AQ + 24, 2)):
            A("v_mov_b64 %s, 0" % v(r, 2))
            if k % 2 == 1:
                A("s_nop 0")

    def stamp(self, A, k):
        pass

    def add_stamps(self, lines, main=True):
        import re
        out, k = [], 0
        stride, phase = self.o.get("every", (20, 0))
        at = [re.compile(p) for p in self.o.get("at", [])]
        n = 0
        self.stamp_pos = []
        for l in lines:
            if l == "; DUMP":
                break
            if not at and not l.endswith(":") and not l.startswith(";"):
                if n % stride == phase and k < 15:
                    out.append("s_memtime s[%d:%d]" % (sST + 2 * k, sST + 2 * k + 1))
                    self.stamp_pos.append(n)
                    k += 1
                n += 1
            if not l.endswith(":") and not l.startswith(";"):
                if at and main and n == self.o.get("nth", -1):
                    out.append("s_memtime s[%d:%d]" % (sST + 28, sST + 29))
                n += 1 if at else 0
            out.append(l)
            for q, p in enumerate(at):
                if p.search(l):
                    out.append("s_memtime s[%d:%d]" % (sST + 2 * q, sST + 2 * q + 1))
        return out + lines[lines.index("; DUMP") + 1:]

    def loop(self, w, slow):
        CUR[0] = w
        A = Asm()
        B = Asm()
        A._uid = B._uid = 1000 * (1 + w + 4 * slow)
        B._uid += 500
        o = {k: (x[w] if isinstance(x, list) and k not in ("at", "more", "drop", "every") else x) for k, x in self.o.items()}
        hs = " sc1" if slow else ""
        ks = lambda i: (2 * w + i) % 8
        tag = "%d_%d" % (slow, w)
        top, entry, fin = "c_top_" + tag, "c_entry_" + tag, "c_fin_" + tag
        E, Lr = MEM, MEM + 4
        CK, FL = T1 + 2, T1 + 3

        ldE = "buffer_load_dwordx4 %s, %s, %s, %s offen sc1" % (v(E, 4), v(VL1), WS, s(sH2L))
        ldL = "buffer_load_dwordx4 %s, %s, %s, %s offen offset:1024 sc1" % (v(Lr, 4), v(VL1), WS, s(sH2L))

        def check(r, bad):
            A("v_max3_u32 %s, %s, %s, %s" % (v(CK), v(r), v(r + 1), v(r + 2)))
            A("v_max_u32 %s, %s, %s" % (v(CK), v(CK), v(r + 3)))
            A("v_cmp_eq_u32 vcc, -1, %s" % v(CK))
            A("s_cbranch_vccnz %s" % bad)

        def nops(n):
            while n > 0:
                A("s_nop %d" % (min(n, 16) - 1))
                n -= 16

        two2 = o.get("two2", 1)
        wr = ["ds_write_b128 %s, %s offset:%d" % (v(VL1), v(r, 4), RA + ks(q) * 1024) for q, r in enumerate((E, Lr))]
        A.label(top)
        A("s_waitcnt vmcnt(%d)" % (2 * two2 + 1))
        A("v_max3_u32 %s, %s, %s, %s" % (v(CK), v(E), v(E + 1), v(E + 2)))
        A("s_waitcnt vmcnt(%d)" % (2 * two2))
        A("v_max3_u32 %s, %s, %s, %s" % (v(CK), v(CK), v(E + 3), v(Lr)))
        A("v_max3_u32 %s, %s, %s, %s" % (v(CK), v(CK), v(Lr + 1), v(Lr + 2)))
        A("v_max_u32 %s, %s, %s" % (v(CK), v(CK), v(Lr + 3)))
        A("v_cmp_eq_u32 vcc, -1, %s" % v(CK))
        if o.get("specw", 1):
            A(wr[0])
        A("s_cbranch_vccnz c_bad_" + tag)
        B.label("c_bad_" + tag)
        if self.tot:
            B("s_add_u32 s95, s95, 1")
        B("s_mov_b64 exec, vcc")
        B(ldE)
        B(ldL)
        B("s_mov_b64 exec, -1")
        self.budget(B, "c_okL_" + tag)
        B("s_branch " + top)
        B.label(entry)
        B(wr[0])
        B("s_branch c_okL_" + tag)
        A.label("c_okL_" + tag)
        if o.get("lateexit"):
            A("s_cmp_eq_u32 %s, %d\ns_cbranch_scc1 %s" % (s(sSTEP), NSEG - 1, fin))
        if not o.get("specw", 1):
            A(wr[0])
        A(wr[1])
        A(W("Q", 0, 0))
        A(W("Q", 1, 0))
        A(W("K", 0, 0))
        A(W("K", 1, 0))
        A(W("Q", 0, 1))
        A(W("Q", 1, 1))
        A("s_waitcnt lgkmcnt(0)")
        A("s_barrier ; B1")
        rd = ["ds_read_b128 %s, %s offset:%d" % (v(MEM + 4 * i, 4), v(VL1), RA + ks(i) * 1024) for i in range(2, 8)]
        A(rd[0])
        A(rd[1])
        A(W("K", 0, 1))
        A(rd[2])
        A(rd[3])
        A(W("K", 1, 1))
        A(rd[4])
        A(rd[5])
        A(W("V", 0, 0))
        A(W("V", 1, 0))
        if o.get("lateV", 0) < 2:
            A(W("V", 0, 1))
        if w > 0:
            A("v_lshlrev_b32 %s, 3, %s" % (v(T0 + 2), v(VL1)))
        else:
            A("v_lshlrev_b32 %s, 7, %s" % (v(T0 + 2), v(VL0)))
        if o.get("lateV", 0) < 1:
            A(W("V", 1, 1))
        gb = []
        for t in range(2):
            for i in (5, 6, 7):
                gb += stream_rd(("K", i), t)
        fill = []
        memc = "buffer_store_dword %s, %s, %s, %s offen sc1" % (v(T0 + 1), v(VH2), WS, s(sH2C))
        pf = "buffer_load_dword %s, %s, %s offen lds" % (v(T0 + 2), WS, s(sPF))
        nokpf = (w == 1 and not o.get("kpf", 0)) or (w == 2 and not o.get("vpf", 0))
        QB, QOP, KOP, VB = T0, T1, P[2], P[2] + 4
        for i in range(2, 8):
            A("s_waitcnt lgkmcnt(5)")
            A(W("Q", 0, i))
            A(gb[i - 2])
            if fill:
                A(fill.pop(0))
        A(W("Q", 1, 2))
        A(gb[6])
        A(W("Q", 1, 3))
        A(gb[7])
        A(cvt(QB, AQ, AQ + 1))
        A(W("Q", 1, 4))
        A(gb[8])
        A(cvt(QB + 1, AQ + 2, AQ + 3))
        A(W("Q", 1, 5))
        A(gb[9])
        A(mf16(AQ, QB, SELQ))
        A(gb[10])
        A(W("Q", 1, 6))
        A(gb[11])
        A(W("Q", 1, 7))
        z64 = lambda r: "v_mov_b64 %s, 0" % v(r, 2)
        add = lambda d, x, y: "v_add_f32 %s, %s, %s" % (v(d), v(x), v(y))
        dpp = lambda d, x, q: "v_mov_b32_dpp %s, %s quad_perm:%s row_mask:0xf bank_mask:0xf" % (v(d), v(x), q)
        addx = lambda r: "v_add_f32_dpp %s, %s, %s quad_perm:[2,3,0,1] row_mask:0xf bank_mask:0xf" % (v(r), v(r), v(r))
        ex = lambda d, x: "v_exp_f32 %s, %s" % (v(d), v(x))
        X = [P[0], P[0] + 4, P[1], P[1] + 4]
        M = P[3]
        EX, EB, AL, EM = X[1], X[2], X[3], T0
        RR, TT = T0 + 2, T0 + 3
        sel = ["v_cndmask_b32 %s, %s, %s, %s" % (v(AQ + r), v(AQ + r), v(AQ + 4 + r), s(sCM, 2)) for r in range(4)]
        xr = ["ds_read_b128 %s, %s offset:%d" % (v(X[q], 4), v(VL1), RB + q * 1024) for q in range(4)]
        gc1 = stream_rd(("O", 1, 1), 0) + stream_rd(("O", 1, 1), 1)
        gc2 = stream_rd(("O", 2, 1), 0) + stream_rd(("O", 3, 1), 0) + stream_rd(("O", 2, 1), 1) + stream_rd(("O", 3, 1), 1)
        kvl = ["buffer_load_dwordx4 %s, %s, %s, %s offen offset:%d sc1" % (v(r + 4 * q, 4), v(VL1), WS, s(sb), 1024 * q)
               for r, sb in ((KXR, sKX), (VXR, sVX)) for q in range(2)]
        pk = lambda d, x: "v_pk_add_f32 %s, %s, %s" % (v(d, 2), v(d, 2), v(x, 2))
        wsm = "ds_write_b64 %s, %s offset:%d" % (v(VL1), v(AK, 2), RA + (w // 2) * 1024 + (w % 2) * 8)
        late = [W("V", 0, 1), W("V", 1, 1)][2 - o.get("lateV", 0):]
        if o.get("pk", 0):
            mid = [W("V", 1, 4), W("V", 0, 5), wsm, "s_waitcnt lgkmcnt(1)", pk(X[0], X[1]), pk(X[0] + 2, X[1] + 2),
                   pk(X[2], X[3]), pk(X[2] + 2, X[3] + 2), pk(X[0], X[2]), pk(X[0] + 2, X[2] + 2),
                   ex(EX, X[0]), ex(EX + 1, X[0] + 1)] + late + [W("V", 1, 5)]
        else:
            mid = ["s_waitcnt lgkmcnt(2)"] + [add(X[0] + r, X[0] + r, X[1] + r) for r in range(4)] + [
                W("V", 1, 4), wsm, "s_waitcnt lgkmcnt(1)"] + [add(X[2] + r, X[2] + r, X[3] + r) for r in range(4)] + [
                W("V", 0, 5)] + [add(X[0] + r, X[0] + r, X[2] + r) for r in range(2)] + late[:1] + [
                add(X[0] + r, X[0] + r, X[2] + r) for r in range(2, 4)] + [
                ex(EX, X[0])] + late[1:] + [ex(EX + 1, X[0] + 1), W("V", 1, 5)]
        seq = [
            cvt(QOP, AQ, AQ + 1), W("K", 0, 2), cvt(QOP + 1, AQ + 2, AQ + 3), W("K", 0, 3),
            cvt(QB + 2, AQ + 4, AQ + 5), cvt(QB + 3, AQ + 6, AQ + 7), W("K", 0, 4), mf16(AQ + 4, QB + 2, SELQ),
            "s_waitcnt lgkmcnt(0)", W("K", 0, 5), W("K", 0, 6),
            cvt(QOP + 2, AQ + 4, AQ + 5), cvt(QOP + 3, AQ + 6, AQ + 7), W("K", 0, 7),
            "WAITK", mf32(AQ, KXR, QOP), mf32(AQ + 4, KXR + 4, QOP),
            cvt(QB, AK, AK + 1), cvt(QB + 1, AK + 2, AK + 3), W("K", 1, 2), mf16(AK, QB, SELK),
            sel[0], sel[1], sel[2], sel[3], W("K", 1, 3),
            "ds_write_b128 %s, %s offset:%d" % (v(VL1), v(AQ, 4), RB + w * 1024),
            W("K", 1, 4), cvt(KOP, AK, AK + 1), W("K", 1, 5), cvt(KOP + 1, AK + 2, AK + 3), W("K", 1, 6), W("K", 1, 7),
            W("V", 0, 2), W("V", 1, 2), cvt(QB + 2, AK + 4, AK + 5), cvt(QB + 3, AK + 6, AK + 7),
            "s_waitcnt lgkmcnt(0)", "s_barrier ; B2", mf16(AK + 4, QB + 2, SELK), xr[0], xr[1],
            W("V", 0, 3), xr[2], xr[3], W("V", 1, 3),
            cvt(KOP + 2, AK + 4, AK + 5), cvt(KOP + 3, AK + 6, AK + 7), W("V", 0, 4), mf32(AK, KOP, QOP),
            ] + mid + [
            "s_waitcnt lgkmcnt(0)", "s_barrier ; B3",
            "ds_read_b128 %s, %s offset:%d" % (v(M, 4), v(VSX), RA), W("V", 0, 6), gc1[0], gc1[1],
            ex(EX + 2, X[0] + 2), ex(EX + 3, X[0] + 3), cvt(EX, EX, EX + 1), cvt(EX + 1, EX + 2, EX + 3),
            W("V", 0, 7), gc1[2], gc1[3], dpp(EB, EX, "[0,1,0,1]"), mf16(AL, HALF, EX),
            dpp(EB + 1, EX + 1, "[0,1,0,1]"), dpp(EB + 2, EX, "[2,3,2,3]"), dpp(EB + 3, EX + 1, "[2,3,2,3]"),
            W("V", 1, 6), "s_waitcnt lgkmcnt(4)", add(M, M, M + 2), W("V", 1, 7), gc2[0], gc2[1], add(M + 1, M + 1, M + 3),
            "WAITV", mf32(AQ, VXR, EB), gc2[2], addx(M), addx(M + 1),
            mf32(AQ + 4, VXR + 4, EB), gc2[3], ex(M + 2, M), ex(M + 3, M + 1), addx(AL),
            cvt(EM, M + 2, M + 3), cvt(EM + 1, M + 2, M + 3), add(AL, AL, AL),
            cvt(VB, AV, AV + 1), cvt(VB + 1, AV + 2, AV + 3),
            mf16(AL, HALF, EM, AL), cvt(VB + 2, AV + 4, AV + 5), cvt(VB + 3, AV + 6, AV + 7), z64(ACCO[0]),
            mf16(AQ, VB, EM, AQ), z64(ACCO[0] + 2), z64(ACCO[1]), z64(ACCO[1] + 2),
            mf16(AQ + 4, VB + 2, EM, AQ + 4)]
        A("\n".join(seq))
        self.normalize(A, w, AL, [z64(ACCO[2]), z64(ACCO[2] + 2), "v_max_f32 %s, %s, %s" % (v(TT), v(AL), v(RR))], [])
        w4 = self.w4 = o.get("w4", 2)
        fl4 = ["v_cmp_ngt_f32 vcc, %s, %s" % (s(sBIG), v(TT)), z64(ACCO[3]), z64(ACCO[3] + 2)]
        for a_ in range(w4):
            A(WO(a_, 0))
            A(fl4.pop(0))
        A("\n".join(fl4))
        A("s_cbranch_vccnz c_slow_" + tag)
        A.label("c_back_" + tag)
        self.fallback(B, w, tag, X, M)
        A("s_waitcnt lgkmcnt(0)")
        A("s_barrier ; B4")
        for u in range(1, 4):
            A("ds_read_b128 %s, %s offset:%d" % (v(OOP[u], 4), v(VL1), RB + ((w + u) % 4) * 1024))
        A(WO(w4, 0))
        A(gc2[4])
        for a_ in range(w4 + 1, 4):
            A(WO(a_, 0))
        sal = ["s_add_u32 %s, %s, 1" % (s(sSTEP), s(sSTEP)), "s_add_u32 %s, %s, 8192" % (s(sH2L), s(sH2L))]
        sal += ["s_add_u32 %s, %s, 262144" % (s(r), s(r)) for r in (sKX, sVX)]
        sal += ["s_add_u32 %s, %s, %d" % (s(sPF), s(sPF), 8192 if w == 3 else 262144)]
        sal += ["s_add_u32 %s, %s, 2" % (s(sNEED), s(sSTEP)), "s_min_u32 %s, %s, %d" % (s(sNEED), s(sNEED), NSEG - 1)]
        tagd = lambda r: "v_bfi_b32 %s, 1, %s, %s" % (v(r), s(sPH), v(r))
        st1 = lambda a_: "buffer_store_dwordx2 %s, %s, %s, %s offen offset:%d%s ; S%d" % (
            v(AQ + 2 * a_, 2), v(VH1), WS, s(sH1S1 if a_ > 1 else sH1S0), 2048 * (a_ % 2), hs, a_)
        c0 = lambda a_: cvt(AQ + 2 * a_, ACCO[a_], ACCO[a_] + 1)
        c1 = lambda a_: cvt(AQ + 2 * a_ + 1, ACCO[a_] + 2, ACCO[a_] + 3)
        t0 = lambda a_: tagd(AQ + 2 * a_)
        t1 = lambda a_: tagd(AQ + 2 * a_ + 1)
        seq = ["s_waitcnt lgkmcnt(3)", WO(0, 1), gc2[5], sal[0], "s_waitcnt lgkmcnt(3)", WO(0, 2), gc2[6], sal[1],
               "s_waitcnt lgkmcnt(3)", WO(0, 3), gc2[7], sal[2], WO(1, 1), sal[3], sal[4], WO(1, 2), c0(0), c1(0), t0(0),
               WO(1, 3), st1(0), WO(2, 1), sal[5], sal[6], WO(2, 2), c0(1), c1(1), t0(1), WO(2, 3), st1(1),
               WO(3, 1), "s_waitcnt lgkmcnt(0)", WO(3, 2), c0(2), c1(2), t0(2), WO(3, 3), st1(2),
               c0(3), c1(3), t0(3), st1(3)]
        A("\n".join(seq))
        ins = {}
        ins.setdefault(o.get("mc0", 14) + o.get("mcs", 1) * w, []).extend(
            (["s_mov_b64 exec, %s" % s(sMX + 2, 2), memc, "s_mov_b64 exec, -1"] if o.get("rep", 1) > 1 else [memc])
            + ["s_add_u32 %s, %s, 8192" % (s(sH2C), s(sH2C))])
        if w == 0:
            ins.setdefault(o.get("pg0", 22), []).extend([
                "s_mov_b64 exec, 3", "buffer_load_dword %s, %s, %s offen sc1 lds" % (v(T0 + 2), WS, s(sPROG)), "s_mov_b64 exec, -1"])
        if w and not nokpf:
            ins.setdefault(o.get("pf0", 14) + o.get("pfs", 4) * (w - 1), []).extend(
                ["s_mov_b64 exec, %s" % s(sMX, 2), pf, "s_mov_b64 exec, -1"] if w == 3 and o.get("pfm", 1) else [pf])
        for q in range(2):
            ins.setdefault(o.get("kx0", 36) + o.get("kxs", 1) * w + o.get("kxq", 4) * q, []).append(kvl[q])
        for q in range(2):
            ins.setdefault(o.get("vx0", 6) + o.get("vxs", 1) * w + o.get("vxq", 4) * q, []).append(kvl[2 + q])
        hint = o.get("hint", 0) and not slow
        if hint and w == 0:
            fp = o.get("fp", 66)
            ins.setdefault(fp - 1, []).extend(["s_sub_u32 %s, %s, 1" % (s(sT0), s(sPH)), "v_mov_b32 %s, %s" % (v(T0), s(sT0))])
            ins.setdefault(fp, []).extend(["s_mov_b64 exec, 1", "buffer_store_byte %s, off, %s, %s" % (v(T0), WS, s(sFS)), "s_mov_b64 exec, -1"])
        res, k = [], 0
        for l in A.lines:
            res.append(l)
            if "mfma" in l:
                res += ins.pop(k, [])
                k += 1
        assert not ins
        isvm = lambda l: l.startswith("buffer_") and "; cond" not in l
        k0 = res.index("c_okL_%s:" % tag)
        kk, kv = res.index("WAITK"), res.index("WAITV")
        res[kk] = "s_waitcnt vmcnt(%d)" % sum(map(isvm, res[k0:kk]))
        res[kv] = "s_waitcnt vmcnt(%d)" % sum(map(isvm, res[res.index(kvl[3]) + 1:kv]))
        A.lines = res
        if self.dbg and o.get("lastonly"):
            A("; DUMP0")
            A("; DUMP1")
        elif self.dbg:
            A("; DUMP0")
            A("s_waitcnt lgkmcnt(0)")
            self.dump_stamps(A, w)
            A("; DUMP1")
        H, AR, TG, XS = MEM + 8, T1, T0, T0 + 1
        wa = Asm()
        self.window_a(wa)
        wa = wa.lines
        zr = ["v_mov_b64 %s, 0" % v(r, 2) for r in range(AQ, AQ + 24, 2)]
        zr = zr[4:] + zr[:4]
        n1, n2, n3, z1, z2 = o.get("n1", 6), o.get("n2", 6), o.get("n3", 12), o.get("z1", 0), o.get("z2", 12)
        two1, two2 = o.get("two1", 1), o.get("two2", 1)
        A("\n".join(zr[:z1] + wa[:n1]))
        if o.get("lg1"):
            A("s_waitcnt lgkmcnt(0)")
        if o.get("sl1"):
            A("s_sleep %d" % o["sl1"])
        if o.get("ack1") is not None:
            A("s_waitcnt vmcnt(%d)" % o["ack1"])
        nops(o.get("delay1", 0))
        hl = lambda r: "\n".join("buffer_load_dwordx4 %s, %s, %s, %s offen offset:%d sc1" % (
            v(r + 4 * it, 4), v(VL1), WS, s(sH1L), it * 1024) for it in range(2))
        A.label("c_pfd_" + tag)
        A(hl(H))
        A("\n".join(wa[n1:n2] + zr[z1:z2]))
        nops(o.get("gap1", 0))
        if o.get("sg1") and two1:
            A("s_sleep %d" % o["sg1"])
        if two1:
            A(hl(H + 8))
        A("s_cmp_lg_u32 %s, 0\ns_cbranch_scc1 c_h1c1_%s" % (s(sPH), tag))
        C = Asm()
        for ph in (0, 1):
            Z = A if ph == 0 else B
            fn, fl_ = ("0xfe", "0xa8") if ph == 0 else ("0x80", "0x80")

            def red(Z, r):
                Z("s_waitcnt vmcnt(%d)" % (1 + 2 * two1))
                Z(mf32(AR, SELR, r))
                Z("s_waitcnt vmcnt(%d)" % (2 * two1))
                Z(mf32(AR, SELR, r + 4, AR))
                Z("v_bitop3_b32 %s, %s, %s, %s bitop3:%s" % (v(TG), v(r), v(r + 2), v(r + 4), fn))
                Z("v_bitop3_b32 %s, %s, %s, 1 bitop3:%s" % (v(TG), v(TG), v(r + 6), fl_))
                Z("v_cmp_ne_u32 vcc, %d, %s" % (ph, v(TG)))
                for ro in (4, 8):
                    for q in range(2):
                        Z("v_add_f32_dpp %s, %s, %s row_ror:%d row_mask:0xf bank_mask:0xf" % (v(AR + q), v(AR + q), v(AR + q), ro))
                Z(cvt(XS, AR, AR + 1))

            def again(r):
                C("s_mov_b64 exec, vcc")
                C(hl(r))
                C("s_mov_b64 exec, -1")
                if self.tot:
                    C("s_add_u32 s94, s94, 1")

            Z.label("c_h1c%d_%s" % (ph, tag))
            red(Z, H)
            Z("s_cbranch_vccnz c_h1b%d_%s" % (ph, tag))
            Z.label("c_h1ok%d_%s" % (ph, tag))
            Z("buffer_store_dword %s, %s, %s, %s offen%s" % (v(XS), v(VH2), WS, s(sH2S), hs))
            if ph:
                Z("s_branch c_pub_" + tag)
            C.label("c_h1b%d_%s" % (ph, tag))
            again(H)
            if two1:
                red(C, H + 8)
                C("s_cbranch_vccz c_h1ok%d_%s" % (ph, tag))
                again(H + 8)
            self.budget(C, "c_h1ok%d_%s" % (ph, tag))
            C("s_branch c_h1c%d_%s" % (ph, tag))
        B.extend(C)
        A.label("c_pub_" + tag)
        A("s_xor_b32 %s, %s, 1" % (s(sPH), s(sPH)))
        A("s_add_u32 %s, %s, 8192" % (s(sH2S), s(sH2S)))
        if not o.get("lateexit"):
            A("s_cmp_eq_u32 %s, %d\ns_cbranch_scc1 %s" % (s(sSTEP), NSEG - 1, fin))
        if w == 0:
            A("ds_read_b64 %s, %s offset:%d" % (v(T1, 2), v(VL1), RB + 4096 + 1024))
            A("s_waitcnt lgkmcnt(0)")
            A("v_min_u32 %s, %s, %s" % (v(T1), v(T1), v(T1 + 1)))
            A("v_readfirstlane_b32 %s, %s" % (s(sSEEN), v(T1)))
            A("s_cmp_lt_u32 %s, %s\ns_cbranch_scc1 c_prg_%s" % (s(sSEEN), s(sNEED), tag))
            A.label("c_prgok_" + tag)
            B.label("c_prg_" + tag)
            for _ in range(2):
                B("s_xor_b32 %s, %s, %d" % (s(sPROG), s(sPROG), 0x1800))
                self.progress(B)
            B("s_branch c_prgok_" + tag)
        A("\n".join(wa[n2:n3] + zr[z2:]))
        if o.get("lg2", 1):
            A("s_waitcnt lgkmcnt(0)")
        if o.get("ack2"):
            A("s_waitcnt vmcnt(0)")
        nops(o.get("delay2", 0))
        if o.get("sl2"):
            A("s_sleep %d" % o["sl2"])
        A(ldE)
        A(ldL + " ; first")
        A("\n".join(wa[n3:]))
        A("s_waitcnt lgkmcnt(0)")
        nops(o.get("gap2", 0))
        if o.get("sg2"):
            A("s_sleep %d" % o["sg2"])
        if two2:
            A(ldE)
            A(ldL)
        A("; DUMP")
        A("s_branch " + top)
        A.label(fin)
        A(memc)
        if o.get("hst"):
            A("s_memrealtime s[90:91]\ns_waitcnt lgkmcnt(0)")
            hst(A, [(100, 1, 5), (100, 0, 6), (86, 0, 7), (88, 1, 10), (88, 0, 11), (90, 0, 12)], T0)
        A("s_nop 7")
        A("s_mov_b64 exec, 1")
        if self.tot:
            A("s_memtime s[90:91]\ns_waitcnt lgkmcnt(0)")
            A("s_sub_u32 s90, s90, s92\ns_sub_u32 s92, s92, s96")
            A("v_mov_b32 %s, s90\nv_mov_b32 %s, s94\nv_mov_b32 %s, %s\nv_mov_b32 %s, %s" % (
                v(T0), v(T0 + 1), v(T0 + 2), "s95", v(T0 + 3), "s92"))
            A("s_lshl_b32 %s, %s, 6\ns_add_u32 %s, %s, %d" % (s(sT0), s(sH), s(sT0), s(sT0), STAMP + 16 * w))
            A("buffer_store_dwordx4 %s, off, %s, %s" % (v(T0, 4), WS, s(sT0)))
            if o.get("wst"):
                A("s_memrealtime s[90:91]\ns_waitcnt lgkmcnt(0)")
                A("v_mov_b32 %s, s88\nv_mov_b32 %s, s90" % (v(T1), v(T1 + 1)))
                A("s_lshl_b32 %s, %s, 5\ns_add_u32 %s, %s, %d" % (s(sT0), s(sH), s(sT0), s(sT0), STAMP + 0x80000 + 24))
                A("buffer_store_dwordx2 %s, off, %s, %s" % (v(T1, 2), WS, s(sT0)))
        A("s_waitcnt vmcnt(0)")
        if self.dbg:
            if o.get("lastonly"):
                A("s_mov_b64 exec, -1")
                self.dump_stamps(A, w)
                A("s_waitcnt vmcnt(0)")
            self.calib(A, 1)
        A("s_endpgm")
        if o.get("drop"):
            import re
            cut = A.lines.index("; DUMP")
            pats = [re.compile(p) for p in o["drop"]]
            keep = range(A.lines.index("; DUMP0"), A.lines.index("; DUMP1")) if self.dbg else range(0)
            A.lines = [l for k, l in enumerate(A.lines[:cut]) if k in keep or not any(p.search(l) for p in pats)] + A.lines[cut:]
        main = fix_hazards(A.lines)
        if self.dbg:
            main = self.add_stamps(main)
        ool = fix_hazards(B.lines)
        if self.dbg and o.get("at"):
            ool = self.add_stamps(ool + ["; DUMP"], False)
        return main + ["s_nop 7"] + ool

    def dump_stamps(self, A, w):
        A("s_lshl_b32 %s, %s, 5\ns_add_u32 %s, %s, %s\ns_lshl_b32 %s, %s, 8" % (
            s(sT0), s(sSTEP), s(sT0), s(sT0), s(sH), s(sT0), s(sT0)))
        A("s_add_u32 %s, %s, %d" % (s(sT0), s(sT0), STAMP + 4096 + 64 * w))
        R0 = AQ + 8
        for k in range(15):
            A("v_mov_b32 %s, %s" % (v(R0 + k), s(sST + 2 * k)))
        A("v_mov_b32 %s, %s" % (v(R0 + 15), s(sBUD)))
        A("s_mov_b64 exec, 1")
        for q in range(4):
            A("buffer_store_dwordx4 %s, off, %s, %s offset:%d" % (v(R0 + 4 * q, 4), WS, s(sT0), 16 * q))
        A("s_mov_b64 exec, -1")

    def softmax_tail(self, A, X, M, fill, first):
        EX, EB, AL, EM = X[1], X[2], X[3], T0
        VB = P[2] + 4
        fill = list(fill)
        f = lambda: A(fill.pop(0)) if fill else None
        dpp = lambda d, x, q: A("v_mov_b32_dpp %s, %s quad_perm:%s row_mask:0xf bank_mask:0xf" % (v(d), v(x), q))
        src = M if first else M + 2
        A(mf16(AL, HALF, EX))
        dpp(EB, EX, "[0,1,0,1]")
        dpp(EB + 1, EX + 1, "[0,1,0,1]")
        dpp(EB + 2, EX, "[2,3,2,3]")
        dpp(EB + 3, EX + 1, "[2,3,2,3]")
        A("v_exp_f32 %s, %s" % (v(M + 2), v(src)))
        A("v_exp_f32 %s, %s" % (v(M + 3), v(src + 1)))
        A(mf32(AQ, VXR, EB))
        A("v_add_f32_dpp %s, %s, %s quad_perm:[2,3,0,1] row_mask:0xf bank_mask:0xf" % (v(AL), v(AL), v(AL)))
        A(cvt(EM, M + 2, M + 3))
        A(mf32(AQ + 4, VXR + 4, EB))
        A(cvt(EM + 1, M + 2, M + 3))
        A("v_add_f32 %s, %s, %s" % (v(AL), v(AL), v(AL)))
        if first:
            A(cvt(VB, AV, AV + 1))
            A(cvt(VB + 1, AV + 2, AV + 3))
        A(mf16(AL, HALF, EM, AL))
        if first:
            A(cvt(VB + 2, AV + 4, AV + 5))
            A(cvt(VB + 3, AV + 6, AV + 7))
        A(mf16(AQ, VB, EM, AQ))
        f()
        f()
        f()
        A(mf16(AQ + 4, VB + 2, EM, AQ + 4))
        while fill:
            f()

    def normalize(self, A, w, AL, f0=(), f1=()):
        RR = T0 + 2
        pk = lambda r: A("v_pk_mul_f32 %s, %s, %s op_sel_hi:[1,0]" % (v(r, 2), v(r, 2), v(RR, 2)))
        A("v_rcp_f32 %s, %s" % (v(RR), v(AL)))
        A("\n".join(f0))
        pk(AQ)
        pk(AQ + 2)
        for q in range(2):
            A(cvt(OOP[0] + q, AQ + 2 * q, AQ + 2 * q + 1))
        pk(AQ + 4)
        pk(AQ + 6)
        for q in range(2, 4):
            A(cvt(OOP[0] + q, AQ + 2 * q, AQ + 2 * q + 1))
        A("ds_write_b128 %s, %s offset:%d" % (v(VL1), v(OOP[0], 4), RB + w * 1024))
        A("\n".join(f1))

    def fallback(self, B, w, tag, X, M):
        EX, AL = X[1], X[3]
        MX, TM = T0 + 2, T0 + 3
        B.label("c_slow_" + tag)
        B("s_nop 15")
        B("v_max3_f32 %s, %s, %s, %s" % (v(MX), v(X[0]), v(X[0] + 1), v(X[0] + 2)))
        B("v_max3_f32 %s, %s, %s, %s" % (v(MX), v(MX), v(X[0] + 3), v(M)))
        B("v_max_f32 %s, %s, %s" % (v(MX), v(MX), v(M + 1)))
        B("v_max_f32_dpp %s, %s, %s quad_perm:[2,3,0,1] row_mask:0xf bank_mask:0xf" % (v(MX), v(MX), v(MX)))
        for sw in ("v_permlane16_swap_b32", "v_permlane32_swap_b32"):
            B("v_mov_b32 %s, %s" % (v(TM), v(MX)))
            B("%s %s, %s" % (sw, v(MX), v(TM)))
            B("s_nop 1")
            B("v_max_f32 %s, %s, %s" % (v(MX), v(MX), v(TM)))
        for r in range(4):
            B("v_sub_f32 %s, %s, %s" % (v(EX + r), v(X[0] + r), v(MX)))
        for r in range(2):
            B("v_sub_f32 %s, %s, %s" % (v(M + 2 + r), v(M + r), v(MX)))
        for r in range(4):
            B("v_exp_f32 %s, %s" % (v(EX + r), v(EX + r)))
        B(cvt(EX, EX, EX + 1))
        B(cvt(EX + 1, EX + 2, EX + 3))
        self.softmax_tail(B, X, M, [], first=False)
        B("s_waitcnt lgkmcnt(0)")
        self.normalize(B, w, AL)
        for a_ in range(4):
            B("v_mov_b64 %s, 0\nv_mov_b64 %s, 0" % (v(ACCO[a_], 2), v(ACCO[a_] + 2, 2)))
        for a_ in range(self.w4):
            B(WO(a_, 0))
        B("s_nop 7")
        B("s_branch c_back_" + tag)

    def emit(self, A):
        for w in range(1, 4):
            A("s_cmp_eq_u32 %s, %d\ns_cbranch_scc1 c_pro_%d" % (s(sWAVE), w, w))
        for w in range(4):
            CUR[0] = w
            P_ = Asm()
            P_._uid = 100 + 200 * w
            P_.label("c_pro_%d" % w)
            self.prologue(P_, w)
            A.extend(fix_hazards(P_.lines))
        for slow in (0, 1):
            for w in range(4):
                A(".p2align 6")
                A.extend(self.loop(w, slow))
```

```python
from asmlib import *
from layout import *

WS = "s[4:7]"
SQ, SK, SV, SO, SM0 = 8, 12, 16, 20, 24
sROLE, sWAVE, sXCC, sBUD = 32, 33, 34, 35
sH, sSTEP, sH2L, sH1S0, sH1L, sKX, sVX, sH1S1, sPH = 36, 37, 38, 39, 40, 41, 42, 43, 44
sKM, sVM, sFLAG, _unused, sH2S, sPF, sPROG, sT0, sT1, sBIG = 45, 46, 47, 48, 49, 50, 51, 52, 53, 54
sC1S, sC1L, sH1L2, sNEED = 55, 56, 57, 58
sH2C, sSEEN, sFS, sH2M = 48, 59, 55, 56
sMX = 24
sFL = 8
sCM = 98
sST = 60

MEM = 112
AQ, AK, AV = 144, 152, 160
KXR, VXR = 168, 176
P = [184 + 8 * i for i in range(6)]
T0, T1 = 232, 236
IDX, VH2, SELQ, SELK, HALF, SELR = 240, 241, 242, 244, 246, 248
VL0, VL1, VSX, VH1 = 252, 253, 254, 255
VPFA, VPFD, VPRG = 248, 249, 250

LB = 147456
RA, RB = 0, 8192
WREG = 36864

STREAM_UNITS = [("Q", 0), ("K", 0), ("Q", 1), ("K", 5), ("K", 6), ("K", 7), ("O", 1, 1), ("O", 2, 1), ("O", 3, 1)]
ALL_UNITS = ([("Q", i) for i in range(8)] + [("K", i) for i in range(8)] + [("V", i) for i in range(8)]
             + [("O", u, p) for u in range(4) for p in range(2)])
RES_UNITS = [u for u in ALL_UNITS if u not in STREAM_UNITS]
assert len(RES_UNITS) == 23
RES_REG = {}
for i, u in enumerate(RES_UNITS):
    RES_REG[u] = 256 + 16 * i if i < 16 else 16 * (i - 16)
CUR = [0]
KS = [[0, 1, 2, 3, 4, 5, 6, 7], [0, 1, 2, 3, 4, 5, 6, 7], [0, 1, 4, 5, 2, 3, 6, 7], [0, 1, 6, 7, 2, 3, 4, 5]]


def slot_of(unit):
    if unit[0] == "K":
        return {0: 5, 5: 6, 6: 7, 7: 8}[unit[1]]
    if unit[0] == "Q":
        return 2 + unit[1]
    order = [u for u in ((gu - CUR[0]) % 4 for gu in range(4)) if u]
    return (4, 0, 1)[order.index(unit[1])]


STAGE = {
    ("Q", 0, 0): P[0], ("Q", 0, 1): P[1], ("K", 0, 0): P[2], ("K", 0, 1): P[3], ("Q", 1, 0): P[4], ("Q", 1, 1): P[5],
    ("K", 5, 0): P[0], ("K", 6, 0): P[1], ("K", 7, 0): P[2], ("K", 5, 1): P[3], ("K", 6, 1): P[4], ("K", 7, 1): P[5],
    ("O", 1, 1, 0): P[4], ("O", 1, 1, 1): P[5], ("O", 2, 1, 0): MEM, ("O", 2, 1, 1): MEM + 8,
    ("O", 3, 1, 0): MEM + 16, ("O", 3, 1, 1): MEM + 24,
}


def opreg(unit, t):
    if unit in RES_REG:
        return RES_REG[unit] + 8 * t
    return STAGE[unit + (t,)]


def stream_rd(unit, t):
    r = STAGE[unit + (t,)]
    off = slot_of(unit) * 4096 + t * 2048
    return ["ds_read_b128 %s, %s offset:%d" % (v(r, 4), v(VL0), off),
            "ds_read_b128 %s, %s offset:%d" % (v(r + 4, 4), v(VL0), off + 1024)]


def smf(acc, aop, breg):
    return "v_smfmac_f32_16x16x64_bf16 %s, %s, %s, %s" % (v(acc, 4), v(aop, 4), R(breg, 8), v(IDX))


def W(m, t, i):
    acc = {"Q": AQ, "K": AK, "V": AV}[m] + 4 * t
    return smf(acc, MEM + 4 * i, opreg((m, i), t))


ACCO = [AK, AK + 4, P[0] + 4, T1]
OOP = [AV, AV + 4, P[1], P[3] + 4]


def WO(a_, u):
    return smf(ACCO[a_], OOP[u], opreg(("O", u, a_ // 2), a_ % 2))


def mf16(d, a_, b_, c=None):
    return "v_mfma_f32_16x16x16_bf16 %s, %s, %s, %s" % (v(d, 4), v(a_, 2), v(b_, 2), "0" if c is None else v(c, 4))


def mf32(d, a_, b_, c=None):
    return "v_mfma_f32_16x16x32_bf16 %s, %s, %s, %s" % (v(d, 4), v(a_, 4), v(b_, 4), "0" if c is None else v(c, 4))


def cvt(d, x, y):
    return "v_cvt_pk_bf16_f32 %s, %s, %s" % (v(d), v(x), v(y))


def zero(r):
    return "v_mov_b32 %s, 0" % v(r)


class Chain:
    def __init__(self, opts):
        self.o = opts
        self.dbg = opts.get("stamps", False)
        self.tot = self.dbg or opts.get("total", False)

    def prologue(self, A, w):
        o = self.o
        nt = "nt " if o.get("w_nt", False) else ""
        A("s_mov_b32 %s, %s" % (s(sH), s(sROLE)))
        if o.get("hst"):
            A("s_memrealtime s[86:87]")
        A("s_load_dwordx4 s[8:11], s[0:1], 8")
        A("s_load_dwordx4 s[12:15], s[0:1], 24")
        A("s_load_dwordx2 s[20:21], s[0:1], 40")
        A("s_waitcnt lgkmcnt(0)")
        A("s_mov_b32 s24, s8\ns_mov_b32 s25, s9\ns_mov_b32 s26, 8192\ns_mov_b32 s27, 0x20000")
        A("s_mov_b32 s8, s10\ns_mov_b32 s9, s11\ns_mov_b32 s10, 0x400000\ns_mov_b32 s11, 0x20000")
        A("s_mov_b32 s16, s14\ns_mov_b32 s17, s15\ns_mov_b32 s18, 0x400000\ns_mov_b32 s19, 0x20000")
        A("s_mov_b32 s14, 0x400000\ns_mov_b32 s15, 0x20000")
        A("s_mov_b32 s22, 0x400000\ns_mov_b32 s23, 0x20000")
        L, N, G = T0, T0 + 1, T0 + 2
        X, Y, Z = T1, T1 + 1, T1 + 2
        DW, DO, TRW, TRO, M0A, INI, RDY, PRK, PRV, MCD = AK, AK + 2, AK + 4, AK + 8, AK + 10, AK + 11, AK + 12, AK + 13, AK + 14, AK + 15
        sWB, sOB = sKM, sVM
        vq = []

        def vm(line, tag=None):
            A(line)
            vq.append(tag)

        def vwait(tag):
            last = max(i for i, x in enumerate(vq) if x == tag)
            A("s_waitcnt vmcnt(%d)" % (len(vq) - 1 - last))
            del vq[:last + 1]

        self.vm = vm
        stages = ([("K", i) for i in range(8)] + [("V", i) for i in range(8)] + [("O", i, 0) for i in range(4)]
                  + [("Q", i) for i in range(8)] + [("O", i, 1) for i in range(4)])
        RING = 5

        def dma(n):
            st = stages[n]
            for q in range(4):
                A("s_mov_b32 m0, %d" % (w * WREG + (n % RING) * 4096 + q * 1024))
                if st[0] == "O":
                    off = st[1] * 32768 + 512 * st[2] + (8 * (w // 2) + 2 * (w % 2) + 16 * (q % 2) + 4 * (q // 2)) * 1024
                    srd, vo, sb = SO, DO, sOB
                else:
                    off = (64 * st[1] + 16 * (w // 2) + 2 * (w % 2) + 4 * q) * 8192
                    srd, vo, sb = {"Q": SQ, "K": SK, "V": SV}[st[0]], DW, sWB
                A("s_add_u32 %s, %s, %d" % (s(sT1), s(sb), off))
                vm("buffer_load_dwordx4 %s, %s, %s offen %slds" % (v(vo + q % 2), s(srd, 4), s(sT1), nt), n)

        A("v_and_b32 %s, 63, v0" % v(L))
        A("v_and_b32 %s, 15, %s" % (v(N), v(L)))
        A("v_lshrrev_b32 %s, 4, %s" % (v(G), v(L)))
        A("v_and_b32 %s, 1, %s" % (v(X), v(G)))
        A("v_lshrrev_b32 %s, 1, %s" % (v(Y), v(G)))
        A("v_lshl_add_u32 %s, %s, 5, %s" % (v(X), v(Y), v(X)))
        A("v_lshlrev_b32 %s, 13, %s" % (v(X), v(X)))
        A("v_lshlrev_b32 %s, 1, %s" % (v(Z), v(G)))
        A("v_xor_b32 %s, %s, %s" % (v(Z), v(Z), v(N)))
        A("v_lshl_add_u32 %s, %s, 4, %s" % (v(DW), v(Z), v(X)))
        A("v_xor_b32 %s, 128, %s" % (v(DW + 1), v(DW)))
        A("s_lshl_b32 %s, %s, 8\ns_lshl_b32 %s, %s, 17" % (s(sWB), s(sH), s(sOB), s(sH)))
        for n in range(RING - 1):
            dma(n)
        A("v_and_b32 %s, 31, %s" % (v(X), v(L)))
        A("v_lshlrev_b32 %s, 2, %s" % (v(Z), v(Y)))
        A("v_xor_b32 %s, %s, %s" % (v(X), v(X), v(Z)))
        A("v_lshlrev_b32 %s, 4, %s" % (v(X), v(X)))
        A("v_lshl_add_u32 %s, %s, 10, %s" % (v(DO), v(Y), v(X)))
        A("v_xor_b32 %s, 128, %s" % (v(DO + 1), v(DO)))
        A("s_mov_b32 %s, %d" % (s(sT0), w * WREG))
        A("v_lshrrev_b32 %s, 2, %s" % (v(X), v(L)))
        A("v_and_b32 %s, 7, %s" % (v(Z), v(X)))
        A("v_xor_b32 %s, %d, %s" % (v(Z), 2 * w, v(Z)))
        A("v_lshlrev_b32 %s, 8, %s" % (v(X), v(X)))
        A("v_lshl_add_u32 %s, %s, 5, %s" % (v(X), v(Z), v(X)))
        A("v_and_b32 %s, 3, %s" % (v(Y), v(L)))
        A("v_lshl_add_u32 %s, %s, 3, %s" % (v(TRW), v(Y), v(X)))
        A("v_xor_b32 %s, 32, %s" % (v(TRW + 1), v(TRW)))
        A("v_add_u32 %s, %d, %s" % (v(TRW + 2), 2 * WREG, v(TRW)))
        A("v_add_u32 %s, %d, %s" % (v(TRW + 3), 2 * WREG, v(TRW + 1)))
        A("v_bfe_u32 %s, %s, 2, 1" % (v(X), v(L)))
        A("v_lshl_add_u32 %s, %s, 1, %s" % (v(X), v(G), v(X)))
        A("v_and_b32 %s, 3, %s" % (v(Z), v(X)))
        A("v_xor_b32 %s, %d, %s" % (v(Z), w, v(Z)))
        A("v_lshlrev_b32 %s, 9, %s" % (v(X), v(X)))
        A("v_lshl_add_u32 %s, %s, 6, %s" % (v(X), v(Z), v(X)))
        A("v_lshl_add_u32 %s, %s, 4, %s" % (v(X), v(Y), v(X)))
        A("v_bfe_u32 %s, %s, 3, 1" % (v(Y), v(L)))
        A("v_lshl_add_u32 %s, %s, 3, %s" % (v(TRO), v(Y), v(X)))
        A("v_add_u32 %s, %d, %s" % (v(TRO + 1), 2 * WREG, v(TRO)))
        CB, N4 = T0 + 3, T1 + 3
        A("v_bfe_u32 %s, %s, 1, 1" % (v(CB), v(L)))
        A("v_bfe_u32 %s, %s, 2, 2" % (v(N4), v(L)))
        A("v_lshlrev_b32 %s, 4, %s" % (v(X), v(L)))
        A("v_add_u32 %s, %s, %s" % (v(VL0), s(sT0), v(X)))
        A("v_add_u32 %s, %d, %s" % (v(VL1), LB, v(X)))
        A("v_lshl_add_u32 %s, %s, 10, %s" % (v(VSX), v(CB), v(VL1)))
        A("v_lshrrev_b32 %s, 3, %s" % (v(X), v(L)))
        A("s_lshl1_add_u32 %s, %s, %s" % (s(sT1), s(sWAVE), s(sH)))
        A("v_lshl_add_u32 %s, %s, 2, %s" % (v(Y), v(X), s(sT1)))
        A("v_and_b32 %s, 31, %s" % (v(Y), v(Y)))
        A("v_lshlrev_b32 %s, 13, %s" % (v(X), v(X)))
        A("v_lshl_add_u32 %s, %s, 6, %s" % (v(X), v(Y), v(X)))
        A("v_and_b32 %s, 7, %s" % (v(Y), v(L)))
        A("v_lshl_add_u32 %s, %s, 3, %s" % (v(VH1), v(Y), v(X)))
        A("v_mul_u32_u24 %s, 0xAAAA, %s" % (v(IDX), v(CB)))
        A("v_add_u32 %s, 0x4444, %s" % (v(IDX), v(IDX)))
        A("v_mov_b32 %s, 0x3F003F00\nv_mov_b32 %s, 0x3F003F00" % (v(HALF), v(HALF + 1)))
        A("v_and_b32 %s, 1, %s" % (v(X), v(L)))
        A("v_lshlrev_b32 %s, 4, %s" % (v(X), v(X)))
        A("v_cmp_eq_u32 vcc, %s, %s" % (v(G), v(N4)))
        for base, val in ((SELQ, SA_BF), (SELK, SB_BF)):
            A("v_mov_b32 %s, 0x%x" % (v(Y), val))
            A("v_lshlrev_b32 %s, %s, %s" % (v(Y), v(X), v(Y)))
            A("v_cndmask_b32 %s, 0, %s, vcc" % (v(base), v(Y)))
            A("v_mov_b32 %s, %s" % (v(base + 1), v(base)))
        A("v_bfe_u32 %s, %s, 2, 1" % (v(X), v(L)))
        A("v_lshlrev_b32 %s, 4, %s" % (v(X), v(X)))
        A("v_mov_b32 %s, 0x3F80" % v(Y))
        A("v_lshlrev_b32 %s, %s, %s" % (v(Y), v(X), v(Y)))
        A("v_bfe_u32 %s, %s, 3, 1" % (v(Z), v(L)))
        A("v_and_b32 %s, 1, %s" % (v(X), v(L)))
        A("v_lshl_add_u32 %s, %s, 1, %s" % (v(Z), v(X), v(Z)))
        for rho in range(4):
            A("v_cmp_eq_u32 vcc, %d, %s" % (rho, v(Z)))
            A("v_cndmask_b32 %s, 0, %s, vcc" % (v(SELR + rho), v(Y)))
        A("v_lshlrev_b32 %s, 2, %s" % (v(X), v(X)))
        A("v_lshl_add_u32 %s, %s, 28, %s" % (v(X), v(N4), v(X)))
        A("v_lshl_add_u32 %s, %s, 8, %s" % (v(X), v(CB), v(X)))
        A("v_and_b32 %s, 16, %s" % (v(Y), v(L)))
        A("v_add_u32 %s, %s, %s" % (v(X), v(Y), v(X)))
        A("v_bfe_u32 %s, %s, 5, 1" % (v(Y), v(L)))
        A("v_lshl_add_u32 %s, %s, 3, %s" % (v(VH2), v(Y), v(X)))
        A("v_and_b32 %s, 1, %s" % (v(X), v(L)))
        A("v_lshl_add_u32 %s, %s, 1, %s" % (v(X), v(N4), v(X)))
        A("v_lshlrev_b32 %s, 10, %s" % (v(X), v(X)))
        A("v_lshl_add_u32 %s, %s, 6, %s" % (v(X), v(CB), v(X)))
        A("v_lshl_add_u32 %s, %s, 4, %s" % (v(M0A), v(G), v(X)))

        self.poison_init(A)
        A("s_mov_b32 %s, 0" % s(sSTEP))
        A("s_lshl_b32 %s, %s, 11" % (s(sT0), s(sWAVE)))
        A("s_mov_b32 %s, %d" % (s(sH2L), MEMB - LB))
        A("s_lshr_b32 %s, %s, 4\ns_lshl_b32 %s, %s, 10\ns_add_u32 %s, %s, %s" % (s(sT1), s(sH), s(sT1), s(sT1), s(sT1), s(sT1), s(sT0)))
        A("s_and_b32 %s, %s, 6\ns_lshl_b32 %s, %s, 5\ns_add_u32 %s, %s, %s" % (s(sPH), s(sH), s(sPH), s(sPH), s(sT1), s(sT1), s(sPH)))
        A("s_and_b32 %s, %s, 8\ns_lshl2_add_u32 %s, %s, %s" % (s(sPH), s(sH), s(sT1), s(sPH), s(sT1)))
        A("s_and_b32 %s, %s, 1\ns_lshl_b32 %s, %s, 9\ns_add_u32 %s, %s, %s" % (s(sPH), s(sH), s(sPH), s(sPH), s(sT1), s(sT1), s(sPH)))
        A("s_add_u32 %s, %s, %d" % (s(sH2S), s(sT1), MEMB + 8192))
        A("s_add_u32 %s, %s, %d" % (s(sH2C), s(sT1), MEMC))
        A("s_lshl_b32 %s, %s, 16" % (s(sH1S0), s(sWAVE)))
        A("s_add_u32 %s, %s, %d" % (s(sH1S0), s(sH1S0), INB1))
        A("s_add_u32 %s, %s, 4096" % (s(sH1S1), s(sH1S0)))
        A("s_lshl_b32 %s, %s, 13" % (s(sT1), s(sH)))
        A("s_add_u32 %s, %s, %s" % (s(sKX), s(sT1), s(sT0)))
        A("s_add_u32 %s, %s, %d" % (s(sH1L), s(sKX), INB1 - LB))
        A("s_mov_b32 %s, 0" % s(sPH))
        A("s_add_u32 %s, %s, %d" % (s(sKX), s(sKX), KX - LB))
        A("s_add_u32 %s, %s, %d" % (s(sVX), s(sKX), VX - KX))
        A("s_cmp_eq_u32 %s, 2" % s(sWAVE))
        A("s_cselect_b32 %s, %d, 0" % (s(sPF), VX - KX))
        A("s_add_u32 %s, %s, %d" % (s(sPF), s(sPF), KX + 262144 - 8 * LB))
        A("s_add_u32 %s, %s, %s" % (s(sPF), s(sPF), s(sT1)))
        A("s_cmp_eq_u32 %s, 3" % s(sWAVE))
        A("s_cselect_b32 %s, %d, %s" % (s(sPF), MEMB + 8192 - 8 * LB, s(sPF)))
        A("s_cmp_eq_u32 %s, 2" % s(sWAVE))
        A("s_cselect_b32 %s, %d, 0" % (s(sPROG), 16 * 128))
        A("s_add_u32 %s, %s, %d" % (s(sPROG), s(sPROG), FLAGS + F_P + 16 * 128))
        A("s_lshr_b32 %s, %s, 1\ns_lshl_b32 %s, %s, 7" % (s(sT1), s(sH), s(sT1), s(sT1)))
        A("s_add_u32 %s, %s, %s" % (s(sPROG), s(sPROG), s(sT1)))
        A("s_mov_b32 %s, 0x%x" % (s(sBIG), 0 if o.get("forcefb") else 0x5D800000))
        A("s_mov_b32 %s, 0xCCCCCCCC\ns_mov_b32 %s, 0xCCCCCCCC" % (s(sCM), s(sCM + 1)))
        for q in range(4):
            vm("buffer_load_dwordx4 %s, %s, %s, 0 offen offset:%d" % (v(MEM + 4 * q, 4), v(M0A), s(SM0, 4), 128 * KS[w][q]))
        A("v_and_b32 %s, 12, %s" % (v(X), v(VH2)))
        A("v_bfe_u32 %s, %s, 4, 1" % (v(Y), v(VH2)))
        A("v_lshl_add_u32 %s, %s, 10, %s" % (v(X), v(Y), v(X)))
        A("v_bfe_u32 %s, %s, 8, 1" % (v(Y), v(VH2)))
        A("v_lshl_add_u32 %s, %s, 4, %s" % (v(X), v(Y), v(X)))
        A("s_and_b32 %s, %s, 6\ns_lshl_b32 %s, %s, 10\ns_and_b32 %s, %s, 24\ns_lshl3_add_u32 %s, %s, %s" % (
            s(sT0), s(sH), s(sT0), s(sT0), s(sT1), s(sH), s(sT0), s(sT1), s(sT0)))
        A("s_and_b32 %s, %s, 1\ns_lshl_b32 %s, %s, 5\ns_add_u32 %s, %s, %s" % (
            s(sT1), s(sH), s(sT1), s(sT1), s(sT0), s(sT0), s(sT1)))
        vm("buffer_load_dword %s, %s, %s, %s offen offset:%d" % (v(MCD), v(X), s(SM0, 4), s(sT0), 256 * w))
        A("v_lshlrev_b32 %s, 3, %s" % (v(T0), v(VL1)))
        HOLD = {("Q", 0): P[0], ("Q", 1): P[4], ("O", 1, 1): P[2], ("O", 2, 1): MEM + 16, ("O", 3, 1): KXR}
        held = []

        def put(u, src):
            for q in range(4):
                A("ds_write_b128 %s, %s offset:%d" % (v(VL0), v(src + 4 * q, 4), slot_of(u) * 4096 + q * 1024))

        pft = "buffer_load_dword %s, %s, %%s offen lds" % (v(T0), WS)
        for n, st in enumerate(stages):
            vwait(n)
            A("s_waitcnt lgkmcnt(0)\ns_barrier")
            if n + RING - 1 < 32:
                dma(n + RING - 1)
            u = ("O", (st[1] - w) % 4, st[2]) if st[0] == "O" else (st[0], KS[w].index(st[1]))
            dst = RES_REG[u] if u in RES_REG else HOLD.get(u, P[0])
            for t_ in range(2):
                for r in range(4):
                    off = (r % 2) * WREG + (n % RING) * 4096
                    ad = (TRO + r // 2, off + 256 * t_) if st[0] == "O" else (TRW + t_ + 2 * (r // 2), off)
                    A("ds_read_b64_tr_b16 %s, %s offset:%d" % (R(dst + 8 * t_ + 2 * r, 2), v(ad[0]), ad[1]))
            if n >= 28:
                c = [x for x in held if slot_of(x) == (n - 1) % RING]
                put(c[0], HOLD[c[0]])
                held.remove(c[0])
            if u in HOLD:
                held.append(u)
            elif u not in RES_REG:
                A("s_waitcnt lgkmcnt(0)")
                put(u, dst)
            if n == 5 and w == 0:
                A("s_cmp_lg_u32 %s, 0\ns_cselect_b32 %s, 0x10001, 1" % (s(sXCC), s(sT0)))
                A("v_mov_b32 %s, %s" % (v(X), s(sT0)))
                A("s_mov_b64 exec, 1")
                vm("buffer_atomic_add %s, off, s[28:31], 0 offset:%d" % (v(X), DBG_CHAIN_READY))
                A("s_mov_b64 exec, -1")
            if n == 14:
                vm("buffer_load_dword %s, off, s[28:31], 0 offset:%d sc1" % (v(INI), DBG_INIT))
                vm("buffer_load_dword %s, off, s[28:31], 0 offset:%d sc1" % (v(RDY), DBG_CHAIN_READY))
            if n == 20:
                lab = A.uid("c_fl")
                A("v_readfirstlane_b32 %s, %s\nv_readfirstlane_b32 %s, %s" % (s(sT0), v(INI), s(sT1), v(RDY)))
                A("s_lshl_b32 %s, %s, 5\ns_and_b32 %s, %s, %s\ns_cbranch_scc1 %s" % (s(sT0), s(sT0), s(sT0), s(sT0), s(sT1), lab))
                self.wait_dbg(A, DBG_INIT, 1, mask=None)
                self.wait_dbg(A, DBG_CHAIN_READY, 32, mask=0xFFFF)
                A.label(lab)
                A("s_lshr_b32 %s, %s, 16" % (s(sXCC), s(sT1)))
            if n == 27:
                A("s_add_u32 %s, %s, %d" % (s(sT0), s(sPROG), -2048 if w == 2 else 2048))
                vm("buffer_load_dword %s, off, %s, %s sc1" % (v(PRK), WS, s(sPROG)), "prg")
                vm("buffer_load_dword %s, off, %s, %s sc1" % (v(PRV), WS, s(sT0)), "prg")
                if w in (0, 3):
                    A("s_mov_b32 m0, %d" % (LB + RB + 4096))
                    A("s_lshl_b32 %s, %s, 13\ns_add_u32 %s, %s, %d" % (s(sT0), s(sH), s(sT0), s(sT0), INB1 - 8 * LB))
                    vm(pft % s(sT0 if w == 0 else sPF))
        A("s_mov_b32 m0, %d" % (LB + RB + 4096 + (0 if w else 1024)))
        vwait("prg")
        A("v_min_u32 %s, %s, %s" % (v(PRK), v(PRK), v(PRV)))
        A("s_mov_b32 %s, %d" % (s(sNEED), o.get("need0", 2)))
        A("v_readfirstlane_b32 %s, %s" % (s(sSEEN), v(PRK)))
        lab = A.uid("c_rdy")
        A("s_cmp_ge_u32 %s, %s\ns_cbranch_scc1 %s" % (s(sSEEN), s(sNEED), lab))
        A("s_xor_b32 %s, %s, %d" % (s(sPROG), s(sPROG), 0x1800))
        self.progress(A)
        A("s_xor_b32 %s, %s, %d" % (s(sPROG), s(sPROG), 0x1800))
        self.progress(A)
        A.label(lab)
        A("s_waitcnt lgkmcnt(0)\ns_barrier")
        put(held[0], HOLD[held[0]])
        A("s_waitcnt lgkmcnt(0)")
        for r, sb in ((KXR, sKX),):
            A("buffer_load_dwordx4 %s, %s, %s, %s offen sc1" % (v(r, 4), v(VL1), WS, s(sb)))
            A("buffer_load_dwordx4 %s, %s, %s, %s offen offset:1024 sc1" % (v(r + 4, 4), v(VL1), WS, s(sb)))
        if w == 3:
            A("s_add_u32 %s, %s, 8192" % (s(sPF), s(sPF)))
        A("s_add_u32 %s, %s, 262144" % (s(sKX), s(sKX)))
        A("s_lshl_b32 %s, %s, 1\ns_lshl_b64 %s, 3, %s" % (s(sT0), s(sH), s(sMX, 2), s(sT0)))
        A("v_mov_b32 %s, %s" % (v(T0 + 1), v(MCD)))
        A("\n".join(stream_rd(("K", 0), 0) + stream_rd(("K", 0), 1)))
        self.window_b(A)
        A("s_waitcnt lgkmcnt(0)")
        if self.dbg:
            self.calib(A, 0)
        if self.tot:
            A("s_memtime s[92:93]\ns_memrealtime s[88:89]\ns_waitcnt lgkmcnt(0)")
        if o.get("hst"):
            A("s_memrealtime s[88:89]\ns_waitcnt lgkmcnt(0)")
        A("s_cmp_lg_u32 %s, 0\ns_cbranch_scc1 c_entry_1_%d\ns_branch c_entry_0_%d" % (s(sXCC), w, w))

    def calib(self, A, slot):
        lab = A.uid("c_cal")
        A("s_memrealtime s[60:61]\ns_waitcnt lgkmcnt(0)")
        A.label(lab)
        A("s_memrealtime s[62:63]\ns_memtime s[64:65]\ns_waitcnt lgkmcnt(0)")
        A("s_cmp_eq_u32 s62, s60\ns_cbranch_scc1 %s" % lab)
        A("v_mov_b32 %s, s62\nv_mov_b32 %s, s64" % (v(T0), v(T0 + 1)))
        A("s_lshl_b32 %s, %s, 6\ns_lshl_b32 %s, %s, 4\ns_add_u32 %s, %s, %s\ns_add_u32 %s, %s, %d" % (
            s(sT0), s(sH), s(sT1), s(sWAVE), s(sT0), s(sT0), s(sT1), s(sT0), s(sT0), STAMP + 2048 + 8 * slot))
        A("buffer_store_dwordx2 %s, off, %s, %s" % (v(T0, 2), WS, s(sT0)))
        A("s_waitcnt vmcnt(0)")

    def poison_init(self, A):
        PO = KXR
        for i in range(4):
            A("v_mov_b32 %s, -1" % v(PO + i))
        A("s_lshl_b32 %s, %s, 13\ns_lshl_b32 %s, %s, 11" % (s(sT0), s(sH), s(sT1), s(sWAVE)))
        A("s_add_u32 %s, %s, %s\ns_add_u32 %s, %s, %d" % (s(sT0), s(sT0), s(sT1), s(sT0), s(sT0), INB1 - LB))
        for q in range(2):
            self.vm("buffer_store_dwordx4 %s, %s, %s, %s offen offset:%d sc1" % (v(PO, 4), v(VL1), WS, s(sT0), 1024 * q))
        X = PO + 4
        A("v_lshlrev_b32 %s, 13, %s" % (v(X), v(T0 + 2)))
        A("v_lshl_add_u32 %s, %s, 4, %s" % (v(X), v(T0 + 1), v(X)))
        A("s_lshl_b32 %s, %s, 8\ns_lshl_b32 %s, %s, 17" % (s(sT0), s(sH), s(sT1), s(sWAVE)))
        A("s_add_u32 %s, %s, %s\ns_add_u32 %s, %s, %d" % (s(sT0), s(sT0), s(sT1), s(sT0), s(sT0), MEMB))
        for q in range(4):
            self.vm("buffer_store_dwordx4 %s, %s, %s, %s offen sc1" % (v(PO, 4), v(X), WS, s(sT0)))
            A("s_add_u32 %s, %s, %d" % (s(sT1), s(sT0), MEMC - MEMB))
            self.vm("buffer_store_dwordx4 %s, %s, %s, %s offen sc1" % (v(PO, 4), v(X), WS, s(sT1)))
            A("s_add_u32 %s, %s, 32768" % (s(sT0), s(sT0)))

    def budget(self, A, give_up):
        A("s_cmp_eq_u32 %s, 0\ns_cbranch_scc1 %s\ns_sub_u32 %s, %s, 1" % (s(sBUD), give_up, s(sBUD), s(sBUD)))

    def wait_dbg(self, A, off, want, mask):
        top, done = A.uid("c_wd"), A.uid("c_wdd")
        A.label(top)
        A("buffer_load_dword %s, off, s[28:31], 0 offset:%d sc1" % (v(T1), off))
        A("s_waitcnt vmcnt(0)")
        A("v_readfirstlane_b32 %s, %s" % (s(sT1), v(T1)))
        if mask is None:
            A("s_cmp_ge_u32 %s, %d" % (s(sT1), want))
        else:
            A("s_and_b32 %s, %s, 0x%x\ns_cmp_ge_u32 %s, %d" % (s(sT0), s(sT1), mask, s(sT0), want))
        A("s_cbranch_scc1 %s" % done)
        self.budget(A, done)
        A("s_sleep 2\ns_branch %s" % top)
        A.label(done)

    def spin_ge(self, A, soff, want, vreg):
        top, done = A.uid("c_sp"), A.uid("c_spd")
        A.label(top)
        A("buffer_load_dword %s, off, %s, %s sc1" % (v(vreg), WS, s(soff)))
        A("s_waitcnt vmcnt(0)")
        A("v_readfirstlane_b32 %s, %s" % (s(sT1), v(vreg)))
        A("s_cmp_ge_u32 %s, %s" % (s(sT1), want))
        A("s_cbranch_scc1 %s" % done)
        self.budget(A, done)
        A("s_sleep 2\ns_branch %s" % top)
        A.label(done)

    def progress(self, A):
        top, done = A.uid("c_sp"), A.uid("c_spd")
        A.label(top)
        A("buffer_load_dword %s, off, %s, %s sc1" % (v(T1), WS, s(sPROG)))
        A("s_waitcnt vmcnt(0)")
        A("v_readfirstlane_b32 %s, %s" % (s(sSEEN), v(T1)))
        A("s_cmp_ge_u32 %s, %s" % (s(sSEEN), s(sNEED)))
        A("s_cbranch_scc1 %s" % done)
        self.budget(A, done)
        A("s_sleep 2\ns_branch %s" % top)
        A.label(done)

    def window_a(self, A):
        for u in STREAM_UNITS[:3]:
            for t in range(2):
                A("\n".join(stream_rd(u, t)))

    def window_b(self, A):
        for k, r in enumerate(range(AQ, AQ + 24, 2)):
            A("v_mov_b64 %s, 0" % v(r, 2))
            if k % 2 == 1:
                A("s_nop 0")

    def stamp(self, A, k):
        pass

    def add_stamps(self, lines, main=True):
        import re
        out, k = [], 0
        stride, phase = self.o.get("every", (20, 0))
        at = [re.compile(p) for p in self.o.get("at", [])]
        n = 0
        self.stamp_pos = []
        for l in lines:
            if l == "; DUMP":
                break
            if not at and not l.endswith(":") and not l.startswith(";"):
                if n % stride == phase and k < 15:
                    out.append("s_memtime s[%d:%d]" % (sST + 2 * k, sST + 2 * k + 1))
                    self.stamp_pos.append(n)
                    k += 1
                n += 1
            if not l.endswith(":") and not l.startswith(";"):
                if at and main and n == self.o.get("nth", -1):
                    out.append("s_memtime s[%d:%d]" % (sST + 28, sST + 29))
                n += 1 if at else 0
            out.append(l)
            for q, p in enumerate(at):
                if p.search(l):
                    out.append("s_memtime s[%d:%d]" % (sST + 2 * q, sST + 2 * q + 1))
        return out + lines[lines.index("; DUMP") + 1:]

    def loop(self, w, slow):
        CUR[0] = w
        A = Asm()
        B = Asm()
        A._uid = B._uid = 1000 * (1 + w + 4 * slow)
        B._uid += 500
        o = {k: (x[w] if isinstance(x, list) and k not in ("at", "more", "drop", "every") else x) for k, x in self.o.items()}
        hs = " sc1" if slow else ""
        ks = lambda i: KS[w][i]
        tag = "%d_%d" % (slow, w)
        top, entry, fin = "c_top_" + tag, "c_entry_" + tag, "c_fin_" + tag
        CK = T1 + 2

        def ld2(p):
            so, off = (sH2L, 0) if ks(2 * p) < 4 else (sH2M, 4096)
            return ["buffer_load_dwordx4 %s, %s, %s, %s offen offset:%d sc1" % (
                v(MEM + 4 * i, 4), v(VL1), WS, s(so), ks(i) * 1024 - off) for i in (2 * p, 2 * p + 1)]

        def chk2(p):
            r = MEM + 8 * p
            return ["v_max3_u32 %s, %s, %s, %s" % (v(CK), v(r), v(r + 1), v(r + 2)),
                    "v_max3_u32 %s, %s, %s, %s" % (v(CK), v(CK), v(r + 3), v(r + 4)),
                    "v_max3_u32 %s, %s, %s, %s" % (v(CK), v(CK), v(r + 5), v(r + 6)),
                    "v_max_u32 %s, %s, %s" % (v(CK), v(CK), v(r + 7)),
                    "v_cmp_eq_u32 vcc, -1, %s" % v(CK)]

        def nops(n):
            while n > 0:
                A("s_nop %d" % (min(n, 16) - 1))
                n -= 16

        wrB = ["ds_write_b128 %s, %s offset:%d" % (v(VL1), v(MEM + 4 * i, 4), RA + ks(i) * 1024) for i in (2, 3)] if w else []
        for p, back in ((0, "c_okL_"), (1, "c_okB_")):
            lds = ld2(0) + ld2(1) if p == 0 else ld2(1)
            B.label("c_bad%d_%s" % (p, tag))
            B("\n".join(lds))
            B("s_sleep 1")
            B.label("c_bad%d_%s" % (p + 2, tag))
            if self.tot:
                B("s_add_u32 s95, s95, %d" % (1 << (16 * p)))
            B("\n".join(lds))
            self.budget(B, back + tag)
            B("s_waitcnt vmcnt(%d)" % (len(lds) + (2 if p == 0 else 0)))
            B("\n".join(chk2(p)))
            if p:
                B("\n".join(wrB))
            B("s_cbranch_vccnz c_bad%d_%s" % (p + 2, tag))
            B("s_branch " + back + tag)
        A.label(top)
        A("s_waitcnt vmcnt(%d)" % (2 + 2 * o.get("twoB", 0) + 2 * o.get("twoA", 0)))
        A("\n".join(chk2(0)))
        A("s_cbranch_vccnz c_bad%d_%s" % (2 if o.get("twoA", 0) and not o.get("twoB", 0) else 0, tag))
        A.label(entry)
        A.label("c_okL_" + tag)
        mA = [W("Q", 0, 0), W("Q", 1, 0), W("K", 0, 0), W("K", 1, 0), W("Q", 0, 1), W("Q", 1, 1),
              W("K", 0, 1), W("K", 1, 1), W("V", 0, 0), W("V", 1, 0), W("V", 0, 1), W("V", 1, 1)]
        mB = [W(m, t_, i) for m in "QVK" for i in (2, 3) for t_ in range(2)]
        nA, nB = o.get("nA", [4, 0, 4, 7][w]), o.get("nB", [4, 4, 4, 1][w])
        mB = mB[:nB + o.get("nC", 4)]
        twoB = o.get("twoB", 0)
        A("\n".join(mA[:nA]))
        A("s_waitcnt vmcnt(%d)" % (2 * twoB))
        ck = chk2(1)
        if o.get("immB", 1):
            A("\n".join(ck))
            A("\n".join(wrB))
            A("s_cbranch_vccnz c_bad%d_%s" % (3 if twoB else 1, tag))
            A.label("c_okB_" + tag)
            A("\n".join(mA[nA:]))
        else:
            A("\n".join(wrB))
            for m in mA[nA:]:
                A(m)
                if ck:
                    A(ck.pop(0))
            A("\n".join(ck))
            A("s_cbranch_vccnz c_bad1_" + tag)
            A.label("c_okB_" + tag)
        if o.get("lateexit"):
            A("s_cmp_eq_u32 %s, %d\ns_cbranch_scc1 %s" % (s(sSTEP), NSEG - 1, fin))
        A(mB[0])
        if w > 0:
            A("v_lshlrev_b32 %s, 3, %s" % (v(T0 + 2), v(VL1)))
        else:
            A("v_lshlrev_b32 %s, 7, %s" % (v(T0 + 2), v(VL0)))
        A("\n".join(mB[1:nB]))
        A("s_waitcnt lgkmcnt(0)")
        A("s_barrier ; B1")
        rd = ["ds_read_b128 %s, %s offset:%d" % (v(MEM + 4 * i, 4), v(VL1), RA + ks(i) * 1024) for i in range(4, 8)]
        gb = []
        for t in range(2):
            for i in (5, 6, 7):
                gb += stream_rd(("K", i), t)
        memc = "buffer_store_dword %s, %s, %s, %s offen sc1" % (v(T0 + 1), v(VH2), WS, s(sH2C))
        pf = "buffer_load_dword %s, %s, %s offen lds" % (v(T0 + 2), WS, s(sPF))
        npend = 2
        QB, QOP, KOP, VB = T0, T1, P[2], P[2] + 4
        ds = rd + gb
        A(ds.pop(0))
        A(ds.pop(0))
        for k, m in enumerate(mB[nB:]):
            A(m)
            A(ds.pop(0))
            if k == 0:
                A(ds.pop(0))
        for i in range(4, 8):
            A("s_waitcnt lgkmcnt(%d)" % (16 - len(ds) - 1 - (i - 4)))
            A(W("Q", 0, i))
            if ds:
                A(ds.pop(0))
        popd = lambda: [ds.pop(0)] if ds else []
        z64 = lambda r: "v_mov_b64 %s, 0" % v(r, 2)
        add = lambda d, x, y: "v_add_f32 %s, %s, %s" % (v(d), v(x), v(y))
        dpp = lambda d, x, q: "v_mov_b32_dpp %s, %s quad_perm:%s row_mask:0xf bank_mask:0xf" % (v(d), v(x), q)
        addx = lambda r: "v_add_f32_dpp %s, %s, %s quad_perm:[2,3,0,1] row_mask:0xf bank_mask:0xf" % (v(r), v(r), v(r))
        ex = lambda d, x: "v_exp_f32 %s, %s" % (v(d), v(x))
        X = [P[0], P[0] + 4, P[1], P[1] + 4]
        M = P[3]
        EX, EB, AL, EM = X[1], X[2], X[3], T0
        RR, TT = T0 + 2, T0 + 3
        sel = ["v_cndmask_b32 %s, %s, %s, %s" % (v(AQ + r), v(AQ + r), v(AQ + 4 + r), s(sCM, 2)) for r in range(4)]
        xr = ["ds_read_b128 %s, %s offset:%d" % (v(X[q], 4), v(VL1), RB + q * 1024) for q in range(4)]
        gc1 = stream_rd(("O", 1, 1), 0) + stream_rd(("O", 1, 1), 1)
        gc2 = stream_rd(("O", 2, 1), 0) + stream_rd(("O", 3, 1), 0) + stream_rd(("O", 2, 1), 1) + stream_rd(("O", 3, 1), 1)
        kvl = ["buffer_load_dwordx4 %s, %s, %s, %s offen offset:%d sc1" % (v(r + 4 * q, 4), v(VL1), WS, s(sb), 1024 * q)
               for r, sb in ((KXR, sKX), (VXR, sVX)) for q in range(2)]
        seq = [W("Q", 1, 4)] + popd() + popd() + [W("Q", 1, 5)] + popd() + [
            cvt(QB, AQ, AQ + 1), cvt(QB + 1, AQ + 2, AQ + 3), W("Q", 1, 6), mf16(AQ, QB, SELQ)] + popd() + popd() + [W("Q", 1, 7),
            W("K", 0, 2), cvt(QOP, AQ, AQ + 1), W("K", 0, 3),
            cvt(QB + 2, AQ + 4, AQ + 5), cvt(QB + 3, AQ + 6, AQ + 7), W("K", 0, 4), mf16(AQ + 4, QB + 2, SELQ),
            cvt(QOP + 1, AQ + 2, AQ + 3), "s_waitcnt lgkmcnt(0)", W("K", 0, 5), W("K", 0, 6),
            cvt(QOP + 2, AQ + 4, AQ + 5), cvt(QOP + 3, AQ + 6, AQ + 7), W("K", 0, 7),
            "WAITK", mf32(AQ, KXR, QOP), mf32(AQ + 4, KXR + 4, QOP) + " ; SX",
            cvt(QB, AK, AK + 1), cvt(QB + 1, AK + 2, AK + 3), W("K", 1, 2), mf16(AK, QB, SELK),
            sel[0], sel[1], sel[2], sel[3], W("K", 1, 3),
            "ds_write_b128 %s, %s offset:%d" % (v(VL1), v(AQ, 4), RB + w * 1024),
            W("K", 1, 4), cvt(KOP, AK, AK + 1), W("K", 1, 5), cvt(KOP + 1, AK + 2, AK + 3), W("K", 1, 6), W("K", 1, 7),
            "V", "V", cvt(QB + 2, AK + 4, AK + 5), cvt(QB + 3, AK + 6, AK + 7),
            "s_waitcnt lgkmcnt(0)", "s_barrier ; B2", mf16(AK + 4, QB + 2, SELK), xr[0], xr[1],
            "V", xr[2], xr[3], "V?",
            cvt(KOP + 2, AK + 4, AK + 5), cvt(KOP + 3, AK + 6, AK + 7), "V?", mf32(AK, KOP, QOP),
            "s_waitcnt lgkmcnt(2)"] + [add(X[0] + r, X[0] + r, X[1] + r) for r in range(4)] + [
            "V",
            "ds_write_b64 %s, %s offset:%d" % (v(VL1), v(AK, 2), RA + (w // 2) * 1024 + (w % 2) * 8),
            "s_waitcnt lgkmcnt(1)"] + [add(X[2] + r, X[2] + r, X[3] + r) for r in range(4)] + [
            "V?"] + [add(X[0] + r, X[0] + r, X[2] + r) for r in range(4)] + [
            ex(EX, X[0]), ex(EX + 1, X[0] + 1), "V",
            "s_waitcnt lgkmcnt(0)", "s_barrier ; B3",
            "ds_read_b128 %s, %s offset:%d" % (v(M, 4), v(VSX), RA), "V", gc1[0], gc1[1],
            ex(EX + 2, X[0] + 2), ex(EX + 3, X[0] + 3), cvt(EX, EX, EX + 1), cvt(EX + 1, EX + 2, EX + 3),
            "V", gc1[2], gc1[3], dpp(EB, EX, "[0,1,0,1]"), mf16(AL, HALF, EX),
            dpp(EB + 1, EX + 1, "[0,1,0,1]"), dpp(EB + 2, EX, "[2,3,2,3]"), dpp(EB + 3, EX + 1, "[2,3,2,3]"),
            "V?", "s_waitcnt lgkmcnt(4)", add(M, M, M + 2), "V", gc2[0], gc2[1], add(M + 1, M + 1, M + 3),
            "WAITV", mf32(AQ, VXR, EB), gc2[2], addx(M), addx(M + 1),
            mf32(AQ + 4, VXR + 4, EB), gc2[3], ex(M + 2, M), ex(M + 3, M + 1), addx(AL),
            cvt(EM, M + 2, M + 3), cvt(EM + 1, M + 2, M + 3), add(AL, AL, AL),
            cvt(VB, AV, AV + 1), cvt(VB + 1, AV + 2, AV + 3),
            mf16(AL, HALF, EM, AL), cvt(VB + 2, AV + 4, AV + 5), cvt(VB + 3, AV + 6, AV + 7), z64(ACCO[0]),
            mf16(AQ, VB, EM, AQ), z64(ACCO[0] + 2), z64(ACCO[1]), z64(ACCO[1] + 2),
            mf16(AQ + 4, VB + 2, EM, AQ + 4)]
        assert not ds
        vs = [m for m in [W("V", t_, i) for i in range(2, 6) for t_ in range(2)] + [
            W("V", 0, 6), W("V", 0, 7), W("V", 1, 6), W("V", 1, 7)] if m not in mB]
        opt = [k for k, m in enumerate(seq) if m == "V?"]
        drop = [opt[k] for k in (3, 2, 1, 0)][:12 - len(vs)]
        seq = [m for k, m in enumerate(seq) if k not in drop and m not in mB]
        seq = [vs.pop(0) if m in ("V", "V?") else m for m in seq]
        A("\n".join(seq))
        self.normalize(A, w, AL, [z64(ACCO[2]), z64(ACCO[2] + 2), "v_max_f32 %s, %s, %s" % (v(TT), v(AL), v(RR))], [])
        A(WO(0, 0))
        A("v_cmp_ngt_f32 vcc, %s, %s" % (s(sBIG), v(TT)))
        A(WO(1, 0))
        A(z64(ACCO[3]))
        A(z64(ACCO[3] + 2))
        A("s_cbranch_vccnz c_slow_" + tag)
        A.label("c_back_" + tag)
        self.fallback(B, w, tag, X, M)
        A("s_waitcnt lgkmcnt(0)")
        A("s_barrier ; B4")
        for u in range(1, 4):
            A("ds_read_b128 %s, %s offset:%d" % (v(OOP[u], 4), v(VL1), RB + ((w + u) % 4) * 1024))
        A(WO(2, 0))
        A(gc2[4])
        A(WO(3, 0))
        sal = ["s_add_u32 %s, %s, 1" % (s(sSTEP), s(sSTEP)), "s_add_u32 %s, %s, 8192\ns_add_u32 %s, %s, 4096" % (s(sH2L), s(sH2L), s(sH2M), s(sH2L))]
        sal += ["s_add_u32 %s, %s, 262144" % (s(r), s(r)) for r in (sKX, sVX)]
        sal += ["s_add_u32 %s, %s, %d" % (s(sPF), s(sPF), 8192 if w == 3 else 262144)]
        sal += ["s_add_u32 %s, %s, 2" % (s(sNEED), s(sSTEP)), "s_min_u32 %s, %s, %d" % (s(sNEED), s(sNEED), NSEG - 1)]
        tagd = lambda r: "v_bfi_b32 %s, 1, %s, %s" % (v(r), s(sPH), v(r))
        st1 = lambda a_: "buffer_store_dwordx2 %s, %s, %s, %s offen offset:%d%s ; S%d" % (
            v(AQ + 2 * a_, 2), v(VH1), WS, s(sH1S1 if a_ > 1 else sH1S0), 2048 * (a_ % 2), hs, a_)
        c0 = lambda a_: cvt(AQ + 2 * a_, ACCO[a_], ACCO[a_] + 1)
        c1 = lambda a_: cvt(AQ + 2 * a_ + 1, ACCO[a_] + 2, ACCO[a_] + 3)
        t0 = lambda a_: tagd(AQ + 2 * a_)
        t1 = lambda a_: tagd(AQ + 2 * a_ + 1)
        seq = ["s_waitcnt lgkmcnt(3)", WO(0, 1), gc2[5], sal[0], "s_waitcnt lgkmcnt(3)", WO(0, 2), gc2[6], sal[1],
               "s_waitcnt lgkmcnt(3)", WO(0, 3), gc2[7], sal[2], WO(1, 1), sal[3], sal[4], WO(1, 2), c0(0), c1(0), t0(0),
               WO(1, 3), st1(0), WO(2, 1), sal[5], sal[6], WO(2, 2), c0(1), c1(1), t0(1), WO(2, 3), st1(1),
               WO(3, 1), "s_waitcnt lgkmcnt(0)", WO(3, 2), c0(2), c1(2), t0(2), WO(3, 3), st1(2),
               c0(3), c1(3), t0(3), st1(3)]
        A("\n".join(seq))
        ins = {}
        nm = lambda mark: sum("mfma" in l for l in A.lines[:[k for k, l in enumerate(A.lines) if mark in l][0] + 1]) - 1
        b1, sx = nm("; B1"), nm("; SX")
        ins.setdefault(b1 + o.get("mc0", 9) + o.get("mcs", 0) * w, []).extend([memc, "s_add_u32 %s, %s, 8192" % (s(sH2C), s(sH2C))])
        if w == 0:
            ins.setdefault(b1 + o.get("pg0", 13), []).extend([
                "s_mov_b64 exec, 3", "buffer_load_dword %s, %s, %s offen sc1 lds" % (v(T0 + 2), WS, s(sPROG)), "s_mov_b64 exec, -1"])
        if w == 3:
            ins.setdefault(b1 + o.get("pf0", 13), []).extend(["s_mov_b64 exec, %s" % s(sMX, 2), pf, "s_mov_b64 exec, -1"])
        for q in range(2):
            ins.setdefault(sx + o.get("kx0", 3) + w + o.get("kxq", 4) * q, []).append(kvl[q])
            ins.setdefault(b1 + o.get("vx0", 1) + w + o.get("vxq", 4) * q, []).append(kvl[2 + q])
        hint = o.get("hint", 0) and not slow
        if hint and w == 0:
            fp = o.get("fp", 66)
            ins.setdefault(fp - 1, []).extend(["s_sub_u32 %s, %s, 1" % (s(sT0), s(sPH)), "v_mov_b32 %s, %s" % (v(T0), s(sT0))])
            ins.setdefault(fp, []).extend(["s_mov_b64 exec, 1", "buffer_store_byte %s, off, %s, %s" % (v(T0), WS, s(sFS)), "s_mov_b64 exec, -1"])
        res, k = [], 0
        for l in A.lines:
            res.append(l)
            if "mfma" in l:
                res += ins.pop(k, [])
                k += 1
        assert not ins
        isvm = lambda l: l.startswith("buffer_") and "; cond" not in l
        k0 = res.index("c_okB_%s:" % tag)
        kk, kv = res.index("WAITK"), res.index("WAITV")
        res[kk] = "s_waitcnt vmcnt(%d)" % sum(map(isvm, res[k0:kk]))
        res[kv] = "s_waitcnt vmcnt(%d)" % sum(map(isvm, res[res.index(kvl[3]) + 1:kv]))
        A.lines = res
        if self.dbg and o.get("lastonly"):
            A("; DUMP0")
            A("; DUMP1")
        elif self.dbg:
            A("; DUMP0")
            A("s_waitcnt lgkmcnt(0)")
            self.dump_stamps(A, w)
            A("; DUMP1")
        H, AR, TG, XS = MEM + 16, T1, T0, T0 + 1
        wa = Asm()
        self.window_a(wa)
        wa = wa.lines
        zr = ["v_mov_b64 %s, 0" % v(r, 2) for r in range(AQ, AQ + 24, 2)]
        zr = zr[4:] + zr[:4]
        n1, n2, n3, z1, z2 = o.get("n1", 6), o.get("n2", 6), o.get("n3", 12), o.get("z1", 0), o.get("z2", 12)
        two1, two2 = o.get("two1", 1), o.get("two2", 1)
        A("\n".join(zr[:z1] + wa[:n1]))
        if o.get("ack1") is not None:
            A("s_waitcnt vmcnt(%d)" % o["ack1"])
        nops(o.get("delay1", 0))
        hl = lambda r: "\n".join("buffer_load_dwordx4 %s, %s, %s, %s offen offset:%d sc1" % (
            v(r + 4 * it, 4), v(VL1), WS, s(sH1L), it * 1024) for it in range(2))
        A.label("c_pfd_" + tag)
        A(hl(H))
        if w == 0:
            A("ds_read_b64 %s, %s offset:%d" % (v(T0 + 2, 2), v(VL1), RB + 4096 + 1024))
            A("s_waitcnt lgkmcnt(0)")
            A("v_min_u32 %s, %s, %s" % (v(T0 + 2), v(T0 + 2), v(T0 + 3)))
            A("v_readfirstlane_b32 %s, %s" % (s(sSEEN), v(T0 + 2)))
            A("s_cmp_lt_u32 %s, %s\ns_cbranch_scc1 c_prg_%s" % (s(sSEEN), s(sNEED), tag))
            A.label("c_prgok_" + tag)
            B.label("c_prg_" + tag)
            for _ in range(2):
                B("s_xor_b32 %s, %s, %d" % (s(sPROG), s(sPROG), 0x1800))
                self.progress(B)
            B("s_branch c_prgok_" + tag)
        A("\n".join(wa[n1:n2] + zr[z1:z2]))
        nops(o.get("gap1", 0))
        if two1:
            A(hl(H + 8))
        A("s_cmp_lg_u32 %s, 0\ns_cbranch_scc1 c_h1c1_%s" % (s(sPH), tag))
        C = Asm()
        for ph in (0, 1):
            Z = A if ph == 0 else B
            fn, fl_ = ("0xfe", "0xa8") if ph == 0 else ("0x80", "0x80")

            def red(Z, r):
                Z("s_waitcnt vmcnt(%d)" % (1 + 2 * two1))
                Z(mf32(AR, SELR, r))
                Z("s_waitcnt vmcnt(%d)" % (2 * two1))
                Z(mf32(AR, SELR, r + 4, AR))
                Z("v_bitop3_b32 %s, %s, %s, %s bitop3:%s" % (v(TG), v(r), v(r + 2), v(r + 4), fn))
                Z("v_bitop3_b32 %s, %s, %s, 1 bitop3:%s" % (v(TG), v(TG), v(r + 6), fl_))
                Z("v_cmp_ne_u32 vcc, %d, %s" % (ph, v(TG)))
                for ro in (4, 8):
                    for q in range(2):
                        Z("v_add_f32_dpp %s, %s, %s row_ror:%d row_mask:0xf bank_mask:0xf" % (v(AR + q), v(AR + q), v(AR + q), ro))
                Z(cvt(XS, AR, AR + 1))

            def again(r):
                C("s_mov_b64 exec, vcc")
                C(hl(r))
                C("s_mov_b64 exec, -1")
                if self.tot:
                    C("s_add_u32 s94, s94, 1")

            Z.label("c_h1c%d_%s" % (ph, tag))
            red(Z, H)
            Z("s_cbranch_vccnz c_h1b%d_%s" % (ph, tag))
            Z.label("c_h1ok%d_%s" % (ph, tag))
            Z("buffer_store_dword %s, %s, %s, %s offen%s" % (v(XS), v(VH2), WS, s(sH2S), hs))
            if ph:
                Z("s_branch c_pub_" + tag)
            C.label("c_h1b%d_%s" % (ph, tag))
            again(H)
            if two1:
                red(C, H + 8)
                C("s_cbranch_vccz c_h1ok%d_%s" % (ph, tag))
                again(H + 8)
            self.budget(C, "c_h1ok%d_%s" % (ph, tag))
            C("s_branch c_h1c%d_%s" % (ph, tag))
        B.extend(C)
        A.label("c_pub_" + tag)
        A("s_xor_b32 %s, %s, 1" % (s(sPH), s(sPH)))
        A("s_add_u32 %s, %s, 8192" % (s(sH2S), s(sH2S)))
        if not o.get("lateexit"):
            A("s_cmp_eq_u32 %s, %d\ns_cbranch_scc1 %s" % (s(sSTEP), NSEG - 1, fin))
        A("\n".join(wa[n2:n3] + zr[z2:]))
        if o.get("lgA", [0, 0, 1, 0][w]):
            A("s_waitcnt lgkmcnt(0)")
        if o.get("ackA", [1, 1, 0, 0][w]):
            A("s_waitcnt vmcnt(0)")
        nops(o.get("delayA", 0))
        A("\n".join(ld2(0)) + " ; first")
        A("\n".join(wa[n3:]))
        if o.get("lgB", [1, 0, 0, 0][w]):
            A("s_waitcnt lgkmcnt(0)")
        if o.get("ackB", 1):
            A("s_waitcnt vmcnt(2)")
        nops(o.get("delayB", 0))
        if o.get("twoA", 0):
            A("\n".join(ld2(0)))
        A("\n".join(ld2(1)) + " ; second")
        A("s_waitcnt lgkmcnt(0)")
        if o.get("twoB", 0):
            nops(o.get("gapB", 0))
            A("\n".join(ld2(1)))
        A("; DUMP")
        A("s_branch " + top)
        A.label(fin)
        A(memc)
        if o.get("hst"):
            A("s_memrealtime s[90:91]\ns_waitcnt lgkmcnt(0)")
            hst(A, [(100, 1, 5), (100, 0, 6), (86, 0, 7), (88, 1, 10), (88, 0, 11), (90, 0, 12)], T0)
        A("s_nop 7")
        A("s_mov_b64 exec, 1")
        if self.tot:
            A("s_memtime s[90:91]\ns_waitcnt lgkmcnt(0)")
            A("s_sub_u32 s90, s90, s92\ns_sub_u32 s92, s92, s96")
            A("v_mov_b32 %s, s90\nv_mov_b32 %s, s94\nv_mov_b32 %s, %s\nv_mov_b32 %s, %s" % (
                v(T0), v(T0 + 1), v(T0 + 2), "s95", v(T0 + 3), "s92"))
            A("s_lshl_b32 %s, %s, 6\ns_add_u32 %s, %s, %d" % (s(sT0), s(sH), s(sT0), s(sT0), STAMP + 16 * w))
            A("buffer_store_dwordx4 %s, off, %s, %s" % (v(T0, 4), WS, s(sT0)))
            if o.get("wst"):
                A("s_memrealtime s[90:91]\ns_waitcnt lgkmcnt(0)")
                A("v_mov_b32 %s, s88\nv_mov_b32 %s, s90" % (v(T1), v(T1 + 1)))
                A("s_lshl_b32 %s, %s, 5\ns_add_u32 %s, %s, %d" % (s(sT0), s(sH), s(sT0), s(sT0), STAMP + 0x80000 + 24))
                A("buffer_store_dwordx2 %s, off, %s, %s" % (v(T1, 2), WS, s(sT0)))
        A("s_waitcnt vmcnt(0)")
        if self.dbg:
            if o.get("lastonly"):
                A("s_mov_b64 exec, -1")
                self.dump_stamps(A, w)
                A("s_waitcnt vmcnt(0)")
            self.calib(A, 1)
        A("s_endpgm")
        if o.get("drop"):
            import re
            cut = A.lines.index("; DUMP")
            pats = [re.compile(p) for p in o["drop"]]
            keep = range(A.lines.index("; DUMP0"), A.lines.index("; DUMP1")) if self.dbg else range(0)
            A.lines = [l for k, l in enumerate(A.lines[:cut]) if k in keep or not any(p.search(l) for p in pats)] + A.lines[cut:]
        main = fix_hazards(A.lines)
        if self.dbg:
            main = self.add_stamps(main)
        ool = fix_hazards(B.lines)
        if self.dbg and o.get("at"):
            ool = self.add_stamps(ool + ["; DUMP"], False)
        return main + ["s_nop 7"] + ool

    def dump_stamps(self, A, w):
        A("s_lshl_b32 %s, %s, 5\ns_add_u32 %s, %s, %s\ns_lshl_b32 %s, %s, 8" % (
            s(sT0), s(sSTEP), s(sT0), s(sT0), s(sH), s(sT0), s(sT0)))
        A("s_add_u32 %s, %s, %d" % (s(sT0), s(sT0), STAMP + 4096 + 64 * w))
        R0 = AQ + 8
        for k in range(15):
            A("v_mov_b32 %s, %s" % (v(R0 + k), s(sST + 2 * k)))
        A("v_mov_b32 %s, %s" % (v(R0 + 15), s(sBUD)))
        A("s_mov_b64 exec, 1")
        for q in range(4):
            A("buffer_store_dwordx4 %s, off, %s, %s offset:%d" % (v(R0 + 4 * q, 4), WS, s(sT0), 16 * q))
        A("s_mov_b64 exec, -1")

    def softmax_tail(self, A, X, M, fill, first):
        EX, EB, AL, EM = X[1], X[2], X[3], T0
        VB = P[2] + 4
        fill = list(fill)
        f = lambda: A(fill.pop(0)) if fill else None
        dpp = lambda d, x, q: A("v_mov_b32_dpp %s, %s quad_perm:%s row_mask:0xf bank_mask:0xf" % (v(d), v(x), q))
        src = M if first else M + 2
        A(mf16(AL, HALF, EX))
        dpp(EB, EX, "[0,1,0,1]")
        dpp(EB + 1, EX + 1, "[0,1,0,1]")
        dpp(EB + 2, EX, "[2,3,2,3]")
        dpp(EB + 3, EX + 1, "[2,3,2,3]")
        A("v_exp_f32 %s, %s" % (v(M + 2), v(src)))
        A("v_exp_f32 %s, %s" % (v(M + 3), v(src + 1)))
        A(mf32(AQ, VXR, EB))
        A("v_add_f32_dpp %s, %s, %s quad_perm:[2,3,0,1] row_mask:0xf bank_mask:0xf" % (v(AL), v(AL), v(AL)))
        A(cvt(EM, M + 2, M + 3))
        A(mf32(AQ + 4, VXR + 4, EB))
        A(cvt(EM + 1, M + 2, M + 3))
        A("v_add_f32 %s, %s, %s" % (v(AL), v(AL), v(AL)))
        if first:
            A(cvt(VB, AV, AV + 1))
            A(cvt(VB + 1, AV + 2, AV + 3))
        A(mf16(AL, HALF, EM, AL))
        if first:
            A(cvt(VB + 2, AV + 4, AV + 5))
            A(cvt(VB + 3, AV + 6, AV + 7))
        A(mf16(AQ, VB, EM, AQ))
        f()
        f()
        f()
        A(mf16(AQ + 4, VB + 2, EM, AQ + 4))
        while fill:
            f()

    def normalize(self, A, w, AL, f0=(), f1=()):
        RR = T0 + 2
        pk = lambda r: A("v_pk_mul_f32 %s, %s, %s op_sel_hi:[1,0]" % (v(r, 2), v(r, 2), v(RR, 2)))
        A("v_rcp_f32 %s, %s" % (v(RR), v(AL)))
        A("\n".join(f0))
        pk(AQ)
        pk(AQ + 2)
        for q in range(2):
            A(cvt(OOP[0] + q, AQ + 2 * q, AQ + 2 * q + 1))
        pk(AQ + 4)
        pk(AQ + 6)
        for q in range(2, 4):
            A(cvt(OOP[0] + q, AQ + 2 * q, AQ + 2 * q + 1))
        A("ds_write_b128 %s, %s offset:%d" % (v(VL1), v(OOP[0], 4), RB + w * 1024))
        A("\n".join(f1))

    def fallback(self, B, w, tag, X, M):
        EX, AL = X[1], X[3]
        MX, TM = T0 + 2, T0 + 3
        B.label("c_slow_" + tag)
        B("s_nop 15")
        B("v_max3_f32 %s, %s, %s, %s" % (v(MX), v(X[0]), v(X[0] + 1), v(X[0] + 2)))
        B("v_max3_f32 %s, %s, %s, %s" % (v(MX), v(MX), v(X[0] + 3), v(M)))
        B("v_max_f32 %s, %s, %s" % (v(MX), v(MX), v(M + 1)))
        B("v_max_f32_dpp %s, %s, %s quad_perm:[2,3,0,1] row_mask:0xf bank_mask:0xf" % (v(MX), v(MX), v(MX)))
        for sw in ("v_permlane16_swap_b32", "v_permlane32_swap_b32"):
            B("v_mov_b32 %s, %s" % (v(TM), v(MX)))
            B("%s %s, %s" % (sw, v(MX), v(TM)))
            B("s_nop 1")
            B("v_max_f32 %s, %s, %s" % (v(MX), v(MX), v(TM)))
        for r in range(4):
            B("v_sub_f32 %s, %s, %s" % (v(EX + r), v(X[0] + r), v(MX)))
        for r in range(2):
            B("v_sub_f32 %s, %s, %s" % (v(M + 2 + r), v(M + r), v(MX)))
        for r in range(4):
            B("v_exp_f32 %s, %s" % (v(EX + r), v(EX + r)))
        B(cvt(EX, EX, EX + 1))
        B(cvt(EX + 1, EX + 2, EX + 3))
        self.softmax_tail(B, X, M, [], first=False)
        B("s_waitcnt lgkmcnt(0)")
        self.normalize(B, w, AL)
        for a_ in range(4):
            B("v_mov_b64 %s, 0\nv_mov_b64 %s, 0" % (v(ACCO[a_], 2), v(ACCO[a_] + 2, 2)))
        for a_ in range(2):
            B(WO(a_, 0))
        B("s_nop 7")
        B("s_branch c_back_" + tag)

    def emit(self, A):
        for w in range(1, 4):
            A("s_cmp_eq_u32 %s, %d\ns_cbranch_scc1 c_pro_%d" % (s(sWAVE), w, w))
        for w in range(4):
            CUR[0] = w
            P_ = Asm()
            P_._uid = 100 + 200 * w
            P_.label("c_pro_%d" % w)
            self.prologue(P_, w)
            A.extend(fix_hazards(P_.lines))
        for slow in (0, 1):
            for w in range(4):
                A(".p2align 6")
                A.extend(self.loop(w, slow))
```

```python
import sys
from asmlib import *
from layout import *
import chain as C

HEADER_COMMENT = open('cdna_kernels/%s.s.ref' % NAME).read().split('; Override launch')[0]


DEFAULT = dict(z1=0, z2=12, ack1=[2, 1, 0, 0], ack2=0, two1=[0, 0, 0, 1], two2=1, n1=0, n2=0, n3=6, pk=1, lateV=2, kx0=34, xskip=1, xearly=2)


def build(opts):
    K = NAME + "_kernel"
    A = Asm()
    E = Asm()
    E("s_cmp_ge_u32 s2, 256\ns_cbranch_scc1 k_exit")
    if opts.get("total") or opts.get("stamps"):
        E("s_memtime s[96:97]")
    if opts.get("hst"):
        E("s_memrealtime s[100:101]")
    E("s_load_dwordx4 s[28:31], s[0:1], 96")
    E("s_getreg_b32 s34, hwreg(HW_REG_XCC_ID, 0, 4)")
    E("v_lshrrev_b32 v1, 6, v0")
    E("s_mov_b32 s35, 0x%x" % opts.get("budget", 0x10000))
    E("s_mov_b32 s94, 0\ns_mov_b32 s95, 0\ns_mov_b32 s3, 0")
    E("v_readfirstlane_b32 s33, v1")
    E("s_and_b32 s34, s34, 7")
    E("s_waitcnt lgkmcnt(0)")
    E("s_mov_b32 s4, s30\ns_mov_b32 s5, s31\ns_mov_b32 s6, 0x%x\ns_mov_b32 s7, 0x20000" % WS_SIZE)
    E("s_mov_b32 s30, 256\ns_mov_b32 s31, 0x20000")
    E("s_cmp_lg_u32 s33, 0\ns_cbranch_scc1 k_noticket")
    E("s_mov_b32 s36, s34\ns_mov_b32 s37, 0")
    if opts.get("scatter"):
        E("s_lshr_b32 s36, s2, %d\ns_and_b32 s36, s36, %d" % tuple(opts["scatter"]))
    E("s_mov_b64 exec, 1")
    E.label("k_ticket")
    E("v_mov_b32 v2, 1")
    E("s_lshl_b32 s38, s36, 5")
    if opts.get("tk", 1):
        E("s_mul_i32 s40, s36, 24\ns_cmp_eq_u32 s36, 0\ns_cselect_b32 s40, 192, s40")
        E("buffer_atomic_add v2, off, s[28:31], s40 sc0")
    else:
        E("buffer_atomic_add v2, off, s[28:31], s38 sc0")
    E("s_waitcnt vmcnt(0)")
    E("v_readfirstlane_b32 s39, v2")
    E("s_cmp_lt_u32 s39, 32\ns_cbranch_scc1 k_gotticket")
    E("s_add_u32 s36, s36, 1\ns_and_b32 s36, s36, 7\ns_add_u32 s37, s37, 1")
    E("s_cmp_lt_u32 s37, 8\ns_cbranch_scc1 k_ticket")
    E("s_mov_b32 s38, 256\ns_mov_b32 s39, 0")
    E.label("k_gotticket")
    E("s_add_u32 s39, s39, s38")
    E("v_mov_b32 v2, s39\nv_mov_b32 v3, 0")
    E("ds_write_b32 v3, v2")
    E("s_waitcnt lgkmcnt(0)")
    E("s_mov_b64 exec, -1")
    E.label("k_noticket")
    E("s_barrier")
    E("v_mov_b32 v3, 0")
    E("ds_read_b32 v2, v3")
    E("s_waitcnt lgkmcnt(0)")
    E("v_readfirstlane_b32 s32, v2")
    E("s_barrier")
    E("s_cmp_lt_u32 s32, 32\ns_cbranch_scc1 k_chain")
    if opts.get("standalone_chain"):
        E("s_cmp_lg_u32 s32, 255\ns_cbranch_scc1 k_exit")
        E("v_mov_b32 v2, 1\ns_mov_b64 exec, 1")
        E("buffer_store_dword v2, off, s[28:31], 0 offset:%d sc1" % DBG_INIT)
        E("s_waitcnt vmcnt(0)")
    else:
        import workers
        workers.dispatch(E, opts)
    E.label("k_exit")
    E("s_endpgm")
    A.extend(fix_hazards(E.lines))
    A.label("k_chain")
    if opts.get('dual'):
        import chain_d
        chain_d.Chain(opts).emit(A)
    else:
        C.Chain(opts).emit(A)
    if not opts.get("standalone_chain"):
        import workers
        workers.emit(A, opts)
    A("s_endpgm")
    out = HEADER_COMMENT
    out += "; @launch grid=(256,1,1) block=(256,1,1) lds=%d\n" % LDS_BYTES
    out += '.amdgcn_target "amdgcn-amd-amdhsa--gfx950"\n.text\n.globl %s\n.p2align 8\n.type %s,@function\n%s:\n' % (K, K, K)
    out += "\n".join(("" if l.endswith(":") or l.startswith(".") else "  ") + l for l in A.lines) + "\n"
    out += """.section .rodata,"a"
.p2align 6
.amdhsa_kernel %s
  .amdhsa_next_free_vgpr 512
  .amdhsa_next_free_sgpr 102
  .amdhsa_accum_offset 256
  .amdhsa_group_segment_fixed_size 0
  .amdhsa_kernarg_size 112
  .amdhsa_user_sgpr_count 2
  .amdhsa_user_sgpr_kernarg_segment_ptr 1
  .amdhsa_system_sgpr_workgroup_id_x 1
.end_amdhsa_kernel
""" % K
    return out


if __name__ == "__main__":
    import json
    opts = dict(DEFAULT)
    opts.update(json.loads(sys.argv[2]) if len(sys.argv) > 2 else {})
    open(sys.argv[1], "w").write(build(opts))
```

```python
from asmlib import *
from layout import *

WS = "s[4:7]"
SQ, SK, SV, SO, SM0 = 8, 12, 16, 20, 24
sROLE, sWAVE, sXCC, sBUD = 32, 33, 34, 35
sH, sSTEP, sH2L, sH1S0, sH1L, sKX, sVX, sH1S1, sPH = 36, 37, 38, 39, 40, 41, 42, 43, 44
sKM, sVM, sFLAG, _unused, sH2S, sPF, sPROG, sT0, sT1, sBIG = 45, 46, 47, 48, 49, 50, 51, 52, 53, 54
sC1S, sC1L, sH1L2, sNEED = 55, 56, 57, 58
sH2C, sSEEN, sFS = 48, 59, 55
sERL, sLAST = 47, 57
sMX = 24
sFL = 8
sCM = 98
sST = 60

MEM = 112
AQ, AK, AV = 144, 152, 160
KXR, VXR = 168, 176
P = [184 + 8 * i for i in range(6)]
T0, T1 = 232, 236
IDX, VH2, SELQ, SELK, HALF, SELR = 240, 241, 242, 244, 246, 248
VL0, VL1, VSX, VH1 = 252, 253, 254, 255
VPFA, VPFD, VPRG = 248, 249, 250

LB = 147456
RA, RB = 0, 8192
WREG = 36864

STREAM_UNITS = [("Q", 0), ("K", 0), ("Q", 1), ("K", 5), ("K", 6), ("K", 7), ("O", 1, 1), ("O", 2, 1), ("O", 3, 1)]
ALL_UNITS = ([("Q", i) for i in range(8)] + [("K", i) for i in range(8)] + [("V", i) for i in range(8)]
             + [("O", u, p) for u in range(4) for p in range(2)])
RES_UNITS = [u for u in ALL_UNITS if u not in STREAM_UNITS]
assert len(RES_UNITS) == 23
RES_REG = {}
for i, u in enumerate(RES_UNITS):
    RES_REG[u] = 256 + 16 * i if i < 16 else 16 * (i - 16)
CUR = [0]


def slot_of(unit):
    if unit[0] == "K":
        return {0: 5, 5: 6, 6: 7, 7: 8}[unit[1]]
    if unit[0] == "Q":
        return 2 + unit[1]
    order = [u for u in ((gu - CUR[0]) % 4 for gu in range(4)) if u]
    return (4, 0, 1)[order.index(unit[1])]


STAGE = {
    ("Q", 0, 0): P[0], ("Q", 0, 1): P[1], ("K", 0, 0): P[2], ("K", 0, 1): P[3], ("Q", 1, 0): P[4], ("Q", 1, 1): P[5],
    ("K", 5, 0): P[0], ("K", 6, 0): P[1], ("K", 7, 0): P[2], ("K", 5, 1): P[3], ("K", 6, 1): P[4], ("K", 7, 1): P[5],
    ("O", 1, 1, 0): P[4], ("O", 1, 1, 1): P[5], ("O", 2, 1, 0): MEM, ("O", 2, 1, 1): MEM + 8,
    ("O", 3, 1, 0): MEM + 16, ("O", 3, 1, 1): MEM + 24,
}


def opreg(unit, t):
    if unit in RES_REG:
        return RES_REG[unit] + 8 * t
    return STAGE[unit + (t,)]


def stream_rd(unit, t):
    r = STAGE[unit + (t,)]
    off = slot_of(unit) * 4096 + t * 2048
    return ["ds_read_b128 %s, %s offset:%d" % (v(r, 4), v(VL0), off),
            "ds_read_b128 %s, %s offset:%d" % (v(r + 4, 4), v(VL0), off + 1024)]


def smf(acc, aop, breg):
    return "v_smfmac_f32_16x16x64_bf16 %s, %s, %s, %s" % (v(acc, 4), v(aop, 4), R(breg, 8), v(IDX))


def W(m, t, i):
    acc = {"Q": AQ, "K": AK, "V": AV}[m] + 4 * t
    return smf(acc, MEM + 4 * i, opreg((m, i), t))


ACCO = [AK, AK + 4, P[0] + 4, T1]
OOP = [AV, AV + 4, P[1], P[3] + 4]


def WO(a_, u):
    return smf(ACCO[a_], OOP[u], opreg(("O", u, a_ // 2), a_ % 2))


def mf16(d, a_, b_, c=None):
    return "v_mfma_f32_16x16x16_bf16 %s, %s, %s, %s" % (v(d, 4), v(a_, 2), v(b_, 2), "0" if c is None else v(c, 4))


def mf32(d, a_, b_, c=None):
    return "v_mfma_f32_16x16x32_bf16 %s, %s, %s, %s" % (v(d, 4), v(a_, 4), v(b_, 4), "0" if c is None else v(c, 4))


def cvt(d, x, y):
    return "v_cvt_pk_bf16_f32 %s, %s, %s" % (v(d), v(x), v(y))


def zero(r):
    return "v_mov_b32 %s, 0" % v(r)


class Chain:
    def __init__(self, opts):
        self.o = opts
        self.dbg = opts.get("stamps", False)
        self.tot = self.dbg or opts.get("total", False)

    def prologue(self, A, w):
        o = self.o
        nt = "nt " if o.get("w_nt", False) else ""
        EC = o.get("early", 0)
        A("s_min_u32 %s, s3, 1" % s(sERL))
        A("s_cmp_lg_u32 s3, 0\ns_cselect_b32 %s, s2, %s" % (s(sH), s(sROLE)))
        A("s_cselect_b32 %s, %d, %d\ns_cselect_b32 %s, 0, %d" % (s(sLAST), EC, NSEG - 1, s(sSTEP), EC))
        if o.get("hst"):
            A("s_memrealtime s[86:87]")
        A("s_load_dwordx4 s[8:11], s[0:1], 8")
        A("s_load_dwordx4 s[12:15], s[0:1], 24")
        A("s_load_dwordx2 s[20:21], s[0:1], 40")
        A("s_waitcnt lgkmcnt(0)")
        A("s_mov_b32 s24, s8\ns_mov_b32 s25, s9\ns_mov_b32 s26, 8192\ns_mov_b32 s27, 0x20000")
        A("s_mov_b32 s8, s10\ns_mov_b32 s9, s11\ns_mov_b32 s10, 0x400000\ns_mov_b32 s11, 0x20000")
        A("s_mov_b32 s16, s14\ns_mov_b32 s17, s15\ns_mov_b32 s18, 0x400000\ns_mov_b32 s19, 0x20000")
        A("s_mov_b32 s14, 0x400000\ns_mov_b32 s15, 0x20000")
        A("s_mov_b32 s22, 0x400000\ns_mov_b32 s23, 0x20000")
        L, N, G = T0, T0 + 1, T0 + 2
        X, Y, Z = T1, T1 + 1, T1 + 2
        DW, DO, TRW, TRO, M0A, INI, RDY, PRK, PRV, MCD = AK, AK + 2, AK + 4, AK + 8, AK + 10, AK + 11, AK + 12, AK + 13, AK + 14, AK + 15
        sWB, sOB = sKM, sVM
        vq = []

        def vm(line, tag=None):
            A(line)
            vq.append(tag)

        def vwait(tag):
            last = max(i for i, x in enumerate(vq) if x == tag)
            A("s_waitcnt vmcnt(%d)" % (len(vq) - 1 - last))
            del vq[:last + 1]

        self.vm = vm
        stages = ([("K", i) for i in range(8)] + [("V", i) for i in range(8)] + [("O", i, 0) for i in range(4)]
                  + [("Q", i) for i in range(8)] + [("O", i, 1) for i in range(4)])
        RING = 5

        def dma(n):
            st = stages[n]
            for q in range(4):
                A("s_mov_b32 m0, %d" % (w * WREG + (n % RING) * 4096 + q * 1024))
                if st[0] == "O":
                    off = st[1] * 32768 + 512 * st[2] + (8 * (w // 2) + 2 * (w % 2) + 16 * (q % 2) + 4 * (q // 2)) * 1024
                    srd, vo, sb = SO, DO, sOB
                else:
                    off = (64 * st[1] + 16 * (w // 2) + 2 * (w % 2) + 4 * q) * 8192
                    srd, vo, sb = {"Q": SQ, "K": SK, "V": SV}[st[0]], DW, sWB
                A("s_add_u32 %s, %s, %d" % (s(sT1), s(sb), off))
                vm("buffer_load_dwordx4 %s, %s, %s offen %slds" % (v(vo + q % 2), s(srd, 4), s(sT1), nt), n)

        A("v_and_b32 %s, 63, v0" % v(L))
        A("v_and_b32 %s, 15, %s" % (v(N), v(L)))
        A("v_lshrrev_b32 %s, 4, %s" % (v(G), v(L)))
        A("v_and_b32 %s, 1, %s" % (v(X), v(G)))
        A("v_lshrrev_b32 %s, 1, %s" % (v(Y), v(G)))
        A("v_lshl_add_u32 %s, %s, 5, %s" % (v(X), v(Y), v(X)))
        A("v_lshlrev_b32 %s, 13, %s" % (v(X), v(X)))
        A("v_lshlrev_b32 %s, 1, %s" % (v(Z), v(G)))
        A("v_xor_b32 %s, %s, %s" % (v(Z), v(Z), v(N)))
        A("v_lshl_add_u32 %s, %s, 4, %s" % (v(DW), v(Z), v(X)))
        A("v_xor_b32 %s, 128, %s" % (v(DW + 1), v(DW)))
        A("s_lshl_b32 %s, %s, 8\ns_lshl_b32 %s, %s, 17" % (s(sWB), s(sH), s(sOB), s(sH)))
        DEP = o.get("dep", 4)
        for n in range(DEP):
            dma(n)
        A("v_and_b32 %s, 31, %s" % (v(X), v(L)))
        A("v_lshlrev_b32 %s, 2, %s" % (v(Z), v(Y)))
        A("v_xor_b32 %s, %s, %s" % (v(X), v(X), v(Z)))
        A("v_lshlrev_b32 %s, 4, %s" % (v(X), v(X)))
        A("v_lshl_add_u32 %s, %s, 10, %s" % (v(DO), v(Y), v(X)))
        A("v_xor_b32 %s, 128, %s" % (v(DO + 1), v(DO)))
        A("s_mov_b32 %s, %d" % (s(sT0), w * WREG))
        A("v_lshrrev_b32 %s, 2, %s" % (v(X), v(L)))
        A("v_and_b32 %s, 7, %s" % (v(Z), v(X)))
        A("v_xor_b32 %s, %d, %s" % (v(Z), 2 * w, v(Z)))
        A("v_lshlrev_b32 %s, 8, %s" % (v(X), v(X)))
        A("v_lshl_add_u32 %s, %s, 5, %s" % (v(X), v(Z), v(X)))
        A("v_and_b32 %s, 3, %s" % (v(Y), v(L)))
        A("v_lshl_add_u32 %s, %s, 3, %s" % (v(TRW), v(Y), v(X)))
        A("v_xor_b32 %s, 32, %s" % (v(TRW + 1), v(TRW)))
        A("v_add_u32 %s, %d, %s" % (v(TRW + 2), 2 * WREG, v(TRW)))
        A("v_add_u32 %s, %d, %s" % (v(TRW + 3), 2 * WREG, v(TRW + 1)))
        A("v_bfe_u32 %s, %s, 2, 1" % (v(X), v(L)))
        A("v_lshl_add_u32 %s, %s, 1, %s" % (v(X), v(G), v(X)))
        A("v_and_b32 %s, 3, %s" % (v(Z), v(X)))
        A("v_xor_b32 %s, %d, %s" % (v(Z), w, v(Z)))
        A("v_lshlrev_b32 %s, 9, %s" % (v(X), v(X)))
        A("v_lshl_add_u32 %s, %s, 6, %s" % (v(X), v(Z), v(X)))
        A("v_lshl_add_u32 %s, %s, 4, %s" % (v(X), v(Y), v(X)))
        A("v_bfe_u32 %s, %s, 3, 1" % (v(Y), v(L)))
        A("v_lshl_add_u32 %s, %s, 3, %s" % (v(TRO), v(Y), v(X)))
        A("v_add_u32 %s, %d, %s" % (v(TRO + 1), 2 * WREG, v(TRO)))
        CB, N4 = T0 + 3, T1 + 3
        A("v_bfe_u32 %s, %s, 1, 1" % (v(CB), v(L)))
        A("v_bfe_u32 %s, %s, 2, 2" % (v(N4), v(L)))
        A("v_lshlrev_b32 %s, 4, %s" % (v(X), v(L)))
        A("v_add_u32 %s, %s, %s" % (v(VL0), s(sT0), v(X)))
        A("v_add_u32 %s, %d, %s" % (v(VL1), LB, v(X)))
        A("v_lshl_add_u32 %s, %s, 10, %s" % (v(VSX), v(CB), v(VL1)))
        A("v_lshrrev_b32 %s, 3, %s" % (v(X), v(L)))
        A("s_lshl1_add_u32 %s, %s, %s" % (s(sT1), s(sWAVE), s(sH)))
        A("v_lshl_add_u32 %s, %s, 2, %s" % (v(Y), v(X), s(sT1)))
        A("v_and_b32 %s, 31, %s" % (v(Y), v(Y)))
        A("v_lshlrev_b32 %s, 13, %s" % (v(X), v(X)))
        A("v_lshl_add_u32 %s, %s, 6, %s" % (v(X), v(Y), v(X)))
        A("v_and_b32 %s, 7, %s" % (v(Y), v(L)))
        A("v_lshl_add_u32 %s, %s, 3, %s" % (v(VH1), v(Y), v(X)))
        A("v_mul_u32_u24 %s, 0xAAAA, %s" % (v(IDX), v(CB)))
        A("v_add_u32 %s, 0x4444, %s" % (v(IDX), v(IDX)))
        A("v_mov_b32 %s, 0x3F003F00\nv_mov_b32 %s, 0x3F003F00" % (v(HALF), v(HALF + 1)))
        A("v_and_b32 %s, 1, %s" % (v(X), v(L)))
        A("v_lshlrev_b32 %s, 4, %s" % (v(X), v(X)))
        A("v_cmp_eq_u32 vcc, %s, %s" % (v(G), v(N4)))
        for base, val in ((SELQ, SA_BF), (SELK, SB_BF)):
            A("v_mov_b32 %s, 0x%x" % (v(Y), val))
            A("v_lshlrev_b32 %s, %s, %s" % (v(Y), v(X), v(Y)))
            A("v_cndmask_b32 %s, 0, %s, vcc" % (v(base), v(Y)))
            A("v_mov_b32 %s, %s" % (v(base + 1), v(base)))
        A("v_bfe_u32 %s, %s, 2, 1" % (v(X), v(L)))
        A("v_lshlrev_b32 %s, 4, %s" % (v(X), v(X)))
        A("v_mov_b32 %s, 0x3F80" % v(Y))
        A("v_lshlrev_b32 %s, %s, %s" % (v(Y), v(X), v(Y)))
        A("v_bfe_u32 %s, %s, 3, 1" % (v(Z), v(L)))
        A("v_and_b32 %s, 1, %s" % (v(X), v(L)))
        A("v_lshl_add_u32 %s, %s, 1, %s" % (v(Z), v(X), v(Z)))
        for rho in range(4):
            A("v_cmp_eq_u32 vcc, %d, %s" % (rho, v(Z)))
            A("v_cndmask_b32 %s, 0, %s, vcc" % (v(SELR + rho), v(Y)))
        A("v_lshlrev_b32 %s, 2, %s" % (v(X), v(X)))
        NR = o.get("rep", 1)
        A("v_and_b32 %s, %d, %s" % (v(Y), NR - 1, v(N4)))
        A("v_mul_u32_u24 %s, %d, %s" % (v(Y), REPB, v(Y)))
        A("v_add_u32 %s, %s, %s" % (v(X), v(Y), v(X)))
        A("v_lshrrev_b32 %s, %d, %s" % (v(Y), NR // 2, v(N4)))
        A("v_lshl_add_u32 %s, %s, 28, %s" % (v(X), v(Y), v(X)))
        A("v_lshl_add_u32 %s, %s, 8, %s" % (v(X), v(CB), v(X)))
        A("v_and_b32 %s, 16, %s" % (v(Y), v(L)))
        A("v_add_u32 %s, %s, %s" % (v(X), v(Y), v(X)))
        A("v_bfe_u32 %s, %s, 5, 1" % (v(Y), v(L)))
        A("v_lshl_add_u32 %s, %s, 3, %s" % (v(VH2), v(Y), v(X)))
        A("v_and_b32 %s, 1, %s" % (v(X), v(L)))
        A("v_lshl_add_u32 %s, %s, 1, %s" % (v(X), v(N4), v(X)))
        A("v_lshlrev_b32 %s, 10, %s" % (v(X), v(X)))
        A("v_lshl_add_u32 %s, %s, 6, %s" % (v(X), v(CB), v(X)))
        A("v_lshl_add_u32 %s, %s, 4, %s" % (v(M0A), v(G), v(X)))

        self.poison_init(A)
        A("s_lshl_b32 %s, %s, 11" % (s(sT0), s(sWAVE)))
        A("s_and_b32 %s, %s, %d\ns_mul_i32 %s, %s, %d" % (s(sC1L), s(sH), NR - 1, s(sC1L), s(sC1L), REPB))
        A("s_add_u32 %s, %s, %s\ns_add_u32 %s, %s, %d" % (s(sH2L), s(sT0), s(sC1L), s(sH2L), s(sH2L), MEMB - LB))
        A("s_lshr_b32 %s, %s, 4\ns_lshl_b32 %s, %s, 10\ns_add_u32 %s, %s, %s" % (s(sT1), s(sH), s(sT1), s(sT1), s(sT1), s(sT1), s(sT0)))
        A("s_and_b32 %s, %s, 6\ns_lshl_b32 %s, %s, 5\ns_add_u32 %s, %s, %s" % (s(sPH), s(sH), s(sPH), s(sPH), s(sT1), s(sT1), s(sPH)))
        A("s_and_b32 %s, %s, 8\ns_lshl2_add_u32 %s, %s, %s" % (s(sPH), s(sH), s(sT1), s(sPH), s(sT1)))
        A("s_and_b32 %s, %s, 1\ns_lshl_b32 %s, %s, 9\ns_add_u32 %s, %s, %s" % (s(sPH), s(sH), s(sPH), s(sPH), s(sT1), s(sT1), s(sPH)))
        A("s_add_u32 %s, %s, %d" % (s(sH2S), s(sT1), MEMB + 8192))
        A("s_add_u32 %s, %s, %d" % (s(sH2C), s(sT1), MEMC))
        A("s_lshl_b32 %s, %s, 13" % (s(sT1), s(sSTEP)))
        A("s_add_u32 %s, %s, %s\ns_add_u32 %s, %s, %s" % (s(sH2S), s(sH2S), s(sT1), s(sH2L), s(sH2L), s(sT1)))
        A("s_add_u32 %s, %s, %s" % (s(sC1L), s(sC1L), s(sT1)))
        A("s_lshl2_add_u32 %s, %s, %s\ns_lshl_b32 %s, %s, 16" % (s(sH1S0), s(sERL), s(sWAVE), s(sH1S0), s(sH1S0)))
        A("s_add_u32 %s, %s, %d" % (s(sH1S0), s(sH1S0), INB1))
        A("s_add_u32 %s, %s, 4096" % (s(sH1S1), s(sH1S0)))
        A("s_lshl_b32 %s, %s, 13" % (s(sT1), s(sH)))
        A("s_add_u32 %s, %s, %s" % (s(sKX), s(sT1), s(sT0)))
        A("s_lshl_b32 %s, %s, 18\ns_add_u32 %s, %s, %s" % (s(sPH), s(sERL), s(sH1L), s(sKX), s(sPH)))
        A("s_add_u32 %s, %s, %d" % (s(sH1L), s(sH1L), INB1 - LB))
        A("s_lshl_b32 %s, %s, 18\ns_add_u32 %s, %s, %s" % (s(sPH), s(sSTEP), s(sKX), s(sKX), s(sPH)))
        A("s_mov_b32 %s, 0" % s(sPH))
        A("s_add_u32 %s, %s, %d" % (s(sKX), s(sKX), KX - LB))
        A("s_add_u32 %s, %s, %d" % (s(sVX), s(sKX), VX - KX))
        A("s_cmp_eq_u32 %s, 2" % s(sWAVE))
        A("s_cselect_b32 %s, %d, 0" % (s(sPF), VX - KX))
        A("s_add_u32 %s, %s, %d" % (s(sPF), s(sPF), KX + 262144 - 8 * LB))
        A("s_add_u32 %s, %s, %s" % (s(sPF), s(sPF), s(sT1)))
        A("s_cmp_eq_u32 %s, 3" % s(sWAVE))
        A("s_cselect_b32 %s, %d, %s" % (s(sPF), MEMB + 8192 - 8 * LB, s(sPF)))
        if w == 3:
            A("s_add_u32 %s, %s, %s" % (s(sPF), s(sPF), s(sC1L)))
        A("s_cmp_eq_u32 %s, 2" % s(sWAVE))
        A("s_cselect_b32 %s, %d, 0" % (s(sPROG), 16 * 128))
        A("s_add_u32 %s, %s, %d" % (s(sPROG), s(sPROG), FLAGS + F_P + 16 * 128))
        A("s_lshr_b32 %s, %s, 1\ns_lshl_b32 %s, %s, 7" % (s(sT1), s(sH), s(sT1), s(sT1)))
        A("s_add_u32 %s, %s, %s" % (s(sPROG), s(sPROG), s(sT1)))
        A("s_mov_b32 %s, 0x%x" % (s(sBIG), 0 if o.get("forcefb") else 0x5D800000))
        A("s_mov_b32 %s, 0xCCCCCCCC\ns_mov_b32 %s, 0xCCCCCCCC" % (s(sCM), s(sCM + 1)))
        for q in range(2):
            vm("buffer_load_dwordx4 %s, %s, %s, 0 offen offset:%d" % (v(MEM + 4 * q, 4), v(M0A), s(SM0, 4), 256 * w + 128 * q))
        A("v_and_b32 %s, 12, %s" % (v(X), v(VH2)))
        A("v_bfe_u32 %s, %s, 4, 1" % (v(Y), v(VH2)))
        A("v_lshl_add_u32 %s, %s, 10, %s" % (v(X), v(Y), v(X)))
        A("v_bfe_u32 %s, %s, 8, 1" % (v(Y), v(VH2)))
        A("v_lshl_add_u32 %s, %s, 4, %s" % (v(X), v(Y), v(X)))
        A("s_and_b32 %s, %s, 6\ns_lshl_b32 %s, %s, 10\ns_and_b32 %s, %s, 24\ns_lshl3_add_u32 %s, %s, %s" % (
            s(sT0), s(sH), s(sT0), s(sT0), s(sT1), s(sH), s(sT0), s(sT1), s(sT0)))
        A("s_and_b32 %s, %s, 1\ns_lshl_b32 %s, %s, 5\ns_add_u32 %s, %s, %s" % (
            s(sT1), s(sH), s(sT1), s(sT1), s(sT0), s(sT0), s(sT1)))
        vm("buffer_load_dword %s, %s, %s, %s offen offset:%d" % (v(MCD), v(X), s(SM0, 4), s(sT0), 256 * w))
        A("v_lshlrev_b32 %s, 3, %s" % (v(T0), v(VL1)))
        HOLD = {("Q", 0): P[0], ("Q", 1): P[4], ("O", 1, 1): P[2], ("O", 2, 1): MEM + 8, ("O", 3, 1): MEM + 24}
        held = []

        def put(u, src):
            for q in range(4):
                A("ds_write_b128 %s, %s offset:%d" % (v(VL0), v(src + 4 * q, 4), slot_of(u) * 4096 + q * 1024))

        pft = "buffer_load_dword %s, %s, %%s offen lds" % (v(T0), WS)
        for n, st in enumerate(stages):
            vwait(n)
            A("s_waitcnt lgkmcnt(0)\ns_barrier")
            if n + DEP < 32:
                dma(n + DEP)
            u = ("O", (st[1] - w) % 4, st[2]) if st[0] == "O" else (st[0], (st[1] - 2 * w) % 8)
            dst = RES_REG[u] if u in RES_REG else HOLD.get(u, P[0])
            for t_ in range(2):
                for r in range(4):
                    off = (r % 2) * WREG + (n % RING) * 4096
                    ad = (TRO + r // 2, off + 256 * t_) if st[0] == "O" else (TRW + t_ + 2 * (r // 2), off)
                    A("ds_read_b64_tr_b16 %s, %s offset:%d" % (R(dst + 8 * t_ + 2 * r, 2), v(ad[0]), ad[1]))
            if n >= 28:
                c = [x for x in held if slot_of(x) == (n - 1) % RING]
                put(c[0], HOLD[c[0]])
                held.remove(c[0])
            if u in HOLD:
                held.append(u)
            elif u not in RES_REG:
                A("s_waitcnt lgkmcnt(0)")
                put(u, dst)
            if n == 5 and w == 0:
                A("s_cmp_lg_u32 %s, 0\ns_cselect_b32 %s, 0x10001, 1" % (s(sXCC), s(sT0)))
                A("s_cmp_lg_u32 s3, 0\ns_cselect_b32 %s, 0x1000000, %s" % (s(sT0), s(sT0)))
                A("v_mov_b32 %s, %s\nv_mov_b32 %s, 1" % (v(X), s(sT0), v(Y)))
                A("s_mov_b64 exec, 1")
                vm("buffer_atomic_add %s, off, s[28:31], 0 offset:%d" % (v(X), DBG_CHAIN_READY))
                A("s_cbranch_scc0 c_nopo")
                A("buffer_atomic_add %s, off, s[28:31], 0 offset:%d" % (v(Y), DBG_POISON))
                A.label("c_nopo")
                A("s_mov_b64 exec, -1")
            if n == o.get("gate") and w == 0:
                A("s_cmp_%s_u32 s3, 0\ns_cbranch_scc1 c_nogate" % ("eq" if EC else "lg"))
                A("v_mov_b32 %s, 1\ns_mov_b64 exec, 1" % v(Y))
                A("buffer_atomic_add %s, off, s[28:31], 0 offset:%d" % (v(Y), DBG_GATE))
                A("s_mov_b64 exec, -1")
                A.label("c_nogate")
            if n == 14:
                vm("buffer_load_dword %s, off, s[28:31], 0 offset:%d sc1" % (v(INI), DBG_INIT))
                vm("buffer_load_dword %s, off, s[28:31], 0 offset:%d sc1" % (v(RDY), DBG_CHAIN_READY))
            if n == 20:
                lab = A.uid("c_fl")
                A("v_readfirstlane_b32 %s, %s\nv_readfirstlane_b32 %s, %s" % (s(sT0), v(INI), s(sT1), v(RDY)))
                A("s_lshl_b32 %s, %s, 29\ns_lshl_b32 %s, %s, 5" % (s(sNEED), s(sERL), s(sT0), s(sT0)))
                A("s_or_b32 %s, %s, %s\ns_or_b32 %s, %s, 32" % (s(sT0), s(sT0), s(sNEED), s(sNEED), s(sNEED)))
                A("s_and_b32 %s, %s, %s\ns_cmp_eq_u32 %s, %s\ns_cbranch_scc1 %s" % (s(sT0), s(sT0), s(sT1), s(sT0), s(sNEED), lab))
                self.wait_dbg(A, DBG_INIT, 1, mask=None)
                self.wait_dbg(A, DBG_CHAIN_READY, 32, mask=sNEED)
                A.label(lab)
                A("s_bfe_u32 %s, %s, 0x80010" % (s(sXCC), s(sT1)))
            if n == 31 - DEP:
                A("s_add_u32 %s, %s, %d" % (s(sT0), s(sPROG), -2048 if w == 2 else 2048))
                vm("buffer_load_dword %s, off, %s, %s sc1" % (v(PRK), WS, s(sPROG)), "prg")
                vm("buffer_load_dword %s, off, %s, %s sc1" % (v(PRV), WS, s(sT0)), "prg")
                if w in (0, 3):
                    A("s_mov_b32 m0, %d" % (LB + RB + 4096))
                    A("s_sub_u32 %s, %s, %d" % (s(sT0), s(sH1L), 7 * LB))
                    vm(pft % s(sT0 if w == 0 else sPF))
        A("s_mov_b32 m0, %d" % (LB + RB + 4096 + (0 if w else 1024)))
        vwait("prg")
        A("v_min_u32 %s, %s, %s" % (v(PRK), v(PRK), v(PRV)))
        A("s_cmp_lg_u32 s3, 0\ns_cselect_b32 %s, %d, %d" % (s(sNEED), min(EC, 2), EC + o.get("need0", 2)))
        A("v_readfirstlane_b32 %s, %s" % (s(sSEEN), v(PRK)))
        lab = A.uid("c_rdy")
        A("s_cmp_ge_u32 %s, %s\ns_cbranch_scc1 %s" % (s(sSEEN), s(sNEED), lab))
        A("s_xor_b32 %s, %s, %d" % (s(sPROG), s(sPROG), 0x1800))
        self.progress(A)
        A("s_xor_b32 %s, %s, %d" % (s(sPROG), s(sPROG), 0x1800))
        self.progress(A)
        A.label(lab)
        for r, sb in ((KXR, sKX),):
            A("buffer_load_dwordx4 %s, %s, %s, %s offen sc1" % (v(r, 4), v(VL1), WS, s(sb)))
            A("buffer_load_dwordx4 %s, %s, %s, %s offen offset:1024 sc1" % (v(r + 4, 4), v(VL1), WS, s(sb)))
        if w == 3:
            A("s_add_u32 %s, %s, 8192" % (s(sPF), s(sPF)))
        A("s_add_u32 %s, %s, 262144" % (s(sKX), s(sKX)))
        A("v_mov_b32 %s, %s" % (v(T0 + 1), v(MCD)))
        A("s_and_b32 %s, %s, %d\ns_lshl_b32 %s, %s, 1\ns_lshl_b64 %s, %d, %s" % (
            s(sT0), s(sH), 32 - NR, s(sT0), s(sT0), s(sMX, 2), (1 << (2 * NR)) - 1, s(sT0)))
        A("s_mov_b32 %s, 0x000f000f\ns_mov_b32 %s, 0x000f000f" % (s(sMX + 2), s(sMX + 3)))
        A("s_waitcnt lgkmcnt(0)\ns_barrier")
        put(held[0], HOLD[held[0]])
        A("s_waitcnt lgkmcnt(0)")
        A("\n".join(stream_rd(("K", 0), 0) + stream_rd(("K", 0), 1)))
        self.window_b(A)
        A("s_waitcnt lgkmcnt(0)")
        if self.dbg:
            self.calib(A, 0)
        if self.tot:
            A("s_memtime s[92:93]\ns_memrealtime s[88:89]\ns_waitcnt lgkmcnt(0)")
        if o.get("hst"):
            A("s_memrealtime s[88:89]\ns_waitcnt lgkmcnt(0)")
        if EC:
            A("s_cmp_lg_u32 s3, 0\ns_cbranch_scc1 c_entry_1_%d" % w)
            for _ in range(1 + o.get("two2", 1)):
                for q in range(2):
                    A("buffer_load_dwordx4 %s, %s, %s, %s offen offset:%d sc1" % (v(MEM + 4 * q, 4), v(VL1), WS, s(sH2L), 1024 * q))
            A("s_cmp_lg_u32 %s, 0\ns_cbranch_scc1 c_top_1_%d\ns_branch c_top_0_%d" % (s(sXCC), w, w))
        else:
            A("s_cmp_lg_u32 %s, 0\ns_cbranch_scc1 c_entry_1_%d\ns_branch c_entry_0_%d" % (s(sXCC), w, w))

    def calib(self, A, slot):
        lab = A.uid("c_cal")
        A("s_memrealtime s[60:61]\ns_waitcnt lgkmcnt(0)")
        A.label(lab)
        A("s_memrealtime s[62:63]\ns_memtime s[64:65]\ns_waitcnt lgkmcnt(0)")
        A("s_cmp_eq_u32 s62, s60\ns_cbranch_scc1 %s" % lab)
        A("v_mov_b32 %s, s62\nv_mov_b32 %s, s64" % (v(T0), v(T0 + 1)))
        A("s_lshl_b32 %s, %s, 6\ns_lshl_b32 %s, %s, 4\ns_add_u32 %s, %s, %s\ns_add_u32 %s, %s, %d" % (
            s(sT0), s(sH), s(sT1), s(sWAVE), s(sT0), s(sT0), s(sT1), s(sT0), s(sT0), STAMP + 2048 + 8 * slot))
        A("buffer_store_dwordx2 %s, off, %s, %s" % (v(T0, 2), WS, s(sT0)))
        A("s_waitcnt vmcnt(0)")

    def poison_init(self, A):
        PO = KXR
        for i in range(4):
            A("v_mov_b32 %s, -1" % v(PO + i))
        A("s_lshl_b32 %s, %s, 5\ns_add_u32 %s, %s, %s" % (s(sT0), s(sERL), s(sT0), s(sT0), s(sH)))
        A("s_lshl_b32 %s, %s, 13\ns_lshl_b32 %s, %s, 11" % (s(sT0), s(sT0), s(sT1), s(sWAVE)))
        A("s_add_u32 %s, %s, %s\ns_add_u32 %s, %s, %d" % (s(sT0), s(sT0), s(sT1), s(sT0), s(sT0), INB1 - LB))
        for q in range(2):
            self.vm("buffer_store_dwordx4 %s, %s, %s, %s offen offset:%d sc1" % (v(PO, 4), v(VL1), WS, s(sT0), 1024 * q))
        X = PO + 4
        assert MEMC - MEMB == 1 << 23
        A("s_cmp_lg_u32 s3, 0\ns_cselect_b32 %s, 8, 13\ns_cselect_b32 %s, 17, 23\ns_lshl_b32 %s, 1, %s" % (s(sT0), s(sPH), s(sPH), s(sPH)))
        A("v_lshlrev_b32 %s, %s, %s" % (v(X), s(sT0), v(T0 + 2)))
        A("v_lshl_add_u32 %s, %s, 4, %s" % (v(X), v(T0 + 1), v(X)))
        A("s_lshl_b32 %s, %s, 8\ns_lshl_b32 %s, %s, 17" % (s(sT0), s(sH), s(sT1), s(sWAVE)))
        A("s_add_u32 %s, %s, %s\ns_add_u32 %s, %s, %d" % (s(sT0), s(sT0), s(sT1), s(sT0), s(sT0), MEMB))
        A("s_cmp_lg_u32 s3, 0\ns_cselect_b32 %s, s3, %s" % (s(sT0), s(sT0)))
        for q in range(4):
            self.vm("buffer_store_dwordx4 %s, %s, %s, %s offen sc1" % (v(PO, 4), v(X), WS, s(sT0)))
            for r_ in range(1, self.o.get("rep", 1)):
                A("s_add_u32 %s, %s, %d" % (s(sT1), s(sT0), r_ * REPB))
                self.vm("buffer_store_dwordx4 %s, %s, %s, %s offen sc1" % (v(PO, 4), v(X), WS, s(sT1)))
            A("s_add_u32 %s, %s, %s" % (s(sT1), s(sT0), s(sPH)))
            self.vm("buffer_store_dwordx4 %s, %s, %s, %s offen sc1" % (v(PO, 4), v(X), WS, s(sT1)))
            A("s_add_u32 %s, %s, 32768" % (s(sT0), s(sT0)))

    def budget(self, A, give_up):
        A("s_cmp_eq_u32 %s, 0\ns_cbranch_scc1 %s\ns_sub_u32 %s, %s, 1" % (s(sBUD), give_up, s(sBUD), s(sBUD)))

    def wait_dbg(self, A, off, want, mask):
        top, done = A.uid("c_wd"), A.uid("c_wdd")
        A.label(top)
        A("buffer_load_dword %s, off, s[28:31], 0 offset:%d sc1" % (v(T1), off))
        A("s_waitcnt vmcnt(0)")
        A("v_readfirstlane_b32 %s, %s" % (s(sT1), v(T1)))
        if mask is None:
            A("s_cmp_ge_u32 %s, %d" % (s(sT1), want))
        else:
            A("s_and_b32 %s, %s, %s\ns_cmp_eq_u32 %s, %s" % (s(sT0), s(sT1), s(mask), s(sT0), s(mask)))
        A("s_cbranch_scc1 %s" % done)
        self.budget(A, done)
        A("s_sleep 2\ns_branch %s" % top)
        A.label(done)

    def spin_ge(self, A, soff, want, vreg):
        top, done = A.uid("c_sp"), A.uid("c_spd")
        A.label(top)
        A("buffer_load_dword %s, off, %s, %s sc1" % (v(vreg), WS, s(soff)))
        A("s_waitcnt vmcnt(0)")
        A("v_readfirstlane_b32 %s, %s" % (s(sT1), v(vreg)))
        A("s_cmp_ge_u32 %s, %s" % (s(sT1), want))
        A("s_cbranch_scc1 %s" % done)
        self.budget(A, done)
        A("s_sleep 2\ns_branch %s" % top)
        A.label(done)

    def progress(self, A):
        top, done = A.uid("c_sp"), A.uid("c_spd")
        A.label(top)
        A("buffer_load_dword %s, off, %s, %s sc1" % (v(T1), WS, s(sPROG)))
        A("s_waitcnt vmcnt(0)")
        A("v_readfirstlane_b32 %s, %s" % (s(sSEEN), v(T1)))
        A("s_cmp_ge_u32 %s, %s" % (s(sSEEN), s(sNEED)))
        A("s_cbranch_scc1 %s" % done)
        self.budget(A, done)
        A("s_sleep 2\ns_branch %s" % top)
        A.label(done)

    def window_a(self, A):
        for u in STREAM_UNITS[:3]:
            for t in range(2):
                A("\n".join(stream_rd(u, t)))

    def window_b(self, A):
        for k, r in enumerate(range(AQ, AQ + 24, 2)):
            A("v_mov_b64 %s, 0" % v(r, 2))
            if k % 2 == 1:
                A("s_nop 0")

    def stamp(self, A, k):
        pass

    def add_stamps(self, lines, main=True):
        import re
        out, k = [], 0
        stride, phase = self.o.get("every", (20, 0))
        at = [re.compile(p) for p in self.o.get("at", [])]
        n = 0
        self.stamp_pos = []
        for l in lines:
            if l == "; DUMP":
                break
            if not at and not l.endswith(":") and not l.startswith(";"):
                if n % stride == phase and k < 15:
                    out.append("s_memtime s[%d:%d]" % (sST + 2 * k, sST + 2 * k + 1))
                    self.stamp_pos.append(n)
                    k += 1
                n += 1
            if not l.endswith(":") and not l.startswith(";"):
                if at and main and n == self.o.get("nth", -1):
                    out.append("s_memtime s[%d:%d]" % (sST + 28, sST + 29))
                n += 1 if at else 0
            out.append(l)
            for q, p in enumerate(at):
                if p.search(l):
                    out.append("s_memtime s[%d:%d]" % (sST + 2 * q, sST + 2 * q + 1))
        return out + lines[lines.index("; DUMP") + 1:]

    def loop(self, w, slow):
        CUR[0] = w
        A = Asm()
        B = Asm()
        A._uid = B._uid = 1000 * (1 + w + 4 * slow)
        B._uid += 500
        o = {k: (x[w] if isinstance(x, list) and k not in ("at", "more", "drop", "every", "scatter") else x) for k, x in self.o.items()}
        hs = " sc1" if slow else ""
        ks = lambda i: (2 * w + i) % 8
        tag = "%d_%d" % (slow, w)
        top, entry, fin = "c_top_" + tag, "c_entry_" + tag, "c_fin_" + tag
        E, Lr = MEM, MEM + 4
        CK, FL = T1 + 2, T1 + 3

        ldE = "buffer_load_dwordx4 %s, %s, %s, %s offen sc1" % (v(E, 4), v(VL1), WS, s(sH2L))
        ldL = "buffer_load_dwordx4 %s, %s, %s, %s offen offset:1024 sc1" % (v(Lr, 4), v(VL1), WS, s(sH2L))

        def check(r, bad):
            A("v_max3_u32 %s, %s, %s, %s" % (v(CK), v(r), v(r + 1), v(r + 2)))
            A("v_max_u32 %s, %s, %s" % (v(CK), v(CK), v(r + 3)))
            A("v_cmp_eq_u32 vcc, -1, %s" % v(CK))
            A("s_cbranch_vccnz %s" % bad)

        def nops(n):
            while n > 0:
                A("s_nop %d" % (min(n, 16) - 1))
                n -= 16

        two2 = o.get("two2", 1)
        wr = ["ds_write_b128 %s, %s offset:%d" % (v(VL1), v(r, 4), RA + ks(q) * 1024) for q, r in enumerate((E, Lr))]
        A.label(top)
        A("s_waitcnt vmcnt(%d)" % (2 * two2 + 1))
        A("v_max3_u32 %s, %s, %s, %s" % (v(CK), v(E), v(E + 1), v(E + 2)))
        A("s_waitcnt vmcnt(%d)" % (2 * two2))
        A("v_max3_u32 %s, %s, %s, %s" % (v(CK), v(CK), v(E + 3), v(Lr)))
        A("v_max3_u32 %s, %s, %s, %s" % (v(CK), v(CK), v(Lr + 1), v(Lr + 2)))
        A("v_max_u32 %s, %s, %s" % (v(CK), v(CK), v(Lr + 3)))
        A("v_cmp_eq_u32 vcc, -1, %s" % v(CK))
        if o.get("specw", 1):
            A(wr[0])
        A("s_cbranch_vccnz c_bad_" + tag)
        B.label("c_bad_" + tag)
        if self.tot:
            B("s_add_u32 s95, s95, 1")
        B("s_mov_b64 exec, vcc")
        B(ldE)
        B(ldL)
        B("s_mov_b64 exec, -1")
        self.budget(B, "c_okL_" + tag)
        B("s_branch " + top)
        B.label(entry)
        B(wr[0])
        B("s_branch c_okL_" + tag)
        A.label("c_okL_" + tag)
        if o.get("lateexit"):
            A("s_cmp_eq_u32 %s, %d\ns_cbranch_scc1 %s" % (s(sSTEP), NSEG - 1, fin))
        if not o.get("specw", 1):
            A(wr[0])
        A(wr[1])
        A(W("Q", 0, 0))
        A(W("Q", 1, 0))
        A(W("K", 0, 0))
        A(W("K", 1, 0))
        A(W("Q", 0, 1))
        A(W("Q", 1, 1))
        A("s_waitcnt lgkmcnt(0)")
        A("s_barrier ; B1")
        rd = ["ds_read_b128 %s, %s offset:%d" % (v(MEM + 4 * i, 4), v(VL1), RA + ks(i) * 1024) for i in range(2, 8)]
        A(rd[0])
        A(rd[1])
        A(W("K", 0, 1))
        A(rd[2])
        A(rd[3])
        A(W("K", 1, 1))
        A(rd[4])
        A(rd[5])
        A(W("V", 0, 0))
        A(W("V", 1, 0))
        if o.get("lateV", 0) < 2:
            A(W("V", 0, 1))
        if w > 0:
            A("v_lshlrev_b32 %s, 3, %s" % (v(T0 + 2), v(VL1)))
        else:
            A("v_lshlrev_b32 %s, 7, %s" % (v(T0 + 2), v(VL0)))
        if o.get("lateV", 0) < 1:
            A(W("V", 1, 1))
        gb = []
        for t in range(2):
            for i in (5, 6, 7):
                gb += stream_rd(("K", i), t)
        fill = []
        memc = "buffer_store_dword %s, %s, %s, %s offen sc1" % (v(T0 + 1), v(VH2), WS, s(sH2C))
        pf = "buffer_load_dword %s, %s, %s offen lds" % (v(T0 + 2), WS, s(sPF))
        nokpf = (w == 1 and not o.get("kpf", 0)) or (w == 2 and not o.get("vpf", 0))
        QB, QOP, KOP, VB = T0, T1, P[2], P[2] + 4
        for i in range(2, 8):
            A("s_waitcnt lgkmcnt(5)")
            A(W("Q", 0, i))
            A(gb[i - 2])
            if fill:
                A(fill.pop(0))
        A(W("Q", 1, 2))
        A(gb[6])
        A(W("Q", 1, 3))
        A(gb[7])
        A(cvt(QB, AQ, AQ + 1))
        A(W("Q", 1, 4))
        A(gb[8])
        A(cvt(QB + 1, AQ + 2, AQ + 3))
        A(W("Q", 1, 5))
        A(gb[9])
        A(mf16(AQ, QB, SELQ))
        A(gb[10])
        A(W("Q", 1, 6))
        A(gb[11])
        A(W("Q", 1, 7))
        z64 = lambda r: "v_mov_b64 %s, 0" % v(r, 2)
        add = lambda d, x, y: "v_add_f32 %s, %s, %s" % (v(d), v(x), v(y))
        dpp = lambda d, x, q: "v_mov_b32_dpp %s, %s quad_perm:%s row_mask:0xf bank_mask:0xf" % (v(d), v(x), q)
        addx = lambda r: "v_add_f32_dpp %s, %s, %s quad_perm:[2,3,0,1] row_mask:0xf bank_mask:0xf" % (v(r), v(r), v(r))
        ex = lambda d, x: "v_exp_f32 %s, %s" % (v(d), v(x))
        X = [P[0], P[0] + 4, P[1], P[1] + 4]
        M = P[3]
        EX, EB, AL, EM = X[1], X[2], X[3], T0
        RR, TT = T0 + 2, T0 + 3
        sel = ["v_cndmask_b32 %s, %s, %s, %s" % (v(AQ + r), v(AQ + r), v(AQ + 4 + r), s(sCM, 2)) for r in range(4)]
        xr = ["ds_read_b128 %s, %s offset:%d" % (v(X[q], 4), v(VL1), RB + q * 1024) for q in range(4)]
        gc1 = stream_rd(("O", 1, 1), 0) + stream_rd(("O", 1, 1), 1)
        gc2 = stream_rd(("O", 2, 1), 0) + stream_rd(("O", 3, 1), 0) + stream_rd(("O", 2, 1), 1) + stream_rd(("O", 3, 1), 1)
        kvl = ["buffer_load_dwordx4 %s, %s, %s, %s offen offset:%d sc1" % (v(r + 4 * q, 4), v(VL1), WS, s(sb), 1024 * q)
               for r, sb in ((KXR, sKX), (VXR, sVX)) for q in range(2)]
        pk = lambda d, x: "v_pk_add_f32 %s, %s, %s" % (v(d, 2), v(d, 2), v(x, 2))
        wsm = "ds_write_b64 %s, %s offset:%d" % (v(VL1), v(AK, 2), RA + (w // 2) * 1024 + (w % 2) * 8)
        late = [W("V", 0, 1), W("V", 1, 1)][2 - o.get("lateV", 0):]
        if o.get("pk", 0):
            mid = [W("V", 1, 4), W("V", 0, 5), wsm, "s_waitcnt lgkmcnt(1)", pk(X[0], X[1]), pk(X[0] + 2, X[1] + 2),
                   pk(X[2], X[3]), pk(X[2] + 2, X[3] + 2), pk(X[0], X[2]), pk(X[0] + 2, X[2] + 2),
                   ex(EX, X[0]), ex(EX + 1, X[0] + 1)] + late + [W("V", 1, 5)]
        else:
            mid = ["s_waitcnt lgkmcnt(2)"] + [add(X[0] + r, X[0] + r, X[1] + r) for r in range(4)] + [
                W("V", 1, 4), wsm, "s_waitcnt lgkmcnt(1)"] + [add(X[2] + r, X[2] + r, X[3] + r) for r in range(4)] + [
                W("V", 0, 5)] + [add(X[0] + r, X[0] + r, X[2] + r) for r in range(2)] + late[:1] + [
                add(X[0] + r, X[0] + r, X[2] + r) for r in range(2, 4)] + [
                ex(EX, X[0])] + late[1:] + [ex(EX + 1, X[0] + 1), W("V", 1, 5)]
        seq = [
            cvt(QOP, AQ, AQ + 1), W("K", 0, 2), cvt(QOP + 1, AQ + 2, AQ + 3), W("K", 0, 3),
            cvt(QB + 2, AQ + 4, AQ + 5), cvt(QB + 3, AQ + 6, AQ + 7), W("K", 0, 4), mf16(AQ + 4, QB + 2, SELQ),
            "s_waitcnt lgkmcnt(0)", W("K", 0, 5), W("K", 0, 6),
            cvt(QOP + 2, AQ + 4, AQ + 5), cvt(QOP + 3, AQ + 6, AQ + 7), W("K", 0, 7),
            "WAITK", mf32(AQ, KXR, QOP), mf32(AQ + 4, KXR + 4, QOP),
            cvt(QB, AK, AK + 1), cvt(QB + 1, AK + 2, AK + 3), W("K", 1, 2), mf16(AK, QB, SELK),
            sel[0], sel[1], sel[2], sel[3], W("K", 1, 3),
            "ds_write_b128 %s, %s offset:%d" % (v(VL1), v(AQ, 4), RB + w * 1024),
            W("K", 1, 4), cvt(KOP, AK, AK + 1), W("K", 1, 5), cvt(KOP + 1, AK + 2, AK + 3), W("K", 1, 6), W("K", 1, 7),
            W("V", 0, 2), W("V", 1, 2), cvt(QB + 2, AK + 4, AK + 5), cvt(QB + 3, AK + 6, AK + 7),
            "s_waitcnt lgkmcnt(0)", "s_barrier ; B2", mf16(AK + 4, QB + 2, SELK), xr[0], xr[1],
            W("V", 0, 3), xr[2], xr[3], W("V", 1, 3),
            cvt(KOP + 2, AK + 4, AK + 5), cvt(KOP + 3, AK + 6, AK + 7), W("V", 0, 4), mf32(AK, KOP, QOP),
            ] + mid + [
            "s_waitcnt lgkmcnt(0)", "s_barrier ; B3",
            "ds_read_b128 %s, %s offset:%d" % (v(M, 4), v(VSX), RA), W("V", 0, 6), gc1[0], gc1[1],
            ex(EX + 2, X[0] + 2), ex(EX + 3, X[0] + 3), cvt(EX, EX, EX + 1), cvt(EX + 1, EX + 2, EX + 3),
            W("V", 0, 7), gc1[2], gc1[3], dpp(EB, EX, "[0,1,0,1]"), mf16(AL, HALF, EX),
            dpp(EB + 1, EX + 1, "[0,1,0,1]"), dpp(EB + 2, EX, "[2,3,2,3]"), dpp(EB + 3, EX + 1, "[2,3,2,3]"),
            W("V", 1, 6), "s_waitcnt lgkmcnt(4)", add(M, M, M + 2), W("V", 1, 7), gc2[0], gc2[1], add(M + 1, M + 1, M + 3),
            "WAITV", mf32(AQ, VXR, EB), gc2[2], addx(M), addx(M + 1),
            mf32(AQ + 4, VXR + 4, EB), gc2[3], ex(M + 2, M), ex(M + 3, M + 1), addx(AL),
            cvt(EM, M + 2, M + 3), cvt(EM + 1, M + 2, M + 3), add(AL, AL, AL),
            cvt(VB, AV, AV + 1), cvt(VB + 1, AV + 2, AV + 3),
            mf16(AL, HALF, EM, AL), cvt(VB + 2, AV + 4, AV + 5), cvt(VB + 3, AV + 6, AV + 7), z64(ACCO[0]),
            mf16(AQ, VB, EM, AQ), z64(ACCO[0] + 2), z64(ACCO[1]), z64(ACCO[1] + 2),
            mf16(AQ + 4, VB + 2, EM, AQ + 4)]
        A("\n".join(seq))
        self.normalize(A, w, AL, [z64(ACCO[2]), z64(ACCO[2] + 2), "v_max_f32 %s, %s, %s" % (v(TT), v(AL), v(RR))], [])
        w4 = self.w4 = o.get("w4", 2)
        fl4 = ["v_cmp_ngt_f32 vcc, %s, %s" % (s(sBIG), v(TT)), z64(ACCO[3]), z64(ACCO[3] + 2)]
        for a_ in range(w4):
            A(WO(a_, 0))
            A(fl4.pop(0))
        A("\n".join(fl4))
        A("s_cbranch_vccnz c_slow_" + tag)
        A.label("c_back_" + tag)
        self.fallback(B, w, tag, X, M)
        A("s_waitcnt lgkmcnt(0)")
        A("s_barrier ; B4")
        for u in range(1, 4):
            A("ds_read_b128 %s, %s offset:%d" % (v(OOP[u], 4), v(VL1), RB + ((w + u) % 4) * 1024))
        A(WO(w4, 0))
        A(gc2[4])
        for a_ in range(w4 + 1, 4):
            A(WO(a_, 0))
        sal = ["s_add_u32 %s, %s, 1" % (s(sSTEP), s(sSTEP)), "s_add_u32 %s, %s, 8192" % (s(sH2L), s(sH2L))]
        sal += ["s_add_u32 %s, %s, 262144" % (s(r), s(r)) for r in (sKX, sVX)]
        sal += ["s_add_u32 %s, %s, %d" % (s(sPF), s(sPF), 8192 if w == 3 else 262144)]
        sal += ["s_add_u32 %s, %s, 2" % (s(sNEED), s(sSTEP)), "s_min_u32 %s, %s, %d" % (s(sNEED), s(sNEED), NSEG - 1)]
        tagd = lambda r: "v_bfi_b32 %s, 1, %s, %s" % (v(r), s(sPH), v(r))
        st1 = lambda a_: "buffer_store_dwordx2 %s, %s, %s, %s offen offset:%d%s ; S%d" % (
            v(AQ + 2 * a_, 2), v(VH1), WS, s(sH1S1 if a_ > 1 else sH1S0), 2048 * (a_ % 2), hs, a_)
        c0 = lambda a_: cvt(AQ + 2 * a_, ACCO[a_], ACCO[a_] + 1)
        c1 = lambda a_: cvt(AQ + 2 * a_ + 1, ACCO[a_] + 2, ACCO[a_] + 3)
        t0 = lambda a_: tagd(AQ + 2 * a_)
        t1 = lambda a_: tagd(AQ + 2 * a_ + 1)
        seq = ["s_waitcnt lgkmcnt(3)", WO(0, 1), gc2[5], sal[0], "s_waitcnt lgkmcnt(3)", WO(0, 2), gc2[6], sal[1],
               "s_waitcnt lgkmcnt(3)", WO(0, 3), gc2[7], sal[2], WO(1, 1), sal[3], sal[4], WO(1, 2), c0(0), c1(0), t0(0),
               WO(1, 3), st1(0), WO(2, 1), sal[5], sal[6], WO(2, 2), c0(1), c1(1), t0(1), WO(2, 3), st1(1),
               WO(3, 1), "s_waitcnt lgkmcnt(0)", WO(3, 2), c0(2), c1(2), t0(2), WO(3, 3), st1(2),
               c0(3), c1(3), t0(3), st1(3)]
        A("\n".join(seq))
        ins = {}
        ins.setdefault(o.get("mc0", 14) + o.get("mcs", 1) * w, []).extend(
            (["s_mov_b64 exec, %s" % s(sMX + 2, 2), memc, "s_mov_b64 exec, -1"] if o.get("rep", 1) > 1 else [memc])
            + ["s_add_u32 %s, %s, %d" % (s(sH2C), s(sH2S), MEMC - MEMB)])
        if w == 0:
            ins.setdefault(o.get("pg0", 22), []).extend([
                "s_mov_b64 exec, 3", "buffer_load_dword %s, %s, %s offen sc1 lds" % (v(T0 + 2), WS, s(sPROG)), "s_mov_b64 exec, -1"])
        if w and not nokpf:
            ins.setdefault(o.get("pf0", 14) + o.get("pfs", 4) * (w - 1), []).extend(
                ["s_mov_b64 exec, %s" % s(sMX, 2), pf, "s_mov_b64 exec, -1"] if w == 3 and o.get("pfm", 1) else [pf])
        for q in range(2):
            ins.setdefault(o.get("kx0", 36) + o.get("kxs", 1) * w + o.get("kxq", 4) * q, []).append(kvl[q])
        for q in range(2):
            ins.setdefault(o.get("vx0", 6) + o.get("vxs", 1) * w + o.get("vxq", 4) * q, []).append(kvl[2 + q])
        hint = o.get("hint", 0) and not slow
        if hint and w == 0:
            fp = o.get("fp", 66)
            ins.setdefault(fp - 1, []).extend(["s_sub_u32 %s, %s, 1" % (s(sT0), s(sPH)), "v_mov_b32 %s, %s" % (v(T0), s(sT0))])
            ins.setdefault(fp, []).extend(["s_mov_b64 exec, 1", "buffer_store_byte %s, off, %s, %s" % (v(T0), WS, s(sFS)), "s_mov_b64 exec, -1"])
        res, k = [], 0
        for l in A.lines:
            res.append(l)
            if "mfma" in l:
                res += ins.pop(k, [])
                k += 1
        assert not ins
        isvm = lambda l: l.startswith("buffer_") and "; cond" not in l
        k0 = res.index("c_okL_%s:" % tag)
        kk, kv = res.index("WAITK"), res.index("WAITV")
        res[kk] = "s_waitcnt vmcnt(%d)" % sum(map(isvm, res[k0:kk]))
        res[kv] = "s_waitcnt vmcnt(%d)" % sum(map(isvm, res[res.index(kvl[3]) + 1:kv]))
        A.lines = res
        if self.dbg and o.get("lastonly"):
            A("; DUMP0")
            A("; DUMP1")
        elif self.dbg:
            A("; DUMP0")
            A("s_waitcnt lgkmcnt(0)")
            self.dump_stamps(A, w)
            A("; DUMP1")
        H, AR, TG, XS = MEM + 8, T1, T0, T0 + 1
        wa = Asm()
        self.window_a(wa)
        wa = wa.lines
        zr = ["v_mov_b64 %s, 0" % v(r, 2) for r in range(AQ, AQ + 24, 2)]
        zr = zr[4:] + zr[:4]
        n1, n2, n3, z1, z2 = o.get("n1", 6), o.get("n2", 6), o.get("n3", 12), o.get("z1", 0), o.get("z2", 12)
        two1, two2 = o.get("two1", 1), o.get("two2", 1)
        A("\n".join(zr[:z1] + wa[:n1]))
        if o.get("lg1"):
            A("s_waitcnt lgkmcnt(0)")
        if o.get("sl1"):
            A("s_sleep %d" % o["sl1"])
        if o.get("ack1") is not None:
            A("s_waitcnt vmcnt(%d)" % o["ack1"])
        nops(o.get("delay1", 0))
        hl = lambda r: "\n".join("buffer_load_dwordx4 %s, %s, %s, %s offen offset:%d sc1" % (
            v(r + 4 * it, 4), v(VL1), WS, s(sH1L), it * 1024) for it in range(2))
        A.label("c_pfd_" + tag)
        A(hl(H))
        A("\n".join(wa[n1:n2] + zr[z1:z2]))
        nops(o.get("gap1", 0))
        if o.get("sg1") and two1:
            A("s_sleep %d" % o["sg1"])
        if two1:
            A(hl(H + 8))
        A("s_cmp_lg_u32 %s, 0\ns_cbranch_scc1 c_h1c1_%s" % (s(sPH), tag))
        C = Asm()
        for ph in (0, 1):
            Z = A if ph == 0 else B
            fn, fl_ = ("0xfe", "0xa8") if ph == 0 else ("0x80", "0x80")

            def red(Z, r):
                Z("s_waitcnt vmcnt(%d)" % (1 + 2 * two1))
                Z(mf32(AR, SELR, r))
                Z("s_waitcnt vmcnt(%d)" % (2 * two1))
                Z(mf32(AR, SELR, r + 4, AR))
                Z("v_bitop3_b32 %s, %s, %s, %s bitop3:%s" % (v(TG), v(r), v(r + 2), v(r + 4), fn))
                Z("v_bitop3_b32 %s, %s, %s, 1 bitop3:%s" % (v(TG), v(TG), v(r + 6), fl_))
                Z("v_cmp_ne_u32 vcc, %d, %s" % (ph, v(TG)))
                for ro in (4, 8):
                    for q in range(2):
                        Z("v_add_f32_dpp %s, %s, %s row_ror:%d row_mask:0xf bank_mask:0xf" % (v(AR + q), v(AR + q), v(AR + q), ro))
                Z(cvt(XS, AR, AR + 1))

            def again(r):
                C("s_mov_b64 exec, vcc")
                C(hl(r))
                C("s_mov_b64 exec, -1")
                if self.tot:
                    C("s_add_u32 s94, s94, 1")

            Z.label("c_h1c%d_%s" % (ph, tag))
            red(Z, H)
            Z("s_cbranch_vccnz c_h1b%d_%s" % (ph, tag))
            Z.label("c_h1ok%d_%s" % (ph, tag))
            Z("buffer_store_dword %s, %s, %s, %s offen%s" % (v(XS), v(VH2), WS, s(sH2S), hs))
            if ph:
                Z("s_branch c_pub_" + tag)
            C.label("c_h1b%d_%s" % (ph, tag))
            again(H)
            if two1:
                red(C, H + 8)
                C("s_cbranch_vccz c_h1ok%d_%s" % (ph, tag))
                again(H + 8)
            self.budget(C, "c_h1ok%d_%s" % (ph, tag))
            C("s_branch c_h1c%d_%s" % (ph, tag))
        B.extend(C)
        A.label("c_pub_" + tag)
        A("s_xor_b32 %s, %s, 1" % (s(sPH), s(sPH)))
        A("s_add_u32 %s, %s, 8192" % (s(sH2S), s(sH2S)))
        if not o.get("lateexit"):
            A("s_cmp_eq_u32 %s, %s\ns_cbranch_scc1 %s" % (s(sSTEP), s(sLAST), fin))
        if w == 0:
            A("ds_read_b64 %s, %s offset:%d" % (v(T1, 2), v(VL1), RB + 4096 + 1024))
            A("s_waitcnt lgkmcnt(0)")
            A("v_min_u32 %s, %s, %s" % (v(T1), v(T1), v(T1 + 1)))
            A("v_readfirstlane_b32 %s, %s" % (s(sSEEN), v(T1)))
            A("s_cmp_lt_u32 %s, %s\ns_cbranch_scc1 c_prg_%s" % (s(sSEEN), s(sNEED), tag))
            A.label("c_prgok_" + tag)
            B.label("c_prg_" + tag)
            for _ in range(2):
                B("s_xor_b32 %s, %s, %d" % (s(sPROG), s(sPROG), 0x1800))
                self.progress(B)
            B("s_branch c_prgok_" + tag)
        A("\n".join(wa[n2:n3] + zr[z2:]))
        if o.get("lg2", 1):
            A("s_waitcnt lgkmcnt(0)")
        if o.get("ack2"):
            A("s_waitcnt vmcnt(0)")
        nops(o.get("delay2", 0))
        if o.get("sl2"):
            A("s_sleep %d" % o["sl2"])
        A(ldE)
        A(ldL + " ; first")
        A("\n".join(wa[n3:]))
        A("s_waitcnt lgkmcnt(0)")
        nops(o.get("gap2", 0))
        if o.get("sg2"):
            A("s_sleep %d" % o["sg2"])
        if two2:
            A(ldE)
            A(ldL)
        A("; DUMP")
        A("s_branch " + top)
        A.label(fin)
        A(memc)
        if slow and o.get("early"):
            A("s_cmp_lg_u32 s3, 0\ns_cbranch_scc1 w_back")
        if o.get("hst"):
            A("s_memrealtime s[90:91]\ns_waitcnt lgkmcnt(0)")
            hst(A, [(100, 1, 5), (100, 0, 6), (86, 0, 7), (88, 1, 10), (88, 0, 11), (90, 0, 12)], T0)
        A("s_nop 7")
        A("s_mov_b64 exec, 1")
        if self.tot:
            A("s_memtime s[90:91]\ns_waitcnt lgkmcnt(0)")
            A("s_sub_u32 s90, s90, s92\ns_sub_u32 s92, s92, s96")
            A("v_mov_b32 %s, s90\nv_mov_b32 %s, s94\nv_mov_b32 %s, %s\nv_mov_b32 %s, %s" % (
                v(T0), v(T0 + 1), v(T0 + 2), "s95", v(T0 + 3), "s92"))
            A("s_lshl_b32 %s, %s, 6\ns_add_u32 %s, %s, %d" % (s(sT0), s(sH), s(sT0), s(sT0), STAMP + 16 * w))
            A("buffer_store_dwordx4 %s, off, %s, %s" % (v(T0, 4), WS, s(sT0)))
            if o.get("wst"):
                A("s_memrealtime s[90:91]\ns_waitcnt lgkmcnt(0)")
                A("v_mov_b32 %s, s88\nv_mov_b32 %s, s90" % (v(T1), v(T1 + 1)))
                A("s_lshl_b32 %s, %s, 5\ns_add_u32 %s, %s, %d" % (s(sT0), s(sH), s(sT0), s(sT0), STAMP + 0x80000 + 24))
                A("buffer_store_dwordx2 %s, off, %s, %s" % (v(T1, 2), WS, s(sT0)))
        A("s_waitcnt vmcnt(0)")
        if self.dbg:
            if o.get("lastonly"):
                A("s_mov_b64 exec, -1")
                self.dump_stamps(A, w)
                A("s_waitcnt vmcnt(0)")
            self.calib(A, 1)
        A("s_endpgm")
        if o.get("drop"):
            import re
            cut = A.lines.index("; DUMP")
            pats = [re.compile(p) for p in o["drop"]]
            keep = range(A.lines.index("; DUMP0"), A.lines.index("; DUMP1")) if self.dbg else range(0)
            A.lines = [l for k, l in enumerate(A.lines[:cut]) if k in keep or not any(p.search(l) for p in pats)] + A.lines[cut:]
        main = fix_hazards(A.lines)
        if self.dbg:
            main = self.add_stamps(main)
        ool = fix_hazards(B.lines)
        if self.dbg and o.get("at"):
            ool = self.add_stamps(ool + ["; DUMP"], False)
        return main + ["s_nop 7"] + ool

    def dump_stamps(self, A, w):
        A("s_lshl_b32 %s, %s, 5\ns_add_u32 %s, %s, %s\ns_lshl_b32 %s, %s, 8" % (
            s(sT0), s(sSTEP), s(sT0), s(sT0), s(sH), s(sT0), s(sT0)))
        A("s_add_u32 %s, %s, %d" % (s(sT0), s(sT0), STAMP + 4096 + 64 * w))
        R0 = AQ + 8
        for k in range(15):
            A("v_mov_b32 %s, %s" % (v(R0 + k), s(sST + 2 * k)))
        A("v_mov_b32 %s, %s" % (v(R0 + 15), s(sBUD)))
        A("s_mov_b64 exec, 1")
        for q in range(4):
            A("buffer_store_dwordx4 %s, off, %s, %s offset:%d" % (v(R0 + 4 * q, 4), WS, s(sT0), 16 * q))
        A("s_mov_b64 exec, -1")

    def softmax_tail(self, A, X, M, fill, first):
        EX, EB, AL, EM = X[1], X[2], X[3], T0
        VB = P[2] + 4
        fill = list(fill)
        f = lambda: A(fill.pop(0)) if fill else None
        dpp = lambda d, x, q: A("v_mov_b32_dpp %s, %s quad_perm:%s row_mask:0xf bank_mask:0xf" % (v(d), v(x), q))
        src = M if first else M + 2
        A(mf16(AL, HALF, EX))
        dpp(EB, EX, "[0,1,0,1]")
        dpp(EB + 1, EX + 1, "[0,1,0,1]")
        dpp(EB + 2, EX, "[2,3,2,3]")
        dpp(EB + 3, EX + 1, "[2,3,2,3]")
        A("v_exp_f32 %s, %s" % (v(M + 2), v(src)))
        A("v_exp_f32 %s, %s" % (v(M + 3), v(src + 1)))
        A(mf32(AQ, VXR, EB))
        A("v_add_f32_dpp %s, %s, %s quad_perm:[2,3,0,1] row_mask:0xf bank_mask:0xf" % (v(AL), v(AL), v(AL)))
        A(cvt(EM, M + 2, M + 3))
        A(mf32(AQ + 4, VXR + 4, EB))
        A(cvt(EM + 1, M + 2, M + 3))
        A("v_add_f32 %s, %s, %s" % (v(AL), v(AL), v(AL)))
        if first:
            A(cvt(VB, AV, AV + 1))
            A(cvt(VB + 1, AV + 2, AV + 3))
        A(mf16(AL, HALF, EM, AL))
        if first:
            A(cvt(VB + 2, AV + 4, AV + 5))
            A(cvt(VB + 3, AV + 6, AV + 7))
        A(mf16(AQ, VB, EM, AQ))
        f()
        f()
        f()
        A(mf16(AQ + 4, VB + 2, EM, AQ + 4))
        while fill:
            f()

    def normalize(self, A, w, AL, f0=(), f1=()):
        RR = T0 + 2
        pk = lambda r: A("v_pk_mul_f32 %s, %s, %s op_sel_hi:[1,0]" % (v(r, 2), v(r, 2), v(RR, 2)))
        A("v_rcp_f32 %s, %s" % (v(RR), v(AL)))
        A("\n".join(f0))
        pk(AQ)
        pk(AQ + 2)
        for q in range(2):
            A(cvt(OOP[0] + q, AQ + 2 * q, AQ + 2 * q + 1))
        pk(AQ + 4)
        pk(AQ + 6)
        for q in range(2, 4):
            A(cvt(OOP[0] + q, AQ + 2 * q, AQ + 2 * q + 1))
        A("ds_write_b128 %s, %s offset:%d" % (v(VL1), v(OOP[0], 4), RB + w * 1024))
        A("\n".join(f1))

    def fallback(self, B, w, tag, X, M):
        EX, AL = X[1], X[3]
        MX, TM = T0 + 2, T0 + 3
        B.label("c_slow_" + tag)
        B("s_nop 15")
        B("v_max3_f32 %s, %s, %s, %s" % (v(MX), v(X[0]), v(X[0] + 1), v(X[0] + 2)))
        B("v_max3_f32 %s, %s, %s, %s" % (v(MX), v(MX), v(X[0] + 3), v(M)))
        B("v_max_f32 %s, %s, %s" % (v(MX), v(MX), v(M + 1)))
        B("v_max_f32_dpp %s, %s, %s quad_perm:[2,3,0,1] row_mask:0xf bank_mask:0xf" % (v(MX), v(MX), v(MX)))
        for sw in ("v_permlane16_swap_b32", "v_permlane32_swap_b32"):
            B("v_mov_b32 %s, %s" % (v(TM), v(MX)))
            B("%s %s, %s" % (sw, v(MX), v(TM)))
            B("s_nop 1")
            B("v_max_f32 %s, %s, %s" % (v(MX), v(MX), v(TM)))
        for r in range(4):
            B("v_sub_f32 %s, %s, %s" % (v(EX + r), v(X[0] + r), v(MX)))
        for r in range(2):
            B("v_sub_f32 %s, %s, %s" % (v(M + 2 + r), v(M + r), v(MX)))
        for r in range(4):
            B("v_exp_f32 %s, %s" % (v(EX + r), v(EX + r)))
        B(cvt(EX, EX, EX + 1))
        B(cvt(EX + 1, EX + 2, EX + 3))
        self.softmax_tail(B, X, M, [], first=False)
        B("s_waitcnt lgkmcnt(0)")
        self.normalize(B, w, AL)
        for a_ in range(4):
            B("v_mov_b64 %s, 0\nv_mov_b64 %s, 0" % (v(ACCO[a_], 2), v(ACCO[a_] + 2, 2)))
        for a_ in range(self.w4):
            B(WO(a_, 0))
        B("s_nop 7")
        B("s_branch c_back_" + tag)

    def emit(self, A):
        for w in range(1, 4):
            A("s_cmp_eq_u32 %s, %d\ns_cbranch_scc1 c_pro_%d" % (s(sWAVE), w, w))
        for w in range(4):
            CUR[0] = w
            P_ = Asm()
            P_._uid = 100 + 200 * w
            P_.label("c_pro_%d" % w)
            self.prologue(P_, w)
            A.extend(fix_hazards(P_.lines))
        for slow in (0, 1):
            for w in range(4):
                A(".p2align 6")
                A.extend(self.loop(w, slow))
```

```python
from asmlib import *
from layout import *

WS, DBG = "s[4:7]", "s[28:31]"
sROLE, sWAVE, sBUD = 32, 33, 35
sSEG, sEND, sIN, sOUT, sFLG, sSC, sT0, sT1, sT2, sRS, sB0, sB1, sLW = range(36, 49)
sPOLL, sNEED, sX, sSET3, sQ, sKM2 = range(49, 55)
sMASK = 56
W0, W1 = 8, 12
SXI, SOUT = 16, 20
NP, NM, NXY, ND, NZ = 62, 64, 48, 16, 32
SEGB = 262144
PARTB = 12 * 32768
HSEG = 112 * 1024

L, N32, HI, VL16, VST, VT0, VT1, VT2, VT3, VPO = 255, 254, 253, 252, 251, 250, 249, 248, 247, 246
VA = 240


def cvt(d, x, y):
    return "v_cvt_pk_bf16_f32 %s, %s, %s" % (v(d), v(x), v(y))


WST = [False]


def rt(A, k):
    if WST[0]:
        A("s_memrealtime %s\ns_waitcnt lgkmcnt(0)" % s(70 + 2 * k, 2))


def budget(A, give_up):
    A("s_cmp_eq_u32 %s, 0\ns_cbranch_scc1 %s\ns_sub_u32 %s, %s, 1" % (s(sBUD), give_up, s(sBUD), s(sBUD)))


def wait_dbg(A, off, want, mask=None, sleep=4, each=False):
    top, done, skip = A.uid("w_wd"), A.uid("w_wdd"), A.uid("w_wds")
    if not each:
        A("s_cmp_lg_u32 %s, 0\ns_cbranch_scc1 %s" % (s(sWAVE), skip))
    A("s_mov_b64 exec, 1")
    A.label(top)
    A("buffer_load_dword %s, off, %s, 0 offset:%d sc1" % (v(VT0), DBG, off))
    A("s_waitcnt vmcnt(0)")
    A("v_readfirstlane_b32 %s, %s" % (s(sT1), v(VT0)))
    if mask:
        A("s_and_b32 %s, %s, 0x%x" % (s(sT1), s(sT1), mask))
    A("s_cmp_ge_u32 %s, %d\ns_cbranch_scc1 %s" % (s(sT1), want, done))
    budget(A, done)
    A("s_sleep %d\ns_branch %s" % (sleep, top))
    A.label(done)
    A("s_mov_b64 exec, -1")
    A.label(skip)
    if not each:
        A("s_barrier")


def poll(A, nl, vaddr, soff, need, sleep=2, vneed=False):
    top, done = A.uid("w_pl"), A.uid("w_pld")
    A("s_mov_b64 exec, 0x%x" % ((1 << nl) - 1))
    A.label(top)
    A("buffer_load_dword %s, %s, %s, %s offen sc1" % (v(VT0), v(vaddr), WS, s(soff)))
    A("s_waitcnt vmcnt(0)")
    A("v_cmp_gt_u32 vcc, %s, %s" % (v(need) if vneed else s(need), v(VT0)))
    A("s_cbranch_vccz %s" % done)
    budget(A, done)
    A("s_sleep %d\ns_branch %s" % (sleep, top))
    A.label(done)
    A("s_mov_b64 exec, -1")


def post_flag(A, val_sgpr_plus1):
    lab = A.uid("w_fl")
    A("s_waitcnt vmcnt(0)\ns_barrier")
    A("s_cmp_lg_u32 %s, 0\ns_cbranch_scc1 %s" % (s(sWAVE), lab))
    A("s_add_u32 %s, %s, 1" % (s(sT0), s(val_sgpr_plus1)))
    A("v_mov_b32 %s, %s" % (v(VT0), s(sT0)))
    A("s_mov_b64 exec, 1")
    A("buffer_store_dword %s, off, %s, %s sc1" % (v(VT0), WS, s(sFLG)))
    A("s_mov_b64 exec, -1")
    A.label(lab)


def count_up(A, off):
    lab = A.uid("w_cu")
    A("s_waitcnt vmcnt(0)\ns_barrier")
    A("s_cmp_lg_u32 %s, 0\ns_cbranch_scc1 %s" % (s(sWAVE), lab))
    A("v_mov_b32 %s, 1" % v(VT0))
    A("s_mov_b64 exec, 1")
    A("buffer_atomic_add %s, off, %s, 0 offset:%d" % (v(VT0), DBG, off))
    A("s_mov_b64 exec, -1")
    A.label(lab)


def poison_check(A, regs, ok, again, sleep):
    A("v_max3_u32 %s, %s, %s, %s" % (v(VT0), v(regs[0]), v(regs[1]), v(regs[2])))
    rest = regs[3:]
    while len(rest) > 1:
        A("v_max3_u32 %s, %s, %s, %s" % (v(VT0), v(VT0), v(rest[0]), v(rest[1])))
        rest = rest[2:]
    if rest:
        A("v_max_u32 %s, %s, %s" % (v(VT0), v(VT0), v(rest[0])))
    A("v_cmp_eq_u32 vcc, -1, %s" % v(VT0))
    A("s_cbranch_vccz " + ok)
    budget(A, ok)
    if sleep:
        A("s_sleep %d" % sleep)
    A("s_branch " + again)
    A.label(ok)


def srd(A, d, karg, size, sreg=None):
    if sreg is None:
        A("s_load_dwordx2 %s, s[0:1], %d" % (s(d, 2), karg))
    else:
        A("s_load_dwordx2 %s, s[0:1], %s" % (s(d, 2), s(sreg)))
    A("s_mov_b32 %s, 0x%x\ns_mov_b32 %s, 0x20000" % (s(d + 2), size, s(d + 3)))


def common(A):
    A("v_and_b32 %s, 63, v0" % v(L))
    A("v_and_b32 %s, 31, v0" % v(N32))
    A("v_lshrrev_b32 %s, 5, %s" % (v(HI), v(L)))
    A("v_lshlrev_b32 %s, 4, %s" % (v(VL16), v(L)))


def load_weights(A, perm, two_srd, nt=False, hook=None):
    X, Y, Z, DV = VT0, VT1, VT2, VT3
    full = not two_srd
    rowb = 128 if full else 64
    A("s_lshl_b32 %s, %s, 15" % (s(sLW), s(sWAVE)))
    A("v_lshrrev_b32 %s, %d, %s" % (v(X), 3 if full else 2, v(L)))
    A("v_mul_lo_u32 %s, %s, %s" % (v(X), v(X), s(sRS)))
    if full:
        A("v_bfe_u32 %s, %s, 4, 1" % (v(Z), v(L)))
        A("v_lshlrev_b32 %s, 2, %s" % (v(Z), v(Z)))
        A("v_xor_b32 %s, %s, %s" % (v(Y), v(Z), v(L)))
        A("v_and_b32 %s, 7, %s" % (v(Y), v(Y)))
    else:
        A("v_and_b32 %s, 3, %s" % (v(Y), v(L)))
    A("v_lshl_add_u32 %s, %s, 4, %s" % (v(DV), v(Y), v(X)))
    A("s_lshl_b32 %s, %s, %d" % (s(sT2), s(sRS), 3 if full else 4))

    def dma(u):
        for half in range(2):
            for t in range(2):
                A("s_add_u32 m0, %s, %d" % (s(sLW), (u % 8) * 4096 + ((2 * half + t) * 1024 if full else t * 2048 + half * 1024)))
                A("buffer_load_dwordx4 %s, %s, %s offen %slds" % (
                    v(DV), s(W1 if (t and two_srd) else W0, 4), s(sB0), "nt " if nt else ""))
                if full or t:
                    A("s_add_u32 %s, %s, %s" % (s(sB0), s(sB0), s(sT2)))

    for u in range(8):
        dma(u)
    A("v_and_b32 %s, 3, %s" % (v(Y), v(L)))
    A("v_bfe_u32 %s, %s, 2, 2" % (v(X), v(L)))
    A("v_lshl_add_u32 %s, %s, %d, %s" % (v(X), v(HI), 2 if perm else 3, v(X)))
    A("v_lshlrev_b32 %s, %d, %s" % (v(X), 7 if full else 6, v(X)))
    A("v_bfe_u32 %s, %s, 4, 1" % (v(Z), v(L)))
    if perm == "col":
        A("v_lshl_add_u32 %s, %s, 4, %s" % (v(X), v(Z), v(X)))
        A("v_and_b32 %s, 1, %s" % (v(Z), v(L)))
        A("v_lshl_add_u32 %s, %s, 5, %s" % (v(X), v(Z), v(X)))
        A("v_bfe_u32 %s, %s, 1, 1" % (v(Z), v(L)))
        A("v_lshl_add_u32 %s, %s, 3, %s" % (v(X), v(Z), v(X)))
    else:
        A("v_lshl_add_u32 %s, %s, 5, %s" % (v(X), v(Z), v(X)))
        A("v_lshl_add_u32 %s, %s, 3, %s" % (v(X), v(Y), v(X)))
    TR = VA
    if full:
        A("v_bfe_u32 %s, %s, 3, 1" % (v(Z), v(L)))
        A("v_lshl_add_u32 %s, %s, 6, %s" % (v(X), v(Z), v(X)))
    A("v_add_u32 %s, %s, %s" % (v(TR), s(sLW), v(X)))
    A("v_xor_b32 %s, %d, %s" % (v(TR + 1), 64 if full else 2048, v(TR)))
    bs, qs = (8, 16) if perm else (16, 4)
    for u in range(16):
        A("s_waitcnt vmcnt(%d)" % (4 * min(7, 15 - u)))
        for b in range(2):
            for t in range(2):
                for q in range(2):
                    A("ds_read_b64_tr_b16 %s, %s offset:%d" % (
                        a(((2 * u + b) * 2 + t) * 4 + 2 * q, 2), v(TR + t), (u % 8) * 4096 + (bs * b + qs * q) * rowb))
        A("s_waitcnt lgkmcnt(0)")
        if u + 8 < 16:
            dma(u + 8)
        if hook:
            hook(u)
    A("s_barrier")
    rt(A, 1)


def gemm(A, nk, acc, fr, swap, fill=(), base=0, sched=None):
    fill = list(fill)
    sched = dict(sched or {})
    q = []

    def emit(l):
        A(l)
        if l.startswith("ds_"):
            q.append(None)

    def rd(k):
        A("ds_read_b128 %s, %s offset:%d" % (v(fr + 4 * (k % 4), 4), v(VL16), base + k * 1024))
        q.append(k)

    for k in range(3):
        rd(k)
    for k in range(nk):
        n = len(q) - 1 - q.index(k)
        A("s_waitcnt lgkmcnt(%d)" % n)
        del q[:len(q) - n]
        for t in range(2):
            w_, x_ = a((2 * k + t) * 4, 4), v(fr + 4 * (k % 4), 4)
            c = "0" if k == 0 else v(acc + 16 * t, 16)
            A("v_mfma_f32_32x32x16_bf16 %s, %s, %s, %s" % (v(acc + 16 * t, 16), x_ if swap else w_, w_ if swap else x_, c))
            if t == 0 and k + 3 < nk:
                rd(k + 3)
            elif fill:
                emit(fill.pop(0))
            for l in sched.pop(2 * k + t, []):
                emit(l)
    assert not fill and not sched


def layernorm(A):
    XR, F, S0, S1 = 0, 32, 96, 98
    X, Y = VT1, VT2
    srd(A, SXI, 0, 2048 * 1024)
    A("v_lshrrev_b32 %s, 3, %s" % (v(X), v(L)))
    A("v_and_b32 %s, 7, %s" % (v(Y), v(L)))
    A("v_lshlrev_b32 %s, 10, %s" % (v(VT3), v(X)))
    A("v_lshl_add_u32 %s, %s, 4, %s" % (v(VT3), v(Y), v(VT3)))
    A("v_lshlrev_b32 %s, 4, %s" % (v(VST), v(X)))
    A("v_lshl_add_u32 %s, %s, 9, %s" % (v(VST), v(Y), v(VST)))
    A("s_lshl_b32 %s, %s, 15\ns_lshl_b32 %s, %s, 13" % (s(sT0), s(sSEG), s(sT1), s(sWAVE)))
    A("s_add_u32 %s, %s, %s" % (s(sT1), s(sT1), s(sT0)))
    A("s_waitcnt lgkmcnt(0)")
    for i in range(8):
        A("buffer_load_dwordx4 %s, %s, %s, %s offen offset:%d" % (v(XR + 4 * i, 4), v(VT3), s(SXI, 4), s(sT1), 128 * i))
    A("s_lshl_b32 %s, %s, 7\ns_add_u32 %s, %s, %s\ns_add_u32 %s, %s, %d" % (
        s(sT1), s(sWAVE), s(sT0), s(sT0), s(sT1), s(sT0), s(sT0), XN))
    A("s_mov_b32 %s, 0xffff0000" % s(sT2))

    def red8(r):
        for m in ("quad_perm:[1,0,3,2]", "quad_perm:[2,3,0,1]", "row_half_mirror"):
            A("v_add_f32_dpp %s, %s, %s %s row_mask:0xf bank_mask:0xf" % (v(r), v(r), v(r), m))

    def rnd(r):
        A(cvt(r, r, r))
        A("v_lshlrev_b32 %s, 16, %s" % (v(r), v(r)))

    for i in range(8):
        A("s_waitcnt vmcnt(%d)" % (7 - i))
        for j in range(4):
            r = 4 * i + j
            A("v_lshlrev_b32 %s, 16, %s" % (v(F + 2 * r), v(XR + r)))
            A("v_and_b32 %s, %s, %s" % (v(F + 2 * r + 1), s(sT2), v(XR + r)))
            if r == 0:
                A("v_mov_b64 %s, %s" % (v(S0, 2), v(F, 2)))
            else:
                A("v_pk_add_f32 %s, %s, %s" % (v(S0, 2), v(S0, 2), v(F + 2 * r, 2)))
    A("v_add_f32 %s, %s, %s" % (v(S0), v(S0), v(S0 + 1)))
    red8(S0)
    A("v_mul_f32 %s, 0xbb000000, %s" % (v(S0), v(S0)))
    A("v_mov_b32 %s, %s" % (v(S0 + 1), v(S0)))
    A("v_mov_b64 %s, 0" % v(S1, 2))
    for r in range(32):
        t = XR + 2 * (r % 8)
        A("v_pk_add_f32 %s, %s, %s" % (v(t, 2), v(F + 2 * r, 2), v(S0, 2)))
        A("v_pk_fma_f32 %s, %s, %s, %s" % (v(S1, 2), v(t, 2), v(t, 2), v(S1, 2)))
    A("v_add_f32 %s, %s, %s" % (v(S1), v(S1), v(S1 + 1)))
    red8(S1)
    A("v_mul_f32 %s, 0x3b000000, %s" % (v(S1), v(S1)))
    rnd(S1)
    A("v_add_f32 %s, 0x3727c5ac, %s" % (v(S1), v(S1)))
    rnd(S1)
    A("v_sqrt_f32 %s, %s" % (v(S1), v(S1)))
    rnd(S1)
    A("v_rcp_f32 %s, %s" % (v(S1), v(S1)))
    rnd(S0)
    A("v_mov_b32 %s, %s" % (v(S0 + 1), v(S0)))
    A("v_mov_b32 %s, %s" % (v(S1 + 1), v(S1)))
    for i in range(8):
        for j in range(4):
            r = 4 * i + j
            f = F + 2 * r
            A("v_pk_add_f32 %s, %s, %s" % (v(f, 2), v(f, 2), v(S0, 2)))
            A(cvt(f + 1, f, f + 1))
            A("v_lshlrev_b32 %s, 16, %s" % (v(f), v(f + 1)))
            A("v_and_b32 %s, %s, %s" % (v(f + 1), s(sT2), v(f + 1)))
            A("v_pk_mul_f32 %s, %s, %s" % (v(f, 2), v(f, 2), v(S1, 2)))
            A(cvt(XR + r, f, f + 1))
        A("buffer_store_dwordx4 %s, %s, %s, %s offen sc1" % (v(XR + 4 * i, 4), v(VST), WS, s(sT0)))
        A("s_add_u32 %s, %s, 4096" % (s(sT0), s(sT0)))
    count_up(A, DBG_LN)


XR, FR, ACC, OUT = 0, 32, 48, 80


def pack_store(A, acc, out, offs, order):
    for t in range(2):
        for p in range(2):
            o = out + 8 * t + 4 * p
            for k, q in enumerate(order[p]):
                A(cvt(o + 2 * k, acc + 16 * t + 4 * q, acc + 16 * t + 4 * q + 1))
                A(cvt(o + 2 * k + 1, acc + 16 * t + 4 * q + 2, acc + 16 * t + 4 * q + 3))
            A("buffer_store_dwordx4 %s, %s, %s, %s offen offset:%d sc1" % (v(o, 4), v(VST), WS, s(sOUT), offs[t][p]))


def in_loads(n):
    return ["buffer_load_dwordx4 %s, %s, %s, %s offen offset:%d sc1" % (
        v(XR + 4 * i, 4), v(VA + 1 + i // 4), WS, s(sIN), (i % 4) * 1024) for i in range(n)]


def in_addr(A, n):
    A("s_mul_i32 %s, %s, %d" % (s(sT0), s(sWAVE), n * 1024))
    A("v_add_u32 %s, %s, %s" % (v(VA + 1), s(sT0), v(VL16)))
    A("v_add_u32 %s, 4096, %s" % (v(VA + 2), v(VA + 1)))


def in_writes(A, n):
    for i in range(n):
        A("ds_write_b128 %s, %s offset:%d" % (v(VA + 1), v(XR + 4 * i, 4), i * 1024))
    A("s_waitcnt lgkmcnt(0)\ns_barrier")


def p_setup(A, kind, mem):
    G = sQ
    if kind == "gu":
        srd(A, W0, 64, 512 * 3584)
        srd(A, W1, 72, 512 * 3584)
        A("s_mov_b32 %s, 3584" % s(sRS))
        A("s_sub_u32 %s, %s, 48" % (s(G), s(G)))
        A("s_lshl2_add_u32 %s, %s, %s" % (s(sT0), s(G), s(sWAVE)))
        A("s_lshl_b32 %s, %s, 6\ns_mov_b32 %s, %s" % (s(sB0), s(sT0), s(sB1), s(sB0)))
        A("s_lshl_b32 %s, %s, 11\ns_add_u32 %s, %s, %d" % (s(sOUT), s(sT0), s(sOUT), s(sOUT), HB))
        A("v_mov_b32 %s, %s" % (v(VST), v(VL16)))
    else:
        A("s_lshr_b32 %s, %s, 4" % (s(sT0), s(G)))
        A("s_lshl_b32 %s, %s, 3\ns_add_u32 %s, %s, 16" % (s(sT1), s(sT0), s(sT1), s(sT1)))
        srd(A, W0, None, 512 * 8192, sreg=sT1)
        A("s_cmp_eq_u32 %s, 0" % s(sT0))
        A("s_mov_b32 %s, 0x%x" % (s(sSC), SB_BF << 16))
        A("s_cselect_b32 %s, 0x%x, %s" % (s(sSC), SA_BF << 16, s(sSC)))
        A("s_lshl_b32 %s, 0x%x, %s" % (s(sOUT), QX, s(sT0)))
        A("s_and_b32 %s, %s, 15" % (s(G), s(G)))
        A("s_lshl2_add_u32 %s, %s, %s" % (s(sT0), s(G), s(sWAVE)))
        A("s_lshl_b32 %s, %s, 7\ns_add_u32 %s, %s, 64" % (s(sB0), s(sT0), s(sB1), s(sB0)))
        A("s_lshl_b32 %s, %s, 12\ns_add_u32 %s, %s, %s" % (s(sT0), s(sT0), s(sOUT), s(sOUT), s(sT0)))
        if mem:
            A("s_add_u32 %s, %s, 64\ns_lshl_b32 %s, %s, 18\ns_add_u32 %s, %s, %s" % (
                s(sT0), s(sSEG), s(sT0), s(sT0), s(sOUT), s(sOUT), s(sT0)))
        A("s_mov_b32 %s, 8192" % s(sRS))
        A("v_and_b32 %s, 15, %s" % (v(VT0), v(L)))
        A("v_lshlrev_b32 %s, 4, %s" % (v(VST), v(VT0)))
        A("v_lshl_add_u32 %s, %s, 8, %s" % (v(VST), v(HI), v(VST)))
        A("v_bfe_u32 %s, %s, 4, 1" % (v(VT0), v(L)))
        A("v_lshl_add_u32 %s, %s, 10, %s" % (v(VST), v(VT0), v(VST)))
    A("s_waitcnt lgkmcnt(0)")


def p_epilogue(kind, acc, out):
    E = Asm()
    if kind == "gu":
        for p in range(2):
            for k, q in enumerate(((0, 2), (1, 3))[p]):
                for e in range(2):
                    g, u_ = acc + 4 * q + 2 * e, acc + 16 + 4 * q + 2 * e
                    E("v_max_f32 %s, 0, %s" % (v(g), v(g)))
                    E("v_max_f32 %s, 0, %s" % (v(g + 1), v(g + 1)))
                    for r in (g, u_):
                        E(cvt(r + 1, r, r + 1))
                        E("v_lshlrev_b32 %s, 16, %s" % (v(r), v(r + 1)))
                        E("v_and_b32 %s, 0xffff0000, %s" % (v(r + 1), v(r + 1)))
                    E("v_mul_f32 %s, %s, %s" % (v(g), v(g), v(u_)))
                    E("v_mul_f32 %s, %s, %s" % (v(g + 1), v(g + 1), v(u_ + 1)))
                    E(cvt(out + 4 * p + 2 * k + e, g, g + 1))
            E("buffer_store_dwordx4 %s, %s, %s, %s offen offset:%d sc1" % (v(out + 4 * p, 4), v(VST), WS, s(sOUT), 1024 * p))
    else:
        offs, order = ((0, 512), (2048, 2560)), ((0, 2), (1, 3))
        for t in range(2):
            for p in range(2):
                o_ = out + 8 * t + 4 * p
                for k, q in enumerate(order[p]):
                    r0 = acc + 16 * t + 4 * q
                    if kind == "qk":
                        for r in range(4):
                            E("v_mul_f32 %s, %s, %s" % (v(r0 + r), s(sSC), v(r0 + r)))
                    E(cvt(o_ + 2 * k, r0, r0 + 1))
                    E(cvt(o_ + 2 * k + 1, r0 + 2, r0 + 3))
                E("buffer_store_dwordx4 %s, %s, %s, %s offen offset:%d sc1" % (v(o_, 4), v(VST), WS, s(sOUT), offs[t][p]))
    return E.lines


def role_p(A, kind, o):
    tg = "p" + kind
    ACC2 = (48, 96)
    step = HSEG if kind == "gu" else SEGB
    nst = 2 if kind == "gu" else 4
    A.label("w_" + tg)
    A("s_lshl_b32 %s, %s, 7\ns_add_u32 %s, %s, %d" % (s(sFLG), s(sQ), s(sFLG), s(sFLG), FLAGS + F_P))
    A("s_mov_b32 %s, 0" % s(sSEG))
    if kind != "v" and o.get("lateq", 0):
        lab = A.uid("w_lq")
        if kind == "qk":
            A("s_cmp_ge_u32 %s, 16\ns_cbranch_scc1 %s" % (s(sQ), lab))
        wait_dbg(A, DBG_GATE, 32, sleep=o.get("lsleep", 32))
        A.label(lab)
    p_setup(A, kind, False)
    A("s_mov_b32 %s, %d" % (s(sIN), XN))
    A("s_mov_b32 %s, %s\ns_mov_b32 %s, %d" % (s(sX), s(sOUT), s(sOUT), DUMMY))
    C0 = 128

    def hook(u):
        if u == o.get("pu", 11):
            A("s_mov_b64 exec, 1")
            A("buffer_load_dword %s, off, %s, 0 offset:%d sc1" % (v(C0), DBG, DBG_LN))
            A("buffer_load_dword %s, off, %s, 0 offset:%d sc1" % (v(C0 + 1), DBG, DBG_INIT))
            A("s_mov_b64 exec, -1")
        if u == 15:
            in_addr(A, 8)
            A("v_readfirstlane_b32 %s, %s\nv_readfirstlane_b32 %s, %s" % (s(sT0), v(C0), s(sT1), v(C0 + 1)))
            A("s_lshl_b32 %s, %s, 6\ns_and_b32 %s, %s, %s\ns_cbranch_scc1 w_go_%s" % (s(sT1), s(sT1), s(sT0), s(sT0), s(sT1), tg))
            wait_dbg(A, DBG_LN, 64, each=True)
            wait_dbg(A, DBG_INIT, 1, each=True)
            A.label("w_go_" + tg)
            A("\n".join(in_loads(8)))

    load_weights(A, None, kind == "gu", nt=o.get("p_nt"), hook=hook)
    A("s_waitcnt vmcnt(0)")
    in_writes(A, 8)
    A("s_add_u32 %s, %s, 32768" % (s(sIN), s(sIN)))
    A("\n".join(in_loads(8)))
    rt(A, 2)
    A.label("w_top_" + tg)
    for p in range(2):
        ep = p_epilogue(kind, ACC2[1 - p], OUT)
        sched = {}
        g = 2
        while ep:
            n = 3 if g % 2 == 0 else 4
            sched[g], ep = ep[:n], ep[n:]
            g += 1
        g = max(g, 30)
        sched[g] = ["s_waitcnt vmcnt(%d)" % nst, "s_mov_b32 %s, %s" % (s(sOUT), s(sX)),
                    "s_add_u32 %s, %s, %d" % (s(sX), s(sX), step), "s_add_u32 %s, %s, 32768" % (s(sIN), s(sIN))]
        for i in range(8):
            sched[g + 1 + i] = ["ds_write_b128 %s, %s offset:%d" % (v(VA + 1), v(XR + 4 * i, 4), (1 - p) * 32768 + i * 1024)]
        for i, l in enumerate(in_loads(8)):
            sched[g + 16 + i] = [l]
        gemm(A, 32, ACC2[p], FR, kind == "v", base=p * 32768, sched=sched)
        lab = A.uid("w_fl")
        A("s_waitcnt vmcnt(8) lgkmcnt(0)\ns_barrier")
        A("s_cmp_lg_u32 %s, 0\ns_cbranch_scc1 %s" % (s(sWAVE), lab))
        A("v_mov_b32 %s, %s" % (v(VT0), s(sSEG)))
        A("s_mov_b64 exec, 1")
        A("buffer_store_dword %s, off, %s, %s sc1" % (v(VT0), WS, s(sFLG)))
        A("s_mov_b64 exec, -1")
        A.label(lab)
        A("s_add_u32 %s, %s, 1" % (s(sSEG), s(sSEG)))
    A("s_cmp_lt_u32 %s, 64\ns_cbranch_scc1 w_top_%s" % (s(sSEG), tg))
    A("s_nop 7")
    A("\n".join(p_epilogue(kind, ACC2[1], OUT)))
    A("s_mov_b32 %s, 63" % s(sSEG))
    post_flag(A, sSEG)
    A("s_branch w_exit")


def role_m(A, kind, o):
    tg = "m" + kind
    A.label("w_" + tg)
    p_setup(A, kind, True)
    A("s_lshl2_add_u32 %s, %s, %s\ns_lshl_b32 %s, %s, 10" % (s(sT0), s(sQ), s(sWAVE), s(sT0), s(sT0)))
    A("s_lshl_b32 %s, %s, 16\ns_add_u32 %s, %s, %s\ns_add_u32 %s, %s, %d" % (
        s(sOUT), s(sSEG), s(sOUT), s(sOUT), s(sT0), s(sOUT), s(sOUT), KM if kind == "qk" else VM))
    if o.get("latem", 0):
        wait_dbg(A, DBG_GATE, 32, sleep=o.get("lsleep", 32))
    load_weights(A, None, False)
    in_addr(A, 8)
    PZ = 16
    for r in range(4):
        A("v_mov_b32 %s, 0" % v(XR + r))
        A("v_mov_b32 %s, -1" % v(PZ + r))
    for i in range(8):
        A("ds_write_b128 %s, %s offset:%d" % (v(VA + 1), v(XR, 4), i * 1024))
    A("s_mov_b32 %s, %s" % (s(sX), s(sOUT)))
    pz = "buffer_store_dwordx4 %s, %s, %s, %s offen sc1\ns_add_u32 %s, %s, 131072" % (v(PZ, 4), v(VL16), WS, s(sX), s(sX), s(sX))
    for i in range(4):
        A(pz)
    A("v_lshlrev_b32 %s, 3, %s" % (v(VST), v(L)))
    sh = 5 if kind == "qk" else 4
    A("v_lshrrev_b32 %s, 4, %s" % (v(VT0), v(L)))
    A("v_lshlrev_b32 %s, 9, %s" % (v(VA + 3), v(VT0)))
    A("v_bfe_u32 %s, %s, 1, 1" % (v(VT0), v(L)))
    A("v_lshl_add_u32 %s, %s, 11, %s" % (v(VA + 3), v(VT0), v(VA + 3)))
    A("v_bfe_u32 %s, %s, 2, 2" % (v(VT0), v(L)))
    A("v_lshl_add_u32 %s, %s, %d, %s" % (v(VA + 3), v(VT0), sh + 1, v(VA + 3)))
    A("v_and_b32 %s, 1, %s" % (v(VT0), v(L)))
    A("v_lshl_add_u32 %s, %s, %d, %s" % (v(VA + 3), v(VT0), sh, v(VA + 3)))
    A("s_lshl_b32 %s, %s, 13" % (s(sT0), s(sWAVE)))
    A("v_add_u32 %s, %s, %s" % (v(VA + 3), s(sT0), v(VA + 3)))
    A("s_lshl_b32 %s, %s, 13\ns_lshl_b32 %s, %s, 11" % (s(sIN), s(sSEG), s(sT0), s(sWAVE)))
    A("s_add_u32 %s, %s, %s\ns_add_u32 %s, %s, %d" % (s(sIN), s(sIN), s(sT0), s(sIN), s(sIN), MEMC))
    count_up(A, DBG_POISON)
    wait_dbg(A, DBG_CHAIN_READY, 32, mask=0xffff)
    A("s_waitcnt lgkmcnt(0)")
    A.label("w_mem_" + tg)
    for i in range(2):
        A("buffer_load_dwordx4 %s, %s, %s, %s offen offset:%d sc1" % (v(XR + 4 * i, 4), v(VL16), WS, s(sIN), 1024 * i))
    A("s_waitcnt vmcnt(0)")
    poison_check(A, list(range(XR, XR + 8)), "w_memok_" + tg, "w_mem_" + tg, o.get("msleep", 1))
    rt(A, 4)
    for i in range(2):
        for sel in range(2):
            A("ds_write_b128 %s, %s offset:%d" % (v(VA + 3), v(XR + 4 * i, 4), 4096 * i + sel * (272 if kind == "qk" else 384)))
    A("s_add_u32 %s, %s, 16384" % (s(sIN), s(sIN)))
    A("s_waitcnt lgkmcnt(0)\ns_barrier")
    F8 = 96
    rd = lambda k: A("ds_read_b128 %s, %s offset:%d" % (v(F8 + 4 * (k % 8), 4), v(VL16), k * 1024))
    for k in range(6):
        rd(k)
    for k in range(32):
        A("s_waitcnt lgkmcnt(%d)" % min(5, 31 - k))
        for t in range(2):
            w_, x_ = a((2 * k + t) * 4, 4), v(F8 + 4 * (k % 8), 4)
            c = "0" if k == 0 else v(ACC + 4 * t, 4)
            A("v_mfma_f32_16x16x32_bf16 %s, %s, %s, %s" % ((v(ACC + 4 * t, 4),) + ((x_, w_) if kind == "v" else (w_, x_)) + (c,)))
            if t == 0 and k + 6 < 32:
                rd(k + 6)
    for t in range(2):
        r0 = ACC + 4 * t
        if kind == "qk":
            for r in range(4):
                A("v_mul_f32 %s, %s, %s" % (v(r0 + r), s(sSC), v(r0 + r)))
        A(cvt(OUT + 2 * t, r0, r0 + 1))
        A(cvt(OUT + 2 * t + 1, r0 + 2, r0 + 3))
        A("buffer_store_dwordx2 %s, %s, %s, %s offen offset:%d sc1" % (v(OUT + 2 * t, 2), v(VST), WS, s(sOUT), 512 * t))
    A(pz)
    A("s_barrier")
    A("s_add_u32 %s, %s, 2" % (s(sSEG), s(sSEG)))
    A("s_add_u32 %s, %s, %d" % (s(sOUT), s(sOUT), 131072))
    A("s_cmp_lt_u32 %s, 64\ns_cbranch_scc1 w_mem_%s" % (s(sSEG), tg))
    A("s_branch w_exit")


def part_setup(A, src_sgpr, ch_sgpr):
    A("s_lshl2_add_u32 %s, %s, %s" % (s(sT0), s(ch_sgpr), s(sWAVE)))
    A("s_lshl_b32 %s, %s, 7\ns_add_u32 %s, %s, %s\ns_add_u32 %s, %s, 64" % (
        s(sT1), s(sT0), s(sB0), s(sB0), s(sT1), s(sB1), s(sB0)))
    A("s_lshl_b32 %s, %s, 12\ns_lshl_b32 %s, %s, 15\ns_add_u32 %s, %s, %s" % (
        s(sOUT), s(sT0), s(sT1), s(src_sgpr), s(sOUT), s(sOUT), s(sT1)))
    A("s_mul_i32 %s, %s, %d\ns_add_u32 %s, %s, %s\ns_add_u32 %s, %s, %d" % (
        s(sT1), s(sSEG), PARTB, s(sOUT), s(sOUT), s(sT1), s(sOUT), s(sOUT), PART))
    A("s_mov_b32 %s, 1024" % s(sRS))
    A("v_mov_b32 %s, %s" % (v(VST), v(VL16)))


PART_OFFS, PART_ORD = ((0, 1024), (2048, 3072)), ((0, 1), (2, 3))


def role_d(A, o):
    A.label("w_d")
    J = sQ
    srd(A, W0, 80, 1792 * 1024)
    A("s_and_b32 %s, %s, 1" % (s(sSEG), s(J)))
    A("s_lshr_b32 %s, %s, 1" % (s(sT0), s(J)))
    A("s_lshl_b32 %s, %s, 3\ns_add_u32 %s, %s, %s" % (s(sFLG), s(sSEG), s(sFLG), s(sFLG), s(sT0)))
    A("s_lshl_b32 %s, %s, 7\ns_add_u32 %s, %s, %d" % (s(sFLG), s(sFLG), s(sFLG), s(sFLG), FLAGS + F_D))
    A("s_and_b32 %s, %s, 3\ns_lshr_b32 %s, %s, 3" % (s(sX), s(sT0), s(sSET3), s(J)))
    A("s_mul_i32 %s, %s, %d" % (s(sB0), s(sX), 448 * 1024))
    A("s_mul_i32 %s, %s, %d\ns_mul_i32 %s, %s, %d" % (s(sIN), s(sX), 28 * 1024, s(sT1), s(sSEG), HSEG))
    A("s_add_u32 %s, %s, %s\ns_add_u32 %s, %s, %d" % (s(sIN), s(sIN), s(sT1), s(sIN), s(sIN), HB))
    A("s_add_u32 %s, %s, 8" % (s(sX), s(sX)))
    part_setup(A, sX, sSET3)
    A("s_mov_b32 %s, %d" % (s(sPOLL), FLAGS + F_P + 48 * 128))
    A("v_lshlrev_b32 %s, 7, %s" % (v(VPO), v(L)))
    A("s_waitcnt lgkmcnt(0)")
    wait_dbg(A, DBG_INIT, 1)
    if o.get("latex", 0):
        wait_dbg(A, DBG_GATE, 32, sleep=o.get("lsleep", 32))
    load_weights(A, "col", False)
    in_addr(A, 7)
    A("s_add_u32 %s, %s, 1" % (s(sNEED), s(sSEG)))
    poll(A, 14, VPO, sPOLL, sNEED, sleep=16)
    A("\n".join(in_loads(7)))
    A("s_waitcnt vmcnt(0)")
    rt(A, 2)
    A.label("w_top_d")
    in_writes(A, 7)
    A("s_add_u32 %s, %s, %d" % (s(sIN), s(sIN), 2 * HSEG))
    A("s_add_u32 %s, %s, 3" % (s(sNEED), s(sSEG)))
    A("s_cmp_gt_u32 %s, 64\ns_cbranch_scc1 w_gemm_d" % s(sNEED))
    poll(A, 14, VPO, sPOLL, sNEED, sleep=8)
    A("\n".join(in_loads(7)))
    A.label("w_gemm_d")
    gemm(A, 28, ACC, FR, False)
    pack_store(A, ACC, OUT, PART_OFFS, PART_ORD)
    post_flag(A, sSEG)
    A("s_add_u32 %s, %s, 2" % (s(sSEG), s(sSEG)))
    A("s_add_u32 %s, %s, %d" % (s(sOUT), s(sOUT), 2 * PARTB))
    A("s_cmp_lt_u32 %s, 64\ns_cbranch_scc1 w_top_d" % s(sSEG))
    A("s_branch w_exit")


def mf16(d, a_, b_, c=None):
    return "v_mfma_f32_16x16x16_bf16 %s, %s, %s, %s" % (v(d, 4), v(a_, 2), v(b_, 2), "0" if c is None else v(c, 4))


def mf32(d, a_, b_, c=None):
    return "v_mfma_f32_16x16x32_bf16 %s, %s, %s, %s" % (v(d, 4), v(a_, 4), v(b_, 4), "0" if c is None else v(c, 4))


def role_xy(A, o):
    A.label("w_xy")
    J = sQ
    Q, K, V_, KM_, VM_ = 0, 32, 64, 96, 112
    S00, S01, S11, SM0, SM1 = 128, 132, 136, 140, 144
    O = 148
    acc, fr, out = 148, 180, 196
    M0, M1, L0, L1, TA, NEG, OW = 212, 213, 214, 215, 216, 218, 219
    P0, P1, PM0, PM1 = 220, 224, 222, 228
    srd(A, W0, 40, 4096 * 1024)
    A("s_mul_i32 %s, %s, 43\ns_lshr_b32 %s, %s, 7" % (s(sT0), s(J), s(sT0), s(sT0)))
    A("s_mul_i32 %s, %s, 3\ns_sub_u32 %s, %s, %s" % (s(sT1), s(sT0), s(sSEG), s(J), s(sT1)))
    A("s_and_b32 %s, %s, 1\ns_lshr_b32 %s, %s, 1" % (s(sSET3), s(sT0), s(sX), s(sT0)))
    A("s_lshl1_add_u32 %s, %s, %s\ns_lshl3_add_u32 %s, %s, %s" % (s(sFLG), s(sSEG), s(sSET3), s(sFLG), s(sFLG), s(sX)))
    A("s_lshl_b32 %s, %s, 7\ns_add_u32 %s, %s, %d" % (s(sFLG), s(sFLG), s(sFLG), s(sFLG), FLAGS + F_Y))
    A("s_lshl_b32 %s, %s, 19" % (s(sB0), s(sX)))
    part_setup(A, sX, sSET3)
    A("s_lshl2_add_u32 %s, %s, %s" % (s(sT0), s(sX), s(sWAVE)))
    A("s_lshl_b32 %s, %s, 13\ns_lshl_b32 %s, %s, 18\ns_add_u32 %s, %s, %s" % (
        s(sIN), s(sT0), s(sT1), s(sSEG), s(sIN), s(sIN), s(sT1)))
    A("s_add_u32 %s, %s, %d" % (s(sIN), s(sIN), QX))
    A("s_lshl_b32 %s, %s, 11\ns_lshl_b32 %s, %s, 16\ns_add_u32 %s, %s, %s\ns_add_u32 %s, %s, %d" % (
        s(sKM2), s(sT0), s(sT1), s(sSEG), s(sKM2), s(sKM2), s(sT1), s(sKM2), s(sKM2), KM))
    A("s_lshr_b32 %s, %s, 1\ns_lshl_b32 %s, %s, 7\ns_add_u32 %s, %s, %d" % (
        s(sPOLL), s(sT0), s(sPOLL), s(sPOLL), s(sPOLL), s(sPOLL), FLAGS + F_P))
    A("s_waitcnt lgkmcnt(0)")
    wait_dbg(A, DBG_INIT, 1, sleep=16)
    if o.get("latex", 0):
        wait_dbg(A, DBG_GATE, 32, sleep=o.get("lsleep", 32))
    load_weights(A, "col", False)
    A("v_lshrrev_b32 %s, 4, %s" % (v(VT1), v(L)))
    A("v_and_b32 %s, 15, %s" % (v(VT2), v(L)))
    A("v_lshlrev_b32 %s, 2, %s" % (v(VT3), v(VT1)))
    for r in range(4):
        A("v_cmp_le_u32 %s, %s, %s" % (s(sMASK + 2 * r, 2), v(VT3), v(VT2)))
        A("v_add_u32 %s, 1, %s" % (v(VT3), v(VT3)))
    A("s_mov_b32 %s, -1\ns_mov_b32 %s, 0" % (s(sMASK + 8), s(sMASK + 9)))
    A("v_mov_b32 %s, 0xff800000" % v(NEG))
    A("v_lshlrev_b32 %s, 9, %s" % (v(OW), v(VT1)))
    A("v_lshl_add_u32 %s, %s, 4, %s" % (v(OW), v(VT2), v(OW)))
    A("s_lshl_b32 %s, %s, 13" % (s(sT0), s(sWAVE)))
    A("v_add_u32 %s, %s, %s" % (v(OW), s(sT0), v(OW)))
    A("v_add_u32 %s, 4096, %s" % (v(VA + 1), v(VL16)))
    KA, VAD = 232, 233
    A("v_and_b32 %s, 7, %s" % (v(KA), v(L)))
    A("v_lshlrev_b32 %s, 4, %s" % (v(KA), v(KA)))
    A("v_lshl_add_u32 %s, %s, 7, %s" % (v(KA), v(VT1), v(KA)))
    A("v_lshlrev_b32 %s, 3, %s" % (v(VAD), v(N32)))
    A("v_lshlrev_b32 %s, 11, %s" % (v(VPO), v(L)))
    wait_dbg(A, DBG_POISON, 96, sleep=16)
    A("s_add_u32 %s, %s, 1" % (s(sNEED), s(sSEG)))
    poll(A, 3, VPO, sPOLL, sNEED, sleep=16)

    def qkv_loads():
        res = []
        for base, off in ((Q, 0), (K, KX - QX), (V_, VX - QX)):
            res.append("s_add_u32 %s, %s, %d" % (s(sT2), s(sIN), off))
            for i in range(8):
                res.append("buffer_load_dwordx4 %s, %s, %s, %s offen offset:%d sc1" % (
                    v(base + 4 * i, 4), v(VL16 if i < 4 else VA + 1), WS, s(sT2), (i % 4) * 1024))
        return res

    A("\n".join(qkv_loads()))
    A("s_waitcnt vmcnt(0)")
    A("s_mov_b32 s66, 0")
    rt(A, 2)
    A.label("w_top_xy")
    for w in range(4):
        A(mf32(S00, K + 8 * w, Q + 8 * w, S00 if w else None))
        A(mf32(S01, K + 8 * w, Q + 8 * w + 4, S01 if w else None))
        A(mf32(S11, K + 8 * w + 4, Q + 8 * w + 4, S11 if w else None))
    A("s_add_u32 %s, %s, 4\ns_min_u32 %s, %s, 64" % (s(sNEED), s(sSEG), s(sNEED), s(sNEED)))
    for r in range(4):
        for S in (S00, S11):
            A("v_cndmask_b32 %s, %s, %s, %s" % (v(S + r), v(NEG), v(S + r), s(sMASK + 2 * r, 2)))
    A("v_max3_f32 %s, %s, %s, %s" % (v(M0), v(S00), v(S00 + 1), v(S00 + 2)))
    A("v_max_f32 %s, %s, %s" % (v(M0), v(M0), v(S00 + 3)))
    A("v_max3_f32 %s, %s, %s, %s" % (v(M1), v(S01), v(S01 + 1), v(S01 + 2)))
    A("v_max3_f32 %s, %s, %s, %s" % (v(M1), v(M1), v(S01 + 3), v(S11)))
    A("v_max3_f32 %s, %s, %s, %s" % (v(M1), v(M1), v(S11 + 1), v(S11 + 2)))
    A("v_max_f32 %s, %s, %s" % (v(M1), v(M1), v(S11 + 3)))
    if o.get("xskip", 0):
        A("s_cmp_ge_u32 s66, %s\ns_cbranch_scc1 w_pok_xy" % s(sNEED))
        poll(A, 3, VPO, sPOLL, sNEED)
        A("v_readlane_b32 s66, %s, 0\nv_readlane_b32 s67, %s, 1\nv_readlane_b32 s68, %s, 2" % (v(VT0), v(VT0), v(VT0)))
        A("s_min_u32 s66, s66, s67\ns_min_u32 s66, s66, s68")
        A.label("w_pok_xy")
    else:
        poll(A, 3, VPO, sPOLL, sNEED)
    rt(A, 3)
    A("s_add_u32 %s, %s, %d" % (s(sT2), s(sKM2), VM - KM))
    A("s_cmp_lt_u32 %s, 61\ns_cselect_b32 %s, %d, 0\ns_add_u32 %s, %s, %s" % (s(sSEG), s(sT0), 3 * SEGB, s(sIN), s(sIN), s(sT0)))
    A.label("w_km_xy")
    for w in range(4):
        A("buffer_load_dwordx4 %s, %s, %s, %s offen offset:%d sc1" % (v(KM_ + 4 * w, 4), v(KA), WS, s(sKM2), w * 512))
    for f in range(8):
        A("buffer_load_dwordx2 %s, %s, %s, %s offen offset:%d sc1" % (v(VM_ + 2 * f, 2), v(VAD), WS, s(sT2), f * 256))
    A("s_waitcnt vmcnt(0)")
    poison_check(A, list(range(KM_, KM_ + 32)), "w_kmok_xy", "w_km_xy", o.get("xsleep", 1))
    rt(A, 4)
    A("s_add_u32 %s, %s, %d" % (s(sKM2), s(sKM2), 3 * 65536))
    for w in range(4):
        A(mf32(SM0, KM_ + 4 * w, Q + 8 * w, SM0 if w else None))
        A(mf32(SM1, KM_ + 4 * w, Q + 8 * w + 4, SM1 if w else None))
    if o.get("xearly"):
        ql = qkv_loads()
        A("s_cmp_ge_u32 %s, 61\ns_cbranch_scc1 w_nol_xy" % s(sSEG))
        A("\n".join(ql[9:18] + ql[:9]))
        A.label("w_nol_xy")
        A("s_nop 3")
    for S, M in ((SM0, M0), (SM1, M1)):
        for r in range(4):
            A("v_cndmask_b32 %s, %s, %s, %s" % (v(S + r), v(NEG), v(S + r), s(sMASK + 8, 2)))
        A("v_max3_f32 %s, %s, %s, %s" % (v(M), v(M), v(S), v(S + 1)))
        A("v_max3_f32 %s, %s, %s, %s" % (v(M), v(M), v(S + 2), v(S + 3)))

    def xred(op, r0, r1):
        for sw in ("v_permlane16_swap_b32", "v_permlane32_swap_b32"):
            A("v_mov_b32 %s, %s\nv_mov_b32 %s, %s" % (v(TA), v(r0), v(TA + 1), v(r1)))
            A("%s %s, %s\n%s %s, %s" % (sw, v(r0), v(TA), sw, v(r1), v(TA + 1)))
            A("s_nop 0")
            A("%s %s, %s, %s\n%s %s, %s, %s" % (op, v(r0), v(r0), v(TA), op, v(r1), v(r1), v(TA + 1)))

    xred("v_max_f32", M0, M1)
    grp = ((M0, L0, (S00, SM0)), (M1, L1, (S01, S11, SM1)))
    for M, Lr, SS in grp:
        for S in SS:
            for r in range(4):
                A("v_sub_f32 %s, %s, %s" % (v(S + r), v(S + r), v(M)))
            for r in range(4):
                A("v_exp_f32 %s, %s" % (v(S + r), v(S + r)))
    for M, Lr, SS in grp:
        regs = [S + r for S in SS for r in range(4)]
        A("v_add_f32 %s, %s, %s" % (v(Lr), v(regs[0]), v(regs[1])))
        for r in regs[2:]:
            A("v_add_f32 %s, %s, %s" % (v(Lr), v(Lr), v(r)))
    xred("v_add_f32", L0, L1)
    A("v_rcp_f32 %s, %s\nv_rcp_f32 %s, %s" % (v(L0), v(L0), v(L1), v(L1)))
    for Lr, S, P in ((L0, S00, P0), (L1, S01, P1), (L1, S11, P1 + 2), (L0, SM0, PM0), (L1, SM1, PM1)):
        for r in range(4):
            A("v_mul_f32 %s, %s, %s" % (v(S + r), v(S + r), v(Lr)))
        A(cvt(P, S, S + 1))
        A(cvt(P + 1, S + 2, S + 3))
    Or = lambda f, kt: O + 8 * f + 4 * kt
    for f in range(8):
        A(mf16(Or(f, 0), V_ + 4 * f, P0))
        A(mf32(Or(f, 1), V_ + 4 * f, P1))
    for f in range(8):
        A(mf16(Or(f, 0), VM_ + 2 * f, PM0, Or(f, 0)))
        A(mf16(Or(f, 1), VM_ + 2 * f, PM1, Or(f, 1)))
    for a_ in range(4):
        for kt in range(2):
            d = KM_ + 4 * ((2 * a_ + kt) % 4)
            for e in range(2):
                A(cvt(d + 2 * e, Or(2 * a_ + e, kt), Or(2 * a_ + e, kt) + 1))
                A(cvt(d + 2 * e + 1, Or(2 * a_ + e, kt) + 2, Or(2 * a_ + e, kt) + 3))
            if 2 * a_ + kt == 4:
                pass
            A("ds_write_b128 %s, %s offset:%d" % (v(OW), v(d, 4), a_ * 2048 + kt * 256))
            if (2 * a_ + kt) % 4 == 3:
                A("s_waitcnt lgkmcnt(0)")
    A("s_barrier")
    rt(A, 5)
    gemm(A, 32, acc, fr, False, fill=qkv_loads()[18 if o.get("xearly") else 0:])
    rt(A, 6)
    pack_store(A, acc, out, PART_OFFS, PART_ORD)
    post_flag(A, sSEG)
    A("s_add_u32 %s, %s, 3" % (s(sSEG), s(sSEG)))
    A("s_add_u32 %s, %s, %d" % (s(sOUT), s(sOUT), 3 * PARTB))
    A("s_cmp_lt_u32 %s, 64\ns_cbranch_scc1 w_top_xy" % s(sSEG))
    A("s_branch w_exit")


def role_z(A, o):
    A.label("w_z")
    J = sQ
    PR, XV, FA, FB, T = 0, 48, 52, 60, 68
    A("s_mov_b32 s2, %s" % s(J))
    srd(A, SXI, 0, 2048 * 1024)
    srd(A, SOUT, 88, 2048 * 1024)
    A("s_lshr_b32 %s, %s, 3\ns_and_b32 %s, %s, 7" % (s(sSEG), s(J), s(J), s(J)))
    A("s_lshl2_add_u32 %s, %s, %s" % (s(sT0), s(J), s(sWAVE)))
    A("s_lshl_b32 %s, %s, 10\ns_mul_i32 %s, %s, %d" % (s(sIN), s(sT0), s(sT1), s(sSEG), PARTB))
    A("s_add_u32 %s, %s, %s\ns_add_u32 %s, %s, %d" % (s(sIN), s(sIN), s(sT1), s(sIN), s(sIN), PART))
    A("s_lshr_b32 %s, %s, 1\ns_lshl_b32 %s, %s, 6" % (s(sT1), s(sT0), s(sT1), s(sT1)))
    A("s_and_b32 %s, %s, 1\ns_lshl4_add_u32 %s, %s, %s" % (s(sT0), s(sT0), s(sX), s(sT0), s(sT1)))
    A("s_lshl_b32 %s, %s, 15\ns_add_u32 %s, %s, %s" % (s(sT1), s(sSEG), s(sX), s(sX), s(sT1)))
    A("s_lshr_b32 %s, %s, 2" % (s(J), s(J)))
    A("s_and_b32 %s, %s, 1\ns_lshl1_add_u32 %s, %s, %s\ns_lshl_b32 %s, %s, 9" % (
        s(sT0), s(sSEG), s(sT0), s(sT0), s(J), s(sT0), s(sT0)))
    A("s_add_u32 %s, %s, %d" % (s(sPOLL), s(sT0), FLAGS + F_D))
    A("s_lshl_b32 %s, %s, 10\ns_add_u32 %s, %s, %d" % (s(sFLG), s(J), s(sFLG), s(sFLG), FLAGS + F_Y))
    A("s_cmp_eq_u32 %s, 3\ns_cselect_b32 %s, 0, %s" % (s(sSEG), s(sSET3), s(sSEG)))
    A("v_lshlrev_b32 %s, 7, %s" % (v(VPO), v(L)))
    A("v_lshlrev_b32 %s, 10, %s" % (v(VST), v(N32)))
    A("v_lshl_add_u32 %s, %s, 5, %s" % (v(VST), v(HI), v(VST)))
    A("s_mov_b32 %s, 0xffff0000" % s(sSC))
    A("s_waitcnt lgkmcnt(0)")
    if o.get("early"):
        A("s_cmp_lg_u32 s3, 0\ns_cbranch_scc1 w_top_z")
    if o.get("zpf"):
        own = o["zpf"] == 1
        A("s_load_dwordx8 s[60:67], s[0:1], 16")
        A("s_mov_b32 %s, 0x400000\ns_mov_b32 %s, 0x20000" % (s(W0 + 2), s(W0 + 3)))
        A("v_lshrrev_b32 %s, 1, %s\nv_and_b32 %s, 1, %s" % (v(VT0), v(L), v(VT1), v(L)))
        A("v_lshlrev_b32 %s, 13, %s\nv_lshl_add_u32 %s, %s, 7, %s" % (v(VT0), v(VT0), v(VT0), v(VT1), v(VT0)))
        A("s_lshl_b32 %s, s2, 8\ns_lshl_b32 %s, %s, 20\ns_add_u32 %s, %s, %s" % (s(sB0), s(sT0), s(sWAVE), s(sB0), s(sB0), s(sT0)))
        A("s_lshl_b32 %s, s2, 17\ns_lshl_b32 %s, %s, 15\ns_add_u32 %s, %s, %s" % (s(sB1), s(sT0), s(sWAVE), s(sB1), s(sB1), s(sT0)))
        A("s_waitcnt lgkmcnt(0)")
        for k, mi in enumerate(o.get("zord", "1230")):
            mi = int(mi)
            A("s_mov_b32 %s, s%d\ns_mov_b32 %s, s%d" % (s(W0), 60 + 2 * mi, s(W0 + 1), 61 + 2 * mi))
            for i in range(4):
                strided = own and mi != 3
                A("s_add_u32 %s, %s, %d" % (s(sT0), s(sB0 if strided else sB1), i * (32 * 8192 if strided else 8192)))
                for hf in range(o.get("zhf", 1)):
                    A("buffer_load_dword %s, %s, %s, %s offen offset:%d" % (
                        v(4 + 4 * k + i), v(VT0 if strided else VPO), s(W0, 4), s(sT0), 64 * hf))
    if o.get("early"):
        A("s_add_u32 s3, %s, %d\ns_branch k_chain" % (s(sIN), 60 * PARTB))
    else:
        for r in range(4):
            A("v_mov_b32 %s, -1" % v(r))
        for i in range(8):
            A("s_add_u32 %s, %s, %d" % (s(sT0), s(sIN), 60 * PARTB + 32768 * i))
            A("buffer_store_dwordx4 %s, %s, %s, %s offen sc1" % (v(0, 4), v(VL16), WS, s(sT0)))
        count_up(A, DBG_POISON)
        wait_dbg(A, DBG_INIT, 1, sleep=16)
    A.label("w_top_z")
    A("s_add_u32 %s, %s, 1" % (s(sNEED), s(sSEG)))
    A("buffer_load_dwordx4 %s, %s, %s, %s offen" % (v(XV, 4), v(VST), s(SXI, 4), s(sX)))
    poll(A, 4, VPO, sPOLL, sNEED, sleep=16)

    def loads(lo, hi):
        for i in range(lo, hi):
            A("s_add_u32 %s, %s, %d" % (s(sT0), s(sIN), 32768 * i))
            A("buffer_load_dwordx4 %s, %s, %s, %s offen sc1" % (v(PR + 4 * i, 4), v(VL16), WS, s(sT0)))

    def unpack(dst, src):
        A("v_lshlrev_b32 %s, 16, %s" % (v(dst), v(src)))
        A("v_and_b32 %s, %s, %s" % (v(dst + 1), s(sSC), v(src)))

    def summ(F, lo, hi):
        for i in range(lo, hi):
            A("s_waitcnt vmcnt(%d)" % (hi - 1 - i))
            for j in range(4):
                unpack(F + 2 * j if i == lo else T + 2 * j, PR + 4 * i + j)
            if i > lo:
                for j in range(4):
                    A("v_pk_add_f32 %s, %s, %s" % (v(F + 2 * j, 2), v(F + 2 * j, 2), v(T + 2 * j, 2)))

    def rnd(F):
        for j in range(4):
            A(cvt(F + 2 * j + 1, F + 2 * j, F + 2 * j + 1))
        for j in range(4):
            A("v_lshlrev_b32 %s, 16, %s" % (v(F + 2 * j), v(F + 2 * j + 1)))
            A("v_and_b32 %s, %s, %s" % (v(F + 2 * j + 1), s(sSC), v(F + 2 * j + 1)))

    loads(8, 12)
    summ(FB, 8, 12)
    rnd(FB)
    XF = PR + 32
    for j in range(4):
        unpack(XF + 2 * j, XV + j)
    A("s_lshl_b32 %s, %s, 11\ns_add_u32 %s, %s, %s" % (s(sT2), s(sSET3), s(sT2), s(sT2), s(sFLG)))
    A("s_cmp_ge_u32 %s, 60\ns_cbranch_scc1 w_last_z" % s(sSEG))
    poll(A, 8, VPO, sT2, sNEED, sleep=8)
    A.label("w_last_z")
    loads(0, 8)
    A("s_cmp_lt_u32 %s, 60\ns_cbranch_scc1 w_ok_z" % s(sSEG))
    A("s_waitcnt vmcnt(0)")
    poison_check(A, list(range(PR, PR + 32)), "w_ok_z", "w_last_z", o.get("zsleep", 1))
    rt(A, 4)
    summ(FA, 0, 8)
    rnd(FA)
    for j in range(4):
        A("v_pk_add_f32 %s, %s, %s" % (v(FA + 2 * j, 2), v(FA + 2 * j, 2), v(XF + 2 * j, 2)))
    rnd(FA)
    for j in range(4):
        A("v_pk_add_f32 %s, %s, %s" % (v(FA + 2 * j, 2), v(FA + 2 * j, 2), v(FB + 2 * j, 2)))
    for j in range(4):
        A(cvt(T + j, FA + 2 * j, FA + 2 * j + 1))
    A("buffer_store_dwordx4 %s, %s, %s, %s offen %s" % (v(T, 4), v(VST), s(SOUT, 4), s(sX), o.get("ofl", "")))
    A("s_add_u32 %s, %s, 4" % (s(sSEG), s(sSEG)))
    A("s_add_u32 %s, %s, %d\ns_add_u32 %s, %s, %d" % (s(sIN), s(sIN), 4 * PARTB, s(sX), s(sX), 4 * 32768))
    A("s_add_u32 %s, %s, 1\ns_cmp_eq_u32 %s, 3\ns_cselect_b32 %s, 0, %s" % (s(sSET3), s(sSET3), s(sSET3), s(sSET3), s(sSET3)))
    A("s_cmp_lt_u32 %s, 64\ns_cbranch_scc1 w_top_z" % s(sSEG))
    A("s_branch w_exit")


def role_init(A):
    A.label("w_init")
    A("v_lshlrev_b32 %s, 7, v0" % v(VT1))
    for r in range(4):
        A("v_mov_b32 %s, 0" % v(r + 4))
    for k in range(2):
        A("s_mov_b32 %s, %d" % (s(sT0), FLAGS + 32768 * k))
        A("buffer_store_dwordx4 %s, %s, %s, %s offen sc1" % (v(4, 4), v(VT1), WS, s(sT0)))
    A("s_waitcnt vmcnt(0)\ns_barrier")
    A("s_cmp_lg_u32 %s, 0\ns_cbranch_scc1 w_exit" % s(sWAVE))
    A("v_mov_b32 %s, 1\ns_mov_b64 exec, 1" % v(VT0))
    A("buffer_store_dword %s, off, %s, 0 offset:%d sc1" % (v(VT0), DBG, DBG_INIT))
    A("s_branch w_exit")


def dispatch(E, opts):
    E("s_branch w_start")


def emit(A0, opts):
    A = Asm()
    A._uid = 50000
    WST[0] = opts.get("wst", False)
    if opts.get("early"):
        A.label("w_back")
        A("s_waitcnt vmcnt(0) lgkmcnt(0)")
        A("v_mbcnt_lo_u32_b32 v0, -1, 0\nv_mbcnt_hi_u32_b32 v0, -1, v0")
        A("s_barrier")
    A.label("w_start")
    if WST[0]:
        for k in range(16):
            A("s_mov_b32 %s, 0" % s(70 + k))
    rt(A, 0)
    common(A)
    A("s_branch w_map")
    A.label("w_exit")
    A("s_waitcnt vmcnt(0)")
    if opts.get("hst"):
        A("s_memrealtime s[98:99]\ns_waitcnt lgkmcnt(0)")
        hst(A, [(100, 1, 2), (100, 0, 3), (98, 0, 4)], 0)
    if WST[0]:
        rt(A, 7)
        A("s_cmp_lg_u32 %s, 0\ns_cbranch_scc1 w_exit2" % s(sWAVE))
        for k in range(8):
            A("v_mov_b32 %s, %s" % (v(k), s(70 + 2 * k)))
        A("s_lshl_b32 %s, %s, 5\ns_add_u32 %s, %s, %d" % (s(sT0), s(sROLE), s(sT0), s(sT0), STAMP + 0x80000))
        A("s_mov_b64 exec, 1")
        A("buffer_store_dwordx4 v[0:3], off, %s, %s\nbuffer_store_dwordx4 v[4:7], off, %s, %s offset:16" % (WS, s(sT0), WS, s(sT0)))
        A("s_waitcnt vmcnt(0)")
        A.label("w_exit2")
    A("s_endpgm")
    A.label("w_map")
    PP, TT = sX, sSET3
    A("s_lshr_b32 %s, %s, 5\ns_sub_u32 %s, %s, 1\ns_and_b32 %s, %s, 31" % (s(PP), s(sROLE), s(PP), s(PP), s(TT), s(sROLE)))
    A("s_cmp_ge_u32 %s, 21\ns_cbranch_scc1 w_single" % s(TT))
    A("s_mul_i32 %s, %s, 6\ns_add_u32 %s, %s, %s\ns_sub_u32 %s, %s, 15" % (s(sSEG), s(PP), s(sSEG), s(sSEG), s(TT), s(sSEG), s(sSEG)))
    A("s_cmp_ge_u32 %s, 15\ns_cbranch_scc1 w_ln" % s(TT))
    A("s_mul_i32 %s, %s, 15\ns_add_u32 %s, %s, %s" % (s(sT0), s(PP), s(sT0), s(sT0), s(TT)))
    A("s_cmp_lt_u32 %s, 96\ns_cbranch_scc1 w_kv" % s(sT0))
    A("s_sub_u32 %s, %s, 54" % (s(sSEG), s(sT0)))
    A("s_cmp_lt_u32 %s, 102\ns_cbranch_scc1 w_ln" % s(sT0))
    A("s_mov_b32 %s, 31" % s(sQ))
    A("s_cmp_eq_u32 %s, 102\ns_cbranch_scc1 w_z" % s(sT0))
    A("s_cmp_eq_u32 %s, 103\ns_cbranch_scc1 w_init\ns_branch w_exit" % s(sT0))
    A.label("w_single")
    A("s_sub_u32 %s, %s, 21\ns_mul_i32 %s, %s, 7\ns_add_u32 %s, %s, %s" % (s(sQ), s(TT), s(sQ), s(sQ), s(sQ), s(sQ), s(PP)))
    A("s_cmp_lt_u32 %s, 16\ns_cbranch_scc1 w_pqk" % s(sQ))
    A("s_add_u32 %s, %s, 32" % (s(sQ), s(sQ)))
    A("s_cmp_lt_u32 %s, 62\ns_cbranch_scc1 w_pgu" % s(sQ))
    A("s_sub_u32 %s, %s, 14" % (s(sSEG), s(sQ)))
    A("s_sub_u32 %s, %s, 78\ns_cbranch_scc0 w_z" % (s(sQ), s(sQ)))
    A.label("w_ln")
    layernorm(A)
    rt(A, 3)
    A("s_mov_b32 %s, %s" % (s(sQ), s(sSEG)))
    A("s_cmp_lt_u32 %s, %d\ns_cbranch_scc1 w_xy" % (s(sQ), NXY))
    A("s_sub_u32 %s, %s, %d\ns_branch w_d" % (s(sQ), s(sQ), NXY))
    A.label("w_kv")
    A("s_mul_i32 %s, %s, 171\ns_lshr_b32 %s, %s, 9" % (s(sQ), s(sT0), s(sQ), s(sQ)))
    A("s_mul_i32 %s, %s, 3\ns_sub_u32 %s, %s, %s" % (s(sT1), s(sQ), s(sSEG), s(sT0), s(sT1)))
    A("s_add_u32 %s, %s, 16" % (s(sQ), s(sQ)))
    A("s_sub_u32 %s, %s, 1\ns_cbranch_scc0 w_ism" % (s(sSEG), s(sSEG)))
    A("s_cmp_lt_u32 %s, 32\ns_cbranch_scc1 w_pqk\ns_branch w_pv" % s(sQ))
    A.label("w_ism")
    A("s_cmp_lt_u32 %s, 32\ns_cbranch_scc1 w_mqk\ns_branch w_mv" % s(sQ))
    role_init(A)
    role_z(A, opts)
    for kind in ("gu", "qk", "v"):
        role_p(A, kind, opts)
    for kind in ("qk", "v"):
        role_m(A, kind, opts)
    role_d(A, opts)
    role_xy(A, opts)
    A0.extend(fix_hazards(A.lines))


def role_ranges():
    r = {k: [] for k in ("chain", "KV", "M0", "M1", "Q", "GU", "XY", "D", "Z")}
    for role in range(256):
        p, t = role // 32 - 1, role % 32
        if p < 0:
            k = "chain"
        elif t >= 21:
            j = (t - 21) * 7 + p
            k = "Q" if j < 16 else "GU" if j < 30 else "D" if j < 46 else "Z"
        elif t >= 15:
            k = "XY"
        else:
            j = 15 * p + t
            k = ("KV", "M0", "M1")[j % 3] if j < 96 else "XY" if j < 102 else "Z" if j == 102 else None
        if k:
            r[k].append(role)
    return list(r.items())
```

```python
from asmlib import *
from layout import *

WS, DBG = "s[4:7]", "s[28:31]"
sROLE, sWAVE, sBUD = 32, 33, 35
sSEG, sEND, sIN, sOUT, sFLG, sSC, sT0, sT1, sT2, sRS, sB0, sB1, sLW = range(36, 49)
sPOLL, sNEED, sX, sSET3, sQ, sKM2 = range(49, 55)
sMASK = 56
W0, W1 = 8, 12
SXI, SOUT = 16, 20
NP, NM, NXY, ND, NZ = 62, 64, 48, 16, 32
SEGB = 262144
PARTB = 12 * 32768
HSEG = 112 * 1024

L, N32, HI, VL16, VST, VT0, VT1, VT2, VT3, VPO = 255, 254, 253, 252, 251, 250, 249, 248, 247, 246
VA = 240


def cvt(d, x, y):
    return "v_cvt_pk_bf16_f32 %s, %s, %s" % (v(d), v(x), v(y))


WST = [False]


def rt(A, k):
    if WST[0]:
        A("s_memrealtime %s\ns_waitcnt lgkmcnt(0)" % s(70 + 2 * k, 2))


def budget(A, give_up):
    A("s_cmp_eq_u32 %s, 0\ns_cbranch_scc1 %s\ns_sub_u32 %s, %s, 1" % (s(sBUD), give_up, s(sBUD), s(sBUD)))


def wait_dbg(A, off, want, mask=None, sleep=4, each=False):
    top, done, skip = A.uid("w_wd"), A.uid("w_wdd"), A.uid("w_wds")
    if not each:
        A("s_cmp_lg_u32 %s, 0\ns_cbranch_scc1 %s" % (s(sWAVE), skip))
    A("s_mov_b64 exec, 1")
    A.label(top)
    A("buffer_load_dword %s, off, %s, 0 offset:%d sc1" % (v(VT0), DBG, off))
    A("s_waitcnt vmcnt(0)")
    A("v_readfirstlane_b32 %s, %s" % (s(sT1), v(VT0)))
    if mask:
        A("s_and_b32 %s, %s, 0x%x" % (s(sT1), s(sT1), mask))
    A("s_cmp_ge_u32 %s, %d\ns_cbranch_scc1 %s" % (s(sT1), want, done))
    budget(A, done)
    A("s_sleep %d\ns_branch %s" % (sleep, top))
    A.label(done)
    A("s_mov_b64 exec, -1")
    A.label(skip)
    if not each:
        A("s_barrier")


def poll(A, nl, vaddr, soff, need, sleep=2, vneed=False):
    top, done = A.uid("w_pl"), A.uid("w_pld")
    A("s_mov_b64 exec, 0x%x" % ((1 << nl) - 1))
    A.label(top)
    A("buffer_load_dword %s, %s, %s, %s offen sc1" % (v(VT0), v(vaddr), WS, s(soff)))
    A("s_waitcnt vmcnt(0)")
    A("v_cmp_gt_u32 vcc, %s, %s" % (v(need) if vneed else s(need), v(VT0)))
    A("s_cbranch_vccz %s" % done)
    budget(A, done)
    A("s_sleep %d\ns_branch %s" % (sleep, top))
    A.label(done)
    A("s_mov_b64 exec, -1")


def post_flag(A, val_sgpr_plus1):
    lab = A.uid("w_fl")
    A("s_waitcnt vmcnt(0)\ns_barrier")
    A("s_cmp_lg_u32 %s, 0\ns_cbranch_scc1 %s" % (s(sWAVE), lab))
    A("s_add_u32 %s, %s, 1" % (s(sT0), s(val_sgpr_plus1)))
    A("v_mov_b32 %s, %s" % (v(VT0), s(sT0)))
    A("s_mov_b64 exec, 1")
    A("buffer_store_dword %s, off, %s, %s sc1" % (v(VT0), WS, s(sFLG)))
    A("s_mov_b64 exec, -1")
    A.label(lab)


def count_up(A, off):
    lab = A.uid("w_cu")
    A("s_waitcnt vmcnt(0)\ns_barrier")
    A("s_cmp_lg_u32 %s, 0\ns_cbranch_scc1 %s" % (s(sWAVE), lab))
    A("v_mov_b32 %s, 1" % v(VT0))
    A("s_mov_b64 exec, 1")
    A("buffer_atomic_add %s, off, %s, 0 offset:%d" % (v(VT0), DBG, off))
    A("s_mov_b64 exec, -1")
    A.label(lab)


def poison_check(A, regs, ok, again, sleep):
    A("v_max3_u32 %s, %s, %s, %s" % (v(VT0), v(regs[0]), v(regs[1]), v(regs[2])))
    rest = regs[3:]
    while len(rest) > 1:
        A("v_max3_u32 %s, %s, %s, %s" % (v(VT0), v(VT0), v(rest[0]), v(rest[1])))
        rest = rest[2:]
    if rest:
        A("v_max_u32 %s, %s, %s" % (v(VT0), v(VT0), v(rest[0])))
    A("v_cmp_eq_u32 vcc, -1, %s" % v(VT0))
    A("s_cbranch_vccz " + ok)
    budget(A, ok)
    if sleep:
        A("s_sleep %d" % sleep)
    A("s_branch " + again)
    A.label(ok)


def srd(A, d, karg, size, sreg=None):
    if sreg is None:
        A("s_load_dwordx2 %s, s[0:1], %d" % (s(d, 2), karg))
    else:
        A("s_load_dwordx2 %s, s[0:1], %s" % (s(d, 2), s(sreg)))
    A("s_mov_b32 %s, 0x%x\ns_mov_b32 %s, 0x20000" % (s(d + 2), size, s(d + 3)))


def common(A):
    A("v_and_b32 %s, 63, v0" % v(L))
    A("v_and_b32 %s, 31, v0" % v(N32))
    A("v_lshrrev_b32 %s, 5, %s" % (v(HI), v(L)))
    A("v_lshlrev_b32 %s, 4, %s" % (v(VL16), v(L)))


def load_weights(A, perm, two_srd, nt=False, hook=None):
    X, Y, Z, DV = VT0, VT1, VT2, VT3
    full = not two_srd
    rowb = 128 if full else 64
    A("s_lshl_b32 %s, %s, 15" % (s(sLW), s(sWAVE)))
    A("v_lshrrev_b32 %s, %d, %s" % (v(X), 3 if full else 2, v(L)))
    A("v_mul_lo_u32 %s, %s, %s" % (v(X), v(X), s(sRS)))
    if full:
        A("v_bfe_u32 %s, %s, 4, 1" % (v(Z), v(L)))
        A("v_lshlrev_b32 %s, 2, %s" % (v(Z), v(Z)))
        A("v_xor_b32 %s, %s, %s" % (v(Y), v(Z), v(L)))
        A("v_and_b32 %s, 7, %s" % (v(Y), v(Y)))
    else:
        A("v_and_b32 %s, 3, %s" % (v(Y), v(L)))
    A("v_lshl_add_u32 %s, %s, 4, %s" % (v(DV), v(Y), v(X)))
    A("s_lshl_b32 %s, %s, %d" % (s(sT2), s(sRS), 3 if full else 4))

    def dma(u):
        for half in range(2):
            for t in range(2):
                A("s_add_u32 m0, %s, %d" % (s(sLW), (u % 8) * 4096 + ((2 * half + t) * 1024 if full else t * 2048 + half * 1024)))
                A("buffer_load_dwordx4 %s, %s, %s offen %slds" % (
                    v(DV), s(W1 if (t and two_srd) else W0, 4), s(sB0), "nt " if nt else ""))
                if full or t:
                    A("s_add_u32 %s, %s, %s" % (s(sB0), s(sB0), s(sT2)))

    for u in range(8):
        dma(u)
    A("v_and_b32 %s, 3, %s" % (v(Y), v(L)))
    A("v_bfe_u32 %s, %s, 2, 2" % (v(X), v(L)))
    A("v_lshl_add_u32 %s, %s, %d, %s" % (v(X), v(HI), 2 if perm else 3, v(X)))
    A("v_lshlrev_b32 %s, %d, %s" % (v(X), 7 if full else 6, v(X)))
    A("v_bfe_u32 %s, %s, 4, 1" % (v(Z), v(L)))
    if perm == "col":
        A("v_lshl_add_u32 %s, %s, 4, %s" % (v(X), v(Z), v(X)))
        A("v_and_b32 %s, 1, %s" % (v(Z), v(L)))
        A("v_lshl_add_u32 %s, %s, 5, %s" % (v(X), v(Z), v(X)))
        A("v_bfe_u32 %s, %s, 1, 1" % (v(Z), v(L)))
        A("v_lshl_add_u32 %s, %s, 3, %s" % (v(X), v(Z), v(X)))
    else:
        A("v_lshl_add_u32 %s, %s, 5, %s" % (v(X), v(Z), v(X)))
        A("v_lshl_add_u32 %s, %s, 3, %s" % (v(X), v(Y), v(X)))
    TR = VA
    if full:
        A("v_bfe_u32 %s, %s, 3, 1" % (v(Z), v(L)))
        A("v_lshl_add_u32 %s, %s, 6, %s" % (v(X), v(Z), v(X)))
    A("v_add_u32 %s, %s, %s" % (v(TR), s(sLW), v(X)))
    A("v_xor_b32 %s, %d, %s" % (v(TR + 1), 64 if full else 2048, v(TR)))
    bs, qs = (8, 16) if perm else (16, 4)
    for u in range(16):
        A("s_waitcnt vmcnt(%d)" % (4 * min(7, 15 - u)))
        for b in range(2):
            for t in range(2):
                for q in range(2):
                    A("ds_read_b64_tr_b16 %s, %s offset:%d" % (
                        a(((2 * u + b) * 2 + t) * 4 + 2 * q, 2), v(TR + t), (u % 8) * 4096 + (bs * b + qs * q) * rowb))
        A("s_waitcnt lgkmcnt(0)")
        if u + 8 < 16:
            dma(u + 8)
        if hook:
            hook(u)
    A("s_barrier")
    rt(A, 1)


def gemm(A, nk, acc, fr, swap, fill=(), base=0, sched=None):
    fill = list(fill)
    sched = dict(sched or {})
    q = []

    def emit(l):
        A(l)
        if l.startswith("ds_"):
            q.append(None)

    def rd(k):
        A("ds_read_b128 %s, %s offset:%d" % (v(fr + 4 * (k % 4), 4), v(VL16), base + k * 1024))
        q.append(k)

    for k in range(3):
        rd(k)
    for k in range(nk):
        n = len(q) - 1 - q.index(k)
        A("s_waitcnt lgkmcnt(%d)" % n)
        del q[:len(q) - n]
        for t in range(2):
            w_, x_ = a((2 * k + t) * 4, 4), v(fr + 4 * (k % 4), 4)
            c = "0" if k == 0 else v(acc + 16 * t, 16)
            A("v_mfma_f32_32x32x16_bf16 %s, %s, %s, %s" % (v(acc + 16 * t, 16), x_ if swap else w_, w_ if swap else x_, c))
            if t == 0 and k + 3 < nk:
                rd(k + 3)
            elif fill:
                emit(fill.pop(0))
            for l in sched.pop(2 * k + t, []):
                emit(l)
    assert not fill and not sched


def layernorm(A):
    XR, F, S0, S1 = 0, 32, 96, 98
    X, Y = VT1, VT2
    srd(A, SXI, 0, 2048 * 1024)
    A("v_lshrrev_b32 %s, 3, %s" % (v(X), v(L)))
    A("v_and_b32 %s, 7, %s" % (v(Y), v(L)))
    A("v_lshlrev_b32 %s, 10, %s" % (v(VT3), v(X)))
    A("v_lshl_add_u32 %s, %s, 4, %s" % (v(VT3), v(Y), v(VT3)))
    A("v_lshlrev_b32 %s, 4, %s" % (v(VST), v(X)))
    A("v_lshl_add_u32 %s, %s, 9, %s" % (v(VST), v(Y), v(VST)))
    A("s_lshl_b32 %s, %s, 15\ns_lshl_b32 %s, %s, 13" % (s(sT0), s(sSEG), s(sT1), s(sWAVE)))
    A("s_add_u32 %s, %s, %s" % (s(sT1), s(sT1), s(sT0)))
    A("s_waitcnt lgkmcnt(0)")
    for i in range(8):
        A("buffer_load_dwordx4 %s, %s, %s, %s offen offset:%d" % (v(XR + 4 * i, 4), v(VT3), s(SXI, 4), s(sT1), 128 * i))
    A("s_lshl_b32 %s, %s, 7\ns_add_u32 %s, %s, %s\ns_add_u32 %s, %s, %d" % (
        s(sT1), s(sWAVE), s(sT0), s(sT0), s(sT1), s(sT0), s(sT0), XN))
    A("s_mov_b32 %s, 0xffff0000" % s(sT2))

    def red8(r):
        for m in ("quad_perm:[1,0,3,2]", "quad_perm:[2,3,0,1]", "row_half_mirror"):
            A("v_add_f32_dpp %s, %s, %s %s row_mask:0xf bank_mask:0xf" % (v(r), v(r), v(r), m))

    def rnd(r):
        A(cvt(r, r, r))
        A("v_lshlrev_b32 %s, 16, %s" % (v(r), v(r)))

    for i in range(8):
        A("s_waitcnt vmcnt(%d)" % (7 - i))
        for j in range(4):
            r = 4 * i + j
            A("v_lshlrev_b32 %s, 16, %s" % (v(F + 2 * r), v(XR + r)))
            A("v_and_b32 %s, %s, %s" % (v(F + 2 * r + 1), s(sT2), v(XR + r)))
            if r == 0:
                A("v_mov_b64 %s, %s" % (v(S0, 2), v(F, 2)))
            else:
                A("v_pk_add_f32 %s, %s, %s" % (v(S0, 2), v(S0, 2), v(F + 2 * r, 2)))
    A("v_add_f32 %s, %s, %s" % (v(S0), v(S0), v(S0 + 1)))
    red8(S0)
    A("v_mul_f32 %s, 0xbb000000, %s" % (v(S0), v(S0)))
    A("v_mov_b32 %s, %s" % (v(S0 + 1), v(S0)))
    A("v_mov_b64 %s, 0" % v(S1, 2))
    for r in range(32):
        t = XR + 2 * (r % 8)
        A("v_pk_add_f32 %s, %s, %s" % (v(t, 2), v(F + 2 * r, 2), v(S0, 2)))
        A("v_pk_fma_f32 %s, %s, %s, %s" % (v(S1, 2), v(t, 2), v(t, 2), v(S1, 2)))
    A("v_add_f32 %s, %s, %s" % (v(S1), v(S1), v(S1 + 1)))
    red8(S1)
    A("v_mul_f32 %s, 0x3b000000, %s" % (v(S1), v(S1)))
    rnd(S1)
    A("v_add_f32 %s, 0x3727c5ac, %s" % (v(S1), v(S1)))
    rnd(S1)
    A("v_sqrt_f32 %s, %s" % (v(S1), v(S1)))
    rnd(S1)
    A("v_rcp_f32 %s, %s" % (v(S1), v(S1)))
    rnd(S0)
    A("v_mov_b32 %s, %s" % (v(S0 + 1), v(S0)))
    A("v_mov_b32 %s, %s" % (v(S1 + 1), v(S1)))
    for i in range(8):
        for j in range(4):
            r = 4 * i + j
            f = F + 2 * r
            A("v_pk_add_f32 %s, %s, %s" % (v(f, 2), v(f, 2), v(S0, 2)))
            A(cvt(f + 1, f, f + 1))
            A("v_lshlrev_b32 %s, 16, %s" % (v(f), v(f + 1)))
            A("v_and_b32 %s, %s, %s" % (v(f + 1), s(sT2), v(f + 1)))
            A("v_pk_mul_f32 %s, %s, %s" % (v(f, 2), v(f, 2), v(S1, 2)))
            A(cvt(XR + r, f, f + 1))
        A("buffer_store_dwordx4 %s, %s, %s, %s offen sc1" % (v(XR + 4 * i, 4), v(VST), WS, s(sT0)))
        A("s_add_u32 %s, %s, 4096" % (s(sT0), s(sT0)))
    count_up(A, DBG_LN)


XR, FR, ACC, OUT = 0, 32, 48, 80


def pack_store(A, acc, out, offs, order):
    for t in range(2):
        for p in range(2):
            o = out + 8 * t + 4 * p
            for k, q in enumerate(order[p]):
                A(cvt(o + 2 * k, acc + 16 * t + 4 * q, acc + 16 * t + 4 * q + 1))
                A(cvt(o + 2 * k + 1, acc + 16 * t + 4 * q + 2, acc + 16 * t + 4 * q + 3))
            A("buffer_store_dwordx4 %s, %s, %s, %s offen offset:%d sc1" % (v(o, 4), v(VST), WS, s(sOUT), offs[t][p]))


def in_loads(n):
    return ["buffer_load_dwordx4 %s, %s, %s, %s offen offset:%d sc1" % (
        v(XR + 4 * i, 4), v(VA + 1 + i // 4), WS, s(sIN), (i % 4) * 1024) for i in range(n)]


def in_addr(A, n):
    A("s_mul_i32 %s, %s, %d" % (s(sT0), s(sWAVE), n * 1024))
    A("v_add_u32 %s, %s, %s" % (v(VA + 1), s(sT0), v(VL16)))
    A("v_add_u32 %s, 4096, %s" % (v(VA + 2), v(VA + 1)))


def in_writes(A, n):
    for i in range(n):
        A("ds_write_b128 %s, %s offset:%d" % (v(VA + 1), v(XR + 4 * i, 4), i * 1024))
    A("s_waitcnt lgkmcnt(0)\ns_barrier")


def p_setup(A, kind, mem):
    G = sQ
    if kind == "gu":
        srd(A, W0, 64, 512 * 3584)
        srd(A, W1, 72, 512 * 3584)
        A("s_mov_b32 %s, 3584" % s(sRS))
        A("s_sub_u32 %s, %s, 48" % (s(G), s(G)))
        A("s_lshl2_add_u32 %s, %s, %s" % (s(sT0), s(G), s(sWAVE)))
        A("s_lshl_b32 %s, %s, 6\ns_mov_b32 %s, %s" % (s(sB0), s(sT0), s(sB1), s(sB0)))
        A("s_lshl_b32 %s, %s, 11\ns_add_u32 %s, %s, %d" % (s(sOUT), s(sT0), s(sOUT), s(sOUT), HB))
        A("v_mov_b32 %s, %s" % (v(VST), v(VL16)))
    else:
        A("s_lshr_b32 %s, %s, 4" % (s(sT0), s(G)))
        A("s_lshl_b32 %s, %s, 3\ns_add_u32 %s, %s, 16" % (s(sT1), s(sT0), s(sT1), s(sT1)))
        srd(A, W0, None, 512 * 8192, sreg=sT1)
        A("s_cmp_eq_u32 %s, 0" % s(sT0))
        A("s_mov_b32 %s, 0x%x" % (s(sSC), SB_BF << 16))
        A("s_cselect_b32 %s, 0x%x, %s" % (s(sSC), SA_BF << 16, s(sSC)))
        A("s_lshl_b32 %s, 0x%x, %s" % (s(sOUT), QX, s(sT0)))
        A("s_and_b32 %s, %s, 15" % (s(G), s(G)))
        A("s_lshl2_add_u32 %s, %s, %s" % (s(sT0), s(G), s(sWAVE)))
        A("s_lshl_b32 %s, %s, 7\ns_add_u32 %s, %s, 64" % (s(sB0), s(sT0), s(sB1), s(sB0)))
        A("s_lshl_b32 %s, %s, 12\ns_add_u32 %s, %s, %s" % (s(sT0), s(sT0), s(sOUT), s(sOUT), s(sT0)))
        if mem:
            A("s_add_u32 %s, %s, 64\ns_lshl_b32 %s, %s, 18\ns_add_u32 %s, %s, %s" % (
                s(sT0), s(sSEG), s(sT0), s(sT0), s(sOUT), s(sOUT), s(sT0)))
        A("s_mov_b32 %s, 8192" % s(sRS))
        A("v_and_b32 %s, 15, %s" % (v(VT0), v(L)))
        A("v_lshlrev_b32 %s, 4, %s" % (v(VST), v(VT0)))
        A("v_lshl_add_u32 %s, %s, 8, %s" % (v(VST), v(HI), v(VST)))
        A("v_bfe_u32 %s, %s, 4, 1" % (v(VT0), v(L)))
        A("v_lshl_add_u32 %s, %s, 10, %s" % (v(VST), v(VT0), v(VST)))
    A("s_waitcnt lgkmcnt(0)")


def p_epilogue(kind, acc, out):
    E = Asm()
    if kind == "gu":
        for p in range(2):
            for k, q in enumerate(((0, 2), (1, 3))[p]):
                for e in range(2):
                    g, u_ = acc + 4 * q + 2 * e, acc + 16 + 4 * q + 2 * e
                    E("v_max_f32 %s, 0, %s" % (v(g), v(g)))
                    E("v_max_f32 %s, 0, %s" % (v(g + 1), v(g + 1)))
                    for r in (g, u_):
                        E(cvt(r + 1, r, r + 1))
                        E("v_lshlrev_b32 %s, 16, %s" % (v(r), v(r + 1)))
                        E("v_and_b32 %s, 0xffff0000, %s" % (v(r + 1), v(r + 1)))
                    E("v_mul_f32 %s, %s, %s" % (v(g), v(g), v(u_)))
                    E("v_mul_f32 %s, %s, %s" % (v(g + 1), v(g + 1), v(u_ + 1)))
                    E(cvt(out + 4 * p + 2 * k + e, g, g + 1))
            E("buffer_store_dwordx4 %s, %s, %s, %s offen offset:%d sc1" % (v(out + 4 * p, 4), v(VST), WS, s(sOUT), 1024 * p))
    else:
        offs, order = ((0, 512), (2048, 2560)), ((0, 2), (1, 3))
        for t in range(2):
            for p in range(2):
                o_ = out + 8 * t + 4 * p
                for k, q in enumerate(order[p]):
                    r0 = acc + 16 * t + 4 * q
                    if kind == "qk":
                        for r in range(4):
                            E("v_mul_f32 %s, %s, %s" % (v(r0 + r), s(sSC), v(r0 + r)))
                    E(cvt(o_ + 2 * k, r0, r0 + 1))
                    E(cvt(o_ + 2 * k + 1, r0 + 2, r0 + 3))
                E("buffer_store_dwordx4 %s, %s, %s, %s offen offset:%d sc1" % (v(o_, 4), v(VST), WS, s(sOUT), offs[t][p]))
    return E.lines


def role_p(A, kind, o):
    tg = "p" + kind
    ACC2 = (48, 96)
    step = HSEG if kind == "gu" else SEGB
    nst = 2 if kind == "gu" else 4
    A.label("w_" + tg)
    A("s_lshl_b32 %s, %s, 7\ns_add_u32 %s, %s, %d" % (s(sFLG), s(sQ), s(sFLG), s(sFLG), FLAGS + F_P))
    A("s_mov_b32 %s, 0" % s(sSEG))
    if kind != "v" and o.get("lateq", 0):
        lab = A.uid("w_lq")
        if kind == "qk":
            A("s_cmp_ge_u32 %s, 16\ns_cbranch_scc1 %s" % (s(sQ), lab))
        wait_dbg(A, DBG_GATE, 32, sleep=o.get("lsleep", 32))
        A.label(lab)
    p_setup(A, kind, False)
    A("s_mov_b32 %s, %d" % (s(sIN), XN))
    A("s_mov_b32 %s, %s\ns_mov_b32 %s, %d" % (s(sX), s(sOUT), s(sOUT), DUMMY))
    C0 = 128

    def hook(u):
        if u == o.get("pu", 11):
            A("s_mov_b64 exec, 1")
            A("buffer_load_dword %s, off, %s, 0 offset:%d sc1" % (v(C0), DBG, DBG_LN))
            A("buffer_load_dword %s, off, %s, 0 offset:%d sc1" % (v(C0 + 1), DBG, DBG_INIT))
            A("s_mov_b64 exec, -1")
        if u == 15:
            in_addr(A, 8)
            A("v_readfirstlane_b32 %s, %s\nv_readfirstlane_b32 %s, %s" % (s(sT0), v(C0), s(sT1), v(C0 + 1)))
            A("s_lshl_b32 %s, %s, 6\ns_and_b32 %s, %s, %s\ns_cbranch_scc1 w_go_%s" % (s(sT1), s(sT1), s(sT0), s(sT0), s(sT1), tg))
            wait_dbg(A, DBG_LN, 64, each=True)
            wait_dbg(A, DBG_INIT, 1, each=True)
            A.label("w_go_" + tg)
            A("\n".join(in_loads(8)))

    load_weights(A, None, kind == "gu", nt=o.get("p_nt"), hook=hook)
    A("s_waitcnt vmcnt(0)")
    in_writes(A, 8)
    A("s_add_u32 %s, %s, 32768" % (s(sIN), s(sIN)))
    A("\n".join(in_loads(8)))
    rt(A, 2)
    A.label("w_top_" + tg)
    for p in range(2):
        ep = p_epilogue(kind, ACC2[1 - p], OUT)
        sched = {}
        g = 2
        while ep:
            n = 3 if g % 2 == 0 else 4
            sched[g], ep = ep[:n], ep[n:]
            g += 1
        g = max(g, 30)
        sched[g] = ["s_waitcnt vmcnt(%d)" % nst, "s_mov_b32 %s, %s" % (s(sOUT), s(sX)),
                    "s_add_u32 %s, %s, %d" % (s(sX), s(sX), step), "s_add_u32 %s, %s, 32768" % (s(sIN), s(sIN))]
        for i in range(8):
            sched[g + 1 + i] = ["ds_write_b128 %s, %s offset:%d" % (v(VA + 1), v(XR + 4 * i, 4), (1 - p) * 32768 + i * 1024)]
        for i, l in enumerate(in_loads(8)):
            sched[g + 16 + i] = [l]
        gemm(A, 32, ACC2[p], FR, kind == "v", base=p * 32768, sched=sched)
        lab = A.uid("w_fl")
        A("s_waitcnt vmcnt(8) lgkmcnt(0)\ns_barrier")
        A("s_cmp_lg_u32 %s, 0\ns_cbranch_scc1 %s" % (s(sWAVE), lab))
        A("v_mov_b32 %s, %s" % (v(VT0), s(sSEG)))
        A("s_mov_b64 exec, 1")
        A("buffer_store_dword %s, off, %s, %s sc1" % (v(VT0), WS, s(sFLG)))
        A("s_mov_b64 exec, -1")
        A.label(lab)
        A("s_add_u32 %s, %s, 1" % (s(sSEG), s(sSEG)))
    A("s_cmp_lt_u32 %s, 64\ns_cbranch_scc1 w_top_%s" % (s(sSEG), tg))
    A("s_nop 7")
    A("\n".join(p_epilogue(kind, ACC2[1], OUT)))
    A("s_mov_b32 %s, 63" % s(sSEG))
    post_flag(A, sSEG)
    A("s_branch w_exit")


def role_m(A, kind, o):
    tg = "m" + kind
    A.label("w_" + tg)
    p_setup(A, kind, True)
    A("s_lshl2_add_u32 %s, %s, %s\ns_lshl_b32 %s, %s, 10" % (s(sT0), s(sQ), s(sWAVE), s(sT0), s(sT0)))
    A("s_lshl_b32 %s, %s, 16\ns_add_u32 %s, %s, %s\ns_add_u32 %s, %s, %d" % (
        s(sOUT), s(sSEG), s(sOUT), s(sOUT), s(sT0), s(sOUT), s(sOUT), KM if kind == "qk" else VM))
    if o.get("latem", 0):
        wait_dbg(A, DBG_GATE, 32, sleep=o.get("lsleep", 32))
    load_weights(A, None, False)
    in_addr(A, 8)
    PZ = 16
    for r in range(4):
        A("v_mov_b32 %s, 0" % v(XR + r))
        A("v_mov_b32 %s, -1" % v(PZ + r))
    for i in range(8):
        A("ds_write_b128 %s, %s offset:%d" % (v(VA + 1), v(XR, 4), i * 1024))
    A("s_mov_b32 %s, %s" % (s(sX), s(sOUT)))
    pz = "buffer_store_dwordx4 %s, %s, %s, %s offen sc1\ns_add_u32 %s, %s, 131072" % (v(PZ, 4), v(VL16), WS, s(sX), s(sX), s(sX))
    for i in range(4):
        A(pz)
    A("v_lshlrev_b32 %s, 3, %s" % (v(VST), v(L)))
    sh = 5 if kind == "qk" else 4
    A("v_lshrrev_b32 %s, 4, %s" % (v(VT0), v(L)))
    A("v_lshlrev_b32 %s, 9, %s" % (v(VA + 3), v(VT0)))
    A("v_bfe_u32 %s, %s, 1, 1" % (v(VT0), v(L)))
    A("v_lshl_add_u32 %s, %s, 11, %s" % (v(VA + 3), v(VT0), v(VA + 3)))
    A("v_bfe_u32 %s, %s, 2, 2" % (v(VT0), v(L)))
    A("v_lshl_add_u32 %s, %s, %d, %s" % (v(VA + 3), v(VT0), sh + 1, v(VA + 3)))
    A("v_and_b32 %s, 1, %s" % (v(VT0), v(L)))
    A("v_lshl_add_u32 %s, %s, %d, %s" % (v(VA + 3), v(VT0), sh, v(VA + 3)))
    A("s_lshl_b32 %s, %s, 13" % (s(sT0), s(sWAVE)))
    A("v_add_u32 %s, %s, %s" % (v(VA + 3), s(sT0), v(VA + 3)))
    A("s_lshl_b32 %s, %s, 13\ns_lshl_b32 %s, %s, 11" % (s(sIN), s(sSEG), s(sT0), s(sWAVE)))
    A("s_add_u32 %s, %s, %s\ns_add_u32 %s, %s, %d" % (s(sIN), s(sIN), s(sT0), s(sIN), s(sIN), MEMC))
    count_up(A, DBG_POISON)
    wait_dbg(A, DBG_CHAIN_READY, 32, mask=0xffff)
    A("s_waitcnt lgkmcnt(0)")
    A.label("w_mem_" + tg)
    for i in range(2):
        A("buffer_load_dwordx4 %s, %s, %s, %s offen offset:%d sc1" % (v(XR + 4 * i, 4), v(VL16), WS, s(sIN), 1024 * i))
    A("s_waitcnt vmcnt(0)")
    poison_check(A, list(range(XR, XR + 8)), "w_memok_" + tg, "w_mem_" + tg, o.get("msleep", 1))
    rt(A, 4)
    for i in range(2):
        for sel in range(2):
            A("ds_write_b128 %s, %s offset:%d" % (v(VA + 3), v(XR + 4 * i, 4), 4096 * i + sel * (272 if kind == "qk" else 384)))
    A("s_add_u32 %s, %s, 16384" % (s(sIN), s(sIN)))
    A("s_waitcnt lgkmcnt(0)\ns_barrier")
    F8 = 96
    rd = lambda k: A("ds_read_b128 %s, %s offset:%d" % (v(F8 + 4 * (k % 8), 4), v(VL16), k * 1024))
    for k in range(6):
        rd(k)
    for k in range(32):
        A("s_waitcnt lgkmcnt(%d)" % min(5, 31 - k))
        for t in range(2):
            w_, x_ = a((2 * k + t) * 4, 4), v(F8 + 4 * (k % 8), 4)
            c = "0" if k == 0 else v(ACC + 4 * t, 4)
            A("v_mfma_f32_16x16x32_bf16 %s, %s, %s, %s" % ((v(ACC + 4 * t, 4),) + ((x_, w_) if kind == "v" else (w_, x_)) + (c,)))
            if t == 0 and k + 6 < 32:
                rd(k + 6)
    for t in range(2):
        r0 = ACC + 4 * t
        if kind == "qk":
            for r in range(4):
                A("v_mul_f32 %s, %s, %s" % (v(r0 + r), s(sSC), v(r0 + r)))
        A(cvt(OUT + 2 * t, r0, r0 + 1))
        A(cvt(OUT + 2 * t + 1, r0 + 2, r0 + 3))
        A("buffer_store_dwordx2 %s, %s, %s, %s offen offset:%d sc1" % (v(OUT + 2 * t, 2), v(VST), WS, s(sOUT), 512 * t))
    A(pz)
    A("s_barrier")
    A("s_add_u32 %s, %s, 2" % (s(sSEG), s(sSEG)))
    A("s_add_u32 %s, %s, %d" % (s(sOUT), s(sOUT), 131072))
    A("s_cmp_lt_u32 %s, 64\ns_cbranch_scc1 w_mem_%s" % (s(sSEG), tg))
    A("s_branch w_exit")


def part_setup(A, src_sgpr, ch_sgpr):
    A("s_lshl2_add_u32 %s, %s, %s" % (s(sT0), s(ch_sgpr), s(sWAVE)))
    A("s_lshl_b32 %s, %s, 7\ns_add_u32 %s, %s, %s\ns_add_u32 %s, %s, 64" % (
        s(sT1), s(sT0), s(sB0), s(sB0), s(sT1), s(sB1), s(sB0)))
    A("s_lshl_b32 %s, %s, 12\ns_lshl_b32 %s, %s, 15\ns_add_u32 %s, %s, %s" % (
        s(sOUT), s(sT0), s(sT1), s(src_sgpr), s(sOUT), s(sOUT), s(sT1)))
    A("s_mul_i32 %s, %s, %d\ns_add_u32 %s, %s, %s\ns_add_u32 %s, %s, %d" % (
        s(sT1), s(sSEG), PARTB, s(sOUT), s(sOUT), s(sT1), s(sOUT), s(sOUT), PART))
    A("s_mov_b32 %s, 1024" % s(sRS))
    A("v_mov_b32 %s, %s" % (v(VST), v(VL16)))


PART_OFFS, PART_ORD = ((0, 1024), (2048, 3072)), ((0, 1), (2, 3))


def role_d(A, o):
    A.label("w_d")
    J = sQ
    srd(A, W0, 80, 1792 * 1024)
    A("s_and_b32 %s, %s, 1" % (s(sSEG), s(J)))
    A("s_lshr_b32 %s, %s, 1" % (s(sT0), s(J)))
    A("s_lshl_b32 %s, %s, 3\ns_add_u32 %s, %s, %s" % (s(sFLG), s(sSEG), s(sFLG), s(sFLG), s(sT0)))
    A("s_lshl_b32 %s, %s, 7\ns_add_u32 %s, %s, %d" % (s(sFLG), s(sFLG), s(sFLG), s(sFLG), FLAGS + F_D))
    A("s_and_b32 %s, %s, 3\ns_lshr_b32 %s, %s, 3" % (s(sX), s(sT0), s(sSET3), s(J)))
    A("s_mul_i32 %s, %s, %d" % (s(sB0), s(sX), 448 * 1024))
    A("s_mul_i32 %s, %s, %d\ns_mul_i32 %s, %s, %d" % (s(sIN), s(sX), 28 * 1024, s(sT1), s(sSEG), HSEG))
    A("s_add_u32 %s, %s, %s\ns_add_u32 %s, %s, %d" % (s(sIN), s(sIN), s(sT1), s(sIN), s(sIN), HB))
    A("s_add_u32 %s, %s, 8" % (s(sX), s(sX)))
    part_setup(A, sX, sSET3)
    A("s_mov_b32 %s, %d" % (s(sPOLL), FLAGS + F_P + 48 * 128))
    A("v_lshlrev_b32 %s, 7, %s" % (v(VPO), v(L)))
    A("s_waitcnt lgkmcnt(0)")
    wait_dbg(A, DBG_INIT, 1)
    if o.get("latex", 0):
        wait_dbg(A, DBG_GATE, 32, sleep=o.get("lsleep", 32))
    load_weights(A, "col", False)
    in_addr(A, 7)
    A("s_add_u32 %s, %s, 1" % (s(sNEED), s(sSEG)))
    poll(A, 14, VPO, sPOLL, sNEED, sleep=16)
    A("\n".join(in_loads(7)))
    A("s_waitcnt vmcnt(0)")
    rt(A, 2)
    A.label("w_top_d")
    in_writes(A, 7)
    A("s_add_u32 %s, %s, %d" % (s(sIN), s(sIN), 2 * HSEG))
    A("s_add_u32 %s, %s, 3" % (s(sNEED), s(sSEG)))
    A("s_cmp_gt_u32 %s, 64\ns_cbranch_scc1 w_gemm_d" % s(sNEED))
    poll(A, 14, VPO, sPOLL, sNEED, sleep=8)
    A("\n".join(in_loads(7)))
    A.label("w_gemm_d")
    gemm(A, 28, ACC, FR, False)
    pack_store(A, ACC, OUT, PART_OFFS, PART_ORD)
    post_flag(A, sSEG)
    A("s_add_u32 %s, %s, 2" % (s(sSEG), s(sSEG)))
    A("s_add_u32 %s, %s, %d" % (s(sOUT), s(sOUT), 2 * PARTB))
    A("s_cmp_lt_u32 %s, 64\ns_cbranch_scc1 w_top_d" % s(sSEG))
    A("s_branch w_exit")


def mf16(d, a_, b_, c=None):
    return "v_mfma_f32_16x16x16_bf16 %s, %s, %s, %s" % (v(d, 4), v(a_, 2), v(b_, 2), "0" if c is None else v(c, 4))


def mf32(d, a_, b_, c=None):
    return "v_mfma_f32_16x16x32_bf16 %s, %s, %s, %s" % (v(d, 4), v(a_, 4), v(b_, 4), "0" if c is None else v(c, 4))


def role_xy(A, o):
    A.label("w_xy")
    J = sQ
    Q, K, V_, KM_, VM_ = 0, 32, 64, 96, 112
    S00, S01, S11, SM0, SM1 = 128, 132, 136, 140, 144
    O = 148
    acc, fr, out = 148, 180, 196
    M0, M1, L0, L1, TA, NEG, OW = 212, 213, 214, 215, 216, 218, 219
    P0, P1, PM0, PM1 = 220, 224, 222, 228
    srd(A, W0, 40, 4096 * 1024)
    A("s_mul_i32 %s, %s, 43\ns_lshr_b32 %s, %s, 7" % (s(sT0), s(J), s(sT0), s(sT0)))
    A("s_mul_i32 %s, %s, 3\ns_sub_u32 %s, %s, %s" % (s(sT1), s(sT0), s(sSEG), s(J), s(sT1)))
    A("s_and_b32 %s, %s, 1\ns_lshr_b32 %s, %s, 1" % (s(sSET3), s(sT0), s(sX), s(sT0)))
    A("s_lshl1_add_u32 %s, %s, %s\ns_lshl3_add_u32 %s, %s, %s" % (s(sFLG), s(sSEG), s(sSET3), s(sFLG), s(sFLG), s(sX)))
    A("s_lshl_b32 %s, %s, 7\ns_add_u32 %s, %s, %d" % (s(sFLG), s(sFLG), s(sFLG), s(sFLG), FLAGS + F_Y))
    A("s_lshl_b32 %s, %s, 19" % (s(sB0), s(sX)))
    part_setup(A, sX, sSET3)
    A("s_lshl2_add_u32 %s, %s, %s" % (s(sT0), s(sX), s(sWAVE)))
    A("s_lshl_b32 %s, %s, 13\ns_lshl_b32 %s, %s, 18\ns_add_u32 %s, %s, %s" % (
        s(sIN), s(sT0), s(sT1), s(sSEG), s(sIN), s(sIN), s(sT1)))
    A("s_add_u32 %s, %s, %d" % (s(sIN), s(sIN), QX))
    A("s_lshl_b32 %s, %s, 11\ns_lshl_b32 %s, %s, 16\ns_add_u32 %s, %s, %s\ns_add_u32 %s, %s, %d" % (
        s(sKM2), s(sT0), s(sT1), s(sSEG), s(sKM2), s(sKM2), s(sT1), s(sKM2), s(sKM2), KM))
    A("s_lshr_b32 %s, %s, 1\ns_lshl_b32 %s, %s, 7\ns_add_u32 %s, %s, %d" % (
        s(sPOLL), s(sT0), s(sPOLL), s(sPOLL), s(sPOLL), s(sPOLL), FLAGS + F_P))
    A("s_waitcnt lgkmcnt(0)")
    wait_dbg(A, DBG_INIT, 1, sleep=16)
    if o.get("latex", 0):
        wait_dbg(A, DBG_GATE, 32, sleep=o.get("lsleep", 32))
    load_weights(A, "col", False)
    A("v_lshrrev_b32 %s, 4, %s" % (v(VT1), v(L)))
    A("v_and_b32 %s, 15, %s" % (v(VT2), v(L)))
    A("v_lshlrev_b32 %s, 2, %s" % (v(VT3), v(VT1)))
    for r in range(4):
        A("v_cmp_le_u32 %s, %s, %s" % (s(sMASK + 2 * r, 2), v(VT3), v(VT2)))
        A("v_add_u32 %s, 1, %s" % (v(VT3), v(VT3)))
    A("s_mov_b32 %s, -1\ns_mov_b32 %s, 0" % (s(sMASK + 8), s(sMASK + 9)))
    A("v_mov_b32 %s, 0xff800000" % v(NEG))
    A("v_lshlrev_b32 %s, 9, %s" % (v(OW), v(VT1)))
    A("v_lshl_add_u32 %s, %s, 4, %s" % (v(OW), v(VT2), v(OW)))
    A("s_lshl_b32 %s, %s, 13" % (s(sT0), s(sWAVE)))
    A("v_add_u32 %s, %s, %s" % (v(OW), s(sT0), v(OW)))
    A("v_add_u32 %s, 4096, %s" % (v(VA + 1), v(VL16)))
    KA, VAD = 232, 233
    A("v_and_b32 %s, 7, %s" % (v(KA), v(L)))
    A("v_lshlrev_b32 %s, 4, %s" % (v(KA), v(KA)))
    A("v_lshl_add_u32 %s, %s, 7, %s" % (v(KA), v(VT1), v(KA)))
    A("v_lshlrev_b32 %s, 3, %s" % (v(VAD), v(N32)))
    A("v_lshlrev_b32 %s, 11, %s" % (v(VPO), v(L)))
    wait_dbg(A, DBG_POISON, 96, sleep=16)
    A("s_add_u32 %s, %s, 1" % (s(sNEED), s(sSEG)))
    poll(A, 3, VPO, sPOLL, sNEED, sleep=16)

    def qkv_loads():
        res = []
        for base, off in ((Q, 0), (K, KX - QX), (V_, VX - QX)):
            res.append("s_add_u32 %s, %s, %d" % (s(sT2), s(sIN), off))
            for i in range(8):
                res.append("buffer_load_dwordx4 %s, %s, %s, %s offen offset:%d sc1" % (
                    v(base + 4 * i, 4), v(VL16 if i < 4 else VA + 1), WS, s(sT2), (i % 4) * 1024))
        return res

    A("\n".join(qkv_loads()))
    A("s_waitcnt vmcnt(0)")
    A("s_mov_b32 s66, 0")
    rt(A, 2)
    A.label("w_top_xy")
    for w in range(4):
        A(mf32(S00, K + 8 * w, Q + 8 * w, S00 if w else None))
        A(mf32(S01, K + 8 * w, Q + 8 * w + 4, S01 if w else None))
        A(mf32(S11, K + 8 * w + 4, Q + 8 * w + 4, S11 if w else None))
    A("s_add_u32 %s, %s, 4\ns_min_u32 %s, %s, 64" % (s(sNEED), s(sSEG), s(sNEED), s(sNEED)))
    for r in range(4):
        for S in (S00, S11):
            A("v_cndmask_b32 %s, %s, %s, %s" % (v(S + r), v(NEG), v(S + r), s(sMASK + 2 * r, 2)))
    A("v_max3_f32 %s, %s, %s, %s" % (v(M0), v(S00), v(S00 + 1), v(S00 + 2)))
    A("v_max_f32 %s, %s, %s" % (v(M0), v(M0), v(S00 + 3)))
    A("v_max3_f32 %s, %s, %s, %s" % (v(M1), v(S01), v(S01 + 1), v(S01 + 2)))
    A("v_max3_f32 %s, %s, %s, %s" % (v(M1), v(M1), v(S01 + 3), v(S11)))
    A("v_max3_f32 %s, %s, %s, %s" % (v(M1), v(M1), v(S11 + 1), v(S11 + 2)))
    A("v_max_f32 %s, %s, %s" % (v(M1), v(M1), v(S11 + 3)))
    if o.get("xskip", 0):
        A("s_cmp_ge_u32 s66, %s\ns_cbranch_scc1 w_pok_xy" % s(sNEED))
        poll(A, 3, VPO, sPOLL, sNEED)
        A("v_readlane_b32 s66, %s, 0\nv_readlane_b32 s67, %s, 1\nv_readlane_b32 s68, %s, 2" % (v(VT0), v(VT0), v(VT0)))
        A("s_min_u32 s66, s66, s67\ns_min_u32 s66, s66, s68")
        A.label("w_pok_xy")
    else:
        poll(A, 3, VPO, sPOLL, sNEED)
    rt(A, 3)
    A("s_add_u32 %s, %s, %d" % (s(sT2), s(sKM2), VM - KM))
    A("s_cmp_lt_u32 %s, 61\ns_cselect_b32 %s, %d, 0\ns_add_u32 %s, %s, %s" % (s(sSEG), s(sT0), 3 * SEGB, s(sIN), s(sIN), s(sT0)))
    A.label("w_km_xy")
    for w in range(4):
        A("buffer_load_dwordx4 %s, %s, %s, %s offen offset:%d sc1" % (v(KM_ + 4 * w, 4), v(KA), WS, s(sKM2), w * 512))
    for f in range(8):
        A("buffer_load_dwordx2 %s, %s, %s, %s offen offset:%d sc1" % (v(VM_ + 2 * f, 2), v(VAD), WS, s(sT2), f * 256))
    A("s_waitcnt vmcnt(0)")
    poison_check(A, list(range(KM_, KM_ + 32)), "w_kmok_xy", "w_km_xy", o.get("xsleep", 1))
    rt(A, 4)
    A("s_add_u32 %s, %s, %d" % (s(sKM2), s(sKM2), 3 * 65536))
    for w in range(4):
        A(mf32(SM0, KM_ + 4 * w, Q + 8 * w, SM0 if w else None))
        A(mf32(SM1, KM_ + 4 * w, Q + 8 * w + 4, SM1 if w else None))
    if o.get("xearly"):
        ql = qkv_loads()
        A("s_cmp_ge_u32 %s, 61\ns_cbranch_scc1 w_nol_xy" % s(sSEG))
        A("\n".join(ql[9:18] + ql[:9]))
        A.label("w_nol_xy")
        A("s_nop 3")
    for S, M in ((SM0, M0), (SM1, M1)):
        for r in range(4):
            A("v_cndmask_b32 %s, %s, %s, %s" % (v(S + r), v(NEG), v(S + r), s(sMASK + 8, 2)))
        A("v_max3_f32 %s, %s, %s, %s" % (v(M), v(M), v(S), v(S + 1)))
        A("v_max3_f32 %s, %s, %s, %s" % (v(M), v(M), v(S + 2), v(S + 3)))

    def xred(op, r0, r1):
        for sw in ("v_permlane16_swap_b32", "v_permlane32_swap_b32"):
            A("v_mov_b32 %s, %s\nv_mov_b32 %s, %s" % (v(TA), v(r0), v(TA + 1), v(r1)))
            A("%s %s, %s\n%s %s, %s" % (sw, v(r0), v(TA), sw, v(r1), v(TA + 1)))
            A("s_nop 0")
            A("%s %s, %s, %s\n%s %s, %s, %s" % (op, v(r0), v(r0), v(TA), op, v(r1), v(r1), v(TA + 1)))

    xred("v_max_f32", M0, M1)
    grp = ((M0, L0, (S00, SM0)), (M1, L1, (S01, S11, SM1)))
    for M, Lr, SS in grp:
        for S in SS:
            for r in range(4):
                A("v_sub_f32 %s, %s, %s" % (v(S + r), v(S + r), v(M)))
            for r in range(4):
                A("v_exp_f32 %s, %s" % (v(S + r), v(S + r)))
    for M, Lr, SS in grp:
        regs = [S + r for S in SS for r in range(4)]
        A("v_add_f32 %s, %s, %s" % (v(Lr), v(regs[0]), v(regs[1])))
        for r in regs[2:]:
            A("v_add_f32 %s, %s, %s" % (v(Lr), v(Lr), v(r)))
    xred("v_add_f32", L0, L1)
    A("v_rcp_f32 %s, %s\nv_rcp_f32 %s, %s" % (v(L0), v(L0), v(L1), v(L1)))
    for Lr, S, P in ((L0, S00, P0), (L1, S01, P1), (L1, S11, P1 + 2), (L0, SM0, PM0), (L1, SM1, PM1)):
        for r in range(4):
            A("v_mul_f32 %s, %s, %s" % (v(S + r), v(S + r), v(Lr)))
        A(cvt(P, S, S + 1))
        A(cvt(P + 1, S + 2, S + 3))
    Or = lambda f, kt: O + 8 * f + 4 * kt
    for f in range(8):
        A(mf16(Or(f, 0), V_ + 4 * f, P0))
        A(mf32(Or(f, 1), V_ + 4 * f, P1))
    if o.get("xearly", 0) > 1:
        A("s_cmp_ge_u32 %s, 61\ns_cbranch_scc1 w_nov_xy" % s(sSEG))
        A("\n".join(qkv_loads()[18:]))
        A.label("w_nov_xy")
    for f in range(8):
        A(mf16(Or(f, 0), VM_ + 2 * f, PM0, Or(f, 0)))
        A(mf16(Or(f, 1), VM_ + 2 * f, PM1, Or(f, 1)))
    for a_ in range(4):
        for kt in range(2):
            d = KM_ + 4 * ((2 * a_ + kt) % 4)
            for e in range(2):
                A(cvt(d + 2 * e, Or(2 * a_ + e, kt), Or(2 * a_ + e, kt) + 1))
                A(cvt(d + 2 * e + 1, Or(2 * a_ + e, kt) + 2, Or(2 * a_ + e, kt) + 3))
            if 2 * a_ + kt == 4:
                pass
            A("ds_write_b128 %s, %s offset:%d" % (v(OW), v(d, 4), a_ * 2048 + kt * 256))
            if (2 * a_ + kt) % 4 == 3:
                A("s_waitcnt lgkmcnt(0)")
    A("s_barrier")
    rt(A, 5)
    gemm(A, 32, acc, fr, False, fill=qkv_loads()[(0, 18, 27)[o.get("xearly", 0)]:])
    rt(A, 6)
    pack_store(A, acc, out, PART_OFFS, PART_ORD)
    post_flag(A, sSEG)
    A("s_add_u32 %s, %s, 3" % (s(sSEG), s(sSEG)))
    A("s_add_u32 %s, %s, %d" % (s(sOUT), s(sOUT), 3 * PARTB))
    A("s_cmp_lt_u32 %s, 64\ns_cbranch_scc1 w_top_xy" % s(sSEG))
    A("s_branch w_exit")


def role_z(A, o):
    A.label("w_z")
    J = sQ
    PR, XV, FA, FB, T = 0, 48, 52, 60, 68
    A("s_mov_b32 s2, %s" % s(J))
    srd(A, SXI, 0, 2048 * 1024)
    srd(A, SOUT, 88, 2048 * 1024)
    A("s_lshr_b32 %s, %s, 3\ns_and_b32 %s, %s, 7" % (s(sSEG), s(J), s(J), s(J)))
    A("s_lshl2_add_u32 %s, %s, %s" % (s(sT0), s(J), s(sWAVE)))
    A("s_lshl_b32 %s, %s, 10\ns_mul_i32 %s, %s, %d" % (s(sIN), s(sT0), s(sT1), s(sSEG), PARTB))
    A("s_add_u32 %s, %s, %s\ns_add_u32 %s, %s, %d" % (s(sIN), s(sIN), s(sT1), s(sIN), s(sIN), PART))
    A("s_lshr_b32 %s, %s, 1\ns_lshl_b32 %s, %s, 6" % (s(sT1), s(sT0), s(sT1), s(sT1)))
    A("s_and_b32 %s, %s, 1\ns_lshl4_add_u32 %s, %s, %s" % (s(sT0), s(sT0), s(sX), s(sT0), s(sT1)))
    A("s_lshl_b32 %s, %s, 15\ns_add_u32 %s, %s, %s" % (s(sT1), s(sSEG), s(sX), s(sX), s(sT1)))
    A("s_lshr_b32 %s, %s, 2" % (s(J), s(J)))
    A("s_and_b32 %s, %s, 1\ns_lshl1_add_u32 %s, %s, %s\ns_lshl_b32 %s, %s, 9" % (
        s(sT0), s(sSEG), s(sT0), s(sT0), s(J), s(sT0), s(sT0)))
    A("s_add_u32 %s, %s, %d" % (s(sPOLL), s(sT0), FLAGS + F_D))
    A("s_lshl_b32 %s, %s, 10\ns_add_u32 %s, %s, %d" % (s(sFLG), s(J), s(sFLG), s(sFLG), FLAGS + F_Y))
    A("s_cmp_eq_u32 %s, 3\ns_cselect_b32 %s, 0, %s" % (s(sSEG), s(sSET3), s(sSEG)))
    A("v_lshlrev_b32 %s, 7, %s" % (v(VPO), v(L)))
    A("v_lshlrev_b32 %s, 10, %s" % (v(VST), v(N32)))
    A("v_lshl_add_u32 %s, %s, 5, %s" % (v(VST), v(HI), v(VST)))
    A("s_mov_b32 %s, 0xffff0000" % s(sSC))
    A("s_waitcnt lgkmcnt(0)")
    if o.get("early"):
        A("s_cmp_lg_u32 s3, 0\ns_cbranch_scc1 w_top_z")
    if o.get("zpf"):
        own = o["zpf"] == 1
        A("s_load_dwordx8 s[60:67], s[0:1], 16")
        A("s_mov_b32 %s, 0x400000\ns_mov_b32 %s, 0x20000" % (s(W0 + 2), s(W0 + 3)))
        A("v_lshrrev_b32 %s, 1, %s\nv_and_b32 %s, 1, %s" % (v(VT0), v(L), v(VT1), v(L)))
        A("v_lshlrev_b32 %s, 13, %s\nv_lshl_add_u32 %s, %s, 7, %s" % (v(VT0), v(VT0), v(VT0), v(VT1), v(VT0)))
        A("s_lshl_b32 %s, s2, 8\ns_lshl_b32 %s, %s, 20\ns_add_u32 %s, %s, %s" % (s(sB0), s(sT0), s(sWAVE), s(sB0), s(sB0), s(sT0)))
        A("s_lshl_b32 %s, s2, 17\ns_lshl_b32 %s, %s, 15\ns_add_u32 %s, %s, %s" % (s(sB1), s(sT0), s(sWAVE), s(sB1), s(sB1), s(sT0)))
        A("s_waitcnt lgkmcnt(0)")
        for k, mi in enumerate(o.get("zord", "1230")):
            mi = int(mi)
            A("s_mov_b32 %s, s%d\ns_mov_b32 %s, s%d" % (s(W0), 60 + 2 * mi, s(W0 + 1), 61 + 2 * mi))
            for i in range(4):
                strided = own and mi != 3
                A("s_add_u32 %s, %s, %d" % (s(sT0), s(sB0 if strided else sB1), i * (32 * 8192 if strided else 8192)))
                for hf in range(o.get("zhf", 1)):
                    A("buffer_load_dword %s, %s, %s, %s offen offset:%d" % (
                        v(4 + 4 * k + i), v(VT0 if strided else VPO), s(W0, 4), s(sT0), 64 * hf))
    if o.get("early"):
        A("s_add_u32 s3, %s, %d\ns_branch k_chain" % (s(sIN), 60 * PARTB))
    else:
        for r in range(4):
            A("v_mov_b32 %s, -1" % v(r))
        for i in range(8):
            A("s_add_u32 %s, %s, %d" % (s(sT0), s(sIN), 60 * PARTB + 32768 * i))
            A("buffer_store_dwordx4 %s, %s, %s, %s offen sc1" % (v(0, 4), v(VL16), WS, s(sT0)))
        count_up(A, DBG_POISON)
        wait_dbg(A, DBG_INIT, 1, sleep=16)
    A.label("w_top_z")
    A("s_add_u32 %s, %s, 1" % (s(sNEED), s(sSEG)))
    A("buffer_load_dwordx4 %s, %s, %s, %s offen" % (v(XV, 4), v(VST), s(SXI, 4), s(sX)))
    poll(A, 4, VPO, sPOLL, sNEED, sleep=16)

    def loads(lo, hi):
        for i in range(lo, hi):
            A("s_add_u32 %s, %s, %d" % (s(sT0), s(sIN), 32768 * i))
            A("buffer_load_dwordx4 %s, %s, %s, %s offen sc1" % (v(PR + 4 * i, 4), v(VL16), WS, s(sT0)))

    def unpack(dst, src):
        A("v_lshlrev_b32 %s, 16, %s" % (v(dst), v(src)))
        A("v_and_b32 %s, %s, %s" % (v(dst + 1), s(sSC), v(src)))

    def summ(F, lo, hi):
        for i in range(lo, hi):
            A("s_waitcnt vmcnt(%d)" % (hi - 1 - i))
            for j in range(4):
                unpack(F + 2 * j if i == lo else T + 2 * j, PR + 4 * i + j)
            if i > lo:
                for j in range(4):
                    A("v_pk_add_f32 %s, %s, %s" % (v(F + 2 * j, 2), v(F + 2 * j, 2), v(T + 2 * j, 2)))

    def rnd(F):
        for j in range(4):
            A(cvt(F + 2 * j + 1, F + 2 * j, F + 2 * j + 1))
        for j in range(4):
            A("v_lshlrev_b32 %s, 16, %s" % (v(F + 2 * j), v(F + 2 * j + 1)))
            A("v_and_b32 %s, %s, %s" % (v(F + 2 * j + 1), s(sSC), v(F + 2 * j + 1)))

    loads(8, 12)
    summ(FB, 8, 12)
    rnd(FB)
    XF = PR + 32
    for j in range(4):
        unpack(XF + 2 * j, XV + j)
    A("s_lshl_b32 %s, %s, 11\ns_add_u32 %s, %s, %s" % (s(sT2), s(sSET3), s(sT2), s(sT2), s(sFLG)))
    A("s_cmp_ge_u32 %s, 60\ns_cbranch_scc1 w_last_z" % s(sSEG))
    poll(A, 8, VPO, sT2, sNEED, sleep=8)
    A.label("w_last_z")
    loads(0, 8)
    A("s_cmp_lt_u32 %s, 60\ns_cbranch_scc1 w_ok_z" % s(sSEG))
    A("s_waitcnt vmcnt(0)")
    poison_check(A, list(range(PR, PR + 32)), "w_ok_z", "w_last_z", o.get("zsleep", 1))
    rt(A, 4)
    summ(FA, 0, 8)
    rnd(FA)
    for j in range(4):
        A("v_pk_add_f32 %s, %s, %s" % (v(FA + 2 * j, 2), v(FA + 2 * j, 2), v(XF + 2 * j, 2)))
    rnd(FA)
    for j in range(4):
        A("v_pk_add_f32 %s, %s, %s" % (v(FA + 2 * j, 2), v(FA + 2 * j, 2), v(FB + 2 * j, 2)))
    for j in range(4):
        A(cvt(T + j, FA + 2 * j, FA + 2 * j + 1))
    A("buffer_store_dwordx4 %s, %s, %s, %s offen %s" % (v(T, 4), v(VST), s(SOUT, 4), s(sX), o.get("ofl", "")))
    A("s_add_u32 %s, %s, 4" % (s(sSEG), s(sSEG)))
    A("s_add_u32 %s, %s, %d\ns_add_u32 %s, %s, %d" % (s(sIN), s(sIN), 4 * PARTB, s(sX), s(sX), 4 * 32768))
    A("s_add_u32 %s, %s, 1\ns_cmp_eq_u32 %s, 3\ns_cselect_b32 %s, 0, %s" % (s(sSET3), s(sSET3), s(sSET3), s(sSET3), s(sSET3)))
    A("s_cmp_lt_u32 %s, 64\ns_cbranch_scc1 w_top_z" % s(sSEG))
    A("s_branch w_exit")


def role_init(A):
    A.label("w_init")
    A("v_lshlrev_b32 %s, 7, v0" % v(VT1))
    for r in range(4):
        A("v_mov_b32 %s, 0" % v(r + 4))
    for k in range(2):
        A("s_mov_b32 %s, %d" % (s(sT0), FLAGS + 32768 * k))
        A("buffer_store_dwordx4 %s, %s, %s, %s offen sc1" % (v(4, 4), v(VT1), WS, s(sT0)))
    A("s_waitcnt vmcnt(0)\ns_barrier")
    A("s_cmp_lg_u32 %s, 0\ns_cbranch_scc1 w_exit" % s(sWAVE))
    A("v_mov_b32 %s, 1\ns_mov_b64 exec, 1" % v(VT0))
    A("buffer_store_dword %s, off, %s, 0 offset:%d sc1" % (v(VT0), DBG, DBG_INIT))
    A("s_branch w_exit")


def dispatch(E, opts):
    E("s_branch w_start")


def emit(A0, opts):
    A = Asm()
    A._uid = 50000
    WST[0] = opts.get("wst", False)
    if opts.get("early"):
        A.label("w_back")
        A("s_waitcnt vmcnt(0) lgkmcnt(0)")
        A("v_mbcnt_lo_u32_b32 v0, -1, 0\nv_mbcnt_hi_u32_b32 v0, -1, v0")
        A("s_barrier")
    A.label("w_start")
    if WST[0]:
        for k in range(16):
            A("s_mov_b32 %s, 0" % s(70 + k))
    rt(A, 0)
    common(A)
    A("s_branch w_map")
    A.label("w_exit")
    A("s_waitcnt vmcnt(0)")
    if opts.get("hst"):
        A("s_memrealtime s[98:99]\ns_waitcnt lgkmcnt(0)")
        hst(A, [(100, 1, 2), (100, 0, 3), (98, 0, 4)], 0)
    if WST[0]:
        rt(A, 7)
        A("s_cmp_lg_u32 %s, 0\ns_cbranch_scc1 w_exit2" % s(sWAVE))
        for k in range(8):
            A("v_mov_b32 %s, %s" % (v(k), s(70 + 2 * k)))
        A("s_lshl_b32 %s, %s, 5\ns_add_u32 %s, %s, %d" % (s(sT0), s(sROLE), s(sT0), s(sT0), STAMP + 0x80000))
        A("s_mov_b64 exec, 1")
        A("buffer_store_dwordx4 v[0:3], off, %s, %s\nbuffer_store_dwordx4 v[4:7], off, %s, %s offset:16" % (WS, s(sT0), WS, s(sT0)))
        A("s_waitcnt vmcnt(0)")
        A.label("w_exit2")
    A("s_endpgm")
    A.label("w_map")
    PP, TT = sX, sSET3
    A("s_lshr_b32 %s, %s, 5\ns_sub_u32 %s, %s, 1\ns_and_b32 %s, %s, 31" % (s(PP), s(sROLE), s(PP), s(PP), s(TT), s(sROLE)))
    A("s_cmp_ge_u32 %s, 21\ns_cbranch_scc1 w_single" % s(TT))
    A("s_mul_i32 %s, %s, 6\ns_add_u32 %s, %s, %s\ns_sub_u32 %s, %s, 15" % (s(sSEG), s(PP), s(sSEG), s(sSEG), s(TT), s(sSEG), s(sSEG)))
    A("s_cmp_ge_u32 %s, 15\ns_cbranch_scc1 w_ln" % s(TT))
    A("s_mul_i32 %s, %s, 15\ns_add_u32 %s, %s, %s" % (s(sT0), s(PP), s(sT0), s(sT0), s(TT)))
    A("s_cmp_lt_u32 %s, 96\ns_cbranch_scc1 w_kv" % s(sT0))
    A("s_sub_u32 %s, %s, 54" % (s(sSEG), s(sT0)))
    A("s_cmp_lt_u32 %s, 102\ns_cbranch_scc1 w_ln" % s(sT0))
    A("s_mov_b32 %s, 31" % s(sQ))
    A("s_cmp_eq_u32 %s, 102\ns_cbranch_scc1 w_z" % s(sT0))
    A("s_cmp_eq_u32 %s, 103\ns_cbranch_scc1 w_init\ns_branch w_exit" % s(sT0))
    A.label("w_single")
    A("s_sub_u32 %s, %s, 21\ns_mul_i32 %s, %s, 7\ns_add_u32 %s, %s, %s" % (s(sQ), s(TT), s(sQ), s(sQ), s(sQ), s(sQ), s(PP)))
    A("s_cmp_lt_u32 %s, 16\ns_cbranch_scc1 w_pqk" % s(sQ))
    A("s_add_u32 %s, %s, 32" % (s(sQ), s(sQ)))
    A("s_cmp_lt_u32 %s, 62\ns_cbranch_scc1 w_pgu" % s(sQ))
    A("s_sub_u32 %s, %s, 14" % (s(sSEG), s(sQ)))
    A("s_sub_u32 %s, %s, 78\ns_cbranch_scc0 w_z" % (s(sQ), s(sQ)))
    A.label("w_ln")
    layernorm(A)
    rt(A, 3)
    A("s_mov_b32 %s, %s" % (s(sQ), s(sSEG)))
    A("s_cmp_lt_u32 %s, %d\ns_cbranch_scc1 w_xy" % (s(sQ), NXY))
    A("s_sub_u32 %s, %s, %d\ns_branch w_d" % (s(sQ), s(sQ), NXY))
    A.label("w_kv")
    A("s_mul_i32 %s, %s, 171\ns_lshr_b32 %s, %s, 9" % (s(sQ), s(sT0), s(sQ), s(sQ)))
    A("s_mul_i32 %s, %s, 3\ns_sub_u32 %s, %s, %s" % (s(sT1), s(sQ), s(sSEG), s(sT0), s(sT1)))
    A("s_add_u32 %s, %s, 16" % (s(sQ), s(sQ)))
    A("s_sub_u32 %s, %s, 1\ns_cbranch_scc0 w_ism" % (s(sSEG), s(sSEG)))
    A("s_cmp_lt_u32 %s, 32\ns_cbranch_scc1 w_pqk\ns_branch w_pv" % s(sQ))
    A.label("w_ism")
    A("s_cmp_lt_u32 %s, 32\ns_cbranch_scc1 w_mqk\ns_branch w_mv" % s(sQ))
    role_init(A)
    role_z(A, opts)
    for kind in ("gu", "qk", "v"):
        role_p(A, kind, opts)
    for kind in ("qk", "v"):
        role_m(A, kind, opts)
    role_d(A, opts)
    role_xy(A, opts)
    A0.extend(fix_hazards(A.lines))


def role_ranges():
    r = {k: [] for k in ("chain", "KV", "M0", "M1", "Q", "GU", "XY", "D", "Z")}
    for role in range(256):
        p, t = role // 32 - 1, role % 32
        if p < 0:
            k = "chain"
        elif t >= 21:
            j = (t - 21) * 7 + p
            k = "Q" if j < 16 else "GU" if j < 30 else "D" if j < 46 else "Z"
        elif t >= 15:
            k = "XY"
        else:
            j = 15 * p + t
            k = ("KV", "M0", "M1")[j % 3] if j < 96 else "XY" if j < 102 else "Z" if j == 102 else None
        if k:
            r[k].append(role)
    return list(r.items())
```
